```python
import torch

def _softmax(x, axis=-1):
    return torch.softmax(x, dim=axis)
def _gelu(x):
    return torch.nn.functional.gelu(x, approximate="tanh")
def _silu(x):
    return torch.nn.functional.silu(x)
def _sigmoid(x):
    return torch.sigmoid(x)
def _layernorm(x, axis=-1, eps=1e-5):
    m = x.mean(dim=axis, keepdim=True)
    v = x.var(dim=axis, keepdim=True, unbiased=False)
    return (x - m) / torch.sqrt(v + eps)
def _scatter_add(tgt, idx, src, axis=0):
    return tgt.clone().index_add_(axis, idx, src)
def _segment_sum(src, seg, n):
    out = torch.zeros((n,) + src.shape[1:], dtype=src.dtype)
    return out.index_add_(0, seg, src)
def _pad(x, pw):
    flat = tuple(v for pair in reversed(pw) for v in pair)
    return torch.nn.functional.pad(x, flat)

kernel_name = 'sequential_preLN__ssm_conv_s4d__mixer_token_mlp__prompt'

def setup_inputs():

    _w = (lambda a: (lambda t: t.to(torch.bfloat16) if t.is_floating_point() else t)(torch.as_tensor(a)))
    def _A_setup():
        Bsz, L, D, N = 1, 2048, 640, 128
        return {
            "u": _w((lambda *s: torch.randn(*s, dtype=torch.bfloat16) * 0.05)(Bsz, L, D)),
            "log_A_real": _w((lambda *s: torch.randn(*s, dtype=torch.bfloat16) * 6.4)(D, N) * 0.5),
            "A_imag": _w((lambda *s: torch.randn(*s, dtype=torch.bfloat16) * 0.05)(D, N) * 3.14),
            "C_real": _w((lambda *s: torch.randn(*s, dtype=torch.bfloat16) * 0.05)(D, N) / N ** 0.5),
            "C_imag": _w((lambda *s: torch.randn(*s, dtype=torch.bfloat16) * 0.05)(D, N) / N ** 0.5),
            "log_dt": _w((lambda *s: torch.randn(*s, dtype=torch.bfloat16) * 0.05)(D) * 0.5 - 4.0),
            "D_skip": _w((lambda *s: torch.randn(*s, dtype=torch.bfloat16) * 0.05)(D)),
        }
    _A_in = _A_setup()

    def _B_setup():
        B, S, D, F = 1, 2048, 640, 1728
        return {
            "x": _w((lambda *s: torch.randn(*s, dtype=torch.bfloat16) * 0.05)(B, S, D)),
            "w1": _w((lambda *s: torch.randn(*s, dtype=torch.bfloat16) * 0.4)(S, F) * (S ** -0.5)),
            "b1": _w((lambda *s: torch.randn(*s, dtype=torch.bfloat16) * 12.8)(F) * 0.02),
            "w2": _w((lambda *s: torch.randn(*s, dtype=torch.bfloat16) * 0.2)(F, S) * (F ** -0.5)),
            "b2": _w((lambda *s: torch.randn(*s, dtype=torch.bfloat16) * 3.2)(S) * 0.02),
        }
    _B_in = _B_setup()

    return {
        "A_u": _A_in["u"],
        "A_log_A_real": _A_in["log_A_real"],
        "A_A_imag": _A_in["A_imag"],
        "A_C_real": _A_in["C_real"],
        "A_C_imag": _A_in["C_imag"],
        "A_log_dt": _A_in["log_dt"],
        "A_D_skip": _A_in["D_skip"],
        "B_x": _B_in["x"],
        "B_w1": _B_in["w1"],
        "B_b1": _B_in["b1"],
        "B_w2": _B_in["w2"],
        "B_b2": _B_in["b2"],
    }

def reference(A_u, A_log_A_real, A_A_imag, A_C_real, A_C_imag, A_log_dt, A_D_skip, B_x, B_w1, B_b1, B_w2, B_b2):
    def _A_ref(u, log_A_real, A_imag, C_real, C_imag, log_dt, D_skip):
        L = u.shape[1]
        dt = torch.exp(log_dt)
        A = -torch.exp(log_A_real) + 1j * A_imag
        C = (C_real + 1j * C_imag) * dt[:, None]
        pos = (lambda x, dt: x.to(dt))(torch.arange(L), log_dt.dtype)
        P = torch.exp((A * dt[:, None])[:, :, None] * pos[None, None, :])
        K = 2.0 * torch.einsum("dn,dnl->dl", C, P).real
        L2 = 2 * L
        u_t = (lambda x, *d: x.permute(*d))(u, 0, 2, 1)
        Kf = (lambda x, *a, **k: torch.fft.rfft(x.float(), *a, **k))(K, L2)
        Uf = (lambda x, *a, **k: torch.fft.rfft(x.float(), *a, **k))(u_t, L2)
        y = (lambda x, *a, **k: torch.fft.irfft(x, *a, **k).to(torch.bfloat16))(Uf * Kf[None, :, :], L2)[:, :, :L]
        y = (lambda x, *d: x.permute(*d))(y, 0, 2, 1)
        return y + u * D_skip[None, None, :]

    def _B_ref(x, w1, b1, w2, b2):
        B, S, D = x.shape
        h = _layernorm(x, axis=-1)
        u = torch.einsum("bsd,sf->bdf", h, w1) + b1
        u = _gelu(u)
        y = torch.einsum("bdf,fs->bds", u, w2) + b2
        return (lambda x, *d: x.permute(*d))(y, 0, 2, 1)

    x = A_u
    h = x + _A_ref(_layernorm(x, axis=-1), A_log_A_real, A_A_imag, A_C_real, A_C_imag, A_log_dt, A_D_skip)
    h2 = h + _B_ref(_layernorm(h, axis=-1), B_w1, B_b1, B_w2, B_b2)
    return h2
```

```python
import re

REG_RE = re.compile(r'\b([vas])(\d+)\b|\b([vas])\[(\d+):(\d+)\]|\b(vcc|exec|m0|scc)\b')

def regs_in(op):
    out = set()
    for m in REG_RE.finditer(op):
        if m.group(1):
            out.add((m.group(1), int(m.group(2))))
        elif m.group(3):
            for i in range(int(m.group(4)), int(m.group(5)) + 1):
                out.add((m.group(3), i))
        else:
            out.add((m.group(6), 0))
    return out

TRANS = ('v_exp_f32', 'v_log_f32', 'v_rcp_f32', 'v_rsq_f32', 'v_sqrt_f32', 'v_sin_f32', 'v_cos_f32', 'v_rcp_iflag_f32')

class Ins:
    __slots__ = ('text', 'op', 'wr', 'rd', 'kind', 'passes', 'srcC', 'srcAB', 'dpp', 'sdata', 'states', 'target', 'islabel')
    def __init__(self, text):
        self.text = text
        self.islabel = False
        self.target = None
        t = text.split(';')[0].strip()
        self.wr = set(); self.rd = set(); self.kind = 'other'; self.passes = 0
        self.srcC = set(); self.srcAB = set(); self.dpp = False; self.sdata = set(); self.states = 1
        if t.endswith(':'):
            self.islabel = True; self.op = t[:-1]; self.states = 0; self.kind = 'label'
            return
        if t.startswith('.') or not t:
            self.op = t; self.states = 0; self.kind = 'dir'
            return
        parts = t.split(None, 1)
        op = parts[0]; self.op = op
        rest = parts[1] if len(parts) > 1 else ''
        ops = []; cur = ''; depth = 0
        for ch in rest:
            if ch == '[': depth += 1
            if ch == ']': depth -= 1
            if ch == ',' and depth == 0:
                ops.append(cur.strip()); cur = ''
            else:
                cur += ch
        if cur.strip(): ops.append(cur.strip())
        def R(i):
            if i >= len(ops): return set()
            tok = ops[i]
            tok = re.sub(r'\b(op_sel|op_sel_hi|neg_lo|neg_hi|quad_perm):\[[^\]]*\]', '', tok)
            return regs_in(tok)
        allr = lambda a: set().union(*[R(i) for i in range(a, len(ops))]) if len(ops) > a else set()
        if op == 's_nop':
            self.states = int(ops[0], 0) + 1; self.kind = 'nop'
        elif op.startswith('v_mfma'):
            self.kind = 'mfma'
            self.passes = 8 if '32x32' in op else 4
            if op.endswith('_f32') and ('x2_f32' in op or 'x4_f32' in op): raise Exception('sgemm not modelled')
            self.wr = R(0); self.srcAB = R(1) | R(2); self.srcC = R(3); self.rd = self.srcAB | self.srcC
        elif op.startswith('v_cmp'):
            self.kind = 'valu'; self.wr = R(0); self.rd = allr(1)
        elif op.startswith('v_permlane') and 'swap' in op:
            self.kind = 'permlane'; self.wr = R(0) | R(1); self.rd = R(0) | R(1)
        elif op in ('v_readfirstlane_b32', 'v_readlane_b32'):
            self.kind = 'readlane'; self.wr = R(0); self.rd = allr(1)
        elif op.startswith('v_'):
            self.kind = 'valu'
            self.wr = R(0); self.rd = allr(1)
            if op.startswith(('v_add_co', 'v_sub_co', 'v_addc_co', 'v_subb_co', 'v_subrev_co')):
                self.wr |= R(1); self.rd = allr(2)
            if op.startswith(('v_fmac', 'v_dot2c', 'v_pk_fmac')): self.rd |= R(0)
            if op.startswith('v_cndmask') and len(ops) == 3: self.rd.add(('vcc', 0))
            if '_dpp' in op or 'quad_perm' in rest or 'row_' in rest or 'wave_' in rest:
                self.dpp = True; self.rd |= R(0)
            b = op.replace('_e32', '').replace('_e64', '')
            if b in TRANS: self.kind = 'trans'
            if op.startswith('v_dot'): self.kind = 'dot'
        elif op.startswith('ds_'):
            self.kind = 'mem'
            if op.startswith(('ds_read', 'ds_bpermute', 'ds_permute', 'ds_swizzle')):
                self.wr = R(0); self.rd = allr(1)
            else:
                self.rd = allr(0)
        elif op.startswith(('global_', 'buffer_', 'flat_')):
            self.kind = 'vmem'
            if op in ('buffer_inv', 'buffer_wbl2'):
                pass
            elif 'load_lds' in op or (' lds' in (' ' + rest) and 'load' in op):
                self.rd = allr(0) | {('m0', 0)}; self.kind = 'dma'
            elif 'load' in op:
                self.wr = R(0); self.rd = allr(1)
            else:
                self.rd = allr(0)
                if 'x4' in op or 'x3' in op:
                    self.sdata = R(1) if op.startswith('global_') else R(0)
        elif op.startswith('s_'):
            self.kind = 'salu'
            if op.startswith(('s_cbranch', 's_branch')):
                self.kind = 'branch'; self.target = ops[0]
                if 'vcc' in op: self.rd = {('vcc', 0)}
            elif op.startswith(('s_cmp', 's_waitcnt', 's_barrier', 's_sleep', 's_endpgm', 's_setprio', 's_bitcmp')):
                self.rd = allr(0)
            else:
                self.wr = R(0); self.rd = allr(1)
                if 'saveexec' in op: self.wr.add(('exec', 0))
        else:
            raise Exception('unknown instr: ' + text)

VALUK = ('valu', 'trans', 'dot', 'permlane', 'readlane')

def vec(s): return {r for r in s if r[0] in 'va'}
def sc(s): return {r for r in s if r[0] == 's' or r[0] == 'vcc'}

def need(p, c):
    n = 0
    if p.kind in VALUK:
        pw = vec(p.wr)
        if c.kind == 'mfma' and pw & c.rd: n = max(n, 2)
        if c.kind in VALUK and c.dpp and pw & c.rd: n = max(n, 2)
        if c.kind == 'permlane' and pw & c.rd: n = max(n, 2)
        if c.kind == 'readlane' and pw & c.rd: n = max(n, 1)
        if p.kind == 'trans' and c.kind != 'trans' and pw & c.rd: n = max(n, 1)
        if p.kind == 'dot' and (pw & (c.rd | c.wr)) and not (c.op == p.op): n = max(n, 3)
        if p.kind == 'dot' and c.op == p.op and pw & c.rd: n = max(n, 3) if False else n
        ps = sc(p.wr)
        if ps:
            if c.kind in VALUK and ps & c.rd: n = max(n, 4 if c.kind == 'readlane' else 2)
            if c.kind in ('vmem', 'dma') and ps & c.rd: n = max(n, 5)
            if c.kind in ('salu',) and ps & c.rd: n = max(n, 1)
    if p.kind == 'mfma':
        big = 12 if p.passes == 8 else 8
        if c.kind == 'mfma':
            if p.wr & c.srcAB: n = max(n, big)
            if p.wr & c.srcC and not (p.wr == c.srcC and p.passes == c.passes): n = max(n, 10 if p.passes == 8 else 6)
            if p.wr & c.wr and not (p.wr == c.srcC and p.passes == c.passes): n = max(n, 10 if p.passes == 8 else 6)
        elif c.kind in VALUK or c.kind in ('mem', 'vmem', 'dma'):
            if p.wr & (c.rd | c.wr): n = max(n, big)
            if c.kind in VALUK and p.srcC & c.wr: n = max(n, 7 if p.passes == 8 else 3)
    if p.sdata:
        if c.kind in VALUK and p.sdata & c.wr: n = max(n, 2)
        elif p.sdata & c.wr: n = max(n, 1)
    if p.kind == 'salu' and ('m0', 0) in p.wr and c.kind == 'dma': n = max(n, 1)
    return n

class Asm:
    def __init__(self):
        self.ins = []
    def __call__(self, text):
        for line in text.split('\n'):
            line = line.strip()
            if line: self.ins.append(Ins(line))
    def label(self, name): self(name + ':')
    def finalize(self):
        out = []
        WIN = 14
        for c in self.ins:
            if c.states:
                dist = 0; req = 0
                for p in reversed(out):
                    if dist >= WIN: break
                    if p.kind == 'branch' and p.op == 's_branch': break
                    if p.op == 's_endpgm': break
                    if p.states:
                        r = need(p, c) - dist
                        if r > req: req = r
                        dist += p.states
                while req > 0:
                    k = min(req, 16)
                    out.append(Ins('s_nop %d' % (k - 1)))
                    req -= k
            out.append(c)
        lab = {i.op: n for n, i in enumerate(out) if i.islabel}
        for n, b in enumerate(out):
            if b.kind == 'branch':
                tgt = lab[b.target]
                dist_c = 0
                for c in out[tgt:tgt + 40]:
                    if dist_c >= WIN: break
                    if c.states:
                        dist = dist_c
                        for p in reversed(out[max(0, n - 40):n + 1]):
                            if dist >= WIN: break
                            if p.states:
                                if need(p, c) - dist > 0:
                                    raise Exception('hazard across branch %s: %s -> %s' % (b.text, p.text, c.text))
                                dist += p.states
                        dist_c += c.states
                        if c.kind == 'branch' and c.op == 's_branch': break
        self.out = out
        return '\n'.join(('' if i.islabel else '    ') + i.text for i in out) + '\n'
```

```python
import sys, struct
from asmdsl import Asm

NAME = "sequential_preLN__ssm_conv_s4d__mixer_token_mlp__prompt"

def f32(x):
    return "0x%08x" % struct.unpack("<I", struct.pack("<f", x))[0]

LOG2E = 1.4426950408889634
INV2PI = 0.15915494309189535

WS_NONCE = 0
WS_STATS = 0x1000
WS_HT = 0x100000
WS_HP = 0x380000
WS_G = 0x600000
WS_DBG = 0x1000000
WS_TIME = 0x2000000

ESTR = 528
E1SZ = 21 * ESTR
ECH = E1SZ + 32 * ESTR
LDS_E = 0
CSTR = 4640
CCH = 4 * CSTR
LDS_C = 84224
USTR = 4224
LDS_U = 0
LDS_X = 12800
LDS_T = LDS_X + 3 * 4096
LDS_RED = LDS_T + 3 * 4096
LDS_RED2 = LDS_RED + 16384
LDS_LN = 160000
LDS_H = 131072 + 12288
LDS_TOTAL = 163840

S_WAVE, S_XCD, S_IDX, S_OCT = 3, 4, 5, 6
S_CF, S_SH, S_PAR, S_TAG = 7, 8, 9, 10
P_X, P_LOGA, P_AIM, P_CR, P_CI, P_LDT, P_DSK = 16, 18, 20, 22, 24, 26, 28
P_W1, P_B1, P_W2, P_B2, P_OUT, P_DBG, P_WS = 32, 34, 36, 38, 40, 42, 44
P_HT, P_HP, P_G, P_ST = 46, 48, 50, 52


def sp(n): return "s[%d:%d]" % (n, n + 1)
def vp(n): return "v[%d:%d]" % (n, n + 1)
def v4(n): return "v[%d:%d]" % (n, n + 3)
def a4(n): return "a[%d:%d]" % (n, n + 3)
def a2(n): return "a[%d:%d]" % (n, n + 1)


class Gen:
    def __init__(self, debug=0, timing=False, stop=None):
        self.a = Asm()
        self.debug = debug
        self.timing = timing
        self.stop = stop
        self.nstamp = 0
        self.uid = 0
        self.slowpaths = []

    def lab(self, base):
        self.uid += 1
        return "L_%s_%d" % (base, self.uid)

    def stamp(self):
        if not self.timing:
            return
        a = self.a
        a("s_memtime s[98:99]")
        a("s_waitcnt lgkmcnt(0)")
        a("v_writelane_b32 v255, s98, %d" % self.nstamp)
        self.nstamp += 1

    def cmul(self, d, x, y):
        a = self.a
        a("v_pk_mul_f32 %s, %s, %s op_sel:[0,0] op_sel_hi:[0,1]" % (vp(d), vp(x), vp(y)))
        a("v_pk_fma_f32 %s, %s, %s, %s op_sel:[1,1,0] op_sel_hi:[1,0,1] neg_lo:[0,1,0]" % (vp(d), vp(x), vp(y), vp(d)))

    def cmuls(self, lst):
        a = self.a
        for d, x, y in lst:
            a("v_pk_mul_f32 %s, %s, %s op_sel:[0,0] op_sel_hi:[0,1]" % (vp(d), vp(x), vp(y)))
        for d, x, y in lst:
            a("v_pk_fma_f32 %s, %s, %s, %s op_sel:[1,1,0] op_sel_hi:[1,0,1] neg_lo:[0,1,0]" % (vp(d), vp(x), vp(y), vp(d)))

    def cexps(self, items, v_ar, v_ap, tmp):
        a = self.a
        for n, (d, k) in enumerate(items):
            t = tmp + 2 * n
            a("v_mul_f32 v%d, %s, v%d" % (t, f32(float(2 ** k)), v_ar))
            a("v_mul_f32 v%d, %s, v%d" % (t + 1, f32(float(2 ** k)), v_ap))
        for n, (d, k) in enumerate(items):
            t = tmp + 2 * n
            a("v_exp_f32 v%d, v%d" % (t, t))
            a("v_fract_f32 v%d, v%d" % (t + 1, t + 1))
        for n, (d, k) in enumerate(items):
            t = tmp + 2 * n
            a("v_cos_f32 v%d, v%d" % (d, t + 1))
            a("v_sin_f32 v%d, v%d" % (d + 1, t + 1))
        for n, (d, k) in enumerate(items):
            t = tmp + 2 * n
            a("v_pk_mul_f32 %s, %s, %s op_sel:[0,0] op_sel_hi:[0,1]" % (vp(d), vp(t), vp(d)))

    def rowreduce16(self, regs, op="v_add_f32"):
        a = self.a
        for mode in ("quad_perm:[1,0,3,2]", "quad_perm:[2,3,0,1]", "row_half_mirror", "row_mirror"):
            for r in regs:
                a("%s_dpp v%d, v%d, v%d %s row_mask:0xf bank_mask:0xf" % (op, r, r, r, mode))

    def bf16_round(self, d, s):
        a = self.a
        a("v_cvt_pk_bf16_f32 v%d, v%d, v%d" % (d, s, s))
        a("v_and_b32 v%d, 0xffff0000, v%d" % (d, d))

    def phase0(self):
        a = self.a
        a("s_cmp_ge_u32 s2, 256")
        a("s_cbranch_scc1 L_end")
        a("s_load_dwordx16 s[16:31], s[0:1], 0")
        a("s_load_dwordx8 s[32:39], s[0:1], 64")
        a("s_load_dwordx4 s[40:43], s[0:1], 96")
        a("s_load_dwordx2 s[44:45], s[0:1], 112")
        a("v_lshrrev_b32 v2, 6, v0")
        a("v_and_b32 v1, 63, v0")
        a("v_readfirstlane_b32 s%d, v2" % S_WAVE)
        a("s_and_b32 s%d, s2, 7" % S_XCD)
        a("s_lshr_b32 s%d, s2, 3" % S_IDX)
        a("s_lshl_b32 s%d, s%d, 5" % (S_OCT, S_XCD))
        a("s_add_u32 s%d, s%d, s%d" % (S_OCT, S_OCT, S_IDX))
        a("s_and_b32 s%d, s%d, 1" % (S_PAR, S_IDX))
        a("s_lshr_b32 s54, s%d, 1" % S_IDX)
        a("s_mul_i32 s54, s54, 5")
        a("s_mul_i32 s55, s%d, 80" % S_XCD)
        a("s_add_u32 s54, s54, s55")
        a("s_lshl_b32 s55, s%d, 1" % S_PAR)
        a("s_add_u32 s%d, s54, s55" % S_CF)
        a("s_and_b32 s%d, s%d, 1" % (S_SH, S_CF))
        a("s_lshl_b32 s%d, s%d, 4" % (S_SH, S_SH))
        if self.timing:
            a("v_mov_b32 v255, 0")
        a("s_waitcnt lgkmcnt(0)")
        self.stamp()
        for p, off in ((P_HT, WS_HT), (P_HP, WS_HP), (P_G, WS_G), (P_ST, WS_STATS)):
            a("s_add_u32 s%d, s%d, 0x%x" % (p, P_WS, off))
            a("s_addc_u32 s%d, s%d, 0" % (p + 1, P_WS + 1))
        a("s_load_dword s%d, %s, 0" % (S_TAG, sp(P_WS)))
        a("s_and_b32 s56, s%d, 0xfffffffe" % S_CF)
        a("s_lshl_b32 s56, s56, 1")
        a("s_load_dwordx2 s[58:59], %s, s56" % sp(P_LDT))
        a("s_load_dwordx2 s[60:61], %s, s56" % sp(P_DSK))
        a("s_lshl_b32 s54, s%d, 3" % S_OCT)
        a("s_lshl_b32 s55, s%d, 1" % S_WAVE)
        a("s_add_u32 s54, s54, s55")
        a("v_lshrrev_b32 v9, 5, v1")
        a("v_add_u32 v9, s54, v9")
        a("v_mul_u32_u24 v4, 1280, v9")
        a("v_and_b32 v5, 31, v1")
        a("v_lshl_add_u32 v4, v5, 3, v4")
        for k in range(5):
            a("global_load_dwordx2 %s, v4, %s offset:%d" % (vp(10 + 2 * k), sp(P_X), 256 * k))
        a("s_mul_i32 s55, s2, 10240")
        a("v_lshlrev_b32 v6, 4, v0")
        a("v_add_u32 v6, s55, v6")
        for r in range(4):
            a("v_mov_b32 v%d, -1" % (20 + r))
        a("v_add_u32 v7, 4096, v6")
        a("v_add_u32 v8, 8192, v6")
        a("global_store_dwordx4 v6, v[20:23], %s sc1" % sp(P_HT))
        a("global_store_dwordx4 v7, v[20:23], %s sc1" % sp(P_HT))
        l = self.lab("pz")
        a("s_cmp_ge_u32 s%d, 2" % S_WAVE)
        a("s_cbranch_scc1 %s" % l)
        a("global_store_dwordx4 v8, v[20:23], %s sc1" % sp(P_HT))
        a.label(l)

    def phase1(self):
        a = self.a
        a("v_mov_b32 v24, 0")
        a("v_mov_b32 v25, 0")
        a("v_mov_b32 v26, 0x3f803f80")
        a("s_waitcnt vmcnt(26) lgkmcnt(0)")
        for k in range(10):
            a("v_dot2_f32_bf16 v24, v%d, v26, v24" % (10 + k))
            a("v_dot2_f32_bf16 v25, v%d, v%d, v25" % (10 + k, 10 + k))
        a("s_mul_i32 s%d, s%d, 1664525" % (S_TAG, S_TAG))
        a("s_add_u32 s%d, s%d, 1013904223" % (S_TAG, S_TAG))
        a("s_nop 1")
        self.rowreduce16([24, 25])
        a("v_mov_b32 v27, v24")
        a("v_mov_b32 v28, v25")
        a("v_permlane16_swap_b32 v24, v27")
        a("v_permlane16_swap_b32 v25, v28")
        a("v_add_f32 v24, v24, v27")
        a("v_add_f32 v25, v25, v28")
        a("v_mul_f32 v24, %s, v24" % f32(1.0 / 640))
        a("v_mul_f32 v25, %s, v25" % f32(1.0 / 640))
        a("v_fma_f32 v25, -v24, v24, v25")
        a("v_max_f32 v25, 0, v25")
        self.bf16_round(25, 25)
        a("v_add_f32 v25, %s, v25" % f32(1e-5))
        self.bf16_round(25, 25)
        a("v_sqrt_f32 v25, v25")
        a("v_cvt_pk_bf16_f32 v24, v24, v25")
        a("v_mov_b32 v25, s%d" % S_TAG)
        a("v_lshlrev_b32 v26, 3, v9")
        a("s_mov_b64 exec, 0x100000001" if False else "s_mov_b32 exec_lo, 1")
        a("s_mov_b32 exec_hi, 1")
        a("global_store_dwordx2 v26, v[24:25], %s sc1" % sp(P_ST))
        a("s_mov_b64 exec, -1")
        self.stamp()

    def phase2_loads(self):
        a = self.a
        a("s_lshl_b32 s54, s%d, 9" % S_WAVE)
        a("v_lshl_add_u32 v2, v1, 1, s54")
        a("v_mul_u32_u24 v2, 1280, v2")
        a("v_add_u32 v2, s56, v2")
        for k in range(4):
            if k:
                a("v_add_u32 v2, %d, v2" % (128 * 1280))
            a("global_load_dwordx2 %s, v2, %s" % (vp(200 + 4 * k), sp(P_X)))
            a("global_load_dwordx2 %s, v2, %s offset:1280" % (vp(202 + 4 * k), sp(P_X)))
        a("s_and_b32 s54, s%d, 1" % S_WAVE)
        a("s_lshl_b32 s54, s54, 7")
        a("s_lshl_b32 s55, s%d, 8" % S_CF)
        a("s_add_u32 s54, s54, s55")
        a("v_lshl_add_u32 v2, v1, 1, s54")
        a("v_lshl_add_u32 v3, v1, 2, s55")
        for pos in range(3):
            a("global_load_ushort v%d, v2, %s offset:%d" % (216 + 6 * pos + 0, sp(P_LOGA), 256 * pos))
            a("global_load_ushort v%d, v2, %s offset:%d" % (216 + 6 * pos + 1, sp(P_AIM), 256 * pos))
            a("global_load_ushort v%d, v2, %s offset:%d" % (216 + 6 * pos + 2, sp(P_CR), 256 * pos))
            a("global_load_ushort v%d, v2, %s offset:%d" % (216 + 6 * pos + 3, sp(P_CI), 256 * pos))
            a("global_load_dword v%d, v3, %s offset:%d" % (216 + 6 * pos + 4, sp(P_CR), 256 * pos))
            a("global_load_dword v%d, v3, %s offset:%d" % (216 + 6 * pos + 5, sp(P_CI), 256 * pos))

    def phase2_kgen(self):
        a = self.a
        a("s_lshr_b64 s[58:59], s[58:59], s%d" % S_SH)
        a("s_lshr_b64 s[60:61], s[60:61], s%d" % S_SH)
        a("s_lshl_b32 s62, s60, 16")
        a("s_and_b32 s63, s60, 0xffff0000")
        a("s_lshl_b32 s64, s61, 16")
        a("s_lshl_b32 s65, s58, 16")
        a("s_and_b32 s66, s58, 0xffff0000")
        a("s_lshl_b32 s67, s59, 16")
        for pos in range(3):
            a("v_mov_b32 v%d, %s" % (240 + pos, f32(LOG2E)))
            a("v_mul_f32 v%d, s%d, v%d" % (240 + pos, 65 + pos, 240 + pos))
        for pos in range(3):
            a("v_exp_f32 v%d, v%d" % (240 + pos, 240 + pos))
        for pos in range(3):
            self.bf16_round(240 + pos, 240 + pos)
        a("s_mul_i32 s55, s2, 20480")
        a("v_lshlrev_b32 v6, 4, v0")
        a("v_add_u32 v6, s55, v6")
        for r in range(4):
            a("v_mov_b32 v%d, -1" % (20 + r))
        for k in range(5):
            if k:
                a("v_add_u32 v6, 4096, v6")
            a("global_store_dwordx4 v6, v[20:23], %s sc1" % sp(P_HP))
        a("s_waitcnt vmcnt(5)")
        for pos in range(3):
            b = 216 + 6 * pos
            a("v_and_b32 v%d, 0x7fff7fff, v%d" % (b + 4, b + 4))
            a("v_and_b32 v%d, 0x7fff7fff, v%d" % (b + 5, b + 5))
            a("v_pk_max_u16 v%d, v%d, v%d" % (b + 4, b + 4, b + 5))
            a("v_lshlrev_b32 v%d, 16, v%d" % (b + 5, b + 4))
            a("v_max_u32 v%d, v%d, v%d" % (b + 4, b + 4, b + 5))
        regs = [216 + 6 * pos + 4 for pos in range(3)]
        self.rowreduce16(regs, op="v_max_u32")
        for sw in ("v_permlane16_swap_b32", "v_permlane32_swap_b32"):
            for r in regs:
                a("v_mov_b32 v%d, v%d" % (r + 1, r))
            a("s_nop 0")
            for r in regs:
                a("%s v%d, v%d" % (sw, r, r + 1))
            for r in regs:
                a("v_max_u32 v%d, v%d, v%d" % (r, r, r + 1))
        for pos in range(3):
            r = regs[pos]
            a("v_and_b32 v%d, 0x7f800000, v%d" % (r, r))
            a("v_max_u32 v%d, 0x00800000, v%d" % (r, r))
            a("v_min_u32 v%d, 0x7e800000, v%d" % (r, r))
            a("v_sub_u32 v%d, 0x7f800000, v%d" % (243 + pos, r))
            a("v_mul_f32 v%d, v%d, v%d" % (246 + pos, r, 240 + pos))
        for pos in range(3):
            b = 216 + 6 * pos
            a("v_lshlrev_b32 v%d, 16, v%d" % (b, b))
            a("v_mul_f32 v%d, %s, v%d" % (b, f32(LOG2E), b))
            a("v_lshlrev_b32 v%d, 16, v%d" % (b + 1, b + 1))
            a("v_lshlrev_b32 v%d, 16, v%d" % (b + 2, b + 2))
            a("v_lshlrev_b32 v%d, 16, v%d" % (b + 3, b + 3))
        for pos in range(3):
            b = 216 + 6 * pos
            a("v_exp_f32 v%d, v%d" % (b, b))
            a("v_mul_f32 v%d, v%d, v%d" % (b + 1, b + 1, 240 + pos))
            a("v_mul_f32 v%d, v%d, v%d" % (b + 2, b + 2, 243 + pos))
            a("v_mul_f32 v%d, v%d, v%d" % (b + 3, b + 3, 243 + pos))
        for pos in range(3):
            b = 216 + 6 * pos
            self.bf16_round(b, b)
            a("v_mul_f32 v%d, v%d, v%d" % (b, b, 240 + pos))
            a("v_mul_f32 v%d, %s, v%d" % (b, f32(-LOG2E), b))
            a("v_mul_f32 v%d, %s, v%d" % (b + 1, f32(INV2PI), b + 1))
        a("s_and_b32 s54, s%d, 1" % S_WAVE)
        a("s_lshl_b32 s54, s54, 8")
        a("v_lshl_add_u32 v2, v1, 2, s54")
        lE1 = self.lab("e1")
        lEd = self.lab("edone")
        a("s_mov_b32 s68, 0")
        a("s_cmp_ge_u32 s%d, 2" % S_WAVE)
        a("s_cbranch_scc1 %s" % lE1)
        lp = self.lab("e2loop")
        a.label(lp)
        AR, AP = 216, 217
        E = lambda j: 10 + 2 * j
        G = {3: E(1), 4: E(2), 5: E(4), 6: E(8), 7: E(16)}
        self.cexps([(G[k], k) for k in (3, 4, 5, 6, 7)], AR, AP, 100)
        def st2(j, pr, tmp):
            a("v_cvt_pk_f16_f32 v%d, v%d, v%d" % (tmp, pr, pr + 1))
            a("ds_write_b32 v2, v%d offset:%d" % (tmp, LDS_E + E1SZ + j * ESTR))
        a("v_mov_b32 v120, 0x00003c00")
        a("ds_write_b32 v2, v120 offset:%d" % (LDS_E + E1SZ))
        self.cmuls([(E(3), E(1), E(2))])
        self.cmuls([(E(4 + j), E(j), E(4)) for j in (1, 2, 3)])
        self.cmuls([(E(8 + j), E(j), E(8)) for j in range(1, 8)])
        for j in range(1, 17):
            st2(j, E(j), 120 + (j % 8))
        T = lambda j: 50 + 2 * j
        self.cmuls([(T(j), E(j), E(16)) for j in range(1, 16)])
        for j in range(1, 16):
            st2(16 + j, T(j), 120 + (j % 8))
        a("v_mov_b32 v216, v222")
        a("v_mov_b32 v217, v223")
        a("v_mov_b32 v222, v228")
        a("v_mov_b32 v223, v229")
        a("v_add_u32 v2, %d, v2" % ECH)
        a("s_add_u32 s68, s68, 1")
        a("s_cmp_lt_u32 s68, 3")
        a("s_cbranch_scc1 %s" % lp)
        a("s_branch %s" % lEd)
        a.label(lE1)
        lp = self.lab("e1loop")
        a.label(lp)
        Gk = {k: 60 + 2 * n for n, k in enumerate((0, 1, 2, 8, 9, 10, 11))}
        self.cexps([(Gk[k], k) for k in (0, 1, 2, 8, 9, 10, 11)], AR, AP, 100)
        R = lambda r: (218 if r == 0 else 10 + 2 * r)
        def st1(r, tmp):
            a("v_cvt_pk_f16_f32 v%d, v%d, -v%d" % (tmp, R(r), R(r) + 1))
            a("ds_write_b32 v2, v%d offset:%d" % (tmp, LDS_E + r * ESTR))
        self.cmuls([(R(1), R(0), Gk[0]), (R(2), R(0), Gk[1]), (R(4), R(0), Gk[2]), (R(8), R(0), Gk[8]),
                    (R(12), R(0), Gk[9]), (R(16), R(0), Gk[10]), (R(20), R(0), Gk[11])])
        self.cmuls([(R(3), R(1), Gk[1]), (R(5), R(1), Gk[2]), (R(6), R(2), Gk[2]), (R(9), R(2), Gk[8]),
                    (R(10), R(4), Gk[8]), (R(13), R(4), Gk[9]), (R(14), R(8), Gk[9]), (R(17), R(8), Gk[10]),
                    (R(18), R(12), Gk[10])])
        self.cmuls([(R(7), R(3), Gk[2]), (R(11), R(6), Gk[8]), (R(15), R(10), Gk[9]), (R(19), R(14), Gk[10])])
        for r in range(21):
            st1(r, 120 + (r % 8))
        for k in range(4):
            a("v_mov_b32 v%d, v%d" % (216 + k, 222 + k))
            a("v_mov_b32 v%d, v%d" % (222 + k, 228 + k))
        a("v_add_u32 v2, %d, v2" % ECH)
        a("s_add_u32 s68, s68, 1")
        a("s_cmp_lt_u32 s68, 3")
        a("s_cbranch_scc1 %s" % lp)
        a.label(lEd)
        a("s_waitcnt lgkmcnt(0)")
        a("s_barrier")
        self.stamp()
        lW3 = self.lab("w3")
        lKd = self.lab("kdone")
        a("s_cmp_eq_u32 s%d, 3" % S_WAVE)
        a("s_cbranch_scc1 %s" % lW3)
        a("s_mul_i32 s54, s%d, %d" % (S_WAVE, ECH))
        a("v_and_b32 v2, 31, v1")
        a("v_lshrrev_b32 v3, 5, v1")
        a("v_mul_u32_u24 v4, %d, v2" % ESTR)
        a("v_lshl_add_u32 v4, v3, 4, v4")
        a("v_add_u32 v4, s54, v4")
        for half in range(2):
            for k in range(8):
                ks = half * 8 + k
                a("ds_read_b128 %s, v4 offset:%d" % (v4(32 + 8 * k), LDS_E + ks * 32))
                a("ds_read_b128 %s, v4 offset:%d" % (v4(36 + 8 * k), LDS_E + E1SZ + ks * 32))
                if k == 6:
                    a("s_waitcnt lgkmcnt(6)")
            for k in range(8):
                ks = half * 8 + k
                a("s_waitcnt lgkmcnt(%d)" % max(0, 14 - 2 * k) if k >= 4 else "s_nop 0")
                a("v_mfma_f32_32x32x16_f16 v[8:23], %s, %s, %s" % (v4(32 + 8 * k), v4(36 + 8 * k), "0" if ks == 0 else "v[8:23]"))
        a("s_mul_i32 s55, s%d, %d" % (S_WAVE, CCH))
        a("s_add_u32 s55, s55, %d" % (LDS_C + 3 * CSTR))
        a("v_lshlrev_b32 v5, 4, v2")
        a("v_sub_u32 v5, s55, v5")
        for i in range(4):
            a("v_cvt_pk_f16_f32 v%d, v%d, v%d" % (24 + 2 * i, 16 + i, 16 + i))
            a("v_mov_b32 v%d, v%d" % (25 + 2 * i, 24 + 2 * i))
        a("s_mov_b32 exec_lo, -1")
        a("s_mov_b32 exec_hi, 0")
        for i in range(4):
            P = 1020 - 256 * i
            a("ds_write_b64 v5, %s offset:%d" % (vp(24 + 2 * i), 2 * P))
            a("ds_write_b64 v5, %s offset:%d" % (vp(24 + 2 * i), 2 * P + 8))
        a("s_mov_b32 exec_lo, 0")
        a("s_mov_b32 exec_hi, 1")
        a("ds_write_b64 v5, %s" % vp(24))
        a("s_mov_b32 exec_lo, 0x55555555")
        a("s_mov_b32 exec_hi, 0")
        for i in range(4):
            P = 1019 - 256 * i
            a("ds_write_b16 v5, v%d offset:%d" % (24 + 2 * i, 2 * P))
        a("s_mov_b64 exec, -1")
        a("v_cvt_pk_f16_f32 v32, v13, v13")
        a("v_cvt_pk_f16_f32 v34, v13, v12")
        a("v_cvt_pk_f16_f32 v35, v12, v12")
        a("v_cvt_pk_f16_f32 v36, v15, v15")
        a("v_cvt_pk_f16_f32 v38, v15, v14")
        a("v_cvt_pk_f16_f32 v39, v14, v14")
        a("v_cvt_pk_f16_f32 v40, v14, v13")
        a("v_mov_b32 v41, v35")
        a("v_cvt_pk_f16_f32 v42, v11, v10")
        a("v_cvt_pk_f16_f32 v43, v9, v8")
        a("s_mov_b32 exec_lo, 0")
        a("s_mov_b32 exec_hi, -1")
        for i, (bb, ba, aa) in enumerate(((32, 34, 35), (36, 38, 39))):
            P = 2042 - 512 - 256 * i
            a("ds_write_b32 v5, v%d offset:%d" % (bb, 2 * P))
            a("ds_write_b64 v5, %s offset:%d" % (vp(ba), 2 * P + 4))
            a("ds_write_b32 v5, v%d offset:%d" % (aa, 2 * P + 12))
        a("s_mov_b32 exec_lo, -1")
        a("s_mov_b32 exec_hi, 0")
        P = 2041 - 256
        a("ds_write_b16 v5, v36 offset:%d" % (2 * P))
        a("ds_write_b32 v5, v39 offset:%d" % (2 * P + 2))
        a("ds_write_b64 v5, %s offset:%d" % (vp(40), 2 * P + 6))
        a("ds_write_b16 v5, v35 offset:%d" % (2 * P + 14))
        a("s_mov_b64 exec, -1")
        a("v_lshlrev_b32 v6, 3, v3")
        a("v_sub_u32 v6, v5, v6")
        a("ds_write_b64 v6, %s offset:%d" % (vp(42), 2 * 2044))
        a("s_branch %s" % lKd)
        a.label(lW3)
        for r in range(4):
            a("v_mov_b32 v%d, 0" % (8 + r))
        a("v_lshlrev_b32 v4, 4, v1")
        a("v_cmp_gt_u32 vcc, 34, v1")
        a("s_and_saveexec_b64 s[54:55], vcc")
        for pos in range(3):
            a("ds_write_b128 v4, v[8:11] offset:%d" % 0 if False else
              "v_add_u32 v5, %d, v4" % (LDS_C + pos * CCH + 3 * CSTR + 4096))
            a("ds_write_b128 v5, v[8:11]")
        a("s_mov_b64 exec, -1")
        a.label(lKd)
        a("s_waitcnt lgkmcnt(0)")
        a("s_barrier")
        self.stamp()
        for rnd in range(4):
            lsk = None
            if rnd == 3:
                lsk = self.lab("cpskip")
                a("s_cmp_ge_u32 s%d, 2" % S_WAVE)
                a("s_cbranch_scc1 %s" % lsk)
            b = 8 + 24 * (rnd & 1)
            a("v_add_u32 v2, %d, v0" % (256 * rnd))
            if rnd == 3:
                a("v_min_u32 v2, 839, v2")
            a("v_cmp_le_u32 vcc, 280, v2")
            a("v_cndmask_b32 v3, 0, 1, vcc")
            a("v_cmp_le_u32 vcc, 560, v2")
            a("v_cndmask_b32 v4, 0, 1, vcc")
            a("v_add_u32 v3, v3, v4")
            a("v_mul_u32_u24 v3, %d, v3" % (CCH - 280 * 16))
            a("v_lshl_add_u32 v3, v2, 4, v3")
            a("v_add_u32 v3, %d, v3" % LDS_C)
            a("ds_read_b128 %s, v3 offset:%d" % (v4(b), 3 * CSTR))
            a("ds_read_b64 %s, v3 offset:%d" % (vp(b + 4), 3 * CSTR + 16))
            a("s_waitcnt lgkmcnt(0)")
            for k in range(4):
                a("v_alignbit_b32 v%d, v%d, v%d, 16" % (b + 8 + k, b + k + 1, b + k))
                a("v_mov_b32 v%d, v%d" % (b + 12 + k, b + k + 1))
                a("v_alignbit_b32 v%d, v%d, v%d, 16" % (b + 16 + k, b + k + 2, b + k + 1))
            a("ds_write_b128 v3, %s offset:%d" % (v4(b + 8), 2 * CSTR))
            a("ds_write_b128 v3, %s offset:%d" % (v4(b + 12), 1 * CSTR))
            a("ds_write_b128 v3, %s offset:%d" % (v4(b + 16), 0))
            if lsk:
                a.label(lsk)
        for k in range(4):
            for b in range(2):
                w = 200 + 4 * k + 2 * b
                a("v_alignbit_b32 v%d, v%d, v%d, s%d" % (w, w + 1, w, S_SH))
                a("v_lshrrev_b32 v%d, s%d, v%d" % (w + 1, S_SH, w + 1))
        a("s_lshl_b32 s54, s%d, 10" % S_WAVE)
        a("v_lshl_add_u32 v2, v1, 2, s54")
        a("v_mov_b32 v3, 0x05040100")
        a("v_mov_b32 v4, 0x07060302")
        for k in range(4):
            w0 = 200 + 4 * k
            w1 = w0 + 2
            a("v_perm_b32 v%d, v%d, v%d, v3" % (60 + 3 * k + 0, w1, w0))
            a("v_perm_b32 v%d, v%d, v%d, v4" % (60 + 3 * k + 1, w1, w0))
            a("v_perm_b32 v%d, v%d, v%d, v3" % (60 + 3 * k + 2, w1 + 1, w0 + 1))
            for pos in range(3):
                a("ds_write_b32 v2, v%d offset:%d" % (60 + 3 * k + pos, LDS_X + pos * 4096 + 256 * k))
        lz = self.lab("uz")
        a("s_cmp_eq_u32 s%d, 3" % S_WAVE)
        a("s_cbranch_scc1 %s" % lz)
        a("s_mul_i32 s54, s%d, %d" % (S_WAVE, USTR))
        a("v_and_b32 v5, 31, v1")
        a("v_lshl_add_u32 v5, v5, 2, s54")
        a("v_mov_b32 v6, 0")
        a("ds_write_b32 v5, v6 offset:%d" % LDS_U)
        a.label(lz)
        self.stamp()

    def phase3_u(self):
        a = self.a
        a("s_lshl_b32 s54, s%d, 12" % S_WAVE)
        a("v_lshl_add_u32 v5, v1, 4, s54")
        a("s_mov_b32 s69, 0")
        lp = self.lab("stpoll")
        lok = self.lab("stok")
        a.label(lp)
        for k in range(4):
            a("global_load_dwordx4 %s, v5, %s offset:%d sc1" % (v4(80 + 4 * k), sp(P_ST), 1024 * k))
        a("s_waitcnt vmcnt(0)")
        a("v_xor_b32 v6, s%d, v81" % S_TAG)
        for r in (83, 85, 87, 89, 91, 93, 95):
            a("v_xor_b32 v7, s%d, v%d" % (S_TAG, r))
            a("v_or_b32 v6, v6, v7")
        a("v_cmp_ne_u32 vcc, 0, v6")
        a("s_cbranch_vccz %s" % lok)
        a("s_add_u32 s69, s69, 1")
        a("s_cmp_gt_u32 s69, 100000")
        a("s_cbranch_scc1 %s" % lok)
        a("s_sleep 4")
        a("s_branch %s" % lp)
        a.label(lok)
        self.stamp()
        for k in range(4):
            s = 80 + 4 * k
            d = 100 + 4 * k
            a("v_lshlrev_b32 v%d, 16, v%d" % (d, s))
            a("v_lshlrev_b32 v%d, 16, v%d" % (d + 1, s + 2))
            a("v_and_b32 v%d, 0xffff0000, v%d" % (d + 2, s))
            a("v_and_b32 v%d, 0xffff0000, v%d" % (d + 3, s + 2))
        for k in range(4):
            d = 100 + 4 * k
            a("v_rcp_f32 v%d, v%d" % (d + 2, d + 2))
            a("v_rcp_f32 v%d, v%d" % (d + 3, d + 3))
        items = [(k, pos) for k in range(4) for pos in range(3)]
        W = lambda n: 120 + 2 * n
        for n, (k, pos) in enumerate(items):
            x = 60 + 3 * k + pos
            a("v_lshlrev_b32 v%d, 16, v%d" % (W(n), x))
            a("v_and_b32 v%d, 0xffff0000, v%d" % (W(n) + 1, x))
        for n, (k, pos) in enumerate(items):
            a("v_pk_add_f32 %s, %s, %s neg_lo:[0,1] neg_hi:[0,1]" % (vp(W(n)), vp(W(n)), vp(100 + 4 * k)))
        for n in range(12):
            a("v_cvt_pk_bf16_f32 v%d, v%d, v%d" % (W(n) + 1, W(n), W(n) + 1))
        for n in range(12):
            a("v_lshlrev_b32 v%d, 16, v%d" % (W(n), W(n) + 1))
            a("v_and_b32 v%d, 0xffff0000, v%d" % (W(n) + 1, W(n) + 1))
        for n, (k, pos) in enumerate(items):
            a("v_pk_mul_f32 %s, %s, %s" % (vp(W(n)), vp(W(n)), vp(102 + 4 * k)))
        for n in range(12):
            a("v_cvt_pk_bf16_f32 v%d, v%d, v%d" % (W(n) + 1, W(n), W(n) + 1))
        for n in range(12):
            a("v_lshlrev_b32 v%d, 16, v%d" % (W(n), W(n) + 1))
            a("v_and_b32 v%d, 0xffff0000, v%d" % (W(n) + 1, W(n) + 1))
        for n, (k, pos) in enumerate(items):
            a("v_cvt_pk_f16_f32 v%d, v%d, v%d" % (150 + n, W(n), W(n) + 1))
            a("ds_write_b32 v2, v%d offset:%d" % (150 + n, LDS_U + pos * USTR + 128 + 256 * k))
        for n, (k, pos) in enumerate(items):
            a("v_mul_f32 v%d, s%d, v%d" % (W(n), 62 + pos, W(n)))
            a("v_mul_f32 v%d, s%d, v%d" % (W(n) + 1, 62 + pos, W(n) + 1))
        for n, (k, pos) in enumerate(items):
            a("v_cvt_pk_bf16_f32 v%d, v%d, v%d" % (162 + n, W(n), W(n) + 1))
            a("ds_write_b32 v2, v%d offset:%d" % (162 + n, LDS_T + pos * 4096 + 256 * k))
        a("s_waitcnt lgkmcnt(0)")
        a("s_barrier")
        self.stamp()

    def conv_iters(self, chunks, nit, acc, vA, vB, first_zero=True):
        a = self.a
        qmax = max(chunks)
        na = qmax + 1
        sets = [(64, 96), (128, 160)]
        def loads(ci):
            Ab, Bb = sets[ci & 1]
            ex = 64 * (nit - 1 - ci)
            L = []
            for n in range(na):
                L.append("ds_read_b128 %s, v%d offset:%d" % (v4(Ab + 4 * n), vA, 512 * (7 - n) + ex))
                L.append("ds_read_b64 %s, v%d offset:%d" % (vp(Bb + 4 * n), vB, 512 * n + ex))
                L.append("ds_read_b64 %s, v%d offset:%d" % (vp(Bb + 4 * n + 2), vB, 512 * n + ex + 8))
            return L
        for l in loads(0):
            a(l)
        started = set()
        for ci in range(nit):
            Ab, Bb = sets[ci & 1]
            a("s_waitcnt lgkmcnt(0)")
            nxt = loads(ci + 1) if ci + 1 < nit else []
            mf = []
            for aa in range(na):
                for q in sorted(chunks, reverse=True):
                    if q >= aa:
                        mf.append((q, aa))
            per = (len(nxt) + len(mf) - 5) // max(1, len(mf) - 4) if nxt else 0
            for n, (q, aa) in enumerate(mf):
                c = v4(acc[q])
                src = c
                if first_zero and q not in started:
                    src = "0"
                    started.add(q)
                a("v_mfma_f32_16x16x32_f16 %s, %s, %s, %s" % (c, v4(Ab + 4 * aa), v4(Bb + 4 * (q - aa)), src))
                for _ in range(per):
                    if nxt:
                        a(nxt.pop(0))
            assert not nxt

    def phase3_conv(self):
        a = self.a
        a("v_and_b32 v2, 15, v1")
        a("v_lshrrev_b32 v3, 4, v1")
        a("v_and_b32 v4, 3, v1")
        a("v_bfe_u32 v5, v1, 2, 2")
        a("v_mul_u32_u24 v6, %d, v4" % CSTR)
        a("v_lshl_add_u32 v6, v3, 4, v6")
        a("v_lshlrev_b32 v7, 7, v5")
        a("v_sub_u32 v6, v6, v7")
        a("v_add_u32 v6, %d, v6" % (LDS_C + 832))
        a("v_lshlrev_b32 v7, 3, v2")
        a("v_lshl_add_u32 v7, v3, 4, v7")
        a("v_add_u32 v7, %d, v7" % (LDS_U + 456))
        a("s_lshr_b32 s70, s%d, 1" % S_WAVE)
        a("s_add_u32 s70, s70, s%d" % S_PAR)
        a("s_and_b32 s71, s%d, 1" % S_WAVE)
        a("s_lshl_b32 s54, s71, 8")
        a("s_add_u32 s54, s54, 192")
        a("s_mul_i32 s55, s70, %d" % CCH)
        a("s_sub_u32 s55, s55, s54")
        a("v_add_u32 v8, s55, v6")
        a("s_mul_i32 s55, s70, %d" % USTR)
        a("s_sub_u32 s55, s55, s54")
        a("v_add_u32 v9, s55, v7")
        acc = {q: 16 + 4 * q for q in range(8)}
        self.conv_iters(list(range(8)), 4, acc, 8, 9)
        a("s_lshl_b32 s72, s%d, 1" % S_PAR)
        a("s_sub_u32 s72, 2, s72")
        a("s_lshl_b32 s54, s%d, 7" % S_WAVE)
        a("s_add_u32 s54, s54, 64")
        a("s_mul_i32 s55, s72, %d" % CCH)
        a("s_sub_u32 s55, s55, s54")
        a("v_add_u32 v8, s55, v6")
        a("s_mul_i32 s55, s72, %d" % USTR)
        a("s_sub_u32 s55, s55, s54")
        a("v_add_u32 v9, s55, v7")
        QA, QB = [7, 4, 3, 0], [6, 5, 2, 1]
        lB = self.lab("cvB")
        lD = self.lab("cvD")
        a("s_cmp_eq_u32 s%d, 1" % S_PAR)
        a("s_cbranch_scc1 %s" % lB)
        self.conv_iters(QA, 2, {q: 48 + 4 * n for n, q in enumerate(QA)}, 8, 9)
        a("s_branch %s" % lD)
        a.label(lB)
        self.conv_iters(QB, 2, {q: 48 + 4 * n for n, q in enumerate(QB)}, 8, 9)
        a.label(lD)
        a("s_nop 7")
        self.stamp()
        a("s_lshl_b32 s54, s%d, 12" % S_WAVE)
        a("v_lshl_add_u32 v10, v1, 4, s54")
        lp1 = self.lab("xp1")
        lxd = self.lab("xd")
        a("s_cmp_eq_u32 s71, 1")
        a("s_cbranch_scc1 %s" % lp1)
        for n in range(4):
            a("ds_write_b128 v10, %s offset:%d" % (v4(32 + 4 * n), LDS_RED + 1024 * n))
        a("s_branch %s" % lxd)
        a.label(lp1)
        for n in range(4):
            a("ds_write_b128 v10, %s offset:%d" % (v4(16 + 4 * n), LDS_RED + 1024 * n))
        a("s_nop 1")
        for n in range(16):
            a("v_mov_b32 v%d, v%d" % (16 + n, 32 + n))
        a.label(lxd)
        for n in range(4):
            a("ds_write_b128 v10, %s offset:%d" % (v4(48 + 4 * n), LDS_RED2 + 1024 * n))
        a("s_waitcnt lgkmcnt(0)")
        a("s_barrier")
        a("v_xor_b32 v11, 4096, v10")
        for n in range(4):
            a("ds_read_b128 %s, v11 offset:%d" % (v4(64 + 4 * n), LDS_RED + 1024 * n))
        a("s_lshl_b32 s54, s%d, 10" % S_WAVE)
        a("s_add_u32 s54, s54, %d" % LDS_RED2)
        a("v_lshl_add_u32 v12, v1, 4, s54")
        for n in range(4):
            a("ds_read_b128 %s, v12 offset:%d" % (v4(80 + 4 * n), 4096 * n))
        a("s_lshl_b32 s54, s70, 12")
        a("s_lshl_b32 s55, s71, 11")
        a("s_add_u32 s54, s54, s55")
        a("v_lshl_add_u32 v13, v1, 3, s54")
        for n in range(4):
            a("ds_read_b64 %s, v13 offset:%d" % (vp(96 + 2 * n), LDS_X + 512 * n))
            a("ds_read_b64 %s, v13 offset:%d" % (vp(106 + 2 * n), LDS_T + 512 * n))
        packA = sum(q << (4 * n) for n, q in enumerate(QA))
        packB = sum(q << (4 * n) for n, q in enumerate(QB))
        a("s_cmp_eq_u32 s%d, 1" % S_PAR)
        a("s_mov_b32 s55, 0x%x" % packA)
        a("s_cmov_b32 s55, 0x%x" % packB)
        a("s_lshl_b32 s73, s%d, 2" % S_WAVE)
        a("s_lshr_b32 s55, s55, s73")
        a("s_and_b32 s73, s55, 15")
        a("s_lshl_b32 s55, s73, 9")
        a("s_lshl_b32 s74, s72, 12")
        a("s_add_u32 s55, s55, s74")
        a("v_lshl_add_u32 v14, v1, 3, s55")
        a("ds_read_b64 %s, v14 offset:%d" % (vp(104), LDS_X))
        a("ds_read_b64 %s, v14 offset:%d" % (vp(114), LDS_T))
        for dst, sreg in ((116, 70), (118, 72)):
            a("s_cmp_eq_u32 s%d, 0" % sreg)
            a("s_cselect_b64 vcc, -1, 0")
            a("v_cndmask_b32 v%d, v247, v246, vcc" % dst)
            a("s_cmp_eq_u32 s%d, 2" % sreg)
            a("s_cselect_b64 vcc, -1, 0")
            a("v_cndmask_b32 v%d, v%d, v248, vcc" % (dst, dst))
        a("s_waitcnt lgkmcnt(0)")
        for n in range(8):
            a("v_pk_add_f32 %s, %s, %s" % (vp(16 + 2 * n), vp(16 + 2 * n), vp(64 + 2 * n)))
        for h in range(2):
            a("v_pk_add_f32 %s, %s, %s" % (vp(80 + 2 * h), vp(80 + 2 * h), vp(84 + 2 * h)))
            a("v_pk_add_f32 %s, %s, %s" % (vp(88 + 2 * h), vp(88 + 2 * h), vp(92 + 2 * h)))
        for h in range(2):
            a("v_pk_add_f32 %s, %s, %s" % (vp(32 + 2 * h), vp(80 + 2 * h), vp(88 + 2 * h)))
        for n in range(10):
            a("v_pk_mul_f32 %s, %s, %s op_sel_hi:[1,0]" % (vp(16 + 2 * n), vp(16 + 2 * n), vp(116 if n < 8 else 118)))
        def rnd_all():
            for n in range(10):
                a("v_cvt_pk_bf16_f32 v%d, v%d, v%d" % (17 + 2 * n, 16 + 2 * n, 17 + 2 * n))
            for n in range(10):
                a("v_lshlrev_b32 v%d, 16, v%d" % (16 + 2 * n, 17 + 2 * n))
                a("v_and_b32 v%d, 0xffff0000, v%d" % (17 + 2 * n, 17 + 2 * n))
        def add_src(src):
            for n in range(10):
                a("v_lshlrev_b32 v%d, 16, v%d" % (64 + 2 * n, src + n))
                a("v_and_b32 v%d, 0xffff0000, v%d" % (65 + 2 * n, src + n))
            for n in range(10):
                a("v_pk_add_f32 %s, %s, %s" % (vp(16 + 2 * n), vp(16 + 2 * n), vp(64 + 2 * n)))
        rnd_all()
        add_src(106)
        rnd_all()
        add_src(96)
        for n in range(10):
            a("v_cvt_pk_bf16_f32 v%d, v%d, v%d" % (40 + n, 16 + 2 * n, 17 + 2 * n))
        for n in range(10):
            a("v_min_u32 v%d, 0xfffffffe, v%d" % (40 + n, 40 + n))
        a("s_lshl_b32 s54, s%d, 12" % S_CF)
        a("v_add_u32 v13, s54, v13")
        a("v_add_u32 v14, s54, v14")
        for n in range(4):
            a("global_store_dwordx2 v13, %s, %s offset:%d sc1" % (vp(40 + 2 * n), sp(P_HT), 512 * n))
        a("global_store_dwordx2 v14, %s, %s sc1" % (vp(48), sp(P_HT)))
        self.stamp()


    def gemm_roles(self):
        a = self.a
        a("s_and_b32 s54, s%d, 1" % S_XCD)
        a("s_lshl_b32 s54, s54, 2")
        a("s_and_b32 s55, s%d, 3" % S_IDX)
        a("s_add_u32 s76, s54, s55")
        a("s_lshr_b32 s54, s%d, 1" % S_XCD)
        a("s_lshr_b32 s55, s%d, 2" % S_IDX)
        a("s_mul_i32 s77, s54, 7")
        a("s_add_u32 s77, s77, s55")
        a("s_lshl_b32 s78, s54, 3")
        a("s_add_u32 s78, s78, s55")
        a("s_mov_b32 s79, 1")
        a("s_cmp_ge_u32 s55, 7")
        a("s_cmov_b32 s79, 0")
        a("s_cmp_ge_u32 s77, 27")
        a("s_cmov_b32 s79, 0")

    def wload_setup(self, ptr, rowstride, s_row0, s_colbytes):
        a = self.a
        a("v_lshrrev_b32 v230, 3, v1")
        a("v_and_b32 v231, 7, v1")
        a("v_and_b32 v232, 2, v230")
        a("v_xor_b32 v231, v231, v232")
        a("v_mul_u32_u24 v230, %d, v230" % rowstride)
        a("v_lshl_add_u32 v232, v231, 4, v230")
        a("v_xor_b32 v231, 4, v231")
        a("v_lshl_add_u32 v233, v231, 4, v230")
        a("s_mul_i32 s54, s%d, %d" % (s_row0, rowstride))
        a("s_add_u32 s54, s54, s%d" % s_colbytes)
        a("s_add_u32 s80, s%d, s54" % ptr)
        a("s_addc_u32 s81, s%d, 0" % (ptr + 1))
        a("v_lshrrev_b32 v230, 4, v1")
        a("v_bfe_u32 v231, v1, 2, 2")
        a("v_lshl_add_u32 v238, v230, 3, v231")
        a("v_lshlrev_b32 v238, 7, v238")
        a("v_and_b32 v239, 3, v1")
        a("v_lshl_add_u32 v238, v239, 3, v238")
        a("s_lshl_b32 s54, s%d, 15" % S_WAVE)
        a("v_add_u32 v238, s54, v238")
        a("v_lshrrev_b32 v231, 1, v231")
        a("v_and_b32 v230, 1, v230")
        a("v_lshl_add_u32 v230, v230, 1, v231")
        for nt in range(4):
            a("v_xor_b32 v231, %d, v230" % nt)
            a("v_lshl_add_u32 v%d, v231, 5, v238" % (234 + nt))

    def wload_dma(self, rowstride, count):
        a = self.a
        a("s_lshl_b32 s82, s%d, 15" % S_WAVE)
        a("s_mov_b32 s83, %s" % (str(count)))
        lp = self.lab("dma")
        a.label(lp)
        a("s_mov_b32 m0, s82")
        a("s_add_u32 s82, s82, 1024")
        a("global_load_lds_dwordx4 v232, s[80:81]")
        a("s_add_u32 s80, s80, %d" % (8 * rowstride))
        a("s_addc_u32 s81, s81, 0")
        a("s_mov_b32 m0, s82")
        a("s_add_u32 s82, s82, 1024")
        a("global_load_lds_dwordx4 v233, s[80:81]")
        a("s_add_u32 s80, s80, %d" % (8 * rowstride))
        a("s_addc_u32 s81, s81, 0")
        a("s_sub_u32 s83, s83, 2")
        a("s_cmp_gt_i32 s83, 0")
        a("s_cbranch_scc1 %s" % lp)

    def wload_tr(self, ks0, nks):
        a = self.a
        a("s_waitcnt vmcnt(0)")
        for s in range(nks):
            for nt in range(4):
                for hf in range(2):
                    a("ds_read_b64_tr_b16 %s, v%d offset:%d" % (a2(((ks0 + s) * 4 + nt) * 4 + 2 * hf), 234 + nt, s * 4096 + hf * 512))
        a("s_waitcnt lgkmcnt(0)")

    def phase4_ln(self):
        a = self.a
        a("s_lshl_b32 s54, s%d, 4" % S_OCT)
        a("v_lshlrev_b32 v2, 12, v0")
        a("v_add_u32 v2, s54, v2")
        a("v_add_u32 v3, 0x100000, v2")
        a("v_add_u32 v4, 0x200000, v2")
        for r in range(4):
            a("v_mov_b32 v%d, 0" % (24 + r))
        a("s_mov_b32 s69, 0")
        lp = self.lab("hpoll")
        lok = self.lab("hok")
        l2 = self.lab("h2")
        a.label(lp)
        a("global_load_dwordx4 v[16:19], v2, %s sc1" % sp(P_HT))
        a("global_load_dwordx4 v[20:23], v3, %s sc1" % sp(P_HT))
        a("s_cmp_ge_u32 s%d, 2" % S_WAVE)
        a("s_cbranch_scc1 %s" % l2)
        a("global_load_dwordx4 v[24:27], v4, %s sc1" % sp(P_HT))
        a.label(l2)
        a("s_waitcnt vmcnt(0)")
        a("v_max3_u32 v5, v16, v17, v18")
        a("v_max3_u32 v6, v19, v20, v21")
        a("v_max3_u32 v7, v22, v23, v24")
        a("v_max3_u32 v8, v25, v26, v27")
        a("v_max3_u32 v5, v5, v6, v7")
        a("v_max_u32 v5, v5, v8")
        a("v_cmp_eq_u32 vcc, -1, v5")
        a("s_cbranch_vccz %s" % lok)
        a("s_add_u32 s69, s69, 1")
        a("s_cmp_gt_u32 s69, 100000")
        a("s_cbranch_scc1 %s" % lok)
        a("s_sleep 4")
        a("s_branch %s" % lp)
        a.label(lok)
        self.stamp()
        for j in range(3):
            for p in range(4):
                a("v_lshlrev_b32 v%d, 16, v%d" % (32 + 8 * j + 2 * p, 16 + 4 * j + p))
                a("v_and_b32 v%d, 0xffff0000, v%d" % (33 + 8 * j + 2 * p, 16 + 4 * j + p))
        for p in range(4):
            a("v_pk_add_f32 %s, %s, %s" % (vp(64 + 2 * p), vp(32 + 2 * p), vp(40 + 2 * p)))
            a("v_pk_mul_f32 %s, %s, %s" % (vp(72 + 2 * p), vp(32 + 2 * p), vp(32 + 2 * p)))
        for p in range(4):
            a("v_pk_add_f32 %s, %s, %s" % (vp(64 + 2 * p), vp(64 + 2 * p), vp(48 + 2 * p)))
            a("v_pk_fma_f32 %s, %s, %s, %s" % (vp(72 + 2 * p), vp(40 + 2 * p), vp(40 + 2 * p), vp(72 + 2 * p)))
        for p in range(4):
            a("v_pk_fma_f32 %s, %s, %s, %s" % (vp(72 + 2 * p), vp(48 + 2 * p), vp(48 + 2 * p), vp(72 + 2 * p)))
        for k in range(8):
            a("v_permlane32_swap_b32 v%d, v%d" % (64 + k, 72 + k))
        for k in range(8):
            a("v_add_f32 v%d, v%d, v%d" % (64 + k, 64 + k, 72 + k))
        for k in range(4):
            a("v_permlane16_swap_b32 v%d, v%d" % (64 + k, 68 + k))
        for k in range(4):
            a("v_add_f32 v%d, v%d, v%d" % (64 + k, 64 + k, 68 + k))
        for k in range(2):
            a("v_add_f32_dpp v%d, v%d, v%d row_ror:8 row_mask:0xf bank_mask:0x3" % (72 + k, 64 + k, 64 + k))
            a("v_add_f32_dpp v%d, v%d, v%d row_ror:8 row_mask:0xf bank_mask:0xc" % (72 + k, 66 + k, 66 + k))
        a("v_add_f32_dpp v64, v72, v72 row_half_mirror row_mask:0xf bank_mask:0x5")
        a("v_add_f32_dpp v64, v73, v73 row_half_mirror row_mask:0xf bank_mask:0xa")
        a("v_add_f32_dpp v64, v64, v64 quad_perm:[1,0,3,2] row_mask:0xf bank_mask:0xf")
        a("v_add_f32_dpp v64, v64, v64 quad_perm:[2,3,0,1] row_mask:0xf bank_mask:0xf")
        a("v_lshlrev_b32 v5, 2, v0")
        a("v_add_u32 v5, %d, v5" % LDS_LN)
        a("v_lshlrev_b32 v6, 2, v1")
        a("v_add_u32 v6, %d, v6" % LDS_LN)
        a("ds_write_b32 v5, v64")
        a("s_waitcnt lgkmcnt(0)")
        a("s_barrier")
        for w in range(4):
            a("ds_read_b32 v%d, v6 offset:%d" % (64 + w, 256 * w))
        a("s_waitcnt lgkmcnt(0)")
        a("v_add_f32 v64, v64, v65")
        a("v_add_f32 v66, v66, v67")
        a("v_add_f32 v64, v64, v66")
        a("v_mov_b32 v65, v64")
        a("v_permlane32_swap_b32 v64, v65")
        a("v_mul_f32 v64, %s, v64" % f32(1.0 / 640))
        a("v_mul_f32 v65, %s, v65" % f32(1.0 / 640))
        a("v_fma_f32 v65, -v64, v64, v65")
        a("v_max_f32 v65, 0, v65")
        self.bf16_round(66, 64)
        self.bf16_round(67, 65)
        a("v_add_f32 v67, %s, v67" % f32(1e-5))
        self.bf16_round(67, 67)
        a("v_sqrt_f32 v67, v67")
        self.bf16_round(67, 67)
        a("v_rcp_f32 v67, v67")
        a("v_sub_f32 v68, v64, v66")
        a("v_mul_f32 v68, v68, v67")
        self.bf16_round(68, 68)
        a("v_mul_f32 v69, v65, v67")
        a("v_mul_f32 v69, v69, v67")
        self.bf16_round(69, 69)
        a("v_add_f32 v69, %s, v69" % f32(1e-5))
        self.bf16_round(69, 69)
        a("v_sqrt_f32 v69, v69")
        self.bf16_round(69, 69)
        a("v_rcp_f32 v69, v69")
        a("v_fma_f32 v70, v66, v67, v68")
        a("v_mul_f32 v71, v67, v69")
        a("v_mul_f32 v70, -v70, v69")
        for r in range(8):
            a("v_readlane_b32 s%d, v71, %d" % (84 + r, 4 * r))
        for r in range(8):
            a("v_readlane_b32 s%d, v70, %d" % (54 + r, 4 * r))
        for r in range(8):
            a("v_mov_b32 v%d, s%d" % (72 + r, 54 + r))
        for j in range(3):
            for p in range(4):
                h = 32 + 8 * j + 2 * p
                a("v_pk_fma_f32 %s, %s, %s, %s" % (vp(h), vp(h), sp(84 + 2 * p), vp(72 + 2 * p)))
        for j in range(3):
            for p in range(4):
                h = 32 + 8 * j + 2 * p
                a("v_cvt_pk_bf16_f32 v%d, v%d, v%d" % (16 + 4 * j + p, h, h + 1))
        for n in range(12):
            a("v_min_u32 v%d, 0xfffffffe, v%d" % (16 + n, 16 + n))
        a("s_lshl_b32 s54, s%d, 8" % S_OCT)
        a("v_lshrrev_b32 v2, 4, v0")
        a("v_lshlrev_b32 v2, 16, v2")
        a("v_and_b32 v3, 15, v0")
        a("v_lshl_add_u32 v2, v3, 4, v2")
        a("v_add_u32 v2, s54, v2")
        a("v_add_u32 v3, 0x100000, v2")
        a("v_add_u32 v4, 0x200000, v2")
        a("global_store_dwordx4 v2, v[16:19], %s sc1" % sp(P_HP))
        a("global_store_dwordx4 v3, v[20:23], %s sc1" % sp(P_HP))
        l3 = self.lab("h3")
        a("s_cmp_ge_u32 s%d, 2" % S_WAVE)
        a("s_cbranch_scc1 %s" % l3)
        a("global_store_dwordx4 v4, v[24:27], %s sc1" % sp(P_HP))
        a.label(l3)
        self.stamp()

    def gemm_main(self, nsteps, w_is_A, s_short=None):
        a = self.a
        slow = []
        def slot(s, mt): return 94 + 20 * (s % 8) + 4 * mt
        def load(s, mt):
            base = 84 if s < 8 else 86
            return "global_load_dwordx4 %s, v%d, %s offset:%d sc1" % (v4(slot(s, mt)), 2 + mt, sp(base), (s % 8) * 1024 - 4096)
        def check(s):
            r = [slot(s, 0) + k for k in range(20)]
            L = []
            L.append("v_max3_u32 v7, v%d, v%d, v%d" % (r[0], r[1], r[2]))
            L.append("v_max3_u32 v8, v%d, v%d, v%d" % (r[3], r[4], r[5]))
            for k in range(6, 18, 4):
                L.append("v_max3_u32 v7, v7, v%d, v%d" % (r[k], r[k + 1]))
                L.append("v_max3_u32 v8, v8, v%d, v%d" % (r[k + 2], r[k + 3]))
            L.append("v_max3_u32 v7, v7, v%d, v%d" % (r[18], r[19]))
            L.append("v_max_u32 v7, v7, v8")
            L.append("v_cmp_eq_u32 vcc, -1, v7")
            return L
        pre = min(8, nsteps)
        for s in range(pre):
            for mt in range(5):
                a(load(s, mt))
        a("s_mov_b32 s69, 0")
        ldone = self.lab("gdone")
        def branch_slow(s):
            ls, lb = self.lab("gslow"), self.lab("gback")
            a("s_cbranch_vccnz %s" % ls)
            a.label(lb)
            slow.append((s, ls, lb))
        a("s_waitcnt vmcnt(%d)" % (5 * (pre - 1)))
        for l in check(0):
            a(l)
        branch_slow(0)
        self.stamp()
        for s in range(nsteps):
            ck = []
            if s + 1 < nsteps:
                issued = min(s + 7, nsteps - 1)
                a("s_waitcnt vmcnt(%d)" % (5 * (issued - (s + 1))))
                ck = check(s + 1)
            n = 0
            for mt in range(5):
                for nt in range(4):
                    c = v4(14 + 4 * (nt * 5 + mt))
                    w = a4((s * 4 + nt) * 4)
                    f = v4(slot(s, mt))
                    A, B = (w, f) if w_is_A else (f, w)
                    a("v_mfma_f32_16x16x32_bf16 %s, %s, %s, %s" % (c, A, B, "0" if s == 0 else c))
                    if ck:
                        a(ck.pop(0))
                if s + 8 < nsteps:
                    a(load(s + 8, mt))
            if s + 1 < nsteps:
                if s_short is not None and s + 2 == nsteps:
                    a("s_cmp_eq_u32 s%d, 1" % s_short)
                    a("s_cbranch_scc1 %s" % ldone)
                branch_slow(s + 1)
        a.label(ldone)
        a("s_waitcnt vmcnt(0)")
        self.slowpaths += [(s, ls, lb, [load(s, mt) for mt in range(5)], check(s)) for s, ls, lb in slow]

    def emit_slowpaths(self):
        a = self.a
        for s, ls, lb, loads, chk in self.slowpaths:
            a.label(ls)
            a("s_add_u32 s69, s69, 1")
            a("s_cmp_gt_u32 s69, 100000")
            a("s_cbranch_scc1 %s" % lb)
            a("s_sleep 2")
            for l in loads:
                a(l)
            a("s_waitcnt vmcnt(0)")
            for l in chk:
                a(l)
            a("s_cbranch_vccnz %s" % ls)
            a("s_branch %s" % lb)

    def phase5_gemm1(self):
        a = self.a
        a("s_mul_i32 s54, s76, %d" % (5 * 65536))
        a("v_lshl_add_u32 v2, v1, 4, s54")
        for mt in range(1, 5):
            a("v_add_u32 v%d, %d, v2" % (2 + mt, 65536 * mt))
        a("s_lshl_b32 s54, s%d, 14" % S_WAVE)
        a("s_add_u32 s54, s54, 4096")
        a("s_add_u32 s84, s%d, s54" % P_HP)
        a("s_addc_u32 s85, s%d, 0" % (P_HP + 1))
        a("s_add_u32 s86, s84, 8192")
        a("s_addc_u32 s87, s85, 0")
        a("v_bfe_u32 v9, v0, 4, 3")
        a("s_lshl_b32 s54, s77, 7")
        a("v_lshl_add_u32 v9, v9, 4, s54")
        a("global_load_dwordx4 v[10:13], v9, %s" % sp(P_B1))
        self.gemm_main(16, True)
        self.stamp()
        a("s_barrier")
        a("v_and_b32 v2, 15, v1")
        a("v_lshrrev_b32 v3, 4, v1")
        a("v_mul_u32_u24 v2, 272, v2")
        a("v_lshl_add_u32 v2, v3, 4, v2")
        a("s_mul_i32 s54, s%d, 21760" % S_WAVE)
        a("v_add_u32 v2, s54, v2")
        for mt in range(5):
            for nt in range(4):
                a("ds_write_b128 v2, %s offset:%d" % (v4(14 + 4 * (nt * 5 + mt)), mt * 16 * 272 + nt * 64))
        a("v_lshrrev_b32 v3, 7, v0")
        a("v_and_b32 v4, 15, v0")
        a("v_lshl_add_u32 v3, v3, 4, v4")
        a("v_mul_u32_u24 v3, 272, v3")
        a("v_bfe_u32 v4, v0, 4, 3")
        a("v_lshl_add_u32 v3, v4, 5, v3")
        a("v_add_u32 v4, %d, v3" % (2 * 21760))
        a("s_mul_i32 s54, s76, 270")
        a("s_lshl_b32 s55, s77, 1")
        a("s_add_u32 s54, s54, s55")
        a("s_lshr_b32 s55, s%d, 1" % S_WAVE)
        a("s_mul_i32 s55, s55, 54")
        a("s_add_u32 s54, s54, s55")
        a("s_and_b32 s55, s%d, 1" % S_WAVE)
        a("s_add_u32 s54, s54, s55")
        a("s_lshl_b32 s54, s54, 10")
        a("v_lshl_add_u32 v5, v1, 4, s54")
        for p in range(4):
            a("v_lshlrev_b32 v%d, 16, v%d" % (96 + 2 * p, 10 + p))
            a("v_and_b32 v%d, 0xffff0000, v%d" % (97 + 2 * p, 10 + p))
        a("v_mov_b32 v104, %s" % f32(-2.0 * 0.7978845608028654 * LOG2E))
        a("v_mov_b32 v106, %s" % f32(-2.0 * 0.7978845608028654 * LOG2E * 0.044715))
        a("s_waitcnt lgkmcnt(0)")
        a("s_barrier")
        lsk = self.lab("g1skip")
        for j in range(3):
            if j == 2:
                a("s_cmp_ge_u32 s%d, 2" % S_WAVE)
                a("s_cbranch_scc1 %s" % lsk)
            b = 112 + 40 * (j & 1)
            for w in range(4):
                for hh in range(2):
                    a("ds_read_b128 %s, v%d offset:%d" % (v4(b + 8 * w + 4 * hh), 3 if w < 2 else 4, (w & 1) * 21760 + j * 32 * 272 + 16 * hh))
            a("s_waitcnt lgkmcnt(0)")
            for p in range(4):
                a("v_pk_add_f32 %s, %s, %s" % (vp(b + 2 * p), vp(b + 2 * p), vp(b + 8 + 2 * p)))
                a("v_pk_add_f32 %s, %s, %s" % (vp(b + 16 + 2 * p), vp(b + 16 + 2 * p), vp(b + 24 + 2 * p)))
            for p in range(4):
                a("v_pk_add_f32 %s, %s, %s" % (vp(b + 2 * p), vp(b + 2 * p), vp(b + 16 + 2 * p)))
            def rnd():
                for p in range(4):
                    a("v_cvt_pk_bf16_f32 v%d, v%d, v%d" % (b + 2 * p + 1, b + 2 * p, b + 2 * p + 1))
                for p in range(4):
                    a("v_lshlrev_b32 v%d, 16, v%d" % (b + 2 * p, b + 2 * p + 1))
                    a("v_and_b32 v%d, 0xffff0000, v%d" % (b + 2 * p + 1, b + 2 * p + 1))
            rnd()
            for p in range(4):
                a("v_pk_add_f32 %s, %s, %s" % (vp(b + 2 * p), vp(b + 2 * p), vp(96 + 2 * p)))
            rnd()
            t = b + 8
            for p in range(4):
                a("v_pk_mul_f32 %s, %s, %s" % (vp(t + 2 * p), vp(b + 2 * p), vp(b + 2 * p)))
            for p in range(4):
                a("v_pk_fma_f32 %s, %s, %s, %s op_sel_hi:[1,0,0]" % (vp(t + 2 * p), vp(t + 2 * p), vp(106), vp(104)))
            for p in range(4):
                a("v_pk_mul_f32 %s, %s, %s" % (vp(t + 2 * p), vp(t + 2 * p), vp(b + 2 * p)))
            for k in range(8):
                a("v_exp_f32 v%d, v%d" % (t + k, t + k))
            for k in range(8):
                a("v_add_f32 v%d, 1.0, v%d" % (t + k, t + k))
            for k in range(8):
                a("v_rcp_f32 v%d, v%d" % (t + k, t + k))
            for p in range(4):
                a("v_pk_mul_f32 %s, %s, %s" % (vp(b + 2 * p), vp(b + 2 * p), vp(t + 2 * p)))
            for p in range(4):
                a("v_cvt_pk_bf16_f32 v%d, v%d, v%d" % (b + 32 + p, b + 2 * p, b + 2 * p + 1))
            for p in range(4):
                a("v_min_u32 v%d, 0xfffffffe, v%d" % (b + 32 + p, b + 32 + p))
            if j:
                a("v_add_u32 v5, %d, v5" % (2 * 54 * 1024))
            a("global_store_dwordx4 v5, %s, %s sc1" % (v4(b + 32), sp(P_G)))
        a.label(lsk)
        self.stamp()

    def phase6_pre(self):
        a = self.a
        a("s_mul_i32 s54, s76, %d" % (80 * 4096))
        a("s_lshl_b32 s55, s78, 7")
        a("s_add_u32 s54, s54, s55")
        a("v_lshrrev_b32 v2, 3, v0")
        a("v_and_b32 v3, 7, v0")
        a("v_lshlrev_b32 v4, 12, v2")
        a("v_lshl_add_u32 v4, v3, 4, v4")
        a("v_add_u32 v4, s54, v4")
        a("v_add_u32 v5, %d, v4" % (32 * 4096))
        a("v_add_u32 v6, %d, v4" % (64 * 4096))
        for r in range(4):
            a("v_mov_b32 v%d, 0" % (208 + r))
        self.p6_loads()
        a("v_mul_u32_u24 v212, %d, v3" % (8 * 176))
        a("v_lshl_add_u32 v212, v2, 1, v212")
        a("v_add_u32 v212, %d, v212" % LDS_H)

    def p6_loads(self):
        a = self.a
        a("global_load_dwordx4 v[200:203], v4, %s sc1" % sp(P_HT))
        a("global_load_dwordx4 v[204:207], v5, %s sc1" % sp(P_HT))
        l = self.lab("p6a")
        a("s_cmp_ge_u32 s%d, 2" % S_WAVE)
        a("s_cbranch_scc1 %s" % l)
        a("global_load_dwordx4 v[208:211], v6, %s sc1" % sp(P_HT))
        a.label(l)

    def phase6_pre2(self):
        a = self.a
        lp, lok = self.lab("p6poll"), self.lab("p6ok")
        a("s_mov_b32 s69, 0")
        a.label(lp)
        a("v_max3_u32 v7, v200, v201, v202")
        a("v_max3_u32 v8, v203, v204, v205")
        a("v_max3_u32 v7, v7, v206, v207")
        a("v_max3_u32 v8, v8, v208, v209")
        a("v_max3_u32 v7, v7, v210, v211")
        a("v_max_u32 v7, v7, v8")
        a("v_cmp_eq_u32 vcc, -1, v7")
        a("s_cbranch_vccz %s" % lok)
        a("s_add_u32 s69, s69, 1")
        a("s_cmp_gt_u32 s69, 100000")
        a("s_cbranch_scc1 %s" % lok)
        a("s_sleep 4")
        self.p6_loads()
        a("s_waitcnt vmcnt(0)")
        a("s_branch %s" % lp)
        a.label(lok)
        l = self.lab("p6b")
        for j in range(3):
            if j == 2:
                a("s_cmp_ge_u32 s%d, 2" % S_WAVE)
                a("s_cbranch_scc1 %s" % l)
            for p in range(4):
                a("ds_write_b16 v212, v%d offset:%d" % (200 + 4 * j + p, (2 * p) * 176 + 64 * j))
                a("ds_write_b16_d16_hi v212, v%d offset:%d" % (200 + 4 * j + p, (2 * p + 1) * 176 + 64 * j))
        a.label(l)

    def phase6_gemm2(self):
        a = self.a
        a("s_mul_i32 s54, s76, %d" % (5 * 54 * 1024))
        a("v_lshl_add_u32 v2, v1, 4, s54")
        for mt in range(1, 5):
            a("v_add_u32 v%d, %d, v2" % (2 + mt, 54 * 1024 * mt))
        a("s_lshl_b32 s54, s88, 10")
        a("s_add_u32 s54, s54, 4096")
        a("s_add_u32 s84, s%d, s54" % P_G)
        a("s_addc_u32 s85, s%d, 0" % (P_G + 1))
        a("s_add_u32 s86, s84, 8192")
        a("s_addc_u32 s87, s85, 0")
        for j in range(3):
            a("v_add_u32 v9, %d, v0" % (256 * j))
            a("v_min_u32 v9, 639, v9")
            a("v_mul_u32_u24 v9, 6554, v9")
            a("v_lshrrev_b32 v9, 16, v9")
            a("s_lshl_b32 s54, s78, 7")
            a("v_lshl_add_u32 v9, v9, 1, s54")
            a("global_load_ushort v%d, v9, %s" % (10 + j, sp(P_B2)))
        self.gemm_main(14, False, s_short=89)
        self.stamp()
        a("s_barrier")
        a("v_and_b32 v2, 15, v1")
        a("v_lshrrev_b32 v3, 4, v1")
        a("v_mul_u32_u24 v2, 336, v2")
        a("v_lshl_add_u32 v2, v3, 4, v2")
        a("s_mul_i32 s54, s%d, 21504" % S_WAVE)
        a("v_add_u32 v2, s54, v2")
        for nt in range(4):
            for mt in range(5):
                a("ds_write_b128 v2, %s offset:%d" % (v4(14 + 4 * (nt * 5 + mt)), nt * 16 * 336 + mt * 64))
        a("s_mul_i32 s54, s78, %d" % (64 * 1280))
        a("s_mul_i32 s55, s76, 160")
        a("s_add_u32 s54, s54, s55")
        for j in range(3):
            r = 96 + 4 * j
            a("v_add_u32 v3, %d, v0" % (256 * j))
            a("v_min_u32 v3, 639, v3")
            a("v_mul_u32_u24 v4, 6554, v3")
            a("v_lshrrev_b32 v4, 16, v4")
            a("v_mul_u32_u24 v5, 10, v4")
            a("v_sub_u32 v5, v3, v5")
            a("v_mul_u32_u24 v%d, 336, v4" % r)
            a("v_lshl_add_u32 v%d, v5, 5, v%d" % (r, r))
            a("v_add_u32 v%d, %d, v%d" % (r + 1, 2 * 21504, r))
            a("v_mul_u32_u24 v%d, 176, v4" % (r + 2))
            a("v_lshl_add_u32 v%d, v5, 4, v%d" % (r + 2, r + 2))
            a("v_add_u32 v%d, %d, v%d" % (r + 2, LDS_H, r + 2))
            a("v_mul_u32_u24 v%d, 1280, v4" % (r + 3))
            a("v_lshl_add_u32 v%d, v5, 4, v%d" % (r + 3, r + 3))
            a("v_add_u32 v%d, s54, v%d" % (r + 3, r + 3))
            a("v_lshlrev_b32 v%d, 16, v%d" % (108 + 2 * j, 10 + j))
        a("s_waitcnt lgkmcnt(0)")
        a("s_barrier")
        lsk = self.lab("g2skip")
        for j in range(3):
            if j == 2:
                a("s_cmp_ge_u32 s%d, 2" % S_WAVE)
                a("s_cbranch_scc1 %s" % lsk)
            b = 120 + 48 * (j & 1)
            r = 96 + 4 * j
            for w in range(4):
                for hh in range(2):
                    a("ds_read_b128 %s, v%d offset:%d" % (v4(b + 8 * w + 4 * hh), r if w < 2 else r + 1, (w & 1) * 21504 + 16 * hh))
            a("ds_read_b128 %s, v%d" % (v4(b + 32), r + 2))
            a("s_waitcnt lgkmcnt(0)")
            for p in range(4):
                a("v_pk_add_f32 %s, %s, %s" % (vp(b + 2 * p), vp(b + 2 * p), vp(b + 8 + 2 * p)))
                a("v_pk_add_f32 %s, %s, %s" % (vp(b + 16 + 2 * p), vp(b + 16 + 2 * p), vp(b + 24 + 2 * p)))
            for p in range(4):
                a("v_pk_add_f32 %s, %s, %s" % (vp(b + 2 * p), vp(b + 2 * p), vp(b + 16 + 2 * p)))
            def rnd():
                for p in range(4):
                    a("v_cvt_pk_bf16_f32 v%d, v%d, v%d" % (b + 2 * p + 1, b + 2 * p, b + 2 * p + 1))
                for p in range(4):
                    a("v_lshlrev_b32 v%d, 16, v%d" % (b + 2 * p, b + 2 * p + 1))
                    a("v_and_b32 v%d, 0xffff0000, v%d" % (b + 2 * p + 1, b + 2 * p + 1))
            rnd()
            for p in range(4):
                a("v_pk_add_f32 %s, %s, %s op_sel_hi:[1,0]" % (vp(b + 2 * p), vp(b + 2 * p), vp(108 + 2 * j)))
            rnd()
            for p in range(4):
                a("v_lshlrev_b32 v%d, 16, v%d" % (b + 8 + 2 * p, b + 32 + p))
                a("v_and_b32 v%d, 0xffff0000, v%d" % (b + 9 + 2 * p, b + 32 + p))
            for p in range(4):
                a("v_pk_add_f32 %s, %s, %s" % (vp(b + 2 * p), vp(b + 2 * p), vp(b + 8 + 2 * p)))
            for p in range(4):
                a("v_cvt_pk_bf16_f32 v%d, v%d, v%d" % (b + 36 + p, b + 2 * p, b + 2 * p + 1))
            a("global_store_dwordx4 v%d, %s, %s" % (r + 3, v4(b + 36), sp(P_OUT)))
        a.label(lsk)
        self.stamp()

    def back_half(self):
        a = self.a
        self.gemm_roles()
        a("s_barrier")
        lw = self.lab("now1a")
        a("s_cmp_eq_u32 s79, 0")
        a("s_cbranch_scc1 %s" % lw)
        a("s_lshl_b32 s90, s%d, 9" % S_WAVE)
        a("s_lshl_b32 s91, s77, 7")
        self.wload_setup(P_W1, 3456, 90, 91)
        self.wload_dma(3456, 32)
        self.wload_tr(0, 8)
        a.label(lw)
        self.stamp()
        self.phase4_ln()
        lg = self.lab("nog1")
        a("s_cmp_eq_u32 s79, 0")
        a("s_cbranch_scc1 %s" % lg)
        self.wload_dma(3456, 32)
        self.wload_tr(8, 8)
        self.stamp()
        self.phase5_gemm1()
        a.label(lg)
        a("s_barrier")
        a("s_mul_i32 s88, s%d, 14" % S_WAVE)
        a("s_lshr_b32 s89, s%d, 1" % S_WAVE)
        a("s_cmp_eq_u32 s%d, 3" % S_WAVE)
        a("s_cmov_b32 s88, 41")
        a("s_lshl_b32 s90, s88, 5")
        a("s_lshl_b32 s91, s78, 7")
        self.phase6_pre()
        self.wload_setup(P_W2, 4096, 90, 91)
        self.wload_dma(4096, 32)
        self.wload_tr(0, 8)
        self.phase6_pre2()
        a("s_lshl_b32 s92, s89, 2")
        a("s_sub_u32 s92, 24, s92")
        self.wload_dma(4096, "s92")
        self.wload_tr(8, 6)
        self.stamp()
        self.phase6_gemm2()

    def finish(self):
        a = self.a
        if self.timing:
            a("s_lshl_b32 s54, s2, 2")
            a("s_add_u32 s54, s54, s%d" % S_WAVE)
            a("s_lshl_b32 s54, s54, 8")
            a("s_add_u32 s54, s54, 0x%x" % WS_TIME)
            a("v_and_b32 v1, 63, v0")
            a("v_lshl_add_u32 v2, v1, 2, s54")
            a("global_store_dword v2, v255, %s" % sp(P_WS))
        l = self.lab("nn")
        a("s_or_b32 s54, s2, s%d" % S_WAVE)
        a("s_cmp_lg_u32 s54, 0")
        a("s_cbranch_scc1 %s" % l)
        a("v_mov_b32 v2, 0")
        a("v_mov_b32 v3, s%d" % S_TAG)
        a("s_mov_b64 exec, 1")
        a("global_store_dword v2, v3, %s" % sp(P_WS))
        a.label(l)
        a.label("L_end")
        a("s_endpgm")

    def dump_lds(self, lds_off, nbytes, ws_off_per_wg, ws_base):
        a = self.a
        a("s_waitcnt lgkmcnt(0)")
        a("s_barrier")
        a("s_mul_i32 s54, s2, %d" % ws_off_per_wg)
        a("s_add_u32 s54, s54, 0x%x" % ws_base)
        a("v_lshlrev_b32 v250, 4, v0")
        a("v_add_u32 v251, s54, v250")
        a("v_add_u32 v250, %d, v250" % lds_off)
        for k in range(nbytes // 4096):
            a("ds_read_b128 v[252:255], v250")
            a("s_waitcnt lgkmcnt(0)")
            a("global_store_dwordx4 v251, v[252:255], %s" % sp(P_WS))
            a("s_waitcnt vmcnt(0)")
            a("v_add_u32 v250, 4096, v250")
            a("v_add_u32 v251, 4096, v251")
        a("s_barrier")

    def build(self):
        self.phase0()
        self.phase2_loads()
        self.phase1()
        self.phase2_kgen()
        if self.debug & 1:
            self.dump_lds(LDS_C, 57344, 65536, WS_DBG)
        self.phase3_u()
        self.phase3_conv()
        self.back_half()
        self.finish()
        self.emit_slowpaths()
        body = self.a.finalize()
        hdr = open("cdna_kernels/%s.s.ref" % NAME).read().split("; Override launch")[0]
        hdr += "; @launch grid=(256,1,1) block=(256,1,1) lds=%d\n" % LDS_TOTAL
        hdr += '.amdgcn_target "amdgcn-amd-amdhsa--gfx950"\n.text\n.globl %s_kernel\n.p2align 8\n.type %s_kernel,@function\n%s_kernel:\n' % (NAME, NAME, NAME)
        ftr = """.section .rodata,"a"
.p2align 6
.amdhsa_kernel %s_kernel
  .amdhsa_next_free_vgpr 512
  .amdhsa_next_free_sgpr 102
  .amdhsa_accum_offset 256
  .amdhsa_group_segment_fixed_size 0
  .amdhsa_kernarg_size 120
  .amdhsa_user_sgpr_count 2
  .amdhsa_user_sgpr_kernarg_segment_ptr 1
  .amdhsa_system_sgpr_workgroup_id_x 1
.end_amdhsa_kernel
""" % NAME
        return hdr + body + ftr


if __name__ == "__main__":
    import argparse
    ap = argparse.ArgumentParser()
    ap.add_argument("-o", default="k.s")
    ap.add_argument("--debug", type=int, default=0)
    ap.add_argument("--timing", action="store_true")
    args = ap.parse_args()
    g = Gen(debug=args.debug, timing=args.timing)
    open(args.o, "w").write(g.build())
```

```python
import sys, struct, os
from asmdsl import Asm

NAME = "sequential_preLN__ssm_conv_s4d__mixer_token_mlp__prompt"

def f32(x):
    return "0x%08x" % struct.unpack("<I", struct.pack("<f", x))[0]

LOG2E = 1.4426950408889634
INV2PI = 0.15915494309189535

WS_FL = 0x10000
WS_UT = 0x100000
WS_H2 = 0x380000
WS_YT = 0x600000
WS_HP = 0x900000
WS_G = 0xB80000
P2A = 7
P2KB = 19
WS_DBG = 0x1000000
WS_TIME = 0x2000000

ESTR = 528
E1SZ = 21 * ESTR
ECH = E1SZ + 32 * ESTR
LDS_E = 0
CSTR = 4640
CCH = 4 * CSTR
LDS_C = 84224
USTR = 4224
LDS_U = 139904
LDS_XR = LDS_U
XRS = 1344
LDS_SR = 152576
LDS_SC = 152704
LDS_SHP = 65536
LDS_SHF = 81920
OWNS = 24576 + 64
OHS = 12288 + 64
LDS_OWN = LDS_C
LDS_LN = 160000
LDS_H = 143360
LDS_TOTAL = 163840

S_WAVE, S_XCD, S_IDX, S_OCT = 3, 4, 5, 6
S_CF, S_PAR, S_TAG = 7, 9, 10
P_UT, P_H2 = 12, 14
P_X, P_LOGA, P_AIM, P_CR, P_CI, P_LDT, P_DSK = 16, 18, 20, 22, 24, 26, 28
P_W1, P_B1, P_W2, P_B2, P_OUT, P_DBG, P_WS = 32, 34, 36, 38, 40, 42, 44
P_YT, P_HP, P_G, P_FL = 46, 48, 50, 52
S_DB, S_FB, S_SB, S_G1 = 76, 77, 78, 79
S_K2, S_SHORT = 92, 93
XG, TG = 200, 212
WD, WT = 234, 238
ACC0, SLOT0, NSLOT = 14, 94, 7
QA, QB = [7, 4, 3, 0], [6, 5, 2, 1]
SPIN = 200000
TLBW = int(os.environ.get('TLBW', '1'))
BGX = os.environ.get('BGX', '')

def sp(n): return "s[%d:%d]" % (n, n + 1)
def vp(n): return "v[%d:%d]" % (n, n + 1)
def v4(n): return "v[%d:%d]" % (n, n + 3)
def a4(n): return "a[%d:%d]" % (n, n + 3)
def a2(n): return "a[%d:%d]" % (n, n + 1)


class Gen:
    def __init__(self, debug=0, timing=False):
        self.a = Asm()
        self.debug = debug
        self.timing = timing
        self.nstamp = 0
        self.names = []
        self.uid = 0
        self.slowpaths = []

    def lab(self, base):
        self.uid += 1
        return "L_%s_%d" % (base, self.uid)

    def stamp(self, name=""):
        if not self.timing:
            return
        a = self.a
        a("s_memtime s[98:99]")
        a("s_waitcnt lgkmcnt(0)")
        a("v_writelane_b32 v255, s98, %d" % self.nstamp)
        if self.nstamp >= 30:
            pass
        elif self.nstamp >= len(self.names):
            self.names.append(name)
        else:
            self.names[self.nstamp] += "/" + name
        self.nstamp += 1

    def weave(self, mark, bg, lo=0.0, hi=1.0):
        a = self.a
        seg = a.ins[mark:]
        del a.ins[mark:]
        n = len(seg)
        pos = [int(n * (lo + (hi - lo) * (k + 0.5) / len(bg))) for k in range(len(bg))]
        k = 0
        for i, ins in enumerate(seg):
            while k < len(bg) and pos[k] <= i:
                for t in bg[k]:
                    a(t)
                k += 1
            a.ins.append(ins)
        while k < len(bg):
            for t in bg[k]:
                a(t)
            k += 1

    def cmuls(self, lst):
        a = self.a
        for d, x, y in lst:
            a("v_pk_mul_f32 %s, %s, %s op_sel:[0,0] op_sel_hi:[0,1]" % (vp(d), vp(x), vp(y)))
        for d, x, y in lst:
            a("v_pk_fma_f32 %s, %s, %s, %s op_sel:[1,1,0] op_sel_hi:[1,0,1] neg_lo:[0,1,0]" % (vp(d), vp(x), vp(y), vp(d)))

    def cexps(self, items, tmp):
        a = self.a
        for n, (d, k, ar, ap) in enumerate(items):
            t = tmp + 2 * n
            a("v_mul_f32 v%d, %s, v%d" % (t, f32(float(2 ** k)), ar))
            a("v_mul_f32 v%d, %s, v%d" % (t + 1, f32(float(2 ** k)), ap))
        for n, it in enumerate(items):
            t = tmp + 2 * n
            a("v_exp_f32 v%d, v%d" % (t, t))
            a("v_fract_f32 v%d, v%d" % (t + 1, t + 1))
        for n, it in enumerate(items):
            t = tmp + 2 * n
            a("v_cos_f32 v%d, v%d" % (it[0], t + 1))
            a("v_sin_f32 v%d, v%d" % (it[0] + 1, t + 1))
        for n, it in enumerate(items):
            t = tmp + 2 * n
            a("v_pk_mul_f32 %s, %s, %s op_sel:[0,0] op_sel_hi:[0,1]" % (vp(it[0]), vp(t), vp(it[0])))

    def rowreduce16(self, regs, op="v_add_f32"):
        a = self.a
        for mode in ("quad_perm:[1,0,3,2]", "quad_perm:[2,3,0,1]", "row_half_mirror", "row_mirror"):
            for r in regs:
                a("%s_dpp v%d, v%d, v%d %s row_mask:0xf bank_mask:0xf" % (op, r, r, r, mode))

    def bf16_round(self, d, s):
        a = self.a
        a("v_cvt_pk_bf16_f32 v%d, v%d, v%d" % (d, s, s))
        a("v_and_b32 v%d, 0xffff0000, v%d" % (d, d))

    def spin_tail(self, lp, lok, sleep):
        a = self.a
        a("s_add_u32 s69, s69, 1")
        a("s_cmp_gt_u32 s69, %d" % SPIN)
        a("s_cbranch_scc1 %s" % lok)
        a("s_sleep %d" % sleep)
        a("s_branch %s" % lp)

    def flag_store(self, arr, per_wave=True, wait="vmcnt(0)"):
        a = self.a
        a("s_lshl_b32 s54, s%d, 7" % S_OCT)
        if arr:
            a("s_add_u32 s54, s54, %d" % (arr * 0x8000))
        if per_wave:
            a("s_lshl_b32 s55, s%d, 2" % S_WAVE)
            a("s_add_u32 s54, s54, s55")
        a("v_mov_b32 v2, s54")
        a("v_mov_b32 v3, s%d" % S_TAG)
        if wait:
            a("s_waitcnt %s" % wait)
        a("s_mov_b64 exec, 1")
        a("global_store_dword v2, v3, %s sc1" % sp(P_FL))
        a("s_mov_b64 exec, -1")

    def phase0(self):
        a = self.a
        a("s_cmp_ge_u32 s2, 256")
        a("s_cbranch_scc1 L_end")
        a("s_load_dwordx16 s[16:31], s[0:1], 0")
        a("s_load_dwordx8 s[32:39], s[0:1], 64")
        a("s_load_dwordx4 s[40:43], s[0:1], 96")
        a("s_load_dwordx2 s[44:45], s[0:1], 112")
        a("s_getpc_b64 s[94:95]")
        a.label("L_pc")
        a("v_lshrrev_b32 v2, 6, v0")
        a("v_and_b32 v1, 63, v0")
        a("v_readfirstlane_b32 s%d, v2" % S_WAVE)
        a("s_and_b32 s%d, s2, 7" % S_XCD)
        a("s_lshr_b32 s%d, s2, 3" % S_IDX)
        a("s_lshl_b32 s%d, s%d, 5" % (S_OCT, S_XCD))
        a("s_add_u32 s%d, s%d, s%d" % (S_OCT, S_OCT, S_IDX))
        a("s_lshl_b32 s54, s%d, 4" % S_IDX)
        a("v_add_u32 v3, s54, v0")
        a("v_lshlrev_b32 v3, 7, v3")
        a("v_min_u32 v3, (L_codeend-L_pc-4), v3")
        a("v_cmp_gt_u32 vcc, 16, v0")
        a("s_and_saveexec_b64 s[54:55], vcc")
        lq = self.lab("cpf")
        a("s_cbranch_execz %s" % lq)
        a("global_load_dword v254, v3, s[94:95]")
        a.label(lq)
        a("s_mov_b64 exec, -1")
        a("s_and_b32 s%d, s%d, 1" % (S_PAR, S_IDX))
        a("s_lshr_b32 s54, s%d, 1" % S_OCT)
        a("s_mul_i32 s54, s54, 5")
        a("s_lshl_b32 s55, s%d, 1" % S_PAR)
        a("s_add_u32 s%d, s54, s55" % S_CF)
        a("s_lshl_b32 s54, s%d, 3" % S_OCT)
        a("s_lshl_b32 s55, s%d, 1" % S_WAVE)
        a("s_add_u32 s54, s54, s55")
        a("v_lshrrev_b32 v9, 5, v1")
        a("v_add_u32 v4, s54, v9")
        a("v_mul_u32_u24 v4, 1280, v4")
        a("v_and_b32 v5, 31, v1")
        a("v_lshl_add_u32 v4, v5, 3, v4")
        a("v_add_u32 v9, s55, v9")
        a("v_mul_u32_u24 v8, %d, v9" % XRS)
        a("v_lshl_add_u32 v8, v5, 3, v8")
        a("v_add_u32 v8, %d, v8" % LDS_XR)
        a("s_min_u32 s56, s%d, 2" % S_WAVE)
        a("s_add_u32 s56, s56, s%d" % S_CF)
        a("s_lshl_b32 s57, s56, 8")
        a("v_lshl_add_u32 v6, v1, 2, s57")
        a("v_lshlrev_b32 v7, 1, v0")
        a("s_lshl_b32 s61, s%d, 9" % S_WAVE)
        a("s_lshl_b32 s62, s%d, 3" % S_IDX)
        a("s_add_u32 s61, s61, s62")
        a("v_lshrrev_b32 v231, 3, v1")
        a("v_add_u32 v231, s61, v231")
        a("v_mul_u32_u24 v231, 3456, v231")
        a("v_and_b32 v232, 7, v1")
        a("s_lshr_b32 s62, s%d, 1" % S_XCD)
        a("s_mul_i32 s62, s62, 7")
        a("v_min_u32 v232, 6, v232")
        a("v_add_u32 v232, s62, v232")
        a("v_min_u32 v232, 26, v232")
        a("v_lshl_add_u32 v231, v232, 7, v231")
        a("v_add_u32 v232, %d, v231" % (256 * 3456))
        if self.timing:
            a("v_mov_b32 v255, 0")
        a("s_waitcnt lgkmcnt(0)")
        self.stamp("start")
        if self.timing:
            a("s_memrealtime s[98:99]")
            a("s_waitcnt lgkmcnt(0)")
            a("v_writelane_b32 v255, s98, 62")
        for k in range(5):
            a("global_load_dwordx2 %s, v4, %s offset:%d" % (vp(10 + 2 * k), sp(P_X), 256 * k))
        a("global_load_ushort v228, v7, %s" % sp(P_DSK))
        a("global_load_ushort v229, v7, %s offset:512" % sp(P_DSK))
        a("v_min_u32 v7, 254, v7")
        a("global_load_ushort v230, v7, %s offset:1024" % sp(P_DSK))
        for n, p in enumerate((P_LOGA, P_AIM, P_CR, P_CI)):
            a("global_load_dword v%d, v6, %s" % (224 + n, sp(p)))
        a("s_load_dword s%d, %s, 0" % (S_TAG, sp(P_WS)))
        a("s_lshl_b32 s57, s56, 1")
        a("s_and_b32 s57, s57, 0xfffffffc")
        a("s_load_dword s59, %s, s57" % sp(P_LDT))
        for p, off in ((P_YT, WS_YT), (P_HP, WS_HP), (P_G, WS_G), (P_FL, WS_FL), (P_UT, WS_UT), (P_H2, WS_H2)):
            a("s_add_u32 s%d, s%d, 0x%x" % (p, P_WS, off))
            a("s_addc_u32 s%d, s%d, 0" % (p + 1, P_WS + 1))
        a("s_and_b32 s54, s%d, 1" % S_XCD)
        a("s_lshl_b32 s54, s54, 2")
        a("s_and_b32 s55, s%d, 3" % S_IDX)
        a("s_add_u32 s%d, s54, s55" % S_DB)
        a("s_lshr_b32 s54, s%d, 1" % S_XCD)
        a("s_lshr_b32 s55, s%d, 2" % S_IDX)
        a("s_mul_i32 s%d, s54, 7" % S_FB)
        a("s_add_u32 s%d, s%d, s55" % (S_FB, S_FB))
        a("s_lshl_b32 s%d, s54, 3" % S_SB)
        a("s_add_u32 s%d, s%d, s55" % (S_SB, S_SB))
        a("s_mov_b32 s%d, 1" % S_G1)
        a("s_cmp_ge_u32 s55, 7")
        a("s_cmov_b32 s%d, 0" % S_G1)
        a("s_cmp_ge_u32 s%d, 27" % S_FB)
        a("s_cmov_b32 s%d, 0" % S_G1)
        a("s_min_u32 s%d, s%d, 26" % (S_FB, S_FB))
        a("s_mul_i32 s%d, s%d, 14" % (S_K2, S_WAVE))
        a("s_lshr_b32 s%d, s%d, 1" % (S_SHORT, S_WAVE))
        a("s_cmp_eq_u32 s%d, 3" % S_WAVE)
        a("s_cmov_b32 s%d, 41" % S_K2)

    def phase1(self):
        a = self.a
        a("v_mov_b32 v24, 0")
        a("v_mov_b32 v25, 0")
        a("v_mov_b32 v26, 0x3f803f80")
        a("v_bfe_u32 v27, v1, 2, 2")
        a("v_mul_u32_u24 v27, %d, v27" % XRS)
        a("v_lshrrev_b32 v28, 4, v0")
        a("v_lshl_add_u32 v27, v28, 5, v27")
        a("v_and_b32 v28, 3, v1")
        a("v_lshl_add_u32 v27, v28, 3, v27")
        a("v_add_u32 v27, %d, v27" % LDS_XR)
        a("v_lshlrev_b32 v29, 2, v9")
        a("v_add_u32 v29, %d, v29" % LDS_SR)
        a("v_mov_b32 v30, %d" % LDS_SR)
        a("s_mul_i32 s58, s%d, 10240" % S_OCT)
        a("v_lshl_add_u32 v2, v0, 4, s58")
        a("v_add_u32 v3, 4096, v2")
        a("v_add_u32 v4, 8192, v2")
        a("s_waitcnt vmcnt(7) lgkmcnt(0)")
        for k in range(5):
            a("ds_write_b64 v8, %s offset:%d" % (vp(10 + 2 * k), 256 * k))
        for k in range(10):
            a("v_dot2_f32_bf16 v24, v%d, v26, v24" % (10 + k))
            a("v_dot2_f32_bf16 v25, v%d, v%d, v25" % (10 + k, 10 + k))
        a("s_mul_i32 s%d, s%d, 1664525" % (S_TAG, S_TAG))
        a("s_add_u32 s%d, s%d, 1013904223" % (S_TAG, S_TAG))
        a("s_nop 1")
        self.rowreduce16([24, 25])
        a("v_mov_b32 v31, v24")
        a("v_mov_b32 v32, v25")
        a("v_permlane16_swap_b32 v24, v31")
        a("v_permlane16_swap_b32 v25, v32")
        a("v_add_f32 v24, v24, v31")
        a("v_add_f32 v25, v25, v32")
        a("v_mul_f32 v24, %s, v24" % f32(1.0 / 640))
        a("v_mul_f32 v25, %s, v25" % f32(1.0 / 640))
        a("v_fma_f32 v25, -v24, v24, v25")
        a("v_max_f32 v25, 0, v25")
        self.bf16_round(25, 25)
        self.bf16_round(24, 24)
        a("v_add_f32 v25, %s, v25" % f32(1e-5))
        self.bf16_round(25, 25)
        a("v_sqrt_f32 v25, v25")
        self.bf16_round(25, 25)
        a("v_rcp_f32 v25, v25")
        a("ds_write_b32 v29, v24")
        a("ds_write_b32 v29, v25 offset:32")
        a("s_waitcnt lgkmcnt(0)")
        a("s_barrier")
        self.stamp("stats")
        for j in range(3):
            for hh in range(2):
                a("ds_read_b64_tr_b16 %s, v27 offset:%d" % (vp(XG + 4 * j + 2 * hh), 512 * j + 4 * XRS * hh))
        for q in range(4):
            a("ds_read_b128 %s, v30 offset:%d" % (v4(32 + 4 * q), 16 * q))
        W = lambda n: 48 + 2 * n
        it = [(j, p) for j in range(3) for p in range(4)]
        def unpack(srcf):
            for n in range(12):
                a("v_lshlrev_b32 v%d, 16, v%d" % (W(n), srcf(n)))
                a("v_and_b32 v%d, 0xffff0000, v%d" % (W(n) + 1, srcf(n)))
        def cvt(dstf, op="v_cvt_pk_bf16_f32"):
            for n in range(12):
                a("%s v%d, v%d, v%d" % (op, dstf(n), W(n), W(n) + 1))
        a("s_waitcnt lgkmcnt(4)")
        unpack(lambda n: XG + n)
        a("s_waitcnt lgkmcnt(0)")
        for n, (j, p) in enumerate(it):
            a("v_pk_add_f32 %s, %s, %s neg_lo:[0,1] neg_hi:[0,1]" % (vp(W(n)), vp(W(n)), vp(32 + 2 * p)))
        cvt(lambda n: 72 + n)
        unpack(lambda n: 72 + n)
        for n, (j, p) in enumerate(it):
            a("v_pk_mul_f32 %s, %s, %s" % (vp(W(n)), vp(W(n)), vp(40 + 2 * p)))
        cvt(lambda n: 72 + n)
        unpack(lambda n: 72 + n)
        cvt(lambda n: 84 + n, "v_cvt_pk_f16_f32")
        a("s_waitcnt vmcnt(0)")
        a("global_store_dwordx4 v2, v[84:87], %s sc1" % sp(P_UT))
        a("global_store_dwordx4 v3, v[88:91], %s sc1" % sp(P_UT))
        l = self.lab("ut3")
        a("s_cmp_ge_u32 s%d, 2" % S_WAVE)
        a("s_cbranch_scc1 %s" % l)
        a("global_store_dwordx4 v4, v[92:95], %s sc1" % sp(P_UT))
        a.label(l)
        for j in range(3):
            a("v_lshlrev_b32 v%d, 16, v%d" % (100 + 2 * j, 228 + j))
        for n, (j, p) in enumerate(it):
            a("v_pk_mul_f32 %s, %s, %s op_sel_hi:[1,0]" % (vp(W(n)), vp(W(n)), vp(100 + 2 * j)))
        cvt(lambda n: TG + n)
        self.stamp("utstore")

    def wl_setup(self, ptr, rs, row0_sgpr, col_sgpr, stage_shift):
        a = self.a
        a("v_lshrrev_b32 v2, 3, v1")
        a("v_and_b32 v3, 7, v1")
        a("v_and_b32 v4, 2, v2")
        a("v_xor_b32 v3, v3, v4")
        a("v_mul_u32_u24 v2, %d, v2" % rs)
        a("v_lshl_add_u32 v%d, v3, 4, v2" % WD)
        a("v_xor_b32 v3, 4, v3")
        a("v_lshl_add_u32 v%d, v3, 4, v2" % (WD + 1))
        a("v_add_u32 v%d, %d, v%d" % (WD + 1, 8 * rs - 1024, WD + 1))
        a("v_add_u32 v%d, %d, v%d" % (WD + 2, 16 * rs - 2048, WD))
        a("v_add_u32 v%d, %d, v%d" % (WD + 3, 16 * rs - 2048, WD + 1))
        a("s_mul_i32 s54, s%d, %d" % (row0_sgpr, rs))
        a("s_add_u32 s54, s54, s%d" % col_sgpr)
        a("s_add_u32 s80, s%d, s54" % ptr)
        a("s_addc_u32 s81, s%d, 0" % (ptr + 1))
        if stage_shift is not None:
            a("v_lshrrev_b32 v2, 4, v1")
            a("v_bfe_u32 v3, v1, 2, 2")
            a("v_lshl_add_u32 v4, v2, 3, v3")
            a("v_lshlrev_b32 v4, 7, v4")
            a("v_and_b32 v5, 3, v1")
            a("v_lshl_add_u32 v4, v5, 3, v4")
            a("s_lshl_b32 s54, s%d, %d" % (S_WAVE, stage_shift))
            a("v_add_u32 v4, s54, v4")
            a("v_lshrrev_b32 v3, 1, v3")
            a("v_and_b32 v2, 1, v2")
            a("v_lshl_add_u32 v2, v2, 1, v3")
            for nt in range(4):
                a("v_xor_b32 v3, %d, v2" % nt)
                a("v_lshl_add_u32 v%d, v3, 5, v4" % (WT + nt))

    def wl_dma_groups(self, rs, nks, stage_shift):
        G = []
        for s in range(nks):
            g = []
            if s == 0:
                g.append("s_lshl_b32 s82, s%d, %d" % (S_WAVE, stage_shift))
            g.append("s_mov_b32 m0, s82")
            g.append("s_add_u32 s82, s82, 4096")
            g.append("global_load_lds_dwordx4 v%d, s[80:81]" % WD)
            g.append("global_load_lds_dwordx4 v%d, s[80:81] offset:1024" % (WD + 1))
            G.append(g)
            G.append(["global_load_lds_dwordx4 v%d, s[80:81] offset:2048" % (WD + 2),
                      "global_load_lds_dwordx4 v%d, s[80:81] offset:3072" % (WD + 3),
                      "s_add_u32 s80, s80, %d" % (32 * rs), "s_addc_u32 s81, s81, 0"])
        return G

    def wl_dma_loop(self, rs, count, stage_shift):
        a = self.a
        a("s_lshl_b32 s82, s%d, %d" % (S_WAVE, stage_shift))
        a("s_mov_b32 s83, %s" % str(count))
        lp = self.lab("dma")
        a.label(lp)
        a("s_mov_b32 m0, s82")
        a("s_add_u32 s82, s82, 4096")
        for k in range(4):
            a("global_load_lds_dwordx4 v%d, s[80:81] offset:%d" % (WD + k, 1024 * k))
        a("s_add_u32 s80, s80, %d" % (32 * rs))
        a("s_addc_u32 s81, s81, 0")
        a("s_sub_u32 s83, s83, 1")
        a("s_cmp_gt_i32 s83, 0")
        a("s_cbranch_scc1 %s" % lp)

    def wl_tr(self, ks0, nks):
        return ["ds_read_b64_tr_b16 %s, v%d offset:%d" % (a2(((ks0 + s) * 4 + nt) * 4 + 2 * hf), WT + nt, s * 4096 + hf * 512)
                for s in range(nks) for nt in range(4) for hf in range(2)]

    def phase2(self):
        a = self.a
        lW3 = self.lab("w3")
        lKd = self.lab("kdone")
        st0 = self.nstamp
        a("s_cmp_eq_u32 s%d, 3" % S_WAVE)
        a("s_cbranch_scc1 %s" % lW3)
        a("s_and_b32 s57, s56, 1")
        a("s_lshl_b32 s57, s57, 4")
        a("s_lshr_b32 s59, s59, s57")
        a("s_lshl_b32 s59, s59, 16")
        a("v_mov_b32 v242, %s" % f32(LOG2E))
        a("v_mul_f32 v242, s59, v242")
        a("v_exp_f32 v242, v242")
        a("v_and_b32 v243, 0x7fff7fff, v226")
        a("v_and_b32 v244, 0x7fff7fff, v227")
        a("v_pk_max_u16 v243, v243, v244")
        a("v_lshlrev_b32 v244, 16, v243")
        a("v_max_u32 v243, v243, v244")
        self.bf16_round(242, 242)
        a("v_lshlrev_b32 v246, 16, v224")
        a("v_and_b32 v250, 0xffff0000, v224")
        fill = [["v_mul_f32 v246, %s, v246" % f32(LOG2E), "v_mul_f32 v250, %s, v250" % f32(LOG2E)],
                ["v_exp_f32 v246, v246", "v_exp_f32 v250, v250"],
                ["v_lshlrev_b32 v247, 16, v225", "v_and_b32 v251, 0xffff0000, v225"],
                ["v_mul_f32 v247, v247, v242", "v_mul_f32 v251, v251, v242"]]
        for mode, fl in zip(("quad_perm:[1,0,3,2]", "quad_perm:[2,3,0,1]", "row_half_mirror", "row_mirror"), fill):
            a("v_max_u32_dpp v243, v243, v243 %s row_mask:0xf bank_mask:0xf" % mode)
            for t in fl:
                a(t)
        for sw, r, src in (("v_permlane16_swap_b32", 248, 226), ("v_permlane32_swap_b32", 249, 227)):
            a("v_mov_b32 v244, v243")
            a("v_lshlrev_b32 v%d, 16, v%d" % (r, src))
            a("v_and_b32 v%d, 0xffff0000, v%d" % (r + 4, src))
            a("%s v243, v244" % sw)
            a("v_max_u32 v243, v243, v244")
        self.bf16_round(246, 246)
        self.bf16_round(250, 250)
        a("v_mul_f32 v247, %s, v247" % f32(INV2PI))
        a("v_mul_f32 v251, %s, v251" % f32(INV2PI))
        a("v_mul_f32 v246, v246, v242")
        a("v_mul_f32 v250, v250, v242")
        a("v_mul_f32 v246, %s, v246" % f32(-LOG2E))
        a("v_mul_f32 v250, %s, v250" % f32(-LOG2E))
        SA, SB = 10, 100
        E = lambda S, j: S + 2 * j
        T = lambda S, j: S + 34 + 2 * j
        GK = lambda S, k: S + 66 + 2 * {0: 0, 1: 1, 2: 2, 8: 3, 9: 4, 10: 5, 11: 6}[k]
        self.cexps([(E(SA, 1), 3, 246, 247), (E(SB, 1), 3, 250, 251), (GK(SA, 0), 0, 246, 247), (GK(SB, 0), 0, 250, 251),
                    (GK(SA, 8), 8, 246, 247), (GK(SB, 8), 8, 250, 251)], 180)
        a("v_and_b32 v243, 0x7f800000, v243")
        a("v_max_u32 v243, 0x00800000, v243")
        a("v_min_u32 v243, 0x7e800000, v243")
        a("v_sub_u32 v244, 0x7f800000, v243")
        a("v_mul_f32 v245, v243, v242")
        for r in (248, 249, 252, 253):
            a("v_mul_f32 v%d, v%d, v244" % (r, r))
        a("s_lshl_b32 s54, s%d, 2" % S_WAVE)
        a("s_add_u32 s54, s54, %d" % LDS_SC)
        a("v_mov_b32 v5, s54")
        a("ds_write_b32 v5, v245")
        a("s_mul_i32 s60, s%d, %d" % (S_WAVE, ECH))
        a("v_lshl_add_u32 v6, v1, 3, s60")
        self.flag_store(0)
        a("global_load_dword v254, v231, %s" % sp(P_W1))
        if 'b' in BGX:
            a("global_load_dword v254, v232, %s" % sp(P_W1))
        self.stamp("flag")
        mark = len(a.ins)
        tmpn = [0]
        def st(off, ra, rb, neg=False):
            t = 188 + 2 * (tmpn[0] % 6)
            tmpn[0] += 1
            ng = "-" if neg else ""
            return ["v_cvt_pk_f16_f32 v%d, v%d, %sv%d" % (t, ra, ng, ra + 1),
                    "v_cvt_pk_f16_f32 v%d, v%d, %sv%d" % (t + 1, rb, ng, rb + 1),
                    "ds_write_b64 v6, %s offset:%d" % (vp(t), off)]
        sq = lambda d, x: (d, x, x)
        SS = (SA, SB)
        R = lambda S, r: ((248 if S == SA else 252) if r == 0 else S + 2 * r)
        a("v_mov_b32 v196, 0x00003c00")
        a("v_mov_b32 v197, 0x00003c00")
        a("ds_write_b64 v6, v[196:197] offset:%d" % (LDS_E + E1SZ))
        self.cmuls([sq(E(S, 2), E(S, 1)) for S in SS] + [sq(GK(S, 1), GK(S, 0)) for S in SS] + [sq(GK(S, 9), GK(S, 8)) for S in SS])
        self.cmuls([sq(E(S, 4), E(S, 2)) for S in SS] + [(E(S, 3), E(S, 1), E(S, 2)) for S in SS] +
                   [sq(GK(S, 2), GK(S, 1)) for S in SS] + [sq(GK(S, 10), GK(S, 9)) for S in SS])
        m2 = len(a.ins)
        self.cmuls([sq(E(S, 8), E(S, 4)) for S in SS] + [(E(S, 4 + j), E(S, j), E(S, 4)) for j in (1, 2, 3) for S in SS] +
                   [sq(GK(S, 11), GK(S, 10)) for S in SS])
        self.weave(m2, [st(LDS_E + E1SZ + j * ESTR, E(SA, j), E(SB, j)) for j in (1, 2, 3, 4)] + [st(LDS_E, R(SA, 0), R(SB, 0), True)])
        m2 = len(a.ins)
        self.cmuls([sq(E(S, 16), E(S, 8)) for S in SS] + [(E(S, 8 + j), E(S, j), E(S, 8)) for j in range(1, 8) for S in SS])
        self.weave(m2, [st(LDS_E + E1SZ + j * ESTR, E(SA, j), E(SB, j)) for j in (5, 6, 7, 8)])
        m2 = len(a.ins)
        self.cmuls([(T(S, j), E(S, j), E(S, 16)) for j in range(1, 16) for S in SS])
        self.weave(m2, [st(LDS_E + E1SZ + j * ESTR, E(SA, j), E(SB, j)) for j in range(9, 17)])
        R = lambda S, r: ((248 if S == SA else 252) if r == 0 else (S + 2 * r if r <= 16 else S + 80 + 2 * (r - 17)))
        l1 = [(1, 0, 0), (2, 0, 1), (4, 0, 2), (8, 0, 8), (12, 0, 9), (16, 0, 10), (20, 0, 11)]
        l2 = [(3, 1, 1), (5, 1, 2), (6, 2, 2), (9, 2, 8), (10, 4, 8), (13, 4, 9), (14, 8, 9), (17, 8, 10), (18, 12, 10)]
        l3 = [(7, 3, 2), (11, 6, 8), (15, 10, 9), (19, 14, 10)]
        tst = [st(LDS_E + E1SZ + (16 + j) * ESTR, T(SA, j), T(SB, j)) for j in range(1, 16)]
        m2 = len(a.ins)
        self.cmuls([(R(S, d), R(S, x), GK(S, k)) for d, x, k in l1 for S in SS])
        self.weave(m2, tst[:7])
        m2 = len(a.ins)
        self.cmuls([(R(S, d), R(S, x), GK(S, k)) for d, x, k in l2 for S in SS])
        self.weave(m2, tst[7:])
        m2 = len(a.ins)
        self.cmuls([(R(S, d), R(S, x), GK(S, k)) for d, x, k in l3 for S in SS])
        self.weave(m2, [st(LDS_E + d * ESTR, R(SA, d), R(SB, d), True) for d, x, k in l1])
        for d, x, k in l2 + l3:
            for t in st(LDS_E + d * ESTR, R(SA, d), R(SB, d), True):
                a(t)
        self.stamp("Edone")
        a("v_and_b32 v2, 31, v1")
        a("v_lshrrev_b32 v3, 5, v1")
        a("v_mul_u32_u24 v4, %d, v2" % ESTR)
        a("v_lshl_add_u32 v4, v3, 4, v4")
        a("v_add_u32 v4, s60, v4")
        for ks in range(16):
            a("ds_read_b128 %s, v4 offset:%d" % (v4(32 + 8 * ks), LDS_E + ks * 32))
            a("ds_read_b128 %s, v4 offset:%d" % (v4(36 + 8 * ks), LDS_E + E1SZ + ks * 32))
            if ks >= 6:
                k = ks - 6
                a("s_waitcnt lgkmcnt(12)")
                a("v_mfma_f32_32x32x16_f16 v[8:23], %s, %s, %s" % (v4(32 + 8 * k), v4(36 + 8 * k), "0" if k == 0 else "v[8:23]"))
        a("s_mul_i32 s55, s%d, %d" % (S_WAVE, CCH))
        a("s_add_u32 s55, s55, %d" % (LDS_C + 3 * CSTR))
        a("v_lshlrev_b32 v5, 4, v2")
        a("v_sub_u32 v5, s55, v5")
        a("v_lshlrev_b32 v6, 3, v3")
        a("v_sub_u32 v6, v5, v6")
        a("v_lshl_add_u32 v7, v1, 4, s55")
        for r in range(4):
            a("v_mov_b32 v%d, 0" % (164 + r))
        for k in range(10, 16):
            a("s_waitcnt lgkmcnt(%d)" % (2 * (15 - k)))
            a("v_mfma_f32_32x32x16_f16 v[8:23], %s, %s, v[8:23]" % (v4(32 + 8 * k), v4(36 + 8 * k)))
        a("v_cmp_gt_u32 vcc, 34, v1")
        a("s_and_saveexec_b64 s[62:63], vcc")
        a("ds_write_b128 v7, v[164:167] offset:4096")
        a("s_mov_b64 exec, -1")
        a("v_min_u32 v168, 23, v1")
        a("v_lshl_add_u32 v168, v168, 4, s55")
        a("v_add_u32 v168, 4096, v168")
        a("v_subrev_u32 v169, %d, v7" % (3 * CSTR))
        a("v_subrev_u32 v170, %d, v168" % (3 * CSTR))
        for i in range(4):
            a("v_cvt_pk_f16_f32 v%d, v%d, v%d" % (24 + 2 * i, 16 + i, 16 + i))
            a("v_cvt_pk_f16_f32 v%d, v%d, v%d" % (25 + 2 * i, 16 + i, 16 + i))
        for d, x, y in ((32, 13, 13), (34, 13, 12), (35, 12, 12), (36, 15, 15), (38, 15, 14), (39, 14, 14), (40, 14, 13),
                        (41, 12, 12), (42, 11, 10), (43, 9, 8)):
            a("v_cvt_pk_f16_f32 v%d, v%d, v%d" % (d, x, y))
        a("s_mov_b32 exec_hi, 0")
        for i in range(4):
            P = 1020 - 256 * i
            a("ds_write_b64 v5, %s offset:%d" % (vp(24 + 2 * i), 2 * P))
            a("ds_write_b64 v5, %s offset:%d" % (vp(24 + 2 * i), 2 * P + 8))
        a("s_mov_b32 exec_lo, 0x55555555")
        for i in range(4):
            P = 1019 - 256 * i
            a("ds_write_b16 v5, v%d offset:%d" % (24 + 2 * i, 2 * P))
        a("s_mov_b32 exec_lo, 0")
        a("s_mov_b32 exec_hi, 1")
        a("ds_write_b64 v5, %s" % vp(24))
        a("s_mov_b32 exec_hi, -1")
        for i, (bb, ba, aa) in enumerate(((32, 34, 35), (36, 38, 39))):
            P = 2042 - 512 - 256 * i
            a("ds_write_b32 v5, v%d offset:%d" % (bb, 2 * P))
            a("ds_write_b64 v5, %s offset:%d" % (vp(ba), 2 * P + 4))
            a("ds_write_b32 v5, v%d offset:%d" % (aa, 2 * P + 12))
        a("s_mov_b32 exec_lo, -1")
        a("s_mov_b32 exec_hi, 0")
        P = 2041 - 256
        a("ds_write_b16 v5, v36 offset:%d" % (2 * P))
        a("ds_write_b32 v5, v39 offset:%d" % (2 * P + 2))
        a("ds_write_b64 v5, %s offset:%d" % (vp(40), 2 * P + 6))
        a("ds_write_b16 v5, v35 offset:%d" % (2 * P + 14))
        a("s_mov_b64 exec, -1")
        a("ds_write_b64 v6, %s offset:%d" % (vp(42), 2 * 2044))
        self.stamp("Kexp")
        for rnd in range(5):
            b = 44 + 24 * rnd
            src = "v7 offset:%d" % (1024 * rnd) if rnd < 4 else "v168"
            src2 = "v7 offset:%d" % (1024 * rnd + 16) if rnd < 4 else "v168 offset:16"
            a("ds_read_b128 %s, %s" % (v4(b), src))
            a("ds_read_b64 %s, %s" % (vp(b + 4), src2))
        for rnd in range(5):
            b = 44 + 24 * rnd
            a("s_waitcnt lgkmcnt(%d)" % (2 * (4 - rnd) + 3 * rnd))
            for k in range(4):
                a("v_alignbit_b32 v%d, v%d, v%d, 16" % (b + 8 + k, b + k + 1, b + k))
            ad, o = ("v169", 1024 * rnd) if rnd < 4 else ("v170", 0)
            a("ds_write_b128 %s, %s offset:%d" % (ad, v4(b + 8), o + 2 * CSTR))
            for k in range(4):
                a("v_mov_b32 v%d, v%d" % (b + 12 + k, b + k + 1))
            a("ds_write_b128 %s, %s offset:%d" % (ad, v4(b + 12), o + 1 * CSTR))
            for k in range(4):
                a("v_alignbit_b32 v%d, v%d, v%d, 16" % (b + 16 + k, b + k + 2, b + k + 1))
            a("ds_write_b128 %s, %s offset:%d" % (ad, v4(b + 16), o))
        a("s_branch %s" % lKd)
        a.label(lW3)
        self.nstamp = st0
        self.flag_store(0)
        a("global_load_dword v254, v231, %s" % sp(P_W1))
        if 'b' in BGX:
            a("global_load_dword v254, v232, %s" % sp(P_W1))
        self.stamp("flag")
        for r in range(4):
            a("v_mov_b32 v%d, -1" % (20 + r))
        a("s_mul_i32 s58, s%d, 12288" % S_OCT)
        a("v_lshl_add_u32 v24, v1, 4, s58")
        a("s_mul_i32 s58, s2, 10240")
        a("v_lshl_add_u32 v25, v1, 4, s58")
        po = []
        for n in range(12):
            g = ["v_add_u32 v24, 4096, v24"] if n in (4, 8) else []
            po.append(g + ["global_store_dwordx4 v24, v[20:23], %s offset:%d sc1" % (sp(P_YT), 1024 * (n % 4))])
        for n in range(10):
            g = ["v_add_u32 v25, 4096, v25"] if (n and n % 4 == 0) else []
            po.append(g + ["global_store_dwordx4 v25, v[20:23], %s offset:%d sc1" % (sp(P_HP), 1024 * (n % 4))])
        mark = len(a.ins)
        a("s_lshl_b32 s54, s%d, 4" % S_CF)
        for j in range(12):
            a("v_add_u32 v7, %d, v1" % (64 * j))
            a("v_mul_u32_u24 v8, 21846, v7")
            a("v_lshrrev_b32 v8, 16, v8")
            a("v_mul_u32_u24 v9, 3, v8")
            a("v_sub_u32 v9, v7, v9")
            a("v_mul_u32_u24 v%d, 10240, v8" % (100 + j))
            a("v_lshl_add_u32 v%d, v9, 4, v%d" % (100 + j, 100 + j))
            a("v_add_u32 v%d, s54, v%d" % (100 + j, 100 + j))
            a("v_mul_u32_u24 v9, %d, v9" % USTR)
            a("v_lshl_add_u32 v%d, v8, 4, v9" % (112 + j))
            a("v_add_u32 v%d, %d, v%d" % (112 + j, LDS_U + 128, 112 + j))
        a("v_lshlrev_b32 v10, 7, v1")
        for k in range(1, 4):
            a("v_add_u32 v%d, %d, v10" % (10 + k, 8192 * k))
        if 'e' in BGX:
            self.weave(mark, po)
        a("s_waitcnt vmcnt(0)")
        a("s_sleep %d" % int(os.environ.get("SL1", "8")))
        a("s_mov_b32 s69, 0")
        lp, lok = self.lab("flpoll"), self.lab("flok")
        a.label(lp)
        for k in range(4):
            a("global_load_dwordx4 %s, v%d, %s sc1" % (v4(16 + 4 * k), 10 + k, sp(P_FL)))
        a("s_waitcnt vmcnt(0)")
        a("v_xor_b32 v6, s%d, v16" % S_TAG)
        for r in range(17, 32):
            a("v_xor_b32 v7, s%d, v%d" % (S_TAG, r))
            a("v_or_b32 v6, v6, v7")
        a("v_cmp_ne_u32 vcc, 0, v6")
        a("s_cbranch_vccz %s" % lok)
        self.spin_tail(lp, lok, 4)
        a.label(lok)
        if self.timing:
            a("v_writelane_b32 v255, s69, 32")
        self.stamp("flok")
        for j in range(12):
            a("global_load_dwordx4 %s, v%d, %s sc1" % (v4(32 + 4 * j), 100 + j, sp(P_UT)))
        a("v_mov_b32 v6, 0")
        a("v_and_b32 v5, 31, v1")
        a("v_lshlrev_b32 v5, 2, v5")
        a("v_add_u32 v5, %d, v5" % LDS_U)
        for pos in range(3):
            a("ds_write_b32 v5, v6 offset:%d" % (pos * USTR))
        self.conv_setup()
        for j in range(12):
            a("s_waitcnt vmcnt(%d)" % (11 - j))
            a("ds_write_b128 v%d, %s" % (112 + j, v4(32 + 4 * j)))
        if 'e' in BGX:
            self.flag_store(1, per_wave=False, wait=None)
        self.stamp("gath")
        lK2 = self.lab("kd2")
        a("s_branch %s" % lK2)
        a.label(lKd)
        self.conv_setup()
        a.label(lK2)
        a("s_waitcnt lgkmcnt(0)")
        self.stamp("prebar")
        a("s_barrier")
        self.stamp("kbar")

    def conv_setup(self):
        a = self.a
        a("s_lshl_b32 s90, s%d, 9" % S_WAVE)
        a("s_lshl_b32 s91, s%d, 7" % S_FB)
        self.wl_setup(P_W1, 3456, 90, 91, 14)
        a("v_and_b32 v2, 15, v1")
        a("v_lshrrev_b32 v3, 4, v1")
        a("v_and_b32 v4, 3, v1")
        a("v_bfe_u32 v5, v1, 2, 2")
        a("v_mul_u32_u24 v6, %d, v4" % CSTR)
        a("v_lshl_add_u32 v6, v3, 4, v6")
        a("v_lshlrev_b32 v7, 7, v5")
        a("v_sub_u32 v6, v6, v7")
        a("v_add_u32 v6, %d, v6" % (LDS_C + 832))
        a("v_lshlrev_b32 v7, 3, v2")
        a("v_lshl_add_u32 v7, v3, 4, v7")
        a("v_add_u32 v7, %d, v7" % (LDS_U + 456))
        a("s_lshr_b32 s70, s%d, 1" % S_WAVE)
        a("s_add_u32 s70, s70, s%d" % S_PAR)
        a("s_and_b32 s71, s%d, 1" % S_WAVE)
        a("s_lshl_b32 s54, s71, 8")
        a("s_add_u32 s54, s54, 192")
        a("s_mul_i32 s55, s70, %d" % CCH)
        a("s_sub_u32 s55, s55, s54")
        a("v_add_u32 v192, s55, v6")
        a("s_mul_i32 s55, s70, %d" % USTR)
        a("s_sub_u32 s55, s55, s54")
        a("v_add_u32 v193, s55, v7")
        a("s_lshl_b32 s72, s%d, 1" % S_PAR)
        a("s_sub_u32 s72, 2, s72")
        a("s_lshl_b32 s54, s%d, 7" % S_WAVE)
        a("s_add_u32 s54, s54, 64")
        a("s_mul_i32 s55, s72, %d" % CCH)
        a("s_sub_u32 s55, s55, s54")
        a("v_add_u32 v194, s55, v6")
        a("s_mul_i32 s55, s72, %d" % USTR)
        a("s_sub_u32 s55, s55, s54")
        a("v_add_u32 v195, s55, v7")
        a("v_lshrrev_b32 v2, 1, v1")
        a("v_mul_u32_u24 v2, 48, v2")
        a("v_and_b32 v3, 1, v1")
        a("v_mul_u32_u24 v3, %d, v3" % OHS)
        a("s_mul_i32 s54, s71, %d" % (2 * OHS))
        a("s_lshl_b32 s55, s70, 4")
        a("s_add_u32 s54, s54, s55")
        a("s_add_u32 s54, s54, %d" % LDS_OWN)
        a("v_add3_u32 v196, v2, v3, s54")
        a("s_lshl_b32 s54, s%d, 12" % S_WAVE)
        a("s_add_u32 s54, s54, %d" % LDS_SHP)
        a("v_lshl_add_u32 v197, v1, 4, s54")
        a("s_lshl_b32 s54, s%d, 10" % S_WAVE)
        a("s_add_u32 s54, s54, %d" % LDS_SHP)
        a("v_lshl_add_u32 v198, v1, 4, s54")
        a("s_lshl_b32 s54, s%d, 9" % S_WAVE)
        a("s_add_u32 s54, s54, %d" % LDS_SHF)
        a("v_lshl_add_u32 v248, v1, 3, s54")
        inv = lambda Q: sum(n << (4 * q) for n, q in enumerate(Q))
        a("s_mov_b32 s55, 0x%x" % inv(QA))
        a("s_cmp_eq_u32 s%d, 1" % S_PAR)
        a("s_cmov_b32 s55, 0x%x" % inv(QB))
        for j in range(3):
            a("v_add_u32 v2, %d, v0" % (256 * j))
            a("v_mul_u32_u24 v3, 21846, v2")
            a("v_lshrrev_b32 v3, 16, v3")
            a("v_mul_u32_u24 v4, 3, v3")
            a("v_sub_u32 v%d, v2, v4" % (242 + j))
            a("v_lshrrev_b32 v5, 5, v3")
            a("v_lshlrev_b32 v5, 2, v5")
            a("v_lshrrev_b32 v5, v5, s55")
            a("v_and_b32 v5, 3, v5")
            a("v_and_b32 v6, 31, v3")
            a("v_lshl_add_u32 v5, v5, 5, v6")
            a("v_lshlrev_b32 v5, 4, v5")
            a("v_add_u32 v%d, %d, v5" % (245 + j, LDS_SHF))
        a("s_mul_i32 s54, s%d, 12288" % S_OCT)
        a("s_mul_i32 s55, s%d, 3072" % S_WAVE)
        a("s_add_u32 s54, s54, s55")
        a("v_lshl_add_u32 v253, v1, 4, s54")
        for r in range(4):
            a("v_mov_b32 v%d, -1" % (224 + r))
        a("s_lshl_b32 s60, s%d, 5" % S_K2)
        a("s_lshl_b32 s61, s%d, 3" % S_IDX)
        a("s_add_u32 s60, s60, s61")
        a("v_lshrrev_b32 v2, 3, v1")
        a("v_add_u32 v2, s60, v2")
        a("s_lshr_b32 s62, s%d, 1" % S_XCD)
        a("s_lshl_b32 s62, s62, 10")
        a("v_and_b32 v4, 7, v1")
        a("v_lshl_add_u32 v4, v4, 7, s62")
        a("v_lshl_add_u32 v199, v2, 12, v4")

    def cv_loads(self, setn, na, vA, vB, ex):
        Ab, Bb = ((64, 96), (128, 160))[setn]
        L = []
        for n in range(na):
            L.append("ds_read_b128 %s, v%d offset:%d" % (v4(Ab + 4 * n), vA, 512 * (7 - n) + ex))
            L.append("ds_read_b64 %s, v%d offset:%d" % (vp(Bb + 4 * n), vB, 512 * n + ex))
            L.append("ds_read_b64 %s, v%d offset:%d" % (vp(Bb + 4 * n + 2), vB, 512 * n + ex + 8))
        return L

    def cv_iter(self, setn, chunks, acc, first, bg, hi=0.85):
        a = self.a
        Ab, Bb = ((64, 96), (128, 160))[setn]
        a("s_waitcnt lgkmcnt(0)")
        mark = len(a.ins)
        seen = set()
        for aa in range(max(chunks) + 1):
            for q in sorted(chunks, reverse=True):
                if q >= aa:
                    c = v4(acc[q])
                    src = "0" if (first and q not in seen) else c
                    seen.add(q)
                    a("v_mfma_f32_16x16x32_f16 %s, %s, %s, %s" % (c, v4(Ab + 4 * aa), v4(Bb + 4 * (q - aa)), src))
        if bg:
            self.weave(mark + 1, bg, 0.0, hi)

    def phase3(self):
        a = self.a
        one = lambda L: [[x] for x in L]
        def mix(L1, L2):
            if not L2: return L1
            out = []
            i = j = 0
            while i < len(L1) or j < len(L2):
                if j >= len(L2) or (i < len(L1) and i * len(L2) <= j * len(L1)):
                    out.append(L1[i]); i += 1
                else:
                    out.append(L2[j]); j += 1
            return out
        accO = {q: 16 + 4 * q for q in range(8)}
        dmaA = self.wl_dma_groups(3456, 4, 14)
        dmaB = self.wl_dma_groups(3456, 4, 14)
        for l in self.cv_loads(0, 8, 194, 195, 64):
            a(l)
        a("v_mov_b32 v12, %d" % LDS_SC)
        a("ds_read_b96 v[250:252], v12")
        lB, lD = self.lab("cvB"), self.lab("cvD")
        a("s_cmp_eq_u32 s%d, 1" % S_PAR)
        a("s_cbranch_scc1 %s" % lB)
        for Q in (QA, QB):
            acc = {q: 48 + 4 * n for n, q in enumerate(Q)}
            self.cv_iter(0, Q, acc, True, mix(one(self.cv_loads(1, max(Q) + 1, 194, 195, 0)), dmaA[:4]))
            self.cv_iter(1, Q, acc, False, mix(one(self.cv_loads(0, 8, 192, 193, 192)), dmaA[4:]))
            if Q is QA:
                a("s_branch %s" % lD)
                a.label(lB)
        a.label(lD)
        pf2 = []
        if 'b' not in BGX:
            pf2.append(["global_load_dword v254, v232, %s" % sp(P_W1)])
        if 'c' in BGX:
            pf2.append(["global_load_dword v254, v199, %s" % sp(P_W2)])
        cpo = []
        if 'e' not in BGX:
            cpo = one(["global_store_dwordx4 v253, v[224:227], %s offset:%d sc1" % (sp(P), 1024 * n) for P in (P_YT, P_HP) for n in range(3)])
        shw = ["ds_write_b128 v197, %s offset:%d" % (v4(48 + 4 * n), 1024 * n) for n in range(4)]
        ld = one(self.cv_loads(1, 8, 192, 193, 128))
        self.cv_iter(0, list(range(8)), accO, True, mix(pf2 + ld[:8] + one(shw) + ld[8:], cpo[:3]))
        a("s_waitcnt lgkmcnt(0)")
        a("s_barrier")
        shr = ["ds_read_b128 %s, v198 offset:%d" % (v4(48 + 4 * k), 4096 * k) for k in range(4)]
        self.cv_iter(1, list(range(8)), accO, False, mix(one(shr) + one(self.cv_loads(0, 8, 192, 193, 64)), cpo[3:]))
        red = []
        red.append("s_cmp_eq_u32 s72, 0")
        red.append("s_cselect_b64 vcc, -1, 0")
        red.append("v_cndmask_b32 v2, v252, v250, vcc")
        for h in range(2):
            red.append("v_pk_add_f32 %s, %s, %s" % (vp(48 + 2 * h), vp(48 + 2 * h), vp(52 + 2 * h)))
            red.append("v_pk_add_f32 %s, %s, %s" % (vp(56 + 2 * h), vp(56 + 2 * h), vp(60 + 2 * h)))
        for h in range(2):
            red.append("v_pk_add_f32 %s, %s, %s" % (vp(48 + 2 * h), vp(48 + 2 * h), vp(56 + 2 * h)))
        for h in range(2):
            red.append("v_pk_mul_f32 %s, %s, %s op_sel_hi:[1,0]" % (vp(48 + 2 * h), vp(48 + 2 * h), vp(2)))
        for h in range(2):
            red.append("v_cvt_pk_bf16_f32 v%d, v%d, v%d" % (52 + h, 48 + 2 * h, 49 + 2 * h))
        red.append("ds_write_b64 v248, v[52:53]")
        for j in range(3):
            red.append("v_cmp_eq_u32 vcc, 0, v%d" % (242 + j))
            red.append("s_nop 1")
            red.append("v_cndmask_b32 v%d, v251, v250, vcc" % (4 + 2 * j))
            red.append("v_cmp_eq_u32 vcc, 2, v%d" % (242 + j))
            red.append("s_nop 1")
            red.append("v_cndmask_b32 v%d, v%d, v252, vcc" % (4 + 2 * j, 4 + 2 * j))
            red.append("v_cmp_eq_u32 s[%d:%d], s72, v%d" % (62 + 2 * j, 63 + 2 * j, 242 + j))
        a("s_waitcnt vmcnt(%d)" % (len(pf2) + len(cpo)))
        self.cv_iter(0, list(range(8)), accO, False, mix(one(self.cv_loads(1, 8, 192, 193, 0)), one(self.wl_tr(0, 4))), hi=0.95)
        self.cv_iter(1, list(range(8)), accO, False, mix(dmaB, [red[:3]] + one(red[3:])), hi=0.95)
        a("s_mul_i32 s54, s%d, 12288" % S_OCT)
        a("v_lshl_add_u32 v10, v0, 4, s54")
        a("v_add_u32 v11, 4096, v10")
        a("v_add_u32 v12, 8192, v10")
        a("v_lshlrev_b32 v13, 4, v0")
        a("v_add_u32 v13, %d, v13" % LDS_OWN)
        a("s_waitcnt vmcnt(16) lgkmcnt(0)" if cpo else "s_waitcnt lgkmcnt(0)")
        self.stamp("convmf")
        a("s_barrier")
        for q in range(8):
            a("ds_write_b128 v196, %s offset:%d" % (v4(16 + 4 * q), 1536 * q))
        if cpo:
            lpd = self.lab("pdst")
            a("s_cmp_lg_u32 s%d, 3" % S_WAVE)
            a("s_cbranch_scc1 %s" % lpd)
            self.flag_store(1, per_wave=False, wait=None)
            a.label(lpd)
        a("s_waitcnt lgkmcnt(0)")
        a("s_barrier")
        for j in range(3):
            b = 64 + 24 * j
            for k in range(2):
                for hh in range(2):
                    a("ds_read_b128 %s, v13 offset:%d" % (v4(b + 8 * k + 4 * hh), k * 2 * OHS + hh * OHS + 4096 * j))
            a("ds_read_b128 %s, v%d" % (v4(b + 16), 245 + j))
        for j in range(3):
            b = 64 + 24 * j
            a("s_waitcnt lgkmcnt(%d)" % (5 * (2 - j)))
            for p in range(4):
                a("v_pk_add_f32 %s, %s, %s" % (vp(b + 2 * p), vp(b + 2 * p), vp(b + 8 + 2 * p)))
            for p in range(4):
                a("v_pk_mul_f32 %s, %s, %s op_sel_hi:[1,0]" % (vp(b + 2 * p), vp(b + 2 * p), vp(4 + 2 * j)))
            for p in range(4):
                a("v_cvt_pk_bf16_f32 v%d, v%d, v%d" % (b + 8 + p, b + 2 * p, b + 2 * p + 1))
            for p in range(4):
                a("v_cndmask_b32 v%d, v%d, v%d, s[%d:%d]" % (b + 8 + p, b + 8 + p, b + 16 + p, 62 + 2 * j, 63 + 2 * j))
            for p in range(4):
                a("v_min_u32 v%d, 0xfffffffe, v%d" % (b + 8 + p, b + 8 + p))
            a("global_store_dwordx4 v%d, %s, %s sc1" % (10 + j, v4(b + 8), sp(P_YT)))
        self.stamp("ytstore")

    def phase4_pre(self):
        a = self.a
        a("s_lshr_b32 s54, 0x66, s%d" % S_XCD)
        a("s_and_b32 s54, s54, 1")
        a("s_mul_i32 s55, s%d, 48" % S_OCT)
        for j in range(3):
            a("v_add_u32 v5, %d, v0" % (256 * j))
            if j == 2:
                a("v_min_u32 v5, 639, v5")
            a("v_mul_u32_u24 v6, 13108, v5")
            a("v_lshrrev_b32 v6, 16, v6")
            a("v_mul_u32_u24 v7, 5, v6")
            a("v_sub_u32 v7, v5, v7")
            a("v_add_u32 v8, s54, v7")
            a("v_cmp_lt_u32 vcc, 2, v8")
            a("v_cndmask_b32 v8, 0, 1, vcc")
            a("v_lshl_add_u32 v6, v6, 1, v8")
            a("v_lshlrev_b32 v8, 1, v8")
            a("v_sub_u32 v7, v7, v8")
            a("v_mul_u32_u24 v6, 12288, v6")
            a("v_lshl_add_u32 v6, v7, 4, v6")
            a("v_add_u32 v%d, s55, v6" % (170 + j))
        for n in range(12):
            a("v_lshlrev_b32 v%d, 16, v%d" % (100 + 2 * n, XG + n))
            a("v_and_b32 v%d, 0xffff0000, v%d" % (101 + 2 * n, XG + n))
            a("v_lshlrev_b32 v%d, 16, v%d" % (124 + 2 * n, TG + n))
            a("v_and_b32 v%d, 0xffff0000, v%d" % (125 + 2 * n, TG + n))
        a("s_lshl_b32 s54, s%d, 8" % S_OCT)
        a("v_lshrrev_b32 v2, 4, v0")
        a("v_lshlrev_b32 v2, 16, v2")
        a("v_and_b32 v3, 15, v0")
        a("v_lshl_add_u32 v2, v3, 4, v2")
        a("v_add_u32 v173, s54, v2")
        a("v_add_u32 v174, 0x100000, v173")
        a("v_add_u32 v175, 0x200000, v173")
        a("s_mul_i32 s54, s%d, 10240" % S_OCT)
        a("v_lshl_add_u32 v176, v0, 4, s54")
        a("v_add_u32 v177, 4096, v176")
        a("v_add_u32 v178, 8192, v176")
        a("v_lshlrev_b32 v179, 2, v0")
        a("v_add_u32 v179, %d, v179" % LDS_LN)
        a("v_lshlrev_b32 v180, 2, v1")
        a("v_add_u32 v180, %d, v180" % LDS_LN)

    def pd_check(self):
        a = self.a
        a("s_mov_b32 s69, 0")
        lp, lok = self.lab("pdpoll"), self.lab("pdok")
        a.label(lp)
        a("s_waitcnt vmcnt(0)")
        a("v_cmp_ne_u32 vcc, s%d, v182" % S_TAG)
        a("s_cbranch_vccz %s" % lok)
        a("s_add_u32 s69, s69, 1")
        a("s_cmp_gt_u32 s69, %d" % SPIN)
        a("s_cbranch_scc1 %s" % lok)
        a("s_sleep 4")
        a("global_load_dword v182, v181, %s sc1" % sp(P_FL))
        a("s_branch %s" % lp)
        a.label(lok)

    def phase4(self):
        a = self.a
        a("s_mov_b32 s69, 0")
        lp, lok = self.lab("hpoll"), self.lab("hok")
        a.label(lp)
        for j in range(3):
            a("global_load_dwordx4 %s, v%d, %s sc1" % (v4(16 + 4 * j), 170 + j, sp(P_YT)))
        a("s_waitcnt vmcnt(0)")
        a("v_max3_u32 v5, v16, v17, v18")
        a("v_max3_u32 v6, v19, v20, v21")
        a("v_max3_u32 v7, v22, v23, v24")
        a("v_max3_u32 v8, v25, v26, v27")
        a("v_max3_u32 v5, v5, v6, v7")
        a("v_max_u32 v5, v5, v8")
        a("v_cmp_eq_u32 vcc, -1, v5")
        a("s_cbranch_vccz %s" % lok)
        self.spin_tail(lp, lok, 4)
        a.label(lok)
        if 'c' not in BGX:
            a("global_load_dword v254, v199, %s" % sp(P_W2))
        self.stamp("hpoll")
        def unp(src):
            for n in range(12):
                a("v_lshlrev_b32 v%d, 16, v%d" % (32 + 2 * n, src + n))
                a("v_and_b32 v%d, 0xffff0000, v%d" % (33 + 2 * n, src + n))
        unp(16)
        for n in range(12):
            a("v_pk_add_f32 %s, %s, %s" % (vp(32 + 2 * n), vp(32 + 2 * n), vp(124 + 2 * n)))
        for n in range(12):
            a("v_cvt_pk_bf16_f32 v%d, v%d, v%d" % (16 + n, 32 + 2 * n, 33 + 2 * n))
        unp(16)
        for n in range(12):
            a("v_pk_add_f32 %s, %s, %s" % (vp(32 + 2 * n), vp(32 + 2 * n), vp(100 + 2 * n)))
        for n in range(12):
            a("v_cvt_pk_bf16_f32 v%d, v%d, v%d" % (150 + n, 32 + 2 * n, 33 + 2 * n))
        lz = self.lab("hz")
        a("s_cmp_lt_u32 s%d, 2" % S_WAVE)
        a("s_cbranch_scc1 %s" % lz)
        for r in range(4):
            a("v_mov_b32 v%d, 0" % (158 + r))
        a.label(lz)
        unp(150)
        for p in range(4):
            a("v_pk_add_f32 %s, %s, %s" % (vp(64 + 2 * p), vp(32 + 2 * p), vp(40 + 2 * p)))
            a("v_pk_mul_f32 %s, %s, %s" % (vp(72 + 2 * p), vp(32 + 2 * p), vp(32 + 2 * p)))
        for p in range(4):
            a("v_pk_add_f32 %s, %s, %s" % (vp(64 + 2 * p), vp(64 + 2 * p), vp(48 + 2 * p)))
            a("v_pk_fma_f32 %s, %s, %s, %s" % (vp(72 + 2 * p), vp(40 + 2 * p), vp(40 + 2 * p), vp(72 + 2 * p)))
        for p in range(4):
            a("v_pk_fma_f32 %s, %s, %s, %s" % (vp(72 + 2 * p), vp(48 + 2 * p), vp(48 + 2 * p), vp(72 + 2 * p)))
        for k in range(8):
            a("v_permlane32_swap_b32 v%d, v%d" % (64 + k, 72 + k))
        for p in range(4):
            a("v_pk_add_f32 %s, %s, %s" % (vp(64 + 2 * p), vp(64 + 2 * p), vp(72 + 2 * p)))
        for k in range(4):
            a("v_permlane16_swap_b32 v%d, v%d" % (64 + k, 68 + k))
        for p in range(2):
            a("v_pk_add_f32 %s, %s, %s" % (vp(64 + 2 * p), vp(64 + 2 * p), vp(68 + 2 * p)))
        for k in range(2):
            a("v_add_f32_dpp v%d, v%d, v%d row_ror:8 row_mask:0xf bank_mask:0x3" % (72 + k, 64 + k, 64 + k))
        for k in range(2):
            a("v_add_f32_dpp v%d, v%d, v%d row_ror:8 row_mask:0xf bank_mask:0xc" % (72 + k, 66 + k, 66 + k))
        a("v_add_f32_dpp v64, v72, v72 row_half_mirror row_mask:0xf bank_mask:0x5")
        a("v_add_f32_dpp v64, v73, v73 row_half_mirror row_mask:0xf bank_mask:0xa")
        a("v_add_f32_dpp v64, v64, v64 quad_perm:[1,0,3,2] row_mask:0xf bank_mask:0xf")
        a("v_add_f32_dpp v64, v64, v64 quad_perm:[2,3,0,1] row_mask:0xf bank_mask:0xf")
        a("ds_write_b32 v179, v64")
        for n in range(12):
            a("v_min_u32 v%d, 0xfffffffe, v%d" % (150 + n, 150 + n))
        a("s_waitcnt lgkmcnt(0)")
        a("s_barrier")
        for w in range(4):
            a("ds_read_b32 v%d, v180 offset:%d" % (64 + w, 256 * w))
        a("s_waitcnt lgkmcnt(0)")
        a("v_pk_add_f32 v[64:65], v[64:65], v[66:67]")
        a("v_add_f32 v64, v64, v65")
        a("v_mul_f32 v64, %s, v64" % f32(1.0 / 640))
        a("v_mov_b32 v65, v64")
        a("v_permlane32_swap_b32 v64, v65")
        a("v_fma_f32 v65, -v64, v64, v65")
        a("v_max_f32 v65, 0, v65")
        self.bf16_round(67, 65)
        self.bf16_round(66, 64)
        a("v_add_f32 v67, %s, v67" % f32(1e-5))
        self.bf16_round(67, 67)
        a("v_sqrt_f32 v67, v67")
        a("v_sub_f32 v68, v64, v66")
        self.bf16_round(67, 67)
        a("v_rcp_f32 v67, v67")
        a("v_mul_f32 v69, v65, v67")
        a("v_mul_f32 v68, v68, v67")
        a("v_mul_f32 v69, v69, v67")
        self.bf16_round(69, 69)
        self.bf16_round(68, 68)
        a("v_add_f32 v69, %s, v69" % f32(1e-5))
        self.bf16_round(69, 69)
        a("v_sqrt_f32 v69, v69")
        a("v_fma_f32 v70, v66, v67, v68")
        self.bf16_round(69, 69)
        a("v_rcp_f32 v69, v69")
        a("v_mul_f32 v70, -v70, v69")
        a("v_mul_f32 v71, v67, v69")
        for r in range(8):
            a("v_readlane_b32 s%d, v70, %d" % (54 + r, 4 * r))
        for r in range(8):
            a("v_readlane_b32 s%d, v71, %d" % (84 + r, 4 * r))
        for r in range(8):
            a("v_mov_b32 v%d, s%d" % (72 + r, 54 + r))
        l3 = self.lab("h3")
        for j in range(3):
            if j == 2:
                a("s_cmp_ge_u32 s%d, 2" % S_WAVE)
                a("s_cbranch_scc1 %s" % l3)
            for p in range(4):
                h = 32 + 8 * j + 2 * p
                a("v_pk_fma_f32 %s, %s, %s, %s" % (vp(h), vp(h), sp(84 + 2 * p), vp(72 + 2 * p)))
            for p in range(4):
                h = 32 + 8 * j + 2 * p
                a("v_cvt_pk_bf16_f32 v%d, v%d, v%d" % (16 + 4 * j + p, h, h + 1))
            for p in range(4):
                a("v_min_u32 v%d, 0xfffffffe, v%d" % (16 + 4 * j + p, 16 + 4 * j + p))
            a("global_store_dwordx4 v%d, %s, %s sc1" % (173 + j, v4(16 + 4 * j), sp(P_HP)))
        a("global_store_dwordx4 v178, v[158:161], %s sc1" % sp(P_H2))
        a.label(l3)
        a("global_store_dwordx4 v176, v[150:153], %s sc1" % sp(P_H2))
        a("global_store_dwordx4 v177, v[154:157], %s sc1" % sp(P_H2))
        self.stamp("hpstore")

    def gemm_main(self, nsteps, w_is_A, s_short=None, bgf=None, tag="g", late=None):
        a = self.a
        slow = []
        NS = NSLOT
        def slot(s, mt): return SLOT0 + 20 * (s % NS) + 4 * mt
        def load(s, mt):
            base = 84 if s < 8 else 86
            return "global_load_dwordx4 %s, v%d, %s offset:%d sc1" % (v4(slot(s, mt)), 2 + mt, sp(base), (s % 8) * 1024 - 4096)
        def check(s):
            r = [slot(s, 0) + k for k in range(20)]
            L = ["v_max3_u32 v7, v%d, v%d, v%d" % (r[0], r[1], r[2]), "v_max3_u32 v8, v%d, v%d, v%d" % (r[3], r[4], r[5])]
            for k in range(6, 18, 4):
                L.append("v_max3_u32 v7, v7, v%d, v%d" % (r[k], r[k + 1]))
                L.append("v_max3_u32 v8, v8, v%d, v%d" % (r[k + 2], r[k + 3]))
            L += ["v_max3_u32 v7, v7, v%d, v%d" % (r[18], r[19]), "v_max_u32 v7, v7, v8", "v_cmp_eq_u32 vcc, -1, v7"]
            return L
        for s in range(NS):
            for mt in range(5):
                a(load(s, mt))
        a("s_mov_b32 s69, 0")
        ldone = self.lab("gdone")
        def branch_slow(s):
            ls, lb = self.lab("gslow"), self.lab("gback")
            a("s_cbranch_vccnz %s" % ls)
            a.label(lb)
            slow.append((s, ls, lb))
        a("s_waitcnt vmcnt(%d)" % (5 * (NS - 1)))
        for l in check(0):
            a(l)
        branch_slow(0)
        self.stamp(tag + "first")
        for s in range(nsteps):
            ck = []
            if s + 1 < nsteps:
                issued = min(s + NS - 1, nsteps - 1)
                extra = 1 if (late and s > nsteps - NS) else 0
                a("s_waitcnt vmcnt(%d)" % (5 * (issued - (s + 1)) + extra))
                ck = check(s + 1)
            ex = bgf(s) if bgf else []
            for mt in range(5):
                for nt in range(4):
                    c = v4(ACC0 + 4 * (nt * 5 + mt))
                    w = a4((s * 4 + nt) * 4)
                    f = v4(slot(s, mt))
                    A, B = (w, f) if w_is_A else (f, w)
                    a("v_mfma_f32_16x16x32_bf16 %s, %s, %s, %s" % (c, A, B, "0" if s == 0 else c))
                    if ck:
                        a(ck.pop(0))
                    elif ex:
                        a(ex.pop(0))
                if s + NS < nsteps:
                    a(load(s + NS, mt))
            assert not ex
            if late and s == nsteps - NS:
                for t in late:
                    a(t)
            if s + 1 < nsteps:
                if s_short is not None and s + 2 == nsteps:
                    a("s_cmp_eq_u32 s%d, 1" % s_short)
                    a("s_cbranch_scc1 %s" % ldone)
                branch_slow(s + 1)
        a.label(ldone)
        a("s_waitcnt vmcnt(0) lgkmcnt(0)")
        self.slowpaths += [(s, ls, lb, [load(s, mt) for mt in range(5)], check(s)) for s, ls, lb in slow]

    def emit_slowpaths(self):
        a = self.a
        for s, ls, lb, loads, chk in self.slowpaths:
            a.label(ls)
            a("s_add_u32 s69, s69, 1")
            a("s_cmp_gt_u32 s69, %d" % SPIN)
            a("s_cbranch_scc1 %s" % lb)
            a("s_sleep 2")
            for l in loads:
                a(l)
            a("s_waitcnt vmcnt(0)")
            for l in chk:
                a(l)
            a("s_cbranch_vccnz %s" % ls)
            a("s_branch %s" % lb)

    def sum4(self, b):
        a = self.a
        for p in range(4):
            a("v_pk_add_f32 %s, %s, %s" % (vp(b + 2 * p), vp(b + 2 * p), vp(b + 8 + 2 * p)))
            a("v_pk_add_f32 %s, %s, %s" % (vp(b + 16 + 2 * p), vp(b + 16 + 2 * p), vp(b + 24 + 2 * p)))
        for p in range(4):
            a("v_pk_add_f32 %s, %s, %s" % (vp(b + 2 * p), vp(b + 2 * p), vp(b + 16 + 2 * p)))

    def rnd8(self, b):
        a = self.a
        for p in range(4):
            a("v_cvt_pk_bf16_f32 v%d, v%d, v%d" % (b + 2 * p + 1, b + 2 * p, b + 2 * p + 1))
        for p in range(4):
            a("v_lshlrev_b32 v%d, 16, v%d" % (b + 2 * p, b + 2 * p + 1))
            a("v_and_b32 v%d, 0xffff0000, v%d" % (b + 2 * p + 1, b + 2 * p + 1))

    def phase5(self):
        a = self.a
        a("s_mul_i32 s54, s%d, %d" % (S_DB, 5 * 65536))
        a("v_lshl_add_u32 v2, v1, 4, s54")
        for mt in range(1, 5):
            a("v_add_u32 v%d, %d, v2" % (2 + mt, 65536 * mt))
        a("s_lshl_b32 s54, s%d, 14" % S_WAVE)
        a("s_add_u32 s54, s54, 4096")
        a("s_add_u32 s84, s%d, s54" % P_HP)
        a("s_addc_u32 s85, s%d, 0" % (P_HP + 1))
        a("s_add_u32 s86, s84, 8192")
        a("s_addc_u32 s87, s85, 0")
        a("s_mul_i32 s54, s%d, 270" % S_DB)
        a("s_lshl_b32 s55, s%d, 1" % S_FB)
        a("s_add_u32 s54, s54, s55")
        a("s_lshr_b32 s55, s%d, 1" % S_WAVE)
        a("s_mul_i32 s55, s55, 54")
        a("s_add_u32 s54, s54, s55")
        a("s_and_b32 s55, s%d, 1" % S_WAVE)
        a("s_add_u32 s54, s54, s55")
        a("s_lshl_b32 s54, s54, 10")
        a("v_lshl_add_u32 v246, v1, 4, s54")
        a("v_add_u32 v247, %d, v246" % (2 * 54 * 1024))
        a("v_add_u32 v248, %d, v246" % (4 * 54 * 1024))
        for r in range(4):
            a("v_mov_b32 v%d, -1" % (10 + r))
        a("global_store_dwordx4 v246, v[10:13], %s sc1" % sp(P_G))
        a("global_store_dwordx4 v247, v[10:13], %s sc1" % sp(P_G))
        lq = self.lab("gp3")
        a("s_cmp_ge_u32 s%d, 2" % S_WAVE)
        a("s_cbranch_scc1 %s" % lq)
        a("global_store_dwordx4 v248, v[10:13], %s sc1" % sp(P_G))
        a.label(lq)
        a("s_mul_i32 s54, s%d, 27" % S_DB)
        a("s_add_u32 s54, s54, s%d" % S_FB)
        a("s_lshl_b32 s54, s54, 7")
        a("s_lshl_b32 s55, s%d, 2" % S_WAVE)
        a("s_add_u32 s54, s54, s55")
        a("s_add_u32 s54, s54, 0x18000")
        a("v_mov_b32 v249, s54")
        a("v_mov_b32 v250, s%d" % S_TAG)
        tr = self.wl_tr(0, 8)
        self.gemm_main(16, True, bgf=lambda s: tr[8 * (s - 2):8 * (s - 1)] if 2 <= s < 10 else [], tag="g1",
                       late=["s_mov_b64 exec, 1", "global_store_dword v249, v250, %s sc1" % sp(P_FL), "s_mov_b64 exec, -1"])
        a("v_bfe_u32 v2, v1, 4, 1")
        a("v_mul_u32_u24 v2, 10240, v2")
        a("v_lshrrev_b32 v3, 5, v1")
        a("v_and_b32 v4, 15, v1")
        a("v_lshl_add_u32 v3, v3, 4, v4")
        a("v_lshl_add_u32 v2, v3, 4, v2")
        a("s_mul_i32 s54, s%d, 20480" % S_WAVE)
        a("v_add_u32 v2, s54, v2")
        self.stamp("g1main")
        a("s_barrier")
        for mt in range(5):
            for nt in range(4):
                a("ds_write_b128 v2, %s offset:%d" % (v4(ACC0 + 4 * (nt * 5 + mt)), (mt * 128 + nt * 32) * 16))
        a("v_lshlrev_b32 v3, 4, v0")
        a("v_add_u32 v4, %d, v3" % (2 * 20480))
        for p in range(4):
            a("v_lshlrev_b32 v%d, 16, v%d" % (96 + 2 * p, 242 + p))
            a("v_and_b32 v%d, 0xffff0000, v%d" % (97 + 2 * p, 242 + p))
        a("v_mov_b32 v104, %s" % f32(-2.0 * 0.7978845608028654 * LOG2E))
        a("v_mov_b32 v106, %s" % f32(-2.0 * 0.7978845608028654 * LOG2E * 0.044715))
        a("s_waitcnt lgkmcnt(0)")
        a("s_barrier")
        lsk = self.lab("g1skip")
        def reads(j):
            b = 112 + 36 * j
            for w in range(4):
                for hh in range(2):
                    a("ds_read_b128 %s, v%d offset:%d" % (v4(b + 8 * w + 4 * hh), 3 if w < 2 else 4, (w & 1) * 20480 + hh * 10240 + 4096 * j))
        reads(0)
        for j in range(3):
            if j == 2:
                a("s_cmp_ge_u32 s%d, 2" % S_WAVE)
                a("s_cbranch_scc1 %s" % lsk)
            b = 112 + 36 * j
            a("s_waitcnt lgkmcnt(0)")
            if j < 2:
                reads(j + 1)
            self.sum4(b)
            self.rnd8(b)
            for p in range(4):
                a("v_pk_add_f32 %s, %s, %s" % (vp(b + 2 * p), vp(b + 2 * p), vp(96 + 2 * p)))
            self.rnd8(b)
            t = b + 8
            for p in range(4):
                a("v_pk_mul_f32 %s, %s, %s" % (vp(t + 2 * p), vp(b + 2 * p), vp(b + 2 * p)))
            for p in range(4):
                a("v_pk_fma_f32 %s, %s, %s, %s op_sel_hi:[1,0,0]" % (vp(t + 2 * p), vp(t + 2 * p), vp(106), vp(104)))
            for p in range(4):
                a("v_pk_mul_f32 %s, %s, %s" % (vp(t + 2 * p), vp(t + 2 * p), vp(b + 2 * p)))
            for k in range(8):
                a("v_exp_f32 v%d, v%d" % (t + k, t + k))
            for p in range(4):
                a("v_pk_add_f32 %s, %s, 1.0 op_sel_hi:[1,0]" % (vp(t + 2 * p), vp(t + 2 * p)))
            for k in range(8):
                a("v_rcp_f32 v%d, v%d" % (t + k, t + k))
            for p in range(4):
                a("v_pk_mul_f32 %s, %s, %s" % (vp(b + 2 * p), vp(b + 2 * p), vp(t + 2 * p)))
            for p in range(4):
                a("v_cvt_pk_bf16_f32 v%d, v%d, v%d" % (b + 32 + p, b + 2 * p, b + 2 * p + 1))
            for p in range(4):
                a("v_min_u32 v%d, 0xfffffffe, v%d" % (b + 32 + p, b + 32 + p))
            a("global_store_dwordx4 v%d, %s, %s sc1" % (246 + j, v4(b + 32), sp(P_G)))
        a.label(lsk)
        a("s_waitcnt lgkmcnt(0)")
        self.stamp("g1done")

    def phase6_pre(self):
        a = self.a
        a("s_mul_i32 s54, s%d, %d" % (S_SB, 8 * 10240))
        a("s_mul_i32 s55, s%d, 1280" % S_DB)
        a("s_add_u32 s54, s54, s55")
        for j in range(3):
            a("v_add_u32 v2, %d, v0" % (256 * j))
            if j == 2:
                a("v_min_u32 v2, 639, v2")
            a("v_mul_u32_u24 v3, 820, v2")
            a("v_lshrrev_b32 v3, 16, v3")
            a("v_mul_u32_u24 v7, 80, v3")
            a("v_sub_u32 v7, v2, v7")
            a("v_mul_u32_u24 v8, 10240, v3")
            a("v_lshl_add_u32 v8, v7, 4, v8")
            a("v_add_u32 v%d, s54, v8" % (4 + j))
            a("v_mul_u32_u24 v8, %d, v3" % (8 * 176))
            a("v_lshl_add_u32 v8, v7, 1, v8")
            a("v_add_u32 v%d, %d, v8" % (212 + j, LDS_H))
        a("v_bfe_u32 v2, v1, 2, 3")
        a("s_lshl_b32 s54, s%d, 3" % S_SB)
        a("v_add_u32 v2, s54, v2")
        a("v_lshlrev_b32 v2, 7, v2")
        a("v_and_b32 v3, 3, v1")
        a("v_lshl_add_u32 v2, v3, 2, v2")
        a("v_add_u32 v2, 0x10000, v2")
        a("s_mul_i32 s54, s%d, 27" % S_DB)
        a("v_min_u32 v9, 26, v1")
        a("v_add_u32 v9, s54, v9")
        a("v_lshlrev_b32 v9, 7, v9")
        a("v_add_u32 v9, 0x18000, v9")
        a("s_mov_b32 s69, 0")
        lp, lok = self.lab("h2poll"), self.lab("h2ok")
        a.label(lp)
        a("global_load_dword v3, v2, %s sc1" % sp(P_FL))
        a("global_load_dwordx4 v[10:13], v9, %s sc1" % sp(P_FL))
        a("s_waitcnt vmcnt(0)")
        a("v_xor_b32 v3, s%d, v3" % S_TAG)
        for r in range(10, 14):
            a("v_xor_b32 v%d, s%d, v%d" % (r, S_TAG, r))
        a("v_or3_b32 v3, v3, v10, v11")
        a("v_or3_b32 v3, v3, v12, v13")
        a("v_cmp_ne_u32 vcc, 0, v3")
        a("s_cbranch_vccz %s" % lok)
        self.spin_tail(lp, lok, 8)
        a.label(lok)
        for j in range(3):
            a("global_load_dwordx4 %s, v%d, %s sc1" % (v4(200 + 4 * j), 4 + j, sp(P_H2)))

    def phase6_pre2(self):
        a = self.a
        l = self.lab("p6b")
        for j in range(3):
            if j == 2:
                a("s_cmp_ge_u32 s%d, 2" % S_WAVE)
                a("s_cbranch_scc1 %s" % l)
            for p in range(4):
                a("ds_write_b16 v%d, v%d offset:%d" % (212 + j, 200 + 4 * j + p, (2 * p) * 176))
                a("ds_write_b16_d16_hi v%d, v%d offset:%d" % (212 + j, 200 + 4 * j + p, (2 * p + 1) * 176))
        a.label(l)

    def phase6(self):
        a = self.a
        a("s_mul_i32 s54, s%d, %d" % (S_DB, 5 * 54 * 1024))
        a("v_lshl_add_u32 v2, v1, 4, s54")
        for mt in range(1, 5):
            a("v_add_u32 v%d, %d, v2" % (2 + mt, 54 * 1024 * mt))
        a("s_lshl_b32 s54, s%d, 10" % S_K2)
        a("s_add_u32 s54, s54, 4096")
        a("s_add_u32 s84, s%d, s54" % P_G)
        a("s_addc_u32 s85, s%d, 0" % (P_G + 1))
        a("s_add_u32 s86, s84, 8192")
        a("s_addc_u32 s87, s85, 0")
        a("s_mul_i32 s54, s%d, %d" % (S_SB, 64 * 1280))
        a("s_mul_i32 s55, s%d, 160" % S_DB)
        a("s_add_u32 s54, s54, s55")
        a("s_lshl_b32 s55, s%d, 7" % S_SB)
        for j in range(3):
            a("v_add_u32 v9, %d, v0" % (256 * j))
            if j == 2:
                a("v_min_u32 v9, 639, v9")
            a("v_mul_u32_u24 v10, 6554, v9")
            a("v_lshrrev_b32 v10, 16, v10")
            a("v_mul_u32_u24 v11, 10, v10")
            a("v_sub_u32 v11, v9, v11")
            a("v_mul_u32_u24 v12, 176, v10")
            a("v_lshl_add_u32 v12, v11, 4, v12")
            a("v_add_u32 v%d, %d, v12" % (234 + j, LDS_H))
            a("v_mul_u32_u24 v12, 1280, v10")
            a("v_lshl_add_u32 v12, v11, 4, v12")
            a("v_add_u32 v%d, s54, v12" % (237 + j))
            a("v_lshl_add_u32 v12, v10, 1, s55")
            a("global_load_ushort v%d, v12, %s" % (242 + 2 * j, sp(P_B2)))
        self.gemm_main(14, False, s_short=S_SHORT, tag="g2")
        a("v_bfe_u32 v2, v1, 4, 1")
        a("v_mul_u32_u24 v2, 10240, v2")
        a("v_and_b32 v4, 15, v1")
        a("v_mul_u32_u24 v4, 10, v4")
        a("v_lshrrev_b32 v3, 5, v1")
        a("v_add_u32 v3, v3, v4")
        a("v_lshl_add_u32 v2, v3, 4, v2")
        a("s_mul_i32 s54, s%d, 20480" % S_WAVE)
        a("v_add_u32 v2, s54, v2")
        self.stamp("g2main")
        a("s_barrier")
        for nt in range(4):
            for mt in range(5):
                a("ds_write_b128 v2, %s offset:%d" % (v4(ACC0 + 4 * (nt * 5 + mt)), (nt * 160 + mt * 2) * 16))
        a("v_lshlrev_b32 v3, 4, v0")
        a("v_add_u32 v4, %d, v3" % (2 * 20480))
        for j in range(3):
            a("v_lshlrev_b32 v%d, 16, v%d" % (242 + 2 * j, 242 + 2 * j))
        a("s_waitcnt lgkmcnt(0)")
        a("s_barrier")
        lsk = self.lab("g2skip")
        def reads(j):
            b = 100 + 44 * j
            for w in range(4):
                for hh in range(2):
                    a("ds_read_b128 %s, v%d offset:%d" % (v4(b + 8 * w + 4 * hh), 3 if w < 2 else 4, (w & 1) * 20480 + hh * 10240 + 4096 * j))
            a("ds_read_b128 %s, v%d" % (v4(b + 32), 234 + j))
        reads(0)
        for j in range(3):
            if j == 2:
                a("s_cmp_ge_u32 s%d, 2" % S_WAVE)
                a("s_cbranch_scc1 %s" % lsk)
            b = 100 + 44 * j
            a("s_waitcnt lgkmcnt(0)")
            if j < 2:
                reads(j + 1)
            self.sum4(b)
            self.rnd8(b)
            for p in range(4):
                a("v_pk_add_f32 %s, %s, %s op_sel_hi:[1,0]" % (vp(b + 2 * p), vp(b + 2 * p), vp(242 + 2 * j)))
            self.rnd8(b)
            for p in range(4):
                a("v_lshlrev_b32 v%d, 16, v%d" % (b + 8 + 2 * p, b + 32 + p))
                a("v_and_b32 v%d, 0xffff0000, v%d" % (b + 9 + 2 * p, b + 32 + p))
            for p in range(4):
                a("v_pk_add_f32 %s, %s, %s" % (vp(b + 2 * p), vp(b + 2 * p), vp(b + 8 + 2 * p)))
            for p in range(4):
                a("v_cvt_pk_bf16_f32 v%d, v%d, v%d" % (b + 36 + p, b + 2 * p, b + 2 * p + 1))
            a("global_store_dwordx4 v%d, %s, %s" % (237 + j, v4(b + 36), sp(P_OUT)))
        a.label(lsk)
        self.stamp("g2done")

    def back_half(self):
        a = self.a
        a("s_waitcnt vmcnt(3)")
        for t in self.wl_tr(4, 4):
            a(t)
        a("s_lshl_b32 s54, s%d, 14" % S_WAVE)
        a("v_lshlrev_b32 v181, 7, v0")
        a("v_add_u32 v181, 0x8000, v181")
        a("s_waitcnt lgkmcnt(0)")
        for nt in range(4):
            a("v_add_u32 v%d, s54, v%d" % (WT + nt, WT + nt))
        a("s_barrier")
        self.wl_dma_loop(3456, 8, 15)
        a("global_load_dword v182, v181, %s sc1" % sp(P_FL))
        self.phase4_pre()
        tr = self.wl_tr(8, 8)
        for h in range(4):
            a("s_waitcnt vmcnt(%d)" % (25 - 8 * h))
            for t in tr[16 * h:16 * h + 16]:
                a(t)
        self.pd_check()
        a("s_barrier")
        self.stamp("win2")
        self.phase4()
        a("s_lshl_b32 s90, s%d, 5" % S_K2)
        a("s_lshl_b32 s91, s%d, 7" % S_SB)
        self.wl_setup(P_W2, 4096, 90, 91, None)
        a("v_bfe_u32 v9, v0, 4, 3")
        a("s_lshl_b32 s54, s%d, 7" % S_FB)
        a("v_lshl_add_u32 v9, v9, 4, s54")
        a("global_load_dwordx4 v[242:245], v9, %s" % sp(P_B1))
        a("s_waitcnt lgkmcnt(0)")
        self.wl_dma_loop(4096, 8, 15)
        self.flag_store(2, wait="vmcnt(33)")
        self.stamp("win3")
        lg, lg2 = self.lab("nog1"), self.lab("g1join")
        a("s_cmp_eq_u32 s%d, 0" % S_G1)
        a("s_cbranch_scc1 %s" % lg)
        self.phase5()
        a("s_branch %s" % lg2)
        a.label(lg)
        a("s_lshl_b32 s60, s%d, 5" % S_K2)
        a("s_and_b32 s61, s%d, 3" % S_IDX)
        a("s_mul_i32 s61, s61, 48")
        a("s_add_u32 s60, s60, s61")
        a("s_add_u32 s60, s60, 256")
        a("v_lshrrev_b32 v2, 3, v1")
        a("v_add_u32 v2, s60, v2")
        a("s_lshr_b32 s62, s%d, 1" % S_XCD)
        a("s_lshl_b32 s62, s62, 10")
        a("v_and_b32 v4, 7, v1")
        a("v_lshl_add_u32 v4, v4, 7, s62")
        for n in range(6):
            a("v_add_u32 v3, %d, v2" % (8 * n))
            a("v_min_u32 v3, 1727, v3")
            a("v_lshl_add_u32 v3, v3, 12, v4")
            a("global_load_dword v254, v3, %s" % sp(P_W2))
        a("s_waitcnt vmcnt(0)")
        for t in self.wl_tr(0, 8):
            a(t)
        a("s_waitcnt lgkmcnt(0)")
        a.label(lg2)
        a("s_barrier")
        a("s_sub_u32 s54, 6, s%d" % S_SHORT)
        self.wl_dma_loop(4096, "s54", 15)
        self.phase6_pre()
        for t in self.wl_tr(8, 6):
            a(t)
        a("s_waitcnt vmcnt(0)")
        self.phase6_pre2()
        a("s_waitcnt lgkmcnt(0)")
        self.stamp("win4")
        self.phase6()

    def finish(self):
        a = self.a
        if self.timing:
            a("s_memrealtime s[98:99]")
            a("s_waitcnt lgkmcnt(0)")
            a("v_writelane_b32 v255, s98, 63")
            a("s_lshl_b32 s54, s2, 2")
            a("s_add_u32 s54, s54, s%d" % S_WAVE)
            a("s_lshl_b32 s54, s54, 8")
            a("s_add_u32 s54, s54, 0x%x" % WS_TIME)
            a("v_lshl_add_u32 v2, v1, 2, s54")
            a("global_store_dword v2, v255, %s" % sp(P_WS))
        l = self.lab("nn")
        a("s_or_b32 s54, s2, s%d" % S_WAVE)
        a("s_cmp_lg_u32 s54, 0")
        a("s_cbranch_scc1 %s" % l)
        a("v_mov_b32 v2, 0")
        a("v_mov_b32 v3, s%d" % S_TAG)
        a("s_mov_b64 exec, 1")
        a("global_store_dword v2, v3, %s" % sp(P_WS))
        a.label(l)
        a.label("L_end")
        a("s_endpgm")

    def build(self):
        self.phase0()
        self.phase1()
        self.phase2()
        self.phase3()
        self.back_half()
        self.finish()
        self.a.label("L_codeend")
        self.emit_slowpaths()
        self.a("s_endpgm")
        body = self.a.finalize()
        hdr = open("cdna_kernels/%s.s.ref" % NAME).read().split("; Override launch")[0]
        hdr += "; @launch grid=(256,1,1) block=(256,1,1) lds=%d\n" % LDS_TOTAL
        hdr += '.amdgcn_target "amdgcn-amd-amdhsa--gfx950"\n.text\n.globl %s_kernel\n.p2align 8\n.type %s_kernel,@function\n%s_kernel:\n' % (NAME, NAME, NAME)
        ftr = """.section .rodata,"a"
.p2align 6
.amdhsa_kernel %s_kernel
  .amdhsa_next_free_vgpr 512
  .amdhsa_next_free_sgpr 102
  .amdhsa_accum_offset 256
  .amdhsa_group_segment_fixed_size 0
  .amdhsa_kernarg_size 120
  .amdhsa_user_sgpr_count 2
  .amdhsa_user_sgpr_kernarg_segment_ptr 1
  .amdhsa_system_sgpr_workgroup_id_x 1
.end_amdhsa_kernel
""" % NAME
        return hdr + body + ftr


if __name__ == "__main__":
    import argparse
    ap = argparse.ArgumentParser()
    ap.add_argument("-o", default="k.s")
    ap.add_argument("--timing", action="store_true")
    args = ap.parse_args()
    g = Gen(timing=args.timing)
    open(args.o, "w").write(g.build())
    if args.timing:
        open(args.o + ".names", "w").write(",".join(g.names))
```

```python
import sys, struct, os
from asmdsl import Asm

NAME = "sequential_preLN__ssm_conv_s4d__mixer_token_mlp__prompt"

def f32(x):
    return "0x%08x" % struct.unpack("<I", struct.pack("<f", x))[0]

LOG2E = 1.4426950408889634
INV2PI = 0.15915494309189535

WS_FL = 0x10000
WS_UT = 0x100000
WS_H2 = 0x380000
WS_YT = 0x600000
WS_HP = 0x900000
WS_G = 0xB80000
P2A = 7
P2KB = 19
WS_DBG = 0x1000000
WS_TIME = 0x2000000

ESTR = 528
E1SZ = 21 * ESTR
ECH = E1SZ + 32 * ESTR
LDS_E = 0
CSTR = 4640
CCH = 4 * CSTR
LDS_C = 84224
USTR = 4224
LDS_U = 139904
LDS_XR = LDS_U
XRS = 1344
LDS_SR = 152576
LDS_SC = 152704
LDS_SHP = 65536
LDS_SHF = 81920
OWNS = 24576 + 64
OHS = 12288 + 64
LDS_OWN = LDS_C
LDS_LN = 160000
LDS_MID = 81920
LDS_H = 147456
LDS_TOTAL = 163840

S_WAVE, S_XCD, S_IDX, S_OCT = 3, 4, 5, 6
S_CF, S_PAR, S_TAG = 7, 9, 10
P_UT, P_H2 = 12, 14
P_X, P_LOGA, P_AIM, P_CR, P_CI, P_LDT, P_DSK = 16, 18, 20, 22, 24, 26, 28
P_W1, P_B1, P_W2, P_B2, P_OUT, P_DBG, P_WS = 32, 34, 36, 38, 40, 42, 44
P_YT, P_HP, P_G, P_FL = 46, 48, 50, 52
S_DB, S_FB, S_SB, S_G1 = 76, 77, 78, 79
S_K2, S_SHORT = 92, 93
XG, TG = 200, 212
WD, WT = 234, 238
ACC0, SLOT0, NSLOT = 14, 94, 7
QA, QB = [7, 4, 3, 0], [6, 5, 2, 1]
SPIN = 200000
TLBW = int(os.environ.get('TLBW', '1'))
BGX = os.environ.get('BGX', 'z')

def sp(n): return "s[%d:%d]" % (n, n + 1)
def vp(n): return "v[%d:%d]" % (n, n + 1)
def v4(n): return "v[%d:%d]" % (n, n + 3)
def a4(n): return "a[%d:%d]" % (n, n + 3)
def a2(n): return "a[%d:%d]" % (n, n + 1)


class Gen:
    def __init__(self, debug=0, timing=False):
        self.a = Asm()
        self.debug = debug
        self.timing = timing
        self.nstamp = 0
        self.names = []
        self.uid = 0
        self.slowpaths = []

    def lab(self, base):
        self.uid += 1
        return "L_%s_%d" % (base, self.uid)

    def stamp(self, name=""):
        if not self.timing:
            return
        a = self.a
        a("s_memrealtime s[98:99]" if os.environ.get("RT") else "s_memtime s[98:99]")
        a("s_waitcnt lgkmcnt(0)")
        a("v_writelane_b32 v255, s98, %d" % self.nstamp)
        if self.nstamp >= 30:
            pass
        elif self.nstamp >= len(self.names):
            self.names.append(name)
        else:
            self.names[self.nstamp] += "/" + name
        self.nstamp += 1

    def weave(self, mark, bg, lo=0.0, hi=1.0):
        a = self.a
        seg = a.ins[mark:]
        del a.ins[mark:]
        n = len(seg)
        pos = [int(n * (lo + (hi - lo) * (k + 0.5) / len(bg))) for k in range(len(bg))]
        k = 0
        for i, ins in enumerate(seg):
            while k < len(bg) and pos[k] <= i:
                for t in bg[k]:
                    a(t)
                k += 1
            a.ins.append(ins)
        while k < len(bg):
            for t in bg[k]:
                a(t)
            k += 1

    def cmuls(self, lst):
        a = self.a
        for d, x, y in lst:
            a("v_pk_mul_f32 %s, %s, %s op_sel:[0,0] op_sel_hi:[0,1]" % (vp(d), vp(x), vp(y)))
        for d, x, y in lst:
            a("v_pk_fma_f32 %s, %s, %s, %s op_sel:[1,1,0] op_sel_hi:[1,0,1] neg_lo:[0,1,0]" % (vp(d), vp(x), vp(y), vp(d)))

    def cexps(self, items, tmp):
        a = self.a
        for n, (d, k, ar, ap) in enumerate(items):
            t = tmp + 2 * n
            a("v_mul_f32 v%d, %s, v%d" % (t, f32(float(2 ** k)), ar))
            a("v_mul_f32 v%d, %s, v%d" % (t + 1, f32(float(2 ** k)), ap))
        for n, it in enumerate(items):
            t = tmp + 2 * n
            a("v_exp_f32 v%d, v%d" % (t, t))
            a("v_fract_f32 v%d, v%d" % (t + 1, t + 1))
        for n, it in enumerate(items):
            t = tmp + 2 * n
            a("v_cos_f32 v%d, v%d" % (it[0], t + 1))
            a("v_sin_f32 v%d, v%d" % (it[0] + 1, t + 1))
        for n, it in enumerate(items):
            t = tmp + 2 * n
            a("v_pk_mul_f32 %s, %s, %s op_sel:[0,0] op_sel_hi:[0,1]" % (vp(it[0]), vp(t), vp(it[0])))

    def rowreduce16(self, regs, op="v_add_f32"):
        a = self.a
        for mode in ("quad_perm:[1,0,3,2]", "quad_perm:[2,3,0,1]", "row_half_mirror", "row_mirror"):
            for r in regs:
                a("%s_dpp v%d, v%d, v%d %s row_mask:0xf bank_mask:0xf" % (op, r, r, r, mode))

    def bf16_round(self, d, s):
        a = self.a
        a("v_cvt_pk_bf16_f32 v%d, v%d, v%d" % (d, s, s))
        a("v_and_b32 v%d, 0xffff0000, v%d" % (d, d))

    def spin_tail(self, lp, lok, sleep):
        a = self.a
        a("s_add_u32 s69, s69, 1")
        a("s_cmp_gt_u32 s69, %d" % SPIN)
        a("s_cbranch_scc1 %s" % lok)
        a("s_sleep %d" % sleep)
        a("s_branch %s" % lp)

    def wait_w3(self, n, extra):
        a = self.a
        if 'z' in BGX:
            a("s_waitcnt vmcnt(%d)%s" % (n, extra))
            return
        l = self.lab("ww3")
        a("s_waitcnt vmcnt(%d)%s" % (n + 4, extra))
        a("s_cmp_eq_u32 s%d, 3" % S_WAVE)
        a("s_cbranch_scc1 %s" % l)
        a("s_waitcnt vmcnt(%d)" % n)
        a.label(l)

    def flag_store(self, arr, per_wave=True, wait="vmcnt(0)"):
        a = self.a
        a("s_lshl_b32 s54, s%d, 7" % S_OCT)
        if arr:
            a("s_add_u32 s54, s54, %d" % (arr * 0x8000))
        if per_wave:
            a("s_lshl_b32 s55, s%d, 2" % S_WAVE)
            a("s_add_u32 s54, s54, s55")
        a("v_mov_b32 v2, s54")
        a("v_mov_b32 v3, s%d" % S_TAG)
        if wait:
            a("s_waitcnt %s" % wait)
        a("s_mov_b64 exec, 1")
        a("global_store_dword v2, v3, %s sc1" % sp(P_FL))
        a("s_mov_b64 exec, -1")

    def phase0(self):
        a = self.a
        a("s_cmp_ge_u32 s2, 256")
        a("s_cbranch_scc1 L_end")
        a("s_load_dwordx16 s[16:31], s[0:1], 0")
        a("s_load_dwordx8 s[32:39], s[0:1], 64")
        a("s_load_dwordx4 s[40:43], s[0:1], 96")
        a("s_load_dwordx2 s[44:45], s[0:1], 112")
        a("s_getpc_b64 s[94:95]")
        a.label("L_pc")
        a("v_lshrrev_b32 v2, 6, v0")
        a("v_and_b32 v1, 63, v0")
        a("v_readfirstlane_b32 s%d, v2" % S_WAVE)
        a("s_and_b32 s%d, s2, 7" % S_XCD)
        a("s_lshr_b32 s%d, s2, 3" % S_IDX)
        a("s_lshl_b32 s%d, s%d, 5" % (S_OCT, S_XCD))
        a("s_add_u32 s%d, s%d, s%d" % (S_OCT, S_OCT, S_IDX))
        a("s_lshl_b32 s54, s%d, 4" % S_IDX)
        a("v_add_u32 v3, s54, v0")
        a("v_lshlrev_b32 v3, 7, v3")
        a("v_min_u32 v3, (L_codeend-L_pc-4), v3")
        a("v_cmp_gt_u32 vcc, 16, v0")
        a("s_and_saveexec_b64 s[54:55], vcc")
        lq = self.lab("cpf")
        a("s_cbranch_execz %s" % lq)
        a("global_load_dword v254, v3, s[94:95]")
        a.label(lq)
        a("s_mov_b64 exec, -1")
        a("s_mul_i32 s54, s%d, 80" % S_XCD)
        a("s_min_u32 s55, s%d, 26" % S_IDX)
        a("s_mul_i32 s55, s55, 3")
        a("s_add_u32 s%d, s54, s55" % S_CF)
        a("s_lshl_b32 s54, s%d, 3" % S_OCT)
        a("s_lshl_b32 s55, s%d, 1" % S_WAVE)
        a("s_add_u32 s54, s54, s55")
        a("v_lshrrev_b32 v9, 5, v1")
        a("v_add_u32 v4, s54, v9")
        a("v_mul_u32_u24 v4, 1280, v4")
        a("v_and_b32 v5, 31, v1")
        a("v_lshl_add_u32 v4, v5, 3, v4")
        a("v_add_u32 v9, s55, v9")
        a("v_mul_u32_u24 v8, %d, v9" % XRS)
        a("v_lshl_add_u32 v8, v5, 3, v8")
        a("v_add_u32 v8, %d, v8" % LDS_XR)
        a("s_min_u32 s56, s%d, 2" % S_WAVE)
        a("s_add_u32 s56, s56, s%d" % S_CF)
        a("s_min_u32 s56, s56, 639")
        a("s_lshl_b32 s57, s56, 8")
        a("v_lshl_add_u32 v6, v1, 2, s57")
        a("v_lshlrev_b32 v7, 1, v0")
        a("v_min_u32 v181, 159, v0")
        a("v_lshrrev_b32 v182, 2, v181")
        a("v_mul_u32_u24 v183, 13108, v182")
        a("v_lshrrev_b32 v183, 16, v183")
        a("v_mul_u32_u24 v183, 27, v183")
        a("v_add3_u32 v182, v182, v183, 27")
        a("v_and_b32 v181, 3, v181")
        a("v_lshlrev_b32 v181, 2, v181")
        a("v_lshl_add_u32 v233, v182, 7, v181")
        a("v_add_u32 v233, 0x8000, v233")
        a("s_lshl_b32 s61, s2, 2")
        a("s_add_u32 s61, s61, s%d" % S_WAVE)
        a("s_lshr_b32 s62, s61, 8")
        a("s_and_b32 s61, s61, 255")
        a("s_lshl_b32 s63, s62, 9")
        a("s_add_u32 s63, s63, s61")
        a("s_mul_i32 s63, s63, 3456")
        a("v_min_u32 v231, 26, v1")
        a("v_lshl_add_u32 v231, v231, 7, s63")
        a("s_mul_i32 s63, s62, 448")
        a("s_min_u32 s63, s63, 1312")
        a("s_add_u32 s63, s63, s61")
        a("s_lshl_b32 s96, s63, 12")
        a("s_add_u32 s63, s63, 256")
        a("s_min_u32 s63, s63, 1727")
        a("s_lshl_b32 s97, s63, 12")
        a("v_and_b32 v232, 31, v1")
        a("v_lshlrev_b32 v232, 7, v232")
        if self.timing:
            a("v_mov_b32 v255, 0")
        a("s_waitcnt lgkmcnt(0)")
        self.stamp("start")
        if self.timing:
            a("s_memrealtime s[98:99]")
            a("s_waitcnt lgkmcnt(0)")
            a("v_writelane_b32 v255, s98, 62")
        for k in range(5):
            a("global_load_dwordx2 %s, v4, %s offset:%d" % (vp(10 + 2 * k), sp(P_X), 256 * k))
        a("global_load_ushort v228, v7, %s" % sp(P_DSK))
        a("global_load_ushort v229, v7, %s offset:512" % sp(P_DSK))
        a("v_min_u32 v7, 254, v7")
        a("global_load_ushort v230, v7, %s offset:1024" % sp(P_DSK))
        for n, p in enumerate((P_LOGA, P_AIM, P_CR, P_CI)):
            a("global_load_dword v%d, v6, %s" % (224 + n, sp(p)))
        a("global_load_dword v254, v231, %s" % sp(P_W1))
        a("v_add_u32 v231, %d, v231" % (256 * 3456))
        a("s_load_dword s%d, %s, 0" % (S_TAG, sp(P_WS)))
        a("s_lshl_b32 s57, s56, 1")
        a("s_and_b32 s57, s57, 0xfffffffc")
        a("s_load_dword s59, %s, s57" % sp(P_LDT))
        for p, off in ((P_YT, WS_YT), (P_HP, WS_HP), (P_G, WS_G), (P_FL, WS_FL), (P_UT, WS_UT), (P_H2, WS_H2)):
            a("s_add_u32 s%d, s%d, 0x%x" % (p, P_WS, off))
            a("s_addc_u32 s%d, s%d, 0" % (p + 1, P_WS + 1))
        a("s_and_b32 s54, s%d, 1" % S_XCD)
        a("s_lshl_b32 s54, s54, 2")
        a("s_and_b32 s55, s%d, 3" % S_IDX)
        a("s_add_u32 s%d, s54, s55" % S_DB)
        a("s_lshr_b32 s54, s%d, 1" % S_XCD)
        a("s_lshr_b32 s55, s%d, 2" % S_IDX)
        a("s_mul_i32 s%d, s54, 7" % S_FB)
        a("s_add_u32 s%d, s%d, s55" % (S_FB, S_FB))
        a("s_lshl_b32 s%d, s54, 3" % S_SB)
        a("s_add_u32 s%d, s%d, s55" % (S_SB, S_SB))
        a("s_mov_b32 s%d, 1" % S_G1)
        a("s_cmp_ge_u32 s55, 7")
        a("s_cmov_b32 s%d, 0" % S_G1)
        a("s_cmp_ge_u32 s%d, 27" % S_FB)
        a("s_cmov_b32 s%d, 0" % S_G1)
        a("s_min_u32 s%d, s%d, 26" % (S_FB, S_FB))
        a("s_mul_i32 s%d, s%d, 14" % (S_K2, S_WAVE))
        a("s_lshr_b32 s%d, s%d, 1" % (S_SHORT, S_WAVE))
        a("s_cmp_eq_u32 s%d, 3" % S_WAVE)
        a("s_cmov_b32 s%d, 41" % S_K2)

    def phase1(self):
        a = self.a
        a("v_mov_b32 v24, 0")
        a("v_mov_b32 v25, 0")
        a("v_mov_b32 v26, 0x3f803f80")
        a("v_bfe_u32 v27, v1, 2, 2")
        a("v_mul_u32_u24 v27, %d, v27" % XRS)
        a("v_lshrrev_b32 v28, 4, v0")
        a("v_lshl_add_u32 v27, v28, 5, v27")
        a("v_and_b32 v28, 3, v1")
        a("v_lshl_add_u32 v27, v28, 3, v27")
        a("v_add_u32 v27, %d, v27" % LDS_XR)
        a("v_lshlrev_b32 v29, 2, v9")
        a("v_add_u32 v29, %d, v29" % LDS_SR)
        a("v_mov_b32 v30, %d" % LDS_SR)
        a("s_mul_i32 s58, s%d, 10240" % S_OCT)
        a("v_lshl_add_u32 v2, v0, 4, s58")
        a("v_add_u32 v3, 4096, v2")
        a("v_add_u32 v4, 8192, v2")
        a("s_waitcnt vmcnt(8) lgkmcnt(0)")
        for k in range(5):
            a("ds_write_b64 v8, %s offset:%d" % (vp(10 + 2 * k), 256 * k))
        for k in range(10):
            a("v_dot2_f32_bf16 v24, v%d, v26, v24" % (10 + k))
            a("v_dot2_f32_bf16 v25, v%d, v%d, v25" % (10 + k, 10 + k))
        a("s_mul_i32 s%d, s%d, 1664525" % (S_TAG, S_TAG))
        a("s_add_u32 s%d, s%d, 1013904223" % (S_TAG, S_TAG))
        a("s_nop 1")
        self.rowreduce16([24, 25])
        a("v_mov_b32 v31, v24")
        a("v_mov_b32 v32, v25")
        a("v_permlane16_swap_b32 v24, v31")
        a("v_permlane16_swap_b32 v25, v32")
        a("v_add_f32 v24, v24, v31")
        a("v_add_f32 v25, v25, v32")
        a("v_mul_f32 v24, %s, v24" % f32(1.0 / 640))
        a("v_mul_f32 v25, %s, v25" % f32(1.0 / 640))
        a("v_fma_f32 v25, -v24, v24, v25")
        a("v_max_f32 v25, 0, v25")
        self.bf16_round(25, 25)
        self.bf16_round(24, 24)
        a("v_add_f32 v25, %s, v25" % f32(1e-5))
        self.bf16_round(25, 25)
        a("v_sqrt_f32 v25, v25")
        self.bf16_round(25, 25)
        a("v_rcp_f32 v25, v25")
        a("ds_write_b32 v29, v24")
        a("ds_write_b32 v29, v25 offset:32")
        a("s_waitcnt lgkmcnt(0)")
        a("s_barrier")
        self.stamp("stats")
        for j in range(3):
            for hh in range(2):
                a("ds_read_b64_tr_b16 %s, v27 offset:%d" % (vp(XG + 4 * j + 2 * hh), 512 * j + 4 * XRS * hh))
        for q in range(4):
            a("ds_read_b128 %s, v30 offset:%d" % (v4(32 + 4 * q), 16 * q))
        W = lambda n: 48 + 2 * n
        it = [(j, p) for j in range(3) for p in range(4)]
        def unpack(srcf):
            for n in range(12):
                a("v_lshlrev_b32 v%d, 16, v%d" % (W(n), srcf(n)))
                a("v_and_b32 v%d, 0xffff0000, v%d" % (W(n) + 1, srcf(n)))
        def cvt(dstf, op="v_cvt_pk_bf16_f32"):
            for n in range(12):
                a("%s v%d, v%d, v%d" % (op, dstf(n), W(n), W(n) + 1))
        a("s_waitcnt lgkmcnt(4)")
        unpack(lambda n: XG + n)
        a("s_waitcnt lgkmcnt(0)")
        for n, (j, p) in enumerate(it):
            a("v_pk_add_f32 %s, %s, %s neg_lo:[0,1] neg_hi:[0,1]" % (vp(W(n)), vp(W(n)), vp(32 + 2 * p)))
        cvt(lambda n: 72 + n)
        unpack(lambda n: 72 + n)
        for n, (j, p) in enumerate(it):
            a("v_pk_mul_f32 %s, %s, %s" % (vp(W(n)), vp(W(n)), vp(40 + 2 * p)))
        cvt(lambda n: 72 + n)
        unpack(lambda n: 72 + n)
        cvt(lambda n: 84 + n, "v_cvt_pk_f16_f32")
        a("s_waitcnt vmcnt(1)")
        a("global_store_dwordx4 v2, v[84:87], %s sc1" % sp(P_UT))
        a("global_store_dwordx4 v3, v[88:91], %s sc1" % sp(P_UT))
        l = self.lab("ut3")
        a("s_cmp_ge_u32 s%d, 2" % S_WAVE)
        a("s_cbranch_scc1 %s" % l)
        a("global_store_dwordx4 v4, v[92:95], %s sc1" % sp(P_UT))
        a.label(l)
        for j in range(3):
            a("v_lshlrev_b32 v%d, 16, v%d" % (100 + 2 * j, 228 + j))
        for n, (j, p) in enumerate(it):
            a("v_pk_mul_f32 %s, %s, %s op_sel_hi:[1,0]" % (vp(W(n)), vp(W(n)), vp(100 + 2 * j)))
        cvt(lambda n: TG + n)
        self.stamp("utstore")

    def wl_setup(self, ptr, rs, row0_sgpr, col_sgpr, stage_shift):
        a = self.a
        a("v_lshrrev_b32 v2, 3, v1")
        a("v_and_b32 v3, 7, v1")
        a("v_and_b32 v4, 2, v2")
        a("v_xor_b32 v3, v3, v4")
        a("v_mul_u32_u24 v2, %d, v2" % rs)
        a("v_lshl_add_u32 v%d, v3, 4, v2" % WD)
        a("v_xor_b32 v3, 4, v3")
        a("v_lshl_add_u32 v%d, v3, 4, v2" % (WD + 1))
        a("v_add_u32 v%d, %d, v%d" % (WD + 1, 8 * rs - 1024, WD + 1))
        a("v_add_u32 v%d, %d, v%d" % (WD + 2, 16 * rs - 2048, WD))
        a("v_add_u32 v%d, %d, v%d" % (WD + 3, 16 * rs - 2048, WD + 1))
        a("s_mul_i32 s54, s%d, %d" % (row0_sgpr, rs))
        a("s_add_u32 s54, s54, s%d" % col_sgpr)
        a("s_add_u32 s80, s%d, s54" % ptr)
        a("s_addc_u32 s81, s%d, 0" % (ptr + 1))
        if stage_shift is not None:
            a("v_lshrrev_b32 v2, 4, v1")
            a("v_bfe_u32 v3, v1, 2, 2")
            a("v_lshl_add_u32 v4, v2, 3, v3")
            a("v_lshlrev_b32 v4, 7, v4")
            a("v_and_b32 v5, 3, v1")
            a("v_lshl_add_u32 v4, v5, 3, v4")
            a("s_lshl_b32 s54, s%d, %d" % (S_WAVE, stage_shift))
            a("v_add_u32 v4, s54, v4")
            a("v_lshrrev_b32 v3, 1, v3")
            a("v_and_b32 v2, 1, v2")
            a("v_lshl_add_u32 v2, v2, 1, v3")
            for nt in range(4):
                a("v_xor_b32 v3, %d, v2" % nt)
                a("v_lshl_add_u32 v%d, v3, 5, v4" % (WT + nt))

    def wl_dma_groups(self, rs, nks, stage_shift, slot0=0):
        G = []
        for s in range(nks):
            g = []
            if s == 0:
                g.append("s_lshl_b32 s82, s%d, %d" % (S_WAVE, stage_shift))
                if slot0:
                    g.append("s_add_u32 s82, s82, %d" % (4096 * slot0))
            g.append("s_mov_b32 m0, s82")
            g.append("s_add_u32 s82, s82, 4096")
            g.append("global_load_lds_dwordx4 v%d, s[80:81]" % WD)
            g.append("global_load_lds_dwordx4 v%d, s[80:81] offset:1024" % (WD + 1))
            G.append(g)
            G.append(["global_load_lds_dwordx4 v%d, s[80:81] offset:2048" % (WD + 2),
                      "global_load_lds_dwordx4 v%d, s[80:81] offset:3072" % (WD + 3),
                      "s_add_u32 s80, s80, %d" % (32 * rs), "s_addc_u32 s81, s81, 0"])
        return G

    def wl_dma_loop(self, rs, count, stage_shift, slot0=0):
        a = self.a
        a("s_lshl_b32 s82, s%d, %d" % (S_WAVE, stage_shift))
        if slot0:
            a("s_add_u32 s82, s82, %d" % (4096 * slot0))
        a("s_mov_b32 s83, %s" % str(count))
        lp = self.lab("dma")
        a.label(lp)
        a("s_mov_b32 m0, s82")
        a("s_add_u32 s82, s82, 4096")
        for k in range(4):
            a("global_load_lds_dwordx4 v%d, s[80:81] offset:%d" % (WD + k, 1024 * k))
        a("s_add_u32 s80, s80, %d" % (32 * rs))
        a("s_addc_u32 s81, s81, 0")
        a("s_sub_u32 s83, s83, 1")
        a("s_cmp_gt_i32 s83, 0")
        a("s_cbranch_scc1 %s" % lp)

    def wl_tr(self, ks0, nks, slot0=0):
        return ["ds_read_b64_tr_b16 %s, v%d offset:%d" % (a2(((ks0 + s) * 4 + nt) * 4 + 2 * hf), WT + nt, (slot0 + s) * 4096 + hf * 512)
                for s in range(nks) for nt in range(4) for hf in range(2)]

    def phase2(self):
        a = self.a
        lW3 = self.lab("w3")
        lKd = self.lab("kdone")
        st0 = self.nstamp
        a("s_cmp_ge_u32 s%d, 27" % S_IDX)
        a("s_cbranch_scc1 L_helper")
        a("s_cmp_eq_u32 s%d, 3" % S_WAVE)
        a("s_cbranch_scc1 %s" % lW3)
        a("s_and_b32 s57, s56, 1")
        a("s_lshl_b32 s57, s57, 4")
        a("s_lshr_b32 s59, s59, s57")
        a("s_lshl_b32 s59, s59, 16")
        a("v_mov_b32 v242, %s" % f32(LOG2E))
        a("v_mul_f32 v242, s59, v242")
        a("v_exp_f32 v242, v242")
        a("v_and_b32 v243, 0x7fff7fff, v226")
        a("v_and_b32 v244, 0x7fff7fff, v227")
        a("v_pk_max_u16 v243, v243, v244")
        a("v_lshlrev_b32 v244, 16, v243")
        a("v_max_u32 v243, v243, v244")
        self.bf16_round(242, 242)
        a("v_lshlrev_b32 v246, 16, v224")
        a("v_and_b32 v250, 0xffff0000, v224")
        fill = [["v_mul_f32 v246, %s, v246" % f32(LOG2E), "v_mul_f32 v250, %s, v250" % f32(LOG2E)],
                ["v_exp_f32 v246, v246", "v_exp_f32 v250, v250"],
                ["v_lshlrev_b32 v247, 16, v225", "v_and_b32 v251, 0xffff0000, v225"],
                ["v_mul_f32 v247, v247, v242", "v_mul_f32 v251, v251, v242"]]
        for mode, fl in zip(("quad_perm:[1,0,3,2]", "quad_perm:[2,3,0,1]", "row_half_mirror", "row_mirror"), fill):
            a("v_max_u32_dpp v243, v243, v243 %s row_mask:0xf bank_mask:0xf" % mode)
            for t in fl:
                a(t)
        for sw, r, src in (("v_permlane16_swap_b32", 248, 226), ("v_permlane32_swap_b32", 249, 227)):
            a("v_mov_b32 v244, v243")
            a("v_lshlrev_b32 v%d, 16, v%d" % (r, src))
            a("v_and_b32 v%d, 0xffff0000, v%d" % (r + 4, src))
            a("%s v243, v244" % sw)
            a("v_max_u32 v243, v243, v244")
        self.bf16_round(246, 246)
        self.bf16_round(250, 250)
        a("v_mul_f32 v247, %s, v247" % f32(INV2PI))
        a("v_mul_f32 v251, %s, v251" % f32(INV2PI))
        a("v_mul_f32 v246, v246, v242")
        a("v_mul_f32 v250, v250, v242")
        a("v_mul_f32 v246, %s, v246" % f32(-LOG2E))
        a("v_mul_f32 v250, %s, v250" % f32(-LOG2E))
        SA, SB = 10, 100
        E = lambda S, j: S + 2 * j
        T = lambda S, j: S + 34 + 2 * j
        GK = lambda S, k: S + 66 + 2 * {0: 0, 1: 1, 2: 2, 8: 3, 9: 4, 10: 5, 11: 6}[k]
        self.cexps([(E(SA, 1), 3, 246, 247), (E(SB, 1), 3, 250, 251), (GK(SA, 0), 0, 246, 247), (GK(SB, 0), 0, 250, 251),
                    (GK(SA, 8), 8, 246, 247), (GK(SB, 8), 8, 250, 251)], 180)
        a("v_and_b32 v243, 0x7f800000, v243")
        a("v_max_u32 v243, 0x00800000, v243")
        a("v_min_u32 v243, 0x7e800000, v243")
        a("v_sub_u32 v244, 0x7f800000, v243")
        a("v_mul_f32 v245, v243, v242")
        for r in (248, 249, 252, 253):
            a("v_mul_f32 v%d, v%d, v244" % (r, r))
        a("s_lshl_b32 s54, s%d, 2" % S_WAVE)
        a("s_add_u32 s54, s54, %d" % LDS_SC)
        a("v_mov_b32 v5, s54")
        a("ds_write_b32 v5, v245")
        a("s_mul_i32 s60, s%d, %d" % (S_WAVE, ECH))
        a("v_lshl_add_u32 v6, v1, 3, s60")
        self.flag_store(0)
        a("global_load_dword v254, v231, %s" % sp(P_W1))
        self.stamp("flag")
        mark = len(a.ins)
        tmpn = [0]
        def st(off, ra, rb, neg=False):
            t = 188 + 2 * (tmpn[0] % 6)
            tmpn[0] += 1
            ng = "-" if neg else ""
            return ["v_cvt_pk_f16_f32 v%d, v%d, %sv%d" % (t, ra, ng, ra + 1),
                    "v_cvt_pk_f16_f32 v%d, v%d, %sv%d" % (t + 1, rb, ng, rb + 1),
                    "ds_write_b64 v6, %s offset:%d" % (vp(t), off)]
        sq = lambda d, x: (d, x, x)
        SS = (SA, SB)
        R = lambda S, r: ((248 if S == SA else 252) if r == 0 else S + 2 * r)
        a("v_mov_b32 v196, 0x00003c00")
        a("v_mov_b32 v197, 0x00003c00")
        a("ds_write_b64 v6, v[196:197] offset:%d" % (LDS_E + E1SZ))
        self.cmuls([sq(E(S, 2), E(S, 1)) for S in SS] + [sq(GK(S, 1), GK(S, 0)) for S in SS] + [sq(GK(S, 9), GK(S, 8)) for S in SS])
        self.cmuls([sq(E(S, 4), E(S, 2)) for S in SS] + [(E(S, 3), E(S, 1), E(S, 2)) for S in SS] +
                   [sq(GK(S, 2), GK(S, 1)) for S in SS] + [sq(GK(S, 10), GK(S, 9)) for S in SS])
        m2 = len(a.ins)
        self.cmuls([sq(E(S, 8), E(S, 4)) for S in SS] + [(E(S, 4 + j), E(S, j), E(S, 4)) for j in (1, 2, 3) for S in SS] +
                   [sq(GK(S, 11), GK(S, 10)) for S in SS])
        self.weave(m2, [st(LDS_E + E1SZ + j * ESTR, E(SA, j), E(SB, j)) for j in (1, 2, 3, 4)] + [st(LDS_E, R(SA, 0), R(SB, 0), True)])
        m2 = len(a.ins)
        self.cmuls([sq(E(S, 16), E(S, 8)) for S in SS] + [(E(S, 8 + j), E(S, j), E(S, 8)) for j in range(1, 8) for S in SS])
        self.weave(m2, [st(LDS_E + E1SZ + j * ESTR, E(SA, j), E(SB, j)) for j in (5, 6, 7, 8)])
        m2 = len(a.ins)
        self.cmuls([(T(S, j), E(S, j), E(S, 16)) for j in range(1, 16) for S in SS])
        self.weave(m2, [st(LDS_E + E1SZ + j * ESTR, E(SA, j), E(SB, j)) for j in range(9, 17)])
        R = lambda S, r: ((248 if S == SA else 252) if r == 0 else (S + 2 * r if r <= 16 else S + 80 + 2 * (r - 17)))
        l1 = [(1, 0, 0), (2, 0, 1), (4, 0, 2), (8, 0, 8), (12, 0, 9), (16, 0, 10), (20, 0, 11)]
        l2 = [(3, 1, 1), (5, 1, 2), (6, 2, 2), (9, 2, 8), (10, 4, 8), (13, 4, 9), (14, 8, 9), (17, 8, 10), (18, 12, 10)]
        l3 = [(7, 3, 2), (11, 6, 8), (15, 10, 9), (19, 14, 10)]
        tst = [st(LDS_E + E1SZ + (16 + j) * ESTR, T(SA, j), T(SB, j)) for j in range(1, 16)]
        m2 = len(a.ins)
        self.cmuls([(R(S, d), R(S, x), GK(S, k)) for d, x, k in l1 for S in SS])
        self.weave(m2, tst[:7])
        m2 = len(a.ins)
        self.cmuls([(R(S, d), R(S, x), GK(S, k)) for d, x, k in l2 for S in SS])
        self.weave(m2, tst[7:])
        m2 = len(a.ins)
        self.cmuls([(R(S, d), R(S, x), GK(S, k)) for d, x, k in l3 for S in SS])
        self.weave(m2, [st(LDS_E + d * ESTR, R(SA, d), R(SB, d), True) for d, x, k in l1])
        for d, x, k in l2 + l3:
            for t in st(LDS_E + d * ESTR, R(SA, d), R(SB, d), True):
                a(t)
        self.stamp("Edone")
        a("v_and_b32 v2, 31, v1")
        a("v_lshrrev_b32 v3, 5, v1")
        a("v_mul_u32_u24 v4, %d, v2" % ESTR)
        a("v_lshl_add_u32 v4, v3, 4, v4")
        a("v_add_u32 v4, s60, v4")
        for ks in range(16):
            a("ds_read_b128 %s, v4 offset:%d" % (v4(32 + 8 * ks), LDS_E + ks * 32))
            a("ds_read_b128 %s, v4 offset:%d" % (v4(36 + 8 * ks), LDS_E + E1SZ + ks * 32))
            if ks >= 6:
                k = ks - 6
                a("s_waitcnt lgkmcnt(12)")
                a("v_mfma_f32_32x32x16_f16 v[8:23], %s, %s, %s" % (v4(32 + 8 * k), v4(36 + 8 * k), "0" if k == 0 else "v[8:23]"))
        a("s_mul_i32 s55, s%d, %d" % (S_WAVE, CCH))
        a("s_add_u32 s55, s55, %d" % (LDS_C + 3 * CSTR))
        a("v_lshlrev_b32 v5, 4, v2")
        a("v_sub_u32 v5, s55, v5")
        a("v_lshlrev_b32 v6, 3, v3")
        a("v_sub_u32 v6, v5, v6")
        a("v_lshl_add_u32 v7, v1, 4, s55")
        for r in range(4):
            a("v_mov_b32 v%d, 0" % (164 + r))
        for k in range(10, 16):
            a("s_waitcnt lgkmcnt(%d)" % (2 * (15 - k)))
            a("v_mfma_f32_32x32x16_f16 v[8:23], %s, %s, v[8:23]" % (v4(32 + 8 * k), v4(36 + 8 * k)))
        a("v_cmp_gt_u32 vcc, 34, v1")
        a("s_and_saveexec_b64 s[62:63], vcc")
        a("ds_write_b128 v7, v[164:167] offset:4096")
        a("s_mov_b64 exec, -1")
        a("v_min_u32 v168, 23, v1")
        a("v_lshl_add_u32 v168, v168, 4, s55")
        a("v_add_u32 v168, 4096, v168")
        a("v_subrev_u32 v169, %d, v7" % (3 * CSTR))
        a("v_subrev_u32 v170, %d, v168" % (3 * CSTR))
        for i in range(4):
            a("v_cvt_pk_f16_f32 v%d, v%d, v%d" % (24 + 2 * i, 16 + i, 16 + i))
            a("v_cvt_pk_f16_f32 v%d, v%d, v%d" % (25 + 2 * i, 16 + i, 16 + i))
        for d, x, y in ((32, 13, 13), (34, 13, 12), (35, 12, 12), (36, 15, 15), (38, 15, 14), (39, 14, 14), (40, 14, 13),
                        (41, 12, 12), (42, 11, 10), (43, 9, 8)):
            a("v_cvt_pk_f16_f32 v%d, v%d, v%d" % (d, x, y))
        a("s_mov_b32 exec_hi, 0")
        for i in range(4):
            P = 1020 - 256 * i
            a("ds_write_b64 v5, %s offset:%d" % (vp(24 + 2 * i), 2 * P))
            a("ds_write_b64 v5, %s offset:%d" % (vp(24 + 2 * i), 2 * P + 8))
        a("s_mov_b32 exec_lo, 0x55555555")
        for i in range(4):
            P = 1019 - 256 * i
            a("ds_write_b16 v5, v%d offset:%d" % (24 + 2 * i, 2 * P))
        a("s_mov_b32 exec_lo, 0")
        a("s_mov_b32 exec_hi, 1")
        a("ds_write_b64 v5, %s" % vp(24))
        a("s_mov_b32 exec_hi, -1")
        for i, (bb, ba, aa) in enumerate(((32, 34, 35), (36, 38, 39))):
            P = 2042 - 512 - 256 * i
            a("ds_write_b32 v5, v%d offset:%d" % (bb, 2 * P))
            a("ds_write_b64 v5, %s offset:%d" % (vp(ba), 2 * P + 4))
            a("ds_write_b32 v5, v%d offset:%d" % (aa, 2 * P + 12))
        a("s_mov_b32 exec_lo, -1")
        a("s_mov_b32 exec_hi, 0")
        P = 2041 - 256
        a("ds_write_b16 v5, v36 offset:%d" % (2 * P))
        a("ds_write_b32 v5, v39 offset:%d" % (2 * P + 2))
        a("ds_write_b64 v5, %s offset:%d" % (vp(40), 2 * P + 6))
        a("ds_write_b16 v5, v35 offset:%d" % (2 * P + 14))
        a("s_mov_b64 exec, -1")
        a("ds_write_b64 v6, %s offset:%d" % (vp(42), 2 * 2044))
        self.stamp("Kexp")
        for rnd in range(5):
            b = 44 + 24 * rnd
            src = "v7 offset:%d" % (1024 * rnd) if rnd < 4 else "v168"
            src2 = "v7 offset:%d" % (1024 * rnd + 16) if rnd < 4 else "v168 offset:16"
            a("ds_read_b128 %s, %s" % (v4(b), src))
            a("ds_read_b64 %s, %s" % (vp(b + 4), src2))
        for rnd in range(5):
            b = 44 + 24 * rnd
            a("s_waitcnt lgkmcnt(%d)" % (2 * (4 - rnd) + 3 * rnd))
            for k in range(4):
                a("v_alignbit_b32 v%d, v%d, v%d, 16" % (b + 8 + k, b + k + 1, b + k))
            ad, o = ("v169", 1024 * rnd) if rnd < 4 else ("v170", 0)
            a("ds_write_b128 %s, %s offset:%d" % (ad, v4(b + 8), o + 2 * CSTR))
            for k in range(4):
                a("v_mov_b32 v%d, v%d" % (b + 12 + k, b + k + 1))
            a("ds_write_b128 %s, %s offset:%d" % (ad, v4(b + 12), o + 1 * CSTR))
            for k in range(4):
                a("v_alignbit_b32 v%d, v%d, v%d, 16" % (b + 16 + k, b + k + 2, b + k + 1))
            a("ds_write_b128 %s, %s offset:%d" % (ad, v4(b + 16), o))
        a("s_branch %s" % lKd)
        a.label(lW3)
        self.nstamp = st0
        self.flag_store(0)
        a("global_load_dword v254, v231, %s" % sp(P_W1))
        self.stamp("flag")
        a("s_lshl_b32 s54, s%d, 4" % S_CF)
        for j in range(12):
            a("v_add_u32 v7, %d, v1" % (64 * j))
            a("v_mul_u32_u24 v8, 21846, v7")
            a("v_lshrrev_b32 v8, 16, v8")
            a("v_mul_u32_u24 v9, 3, v8")
            a("v_sub_u32 v9, v7, v9")
            a("v_mul_u32_u24 v%d, 10240, v8" % (100 + j))
            a("v_lshl_add_u32 v%d, v9, 4, v%d" % (100 + j, 100 + j))
            a("v_add_u32 v%d, s54, v%d" % (100 + j, 100 + j))
            a("v_mul_u32_u24 v9, %d, v9" % USTR)
            a("v_lshl_add_u32 v%d, v8, 4, v9" % (112 + j))
            a("v_add_u32 v%d, %d, v%d" % (112 + j, LDS_U + 128, 112 + j))
        a("v_lshlrev_b32 v10, 7, v1")
        for k in range(1, 4):
            a("v_add_u32 v%d, %d, v10" % (10 + k, 8192 * k))
        a("s_waitcnt vmcnt(0)")
        a("s_sleep %d" % int(os.environ.get("SL1", "8")))
        a("s_mov_b32 s69, 0")
        lp, lok = self.lab("flpoll"), self.lab("flok")
        a.label(lp)
        for k in range(4):
            a("global_load_dwordx4 %s, v%d, %s sc1" % (v4(16 + 4 * k), 10 + k, sp(P_FL)))
        a("s_waitcnt vmcnt(0)")
        a("v_xor_b32 v6, s%d, v16" % S_TAG)
        for r in range(17, 32):
            a("v_xor_b32 v7, s%d, v%d" % (S_TAG, r))
            a("v_or_b32 v6, v6, v7")
        a("v_cmp_ne_u32 vcc, 0, v6")
        a("s_cbranch_vccz %s" % lok)
        self.spin_tail(lp, lok, 4)
        a.label(lok)
        if self.timing:
            a("v_writelane_b32 v255, s69, 32")
        self.stamp("flok")
        for j in range(12):
            a("global_load_dwordx4 %s, v%d, %s sc1" % (v4(32 + 4 * j), 100 + j, sp(P_UT)))
        a("v_mov_b32 v6, 0")
        a("v_and_b32 v5, 31, v1")
        a("v_lshlrev_b32 v5, 2, v5")
        a("v_add_u32 v5, %d, v5" % LDS_U)
        for pos in range(3):
            a("ds_write_b32 v5, v6 offset:%d" % (pos * USTR))
        self.conv_setup()
        for j in range(12):
            a("s_waitcnt vmcnt(%d)" % (11 - j))
            a("ds_write_b128 v%d, %s" % (112 + j, v4(32 + 4 * j)))
        self.stamp("gath")
        lK2 = self.lab("kd2")
        a("s_branch %s" % lK2)
        a.label(lKd)
        self.conv_setup()
        a.label(lK2)
        a("s_waitcnt lgkmcnt(0)")
        self.stamp("prebar")
        a("s_barrier")
        self.stamp("kbar")

    def conv_setup(self):
        a = self.a
        a("s_lshl_b32 s90, s%d, 9" % S_WAVE)
        a("s_lshl_b32 s91, s%d, 7" % S_FB)
        self.wl_setup(P_W1, 3456, 90, 91, 14)
        a("v_and_b32 v2, 15, v1")
        a("v_lshrrev_b32 v3, 4, v1")
        a("v_and_b32 v4, 3, v1")
        a("v_bfe_u32 v5, v1, 2, 2")
        a("v_mul_u32_u24 v6, %d, v4" % CSTR)
        a("v_lshl_add_u32 v6, v3, 4, v6")
        a("v_lshlrev_b32 v7, 7, v5")
        a("v_sub_u32 v6, v6, v7")
        a("v_add_u32 v6, %d, v6" % (LDS_C + 832))
        a("v_lshlrev_b32 v7, 3, v2")
        a("v_lshl_add_u32 v7, v3, 4, v7")
        a("v_add_u32 v7, %d, v7" % (LDS_U + 456))
        for p in range(3):
            a("s_mul_i32 s54, s%d, 6" % S_WAVE)
            a("s_add_u32 s54, s54, %d" % (2 * p + 1))
            a("s_lshr_b32 s55, s54, 3")
            a("s_and_b32 s54, s54, 7")
            a("s_lshl_b32 s54, s54, 6")
            a("s_mul_i32 s60, s55, %d" % CCH)
            a("s_sub_u32 s60, s60, s54")
            a("v_add_u32 v%d, s60, v6" % (194 + 2 * p))
            a("s_mul_i32 s60, s55, %d" % USTR)
            a("s_sub_u32 s60, s60, s54")
            a("v_add_u32 v%d, s60, v7" % (195 + 2 * p))
        a("v_lshrrev_b32 v2, 1, v1")
        a("v_mul_u32_u24 v2, 48, v2")
        a("v_and_b32 v3, 1, v1")
        a("v_mul_u32_u24 v3, %d, v3" % OHS)
        a("s_min_u32 s54, s%d, 2" % S_WAVE)
        a("s_lshl_b32 s54, s54, 4")
        a("s_add_u32 s54, s54, %d" % LDS_OWN)
        a("s_add_u32 s55, s54, %d" % (2 * OHS))
        a("s_cmp_eq_u32 s%d, 3" % S_WAVE)
        a("s_cmov_b32 s54, s55")
        a("v_add3_u32 v242, v2, v3, s54")
        a("s_sub_u32 s55, s55, 16")
        a("v_add3_u32 v243, v2, v3, s55")
        for j in range(3):
            a("v_add_u32 v2, %d, v0" % (256 * j))
            a("v_mul_u32_u24 v3, 21846, v2")
            a("v_lshrrev_b32 v3, 16, v3")
            a("v_mul_u32_u24 v4, 3, v3")
            a("v_sub_u32 v2, v2, v4")
            a("v_lshlrev_b32 v2, 2, v2")
            a("v_add_u32 v%d, %d, v2" % (244 + j, LDS_SC))

    def w2a_addr(self):
        a = self.a
        a("s_lshl_b32 s64, s%d, 5" % S_K2)
        a("s_lshl_b32 s65, s%d, 3" % S_IDX)
        a("s_add_u32 s64, s64, s65")
        a("v_lshrrev_b32 v2, 3, v1")
        a("v_add_u32 v2, s64, v2")
        a("s_lshr_b32 s65, s%d, 1" % S_XCD)
        a("s_lshl_b32 s65, s65, 10")
        a("v_and_b32 v4, 7, v1")
        a("v_lshl_add_u32 v4, v4, 7, s65")
        a("v_lshl_add_u32 v193, v2, 12, v4")

    def cv_loads(self, setn, na, vA, vB, ex):
        Ab, Bb = ((64, 96), (128, 160))[setn]
        L = []
        for n in range(na):
            L.append("ds_read_b128 %s, v%d offset:%d" % (v4(Ab + 4 * n), vA, 512 * (7 - n) + ex))
            L.append("ds_read_b64 %s, v%d offset:%d" % (vp(Bb + 4 * n), vB, 512 * n + ex))
            L.append("ds_read_b64 %s, v%d offset:%d" % (vp(Bb + 4 * n + 2), vB, 512 * n + ex + 8))
        return L

    def cv_iter(self, setn, chunks, acc, first, bg, hi=0.85):
        a = self.a
        Ab, Bb = ((64, 96), (128, 160))[setn]
        a("s_waitcnt lgkmcnt(0)")
        mark = len(a.ins)
        seen = set()
        for aa in range(max(chunks) + 1):
            for q in sorted(chunks, reverse=True):
                if q >= aa:
                    c = v4(acc[q])
                    src = "0" if (first and q not in seen) else c
                    seen.add(q)
                    a("v_mfma_f32_16x16x32_f16 %s, %s, %s, %s" % (c, v4(Ab + 4 * aa), v4(Bb + 4 * (q - aa)), src))
        if bg:
            self.weave(mark + 1, bg, 0.0, hi)

    def phase3(self):
        a = self.a
        one = lambda L: [[x] for x in L]
        def mix(L1, L2):
            if not L2: return L1
            out = []
            i = j = 0
            while i < len(L1) or j < len(L2):
                if j >= len(L2) or (i < len(L1) and i * len(L2) <= j * len(L1)):
                    out.append(L1[i]); i += 1
                else:
                    out.append(L2[j]); j += 1
            return out
        acc = {q: 16 + 4 * q for q in range(8)}
        dmaA = self.wl_dma_groups(3456, 4, 14)
        dmaB = self.wl_dma_groups(3456, 4, 14)
        def lds(it):
            p = it >> 1
            return one(self.cv_loads(it & 1, 8, 194 + 2 * p, 195 + 2 * p, 64 * (1 - (it & 1))))
        for g in lds(0):
            a(g[0])
        for j in range(3):
            a("ds_read_b32 v%d, v%d" % (4 + 2 * j, 244 + j))
        pfs = [["v_add_u32 v231, s96, v232", "global_load_dword v254, v231, %s" % sp(P_W2)]]
        nop = []
        extra = {0: dmaA[:4], 1: dmaA[4:], 2: [nop] * 24 + [["s_waitcnt vmcnt(0)"]] + one(self.wl_tr(0, 4)),
                 3: dmaB[:5], 4: dmaB[5:] + [["global_load_dword v247, v233, %s sc1" % sp(P_FL)]] + pfs}
        for it in range(6):
            if it in (2, 4):
                lf = self.lab("flush")
                a("s_cmp_lg_u32 s%d, %d" % (S_WAVE, it >> 1))
                a("s_cbranch_scc1 %s" % lf)
                a("s_nop 7")
                for r in range(32):
                    a("v_accvgpr_write_b32 a%d, v%d" % (128 + r, 16 + r))
                for r in range(16):
                    a("v_pk_mov_b32 %s, 0, 0" % vp(16 + 2 * r))
                a("s_nop 1")
                a.label(lf)
            self.cv_iter(it & 1, list(range(8)), acc, it == 0, mix(lds(it + 1) if it < 5 else [], extra.get(it, [])), hi=0.92)
        a("s_mul_i32 s54, s%d, 12288" % S_OCT)
        a("v_lshl_add_u32 v10, v0, 4, s54")
        a("v_add_u32 v11, 4096, v10")
        a("v_add_u32 v12, 8192, v10")
        a("v_lshlrev_b32 v13, 4, v0")
        a("v_add_u32 v13, %d, v13" % LDS_OWN)
        self.stamp("convmf")
        a("s_barrier")
        for q in range(8):
            a("ds_write_b128 v242, %s offset:%d" % (v4(16 + 4 * q), 1536 * q))
        lw = self.lab("nofl")
        a("s_add_u32 s54, s%d, 1" % S_WAVE)
        a("s_bitcmp0_b32 s54, 1")
        a("s_cbranch_scc1 %s" % lw)
        for q in range(8):
            a("ds_write_b128 v243, %s offset:%d" % (a4(128 + 4 * q), 1536 * q))
        a.label(lw)
        self.pd_check(1)
        a("s_waitcnt lgkmcnt(0)")
        a("s_barrier")
        for j in range(3):
            b = 64 + 16 * j
            for k in range(2):
                for hh in range(2):
                    a("ds_read_b128 %s, v13 offset:%d" % (v4(b + 8 * k + 4 * hh), k * 2 * OHS + hh * OHS + 4096 * j))
        for j in range(3):
            b = 64 + 16 * j
            a("s_waitcnt lgkmcnt(%d)" % (4 * (2 - j)))
            for p in range(4):
                a("v_pk_add_f32 %s, %s, %s" % (vp(b + 2 * p), vp(b + 2 * p), vp(b + 8 + 2 * p)))
            for p in range(4):
                a("v_pk_mul_f32 %s, %s, %s op_sel_hi:[1,0]" % (vp(b + 2 * p), vp(b + 2 * p), vp(4 + 2 * j)))
            for p in range(4):
                a("v_cvt_pk_bf16_f32 v%d, v%d, v%d" % (b + 8 + p, b + 2 * p, b + 2 * p + 1))
            for p in range(4):
                a("v_min_u32 v%d, 0xfffffffe, v%d" % (b + 8 + p, b + 8 + p))
            a("global_store_dwordx4 v%d, %s, %s sc1" % (10 + j, v4(b + 8), sp(P_YT)))
        self.stamp("ytstore")

    def helper(self):
        a = self.a
        a.label("L_helper")
        self.flag_store(0)
        a("global_load_dword v254, v231, %s" % sp(P_W1))
        a("s_sub_u32 s60, s%d, 27" % S_IDX)
        a("s_lshl_b32 s60, s60, 2")
        a("s_add_u32 s60, s60, s%d" % S_WAVE)
        for r in range(4):
            a("v_mov_b32 v%d, -1" % (20 + r))
        a("v_lshrrev_b32 v5, 3, v1")
        a("v_and_b32 v6, 7, v1")
        a("s_lshr_b32 s62, s%d, 1" % S_XCD)
        def poison(ptr, per_xcd_kb, xcd_stride):
            a("s_mul_i32 s61, s%d, %d" % (S_XCD, xcd_stride))
            a("s_lshl_b32 s63, s60, 10")
            a("s_add_u32 s61, s61, s63")
            a("v_lshl_add_u32 v7, v1, 4, s61")
            a("s_mov_b32 s63, s60")
            lp = self.lab("poi")
            a.label(lp)
            a("global_store_dwordx4 v7, v[20:23], %s sc1" % sp(ptr))
            a("v_add_u32 v7, 20480, v7")
            a("s_add_u32 s63, s63, 20")
            a("s_cmp_lt_u32 s63, %d" % per_xcd_kb)
            a("s_cbranch_scc1 %s" % lp)
        def pref(ptr, rs, nline, maxline, rowf, ngroups):
            a("s_mul_i32 s61, s62, %d" % nline)
            a("v_min_u32 v8, %d, v6" % (nline - 1))
            a("v_add_u32 v8, s61, v8")
            a("v_min_u32 v8, %d, v8" % maxline)
            a("v_lshlrev_b32 v8, 7, v8")
            a("s_mov_b32 s63, s60")
            lp = self.lab("prf")
            a.label(lp)
            rowf()
            a("v_add_u32 v9, s64, v5")
            a("v_mul_u32_u24 v9, %d, v9" % rs)
            a("v_add_u32 v9, v9, v8")
            a("global_load_dword v254, v9, %s" % sp(ptr))
            a("s_add_u32 s63, s63, 20")
            a("s_cmp_lt_u32 s63, %d" % ngroups)
            a("s_cbranch_scc1 %s" % lp)
        def row_w1b():
            a("s_and_b32 s64, s63, 3")
            a("s_lshl_b32 s64, s64, 9")
            a("s_lshr_b32 s65, s63, 2")
            a("s_lshl_b32 s65, s65, 3")
            a("s_add_u32 s64, s64, s65")
            a("s_add_u32 s64, s64, 256")
        def row_w2():
            a("s_and_b32 s64, s63, 3")
            a("s_mul_i32 s64, s64, 448")
            a("s_min_u32 s64, s64, 1312")
            a("s_lshr_b32 s65, s63, 2")
            a("s_lshl_b32 s65, s65, 3")
            a("s_add_u32 s64, s64, s65")
            a("s_min_u32 s64, s64, 1720")
        poison(P_YT, 27 * 12, 32 * 12288)
        self.flag_store(1)
        a("v_add_u32 v231, s96, v232")
        a("global_load_dword v254, v231, %s" % sp(P_W2))
        poison(P_HP, 320, 327680)
        self.flag_store(4)
        a("s_lshl_b32 s90, s%d, 9" % S_WAVE)
        a("s_lshl_b32 s91, s%d, 7" % S_FB)
        self.wl_setup(P_W1, 3456, 90, 91, 15)
        lh = self.lab("hskip")
        a("s_cmp_eq_u32 s%d, 0" % S_G1)
        a("s_cbranch_scc1 %s" % lh)
        self.wl_dma_loop(3456, 8, 15)
        a("s_waitcnt vmcnt(0)")
        for t in self.wl_tr(0, 8):
            a(t)
        a("s_waitcnt lgkmcnt(0)")
        a.label(lh)
        a("global_load_dword v247, v233, %s sc1" % sp(P_FL))
        self.pd_check(0)
        a("s_branch L_win2")

    def phase4_pre(self):
        a = self.a
        a("s_mul_i32 s55, s%d, 48" % S_OCT)
        for j in range(3):
            a("v_add_u32 v5, %d, v0" % (256 * j))
            if j == 2:
                a("v_min_u32 v5, 639, v5")
            a("v_mul_u32_u24 v6, 820, v5")
            a("v_lshrrev_b32 v6, 16, v6")
            a("v_mul_u32_u24 v7, 80, v6")
            a("v_sub_u32 v7, v5, v7")
            a("v_mul_u32_u24 v8, 21846, v7")
            a("v_lshrrev_b32 v8, 16, v8")
            a("v_lshl_add_u32 v6, v6, 5, v8")
            a("v_mul_u32_u24 v8, 3, v8")
            a("v_sub_u32 v7, v7, v8")
            a("v_mul_u32_u24 v6, 12288, v6")
            a("v_lshl_add_u32 v6, v7, 4, v6")
            a("v_add_u32 v%d, s55, v6" % (170 + j))
        for n in range(12):
            a("v_lshlrev_b32 v%d, 16, v%d" % (100 + 2 * n, XG + n))
            a("v_and_b32 v%d, 0xffff0000, v%d" % (101 + 2 * n, XG + n))
            a("v_lshlrev_b32 v%d, 16, v%d" % (124 + 2 * n, TG + n))
            a("v_and_b32 v%d, 0xffff0000, v%d" % (125 + 2 * n, TG + n))
        a("s_lshl_b32 s54, s%d, 8" % S_OCT)
        a("v_lshrrev_b32 v2, 4, v0")
        a("v_lshlrev_b32 v2, 16, v2")
        a("v_and_b32 v3, 15, v0")
        a("v_lshl_add_u32 v2, v3, 4, v2")
        a("v_add_u32 v173, s54, v2")
        a("v_add_u32 v174, 0x100000, v173")
        a("v_add_u32 v175, 0x200000, v173")
        a("s_mul_i32 s54, s%d, 10240" % S_OCT)
        a("v_lshl_add_u32 v176, v0, 4, s54")
        a("v_add_u32 v177, 4096, v176")
        a("v_add_u32 v178, 8192, v176")
        a("v_lshlrev_b32 v179, 2, v0")
        a("v_add_u32 v179, %d, v179" % LDS_LN)
        a("v_lshlrev_b32 v180, 2, v1")
        a("v_add_u32 v180, %d, v180" % LDS_LN)

    def pd_check(self, n):
        a = self.a
        a("s_mov_b32 s69, 0")
        lp, lok = self.lab("pdpoll"), self.lab("pdok")
        a("s_waitcnt vmcnt(%d)" % n)
        a.label(lp)
        a("v_cmp_ne_u32 vcc, s%d, v247" % S_TAG)
        a("s_cbranch_vccz %s" % lok)
        a("s_add_u32 s69, s69, 1")
        a("s_cmp_gt_u32 s69, %d" % SPIN)
        a("s_cbranch_scc1 %s" % lok)
        a("s_sleep 4")
        a("global_load_dword v247, v233, %s sc1" % sp(P_FL))
        a("s_waitcnt vmcnt(0)")
        a("s_branch %s" % lp)
        a.label(lok)

    def phase4(self, N2):
        a = self.a
        a("s_mov_b32 s69, 0")
        lp, lok, lf = self.lab("hpoll"), self.lab("hok"), self.lab("hfirst")
        for j in range(3):
            a("global_load_dwordx4 %s, v%d, %s sc1" % (v4(16 + 4 * j), 170 + j, sp(P_YT)))
        a("s_waitcnt vmcnt(3)")
        for t in self.wl_tr(8, N2):
            a(t)
        a("s_branch %s" % lf)
        a.label(lp)
        for j in range(3):
            a("global_load_dwordx4 %s, v%d, %s sc1" % (v4(16 + 4 * j), 170 + j, sp(P_YT)))
        a.label(lf)
        a("s_waitcnt vmcnt(0)")
        a("v_max3_u32 v5, v16, v17, v18")
        a("v_max3_u32 v6, v19, v20, v21")
        a("v_max3_u32 v7, v22, v23, v24")
        a("v_max3_u32 v8, v25, v26, v27")
        a("v_max3_u32 v5, v5, v6, v7")
        a("v_max_u32 v5, v5, v8")
        a("v_cmp_eq_u32 vcc, -1, v5")
        a("s_cbranch_vccz %s" % lok)
        self.spin_tail(lp, lok, 4)
        a.label(lok)
        self.stamp("hpoll")
        mark4 = len(a.ins)
        def unp(src):
            for n in range(12):
                a("v_lshlrev_b32 v%d, 16, v%d" % (32 + 2 * n, src + n))
                a("v_and_b32 v%d, 0xffff0000, v%d" % (33 + 2 * n, src + n))
        unp(16)
        for n in range(12):
            a("v_pk_add_f32 %s, %s, %s" % (vp(32 + 2 * n), vp(32 + 2 * n), vp(124 + 2 * n)))
        for n in range(12):
            a("v_cvt_pk_bf16_f32 v%d, v%d, v%d" % (16 + n, 32 + 2 * n, 33 + 2 * n))
        unp(16)
        for n in range(12):
            a("v_pk_add_f32 %s, %s, %s" % (vp(32 + 2 * n), vp(32 + 2 * n), vp(100 + 2 * n)))
        for n in range(12):
            a("v_cvt_pk_bf16_f32 v%d, v%d, v%d" % (150 + n, 32 + 2 * n, 33 + 2 * n))
        self.weave(mark4, self.wl_dma_groups(3456, 8 - N2, 15, slot0=N2))
        lz = self.lab("hz")
        a("s_cmp_lt_u32 s%d, 2" % S_WAVE)
        a("s_cbranch_scc1 %s" % lz)
        for r in range(4):
            a("v_mov_b32 v%d, 0" % (158 + r))
        a.label(lz)
        unp(150)
        for p in range(4):
            a("v_pk_add_f32 %s, %s, %s" % (vp(64 + 2 * p), vp(32 + 2 * p), vp(40 + 2 * p)))
            a("v_pk_mul_f32 %s, %s, %s" % (vp(72 + 2 * p), vp(32 + 2 * p), vp(32 + 2 * p)))
        for p in range(4):
            a("v_pk_add_f32 %s, %s, %s" % (vp(64 + 2 * p), vp(64 + 2 * p), vp(48 + 2 * p)))
            a("v_pk_fma_f32 %s, %s, %s, %s" % (vp(72 + 2 * p), vp(40 + 2 * p), vp(40 + 2 * p), vp(72 + 2 * p)))
        for p in range(4):
            a("v_pk_fma_f32 %s, %s, %s, %s" % (vp(72 + 2 * p), vp(48 + 2 * p), vp(48 + 2 * p), vp(72 + 2 * p)))
        for k in range(8):
            a("v_permlane32_swap_b32 v%d, v%d" % (64 + k, 72 + k))
        for p in range(4):
            a("v_pk_add_f32 %s, %s, %s" % (vp(64 + 2 * p), vp(64 + 2 * p), vp(72 + 2 * p)))
        for k in range(4):
            a("v_permlane16_swap_b32 v%d, v%d" % (64 + k, 68 + k))
        for p in range(2):
            a("v_pk_add_f32 %s, %s, %s" % (vp(64 + 2 * p), vp(64 + 2 * p), vp(68 + 2 * p)))
        for k in range(2):
            a("v_add_f32_dpp v%d, v%d, v%d row_ror:8 row_mask:0xf bank_mask:0x3" % (72 + k, 64 + k, 64 + k))
        for k in range(2):
            a("v_add_f32_dpp v%d, v%d, v%d row_ror:8 row_mask:0xf bank_mask:0xc" % (72 + k, 66 + k, 66 + k))
        a("v_add_f32_dpp v64, v72, v72 row_half_mirror row_mask:0xf bank_mask:0x5")
        a("v_add_f32_dpp v64, v73, v73 row_half_mirror row_mask:0xf bank_mask:0xa")
        a("v_add_f32_dpp v64, v64, v64 quad_perm:[1,0,3,2] row_mask:0xf bank_mask:0xf")
        a("v_add_f32_dpp v64, v64, v64 quad_perm:[2,3,0,1] row_mask:0xf bank_mask:0xf")
        a("ds_write_b32 v179, v64")
        self.pd_check(63)
        for n in range(12):
            a("v_min_u32 v%d, 0xfffffffe, v%d" % (150 + n, 150 + n))
        a("s_waitcnt lgkmcnt(0)")
        a("s_barrier")
        for w in range(4):
            a("ds_read_b32 v%d, v180 offset:%d" % (64 + w, 256 * w))
        a("s_waitcnt lgkmcnt(0)")
        a("v_pk_add_f32 v[64:65], v[64:65], v[66:67]")
        a("v_add_f32 v64, v64, v65")
        a("v_mul_f32 v64, %s, v64" % f32(1.0 / 640))
        a("v_mov_b32 v65, v64")
        a("v_permlane32_swap_b32 v64, v65")
        a("v_fma_f32 v65, -v64, v64, v65")
        a("v_max_f32 v65, 0, v65")
        self.bf16_round(67, 65)
        self.bf16_round(66, 64)
        a("v_add_f32 v67, %s, v67" % f32(1e-5))
        self.bf16_round(67, 67)
        a("v_sqrt_f32 v67, v67")
        a("v_sub_f32 v68, v64, v66")
        self.bf16_round(67, 67)
        a("v_rcp_f32 v67, v67")
        a("v_mul_f32 v69, v65, v67")
        a("v_mul_f32 v68, v68, v67")
        a("v_mul_f32 v69, v69, v67")
        self.bf16_round(69, 69)
        self.bf16_round(68, 68)
        a("v_add_f32 v69, %s, v69" % f32(1e-5))
        self.bf16_round(69, 69)
        a("v_sqrt_f32 v69, v69")
        a("v_fma_f32 v70, v66, v67, v68")
        self.bf16_round(69, 69)
        a("v_rcp_f32 v69, v69")
        a("v_mul_f32 v70, -v70, v69")
        a("v_mul_f32 v71, v67, v69")
        for r in range(8):
            a("v_readlane_b32 s%d, v70, %d" % (54 + r, 4 * r))
        for r in range(8):
            a("v_readlane_b32 s%d, v71, %d" % (84 + r, 4 * r))
        for r in range(8):
            a("v_mov_b32 v%d, s%d" % (72 + r, 54 + r))
        l3 = self.lab("h3")
        for j in range(3):
            if j == 2:
                a("s_cmp_ge_u32 s%d, 2" % S_WAVE)
                a("s_cbranch_scc1 %s" % l3)
            for p in range(4):
                h = 32 + 8 * j + 2 * p
                a("v_pk_fma_f32 %s, %s, %s, %s" % (vp(h), vp(h), sp(84 + 2 * p), vp(72 + 2 * p)))
            for p in range(4):
                h = 32 + 8 * j + 2 * p
                a("v_cvt_pk_bf16_f32 v%d, v%d, v%d" % (16 + 4 * j + p, h, h + 1))
            for p in range(4):
                a("v_min_u32 v%d, 0xfffffffe, v%d" % (16 + 4 * j + p, 16 + 4 * j + p))
            a("global_store_dwordx4 v%d, %s, %s sc1" % (173 + j, v4(16 + 4 * j), sp(P_HP)))
        a("global_store_dwordx4 v178, v[158:161], %s sc1" % sp(P_H2))
        a.label(l3)
        a("global_store_dwordx4 v176, v[150:153], %s sc1" % sp(P_H2))
        a("global_store_dwordx4 v177, v[154:157], %s sc1" % sp(P_H2))
        self.stamp("hpstore")

    def gemm_main(self, nsteps, w_is_A, s_short=None, bgf=None, tag="g", late=None, lgk_at=None):
        a = self.a
        slow = []
        NS = NSLOT
        def slot(s, mt): return SLOT0 + 20 * (s % NS) + 4 * mt
        def load(s, mt):
            base = 84 if s < 8 else 86
            return "global_load_dwordx4 %s, v%d, %s offset:%d sc1" % (v4(slot(s, mt)), 2 + mt, sp(base), (s % 8) * 1024 - 4096)
        def check(s):
            r = [slot(s, 0) + k for k in range(20)]
            L = ["v_max3_u32 v7, v%d, v%d, v%d" % (r[0], r[1], r[2]), "v_max3_u32 v8, v%d, v%d, v%d" % (r[3], r[4], r[5])]
            for k in range(6, 18, 4):
                L.append("v_max3_u32 v7, v7, v%d, v%d" % (r[k], r[k + 1]))
                L.append("v_max3_u32 v8, v8, v%d, v%d" % (r[k + 2], r[k + 3]))
            L += ["v_max3_u32 v7, v7, v%d, v%d" % (r[18], r[19]), "v_max_u32 v7, v7, v8", "v_cmp_eq_u32 vcc, -1, v7"]
            return L
        PRE = int(os.environ.get("PRE", "2"))
        order = []
        def issue(s, mt):
            a(load(s, mt))
            order.append(s)
        def wait_for(s):
            last = max(i for i, t in enumerate(order) if t == s)
            a("s_waitcnt vmcnt(%d)" % (len(order) - 1 - last))
        for s in range(PRE):
            for mt in range(5):
                issue(s, mt)
        nxt = PRE
        a("s_mov_b32 s69, 0")
        ldone = self.lab("gdone")
        def branch_slow(s):
            ls, lb = self.lab("gslow"), self.lab("gback")
            a("s_cbranch_vccnz %s" % ls)
            a.label(lb)
            slow.append((s, ls, lb))
        wait_for(0)
        for l in check(0):
            a(l)
        branch_slow(0)
        self.stamp(tag + "first")
        for s in range(nsteps):
            ex = bgf(s) if bgf else []
            if lgk_at is not None and s == lgk_at:
                a("s_waitcnt lgkmcnt(0)")
            plan = []
            for _ in range(2):
                if nxt < nsteps and nxt <= s + NS - 1:
                    plan.append(nxt); nxt += 1
            tail = None
            if len(plan) < 2 and nxt < nsteps and nxt == s + NS:
                tail = nxt; nxt += 1
            pl = [(t, mt) for t in plan for mt in range(5)]
            ck = None
            n = 0
            for mt in range(5):
                for nt in range(4):
                    c = v4(ACC0 + 4 * (nt * 5 + mt))
                    w = a4((s * 4 + nt) * 4)
                    f = v4(slot(s, mt))
                    A, B = (w, f) if w_is_A else (f, w)
                    a("v_mfma_f32_16x16x32_bf16 %s, %s, %s, %s" % (c, A, B, "0" if s == 0 else c))
                    n += 1
                    if pl and n % 2 == 1:
                        issue(*pl.pop(0))
                    if n <= 8 and ex:
                        a(ex.pop(0))
                    if n == 8 and s + 1 < nsteps:
                        wait_for(s + 1)
                        ck = check(s + 1)
                    if ck:
                        a(ck.pop(0))
                if tail is not None:
                    issue(tail, mt)
            assert not ex and not pl and not ck
            if late and s == nsteps - NS:
                for t in late:
                    a(t)
                order.append(-1)
                order.append(-1)
            if s + 1 < nsteps:
                if s_short is not None and s + 2 == nsteps:
                    a("s_cmp_eq_u32 s%d, 1" % s_short)
                    a("s_cbranch_scc1 %s" % ldone)
                branch_slow(s + 1)
        a.label(ldone)
        a("s_waitcnt vmcnt(%d) lgkmcnt(0)" % (2 if late else 0))
        if self.timing:
            a("v_writelane_b32 v255, s69, %d" % (40 if late else 41))
        self.slowpaths += [(s, ls, lb, [load(s, mt) for mt in range(5)], check(s)) for s, ls, lb in slow]

    def emit_slowpaths(self):
        a = self.a
        for s, ls, lb, loads, chk in self.slowpaths:
            a.label(ls)
            a("s_add_u32 s69, s69, 1")
            a("s_cmp_gt_u32 s69, %d" % SPIN)
            a("s_cbranch_scc1 %s" % lb)
            a("s_sleep 2")
            for l in loads:
                a(l)
            a("s_waitcnt vmcnt(0)")
            for l in chk:
                a(l)
            a("s_cbranch_vccnz %s" % ls)
            a("s_branch %s" % lb)

    def sum4(self, b):
        a = self.a
        for p in range(4):
            a("v_pk_add_f32 %s, %s, %s" % (vp(b + 2 * p), vp(b + 2 * p), vp(b + 8 + 2 * p)))
            a("v_pk_add_f32 %s, %s, %s" % (vp(b + 16 + 2 * p), vp(b + 16 + 2 * p), vp(b + 24 + 2 * p)))
        for p in range(4):
            a("v_pk_add_f32 %s, %s, %s" % (vp(b + 2 * p), vp(b + 2 * p), vp(b + 16 + 2 * p)))

    def rnd8(self, b):
        a = self.a
        for p in range(4):
            a("v_cvt_pk_bf16_f32 v%d, v%d, v%d" % (b + 2 * p + 1, b + 2 * p, b + 2 * p + 1))
        for p in range(4):
            a("v_lshlrev_b32 v%d, 16, v%d" % (b + 2 * p, b + 2 * p + 1))
            a("v_and_b32 v%d, 0xffff0000, v%d" % (b + 2 * p + 1, b + 2 * p + 1))

    def phase5(self, N2, N3):
        a = self.a
        a("s_mul_i32 s54, s%d, %d" % (S_DB, 5 * 65536))
        a("v_lshl_add_u32 v2, v1, 4, s54")
        for mt in range(1, 5):
            a("v_add_u32 v%d, %d, v2" % (2 + mt, 65536 * mt))
        a("s_lshl_b32 s54, s%d, 14" % S_WAVE)
        a("s_add_u32 s54, s54, 4096")
        a("s_add_u32 s84, s%d, s54" % P_HP)
        a("s_addc_u32 s85, s%d, 0" % (P_HP + 1))
        a("s_add_u32 s86, s84, 8192")
        a("s_addc_u32 s87, s85, 0")
        a("s_mul_i32 s54, s%d, 270" % S_DB)
        a("s_lshl_b32 s55, s%d, 1" % S_FB)
        a("s_add_u32 s54, s54, s55")
        a("s_lshr_b32 s55, s%d, 1" % S_WAVE)
        a("s_mul_i32 s55, s55, 54")
        a("s_add_u32 s54, s54, s55")
        a("s_and_b32 s55, s%d, 1" % S_WAVE)
        a("s_add_u32 s54, s54, s55")
        a("s_lshl_b32 s54, s54, 10")
        a("v_lshl_add_u32 v246, v1, 4, s54")
        a("v_add_u32 v247, %d, v246" % (2 * 54 * 1024))
        a("v_add_u32 v248, %d, v246" % (4 * 54 * 1024))
        for r in range(4):
            a("v_mov_b32 v%d, -1" % (10 + r))
        a("global_store_dwordx4 v246, v[10:13], %s sc1" % sp(P_G))
        a("global_store_dwordx4 v247, v[10:13], %s sc1" % sp(P_G))
        lq = self.lab("gp3")
        a("s_cmp_ge_u32 s%d, 2" % S_WAVE)
        a("s_cbranch_scc1 %s" % lq)
        a("global_store_dwordx4 v248, v[10:13], %s sc1" % sp(P_G))
        a.label(lq)
        a("s_mul_i32 s54, s%d, 27" % S_DB)
        a("s_add_u32 s54, s54, s%d" % S_FB)
        a("s_lshl_b32 s54, s54, 7")
        a("s_lshl_b32 s55, s%d, 2" % S_WAVE)
        a("s_add_u32 s54, s54, s55")
        a("s_add_u32 s54, s54, 0x18000")
        a("v_mov_b32 v249, s54")
        a("v_mov_b32 v250, s%d" % S_TAG)
        tr = self.wl_tr(8 + N2, 8 - N2, slot0=N2) + self.wl_tr(0, N3)
        assert N3 <= N2 and 8 - N2 >= 2
        self.gemm_main(16, True, bgf=lambda s: tr[8 * s:8 * (s + 1)], tag="g1", lgk_at=8 + N2 - 1,
                       late=["s_mov_b64 exec, 1", "global_store_dword v249, v250, %s sc1" % sp(P_FL), "s_mov_b64 exec, -1",
                             "global_load_dword v254, v251, %s" % sp(P_W2)])
        a("v_bfe_u32 v2, v1, 4, 1")
        a("v_mul_u32_u24 v2, 10240, v2")
        a("v_lshrrev_b32 v3, 5, v1")
        a("v_and_b32 v4, 15, v1")
        a("v_lshl_add_u32 v3, v3, 4, v4")
        a("v_lshl_add_u32 v2, v3, 4, v2")
        a("s_mul_i32 s54, s%d, 20480" % S_WAVE)
        a("v_add_u32 v2, s54, v2")
        self.stamp("g1main")
        a("s_barrier")
        midg = self.w2_mid(N3, groups=True)
        mk = len(a.ins)
        for mt in range(5):
            for nt in range(4):
                a("ds_write_b128 v2, %s offset:%d" % (v4(ACC0 + 4 * (nt * 5 + mt)), (mt * 128 + nt * 32) * 16))
        self.weave(mk, midg[:4])
        a("v_lshlrev_b32 v3, 4, v0")
        a("v_add_u32 v4, %d, v3" % (2 * 20480))
        for p in range(4):
            a("v_lshlrev_b32 v%d, 16, v%d" % (96 + 2 * p, 242 + p))
            a("v_and_b32 v%d, 0xffff0000, v%d" % (97 + 2 * p, 242 + p))
        a("v_mov_b32 v104, %s" % f32(-2.0 * 0.7978845608028654 * LOG2E))
        a("v_mov_b32 v106, %s" % f32(-2.0 * 0.7978845608028654 * LOG2E * 0.044715))
        a("s_waitcnt lgkmcnt(0)")
        a("s_barrier")
        lsk = self.lab("g1skip")
        def reads(j):
            b = 112 + 36 * j
            for w in range(4):
                for hh in range(2):
                    a("ds_read_b128 %s, v%d offset:%d" % (v4(b + 8 * w + 4 * hh), 3 if w < 2 else 4, (w & 1) * 20480 + hh * 10240 + 4096 * j))
        reads(0)
        for j in range(3):
            if j == 2:
                a("s_cmp_ge_u32 s%d, 2" % S_WAVE)
                a("s_cbranch_scc1 %s" % lsk)
            b = 112 + 36 * j
            a("s_waitcnt lgkmcnt(0)")
            if j < 2:
                reads(j + 1)
            mk = len(a.ins)
            self.sum4(b)
            self.rnd8(b)
            for p in range(4):
                a("v_pk_add_f32 %s, %s, %s" % (vp(b + 2 * p), vp(b + 2 * p), vp(96 + 2 * p)))
            self.rnd8(b)
            t = b + 8
            for p in range(4):
                a("v_pk_mul_f32 %s, %s, %s" % (vp(t + 2 * p), vp(b + 2 * p), vp(b + 2 * p)))
            for p in range(4):
                a("v_pk_fma_f32 %s, %s, %s, %s op_sel_hi:[1,0,0]" % (vp(t + 2 * p), vp(t + 2 * p), vp(106), vp(104)))
            for p in range(4):
                a("v_pk_mul_f32 %s, %s, %s" % (vp(t + 2 * p), vp(t + 2 * p), vp(b + 2 * p)))
            for k in range(8):
                a("v_exp_f32 v%d, v%d" % (t + k, t + k))
            for p in range(4):
                a("v_pk_add_f32 %s, %s, 1.0 op_sel_hi:[1,0]" % (vp(t + 2 * p), vp(t + 2 * p)))
            for k in range(8):
                a("v_rcp_f32 v%d, v%d" % (t + k, t + k))
            for p in range(4):
                a("v_pk_mul_f32 %s, %s, %s" % (vp(b + 2 * p), vp(b + 2 * p), vp(t + 2 * p)))
            for p in range(4):
                a("v_cvt_pk_bf16_f32 v%d, v%d, v%d" % (b + 32 + p, b + 2 * p, b + 2 * p + 1))
            for p in range(4):
                a("v_min_u32 v%d, 0xfffffffe, v%d" % (b + 32 + p, b + 32 + p))
            if j == 0:
                self.weave(mk, midg[4:])
            a("global_store_dwordx4 v%d, %s, %s sc1" % (246 + j, v4(b + 32), sp(P_G)))
        a.label(lsk)
        a("s_waitcnt lgkmcnt(0)")
        self.stamp("g1done")

    def phase6_pre(self, dma, rem):
        a = self.a
        a("s_mov_b32 s64, s54")
        a("s_mul_i32 s54, s%d, %d" % (S_SB, 8 * 10240))
        a("s_mul_i32 s55, s%d, 1280" % S_DB)
        a("s_add_u32 s54, s54, s55")
        for j in range(3):
            a("v_add_u32 v2, %d, v0" % (256 * j))
            if j == 2:
                a("v_min_u32 v2, 639, v2")
            a("v_mul_u32_u24 v3, 820, v2")
            a("v_lshrrev_b32 v3, 16, v3")
            a("v_mul_u32_u24 v7, 80, v3")
            a("v_sub_u32 v7, v2, v7")
            a("v_mul_u32_u24 v8, 10240, v3")
            a("v_lshl_add_u32 v8, v7, 4, v8")
            a("v_add_u32 v%d, s54, v8" % (4 + j))
            a("v_mul_u32_u24 v8, %d, v3" % (8 * 176))
            a("v_lshl_add_u32 v8, v7, 1, v8")
            a("v_add_u32 v%d, %d, v8" % (251 + j, LDS_H))
        a("v_bfe_u32 v2, v1, 2, 3")
        a("s_lshl_b32 s54, s%d, 3" % S_SB)
        a("v_add_u32 v2, s54, v2")
        a("v_lshlrev_b32 v2, 7, v2")
        a("v_and_b32 v3, 3, v1")
        a("v_lshl_add_u32 v2, v3, 2, v2")
        a("v_add_u32 v2, 0x10000, v2")
        a("s_mul_i32 s54, s%d, 27" % S_DB)
        a("v_min_u32 v9, 26, v1")
        a("v_add_u32 v9, s54, v9")
        a("v_lshlrev_b32 v9, 7, v9")
        a("v_add_u32 v9, 0x18000, v9")
        a("s_mov_b32 s69, 0")
        lp, lok, lf = self.lab("h2poll"), self.lab("h2ok"), self.lab("h2f")
        a("global_load_dword v3, v2, %s sc1" % sp(P_FL))
        a("global_load_dwordx4 v[10:13], v9, %s sc1" % sp(P_FL))
        dma()
        a("s_waitcnt vmcnt(%d)" % (4 * (rem - 1)))
        a("s_branch %s" % lf)
        a.label(lp)
        a("global_load_dword v3, v2, %s sc1" % sp(P_FL))
        a("global_load_dwordx4 v[10:13], v9, %s sc1" % sp(P_FL))
        a("s_waitcnt vmcnt(0)")
        a.label(lf)
        a("v_xor_b32 v3, s%d, v3" % S_TAG)
        for r in range(10, 14):
            a("v_xor_b32 v%d, s%d, v%d" % (r, S_TAG, r))
        a("v_or3_b32 v3, v3, v10, v11")
        a("v_or3_b32 v3, v3, v12, v13")
        a("v_cmp_ne_u32 vcc, 0, v3")
        a("s_cbranch_vccz %s" % lok)
        self.spin_tail(lp, lok, 8)
        a.label(lok)
        for j in range(3):
            a("global_load_dwordx4 %s, v%d, %s sc1" % (a4(224 + 4 * j), 4 + j, sp(P_H2)))

    def phase6(self, k0, rem):
        a = self.a
        a("s_mul_i32 s54, s%d, %d" % (S_DB, 5 * 54 * 1024))
        a("v_lshl_add_u32 v2, v1, 4, s54")
        for mt in range(1, 5):
            a("v_add_u32 v%d, %d, v2" % (2 + mt, 54 * 1024 * mt))
        a("s_lshl_b32 s54, s%d, 10" % S_K2)
        a("s_add_u32 s54, s54, 4096")
        a("s_add_u32 s84, s%d, s54" % P_G)
        a("s_addc_u32 s85, s%d, 0" % (P_G + 1))
        a("s_add_u32 s86, s84, 8192")
        a("s_addc_u32 s87, s85, 0")
        a("s_mul_i32 s54, s%d, %d" % (S_SB, 64 * 1280))
        a("s_mul_i32 s55, s%d, 160" % S_DB)
        a("s_add_u32 s54, s54, s55")
        a("s_lshl_b32 s55, s%d, 7" % S_SB)
        for j in range(3):
            a("v_add_u32 v9, %d, v0" % (256 * j))
            if j == 2:
                a("v_min_u32 v9, 639, v9")
            a("v_mul_u32_u24 v10, 6554, v9")
            a("v_lshrrev_b32 v10, 16, v10")
            a("v_mul_u32_u24 v11, 10, v10")
            a("v_sub_u32 v11, v9, v11")
            a("v_mul_u32_u24 v12, 176, v10")
            a("v_lshl_add_u32 v12, v11, 4, v12")
            a("v_add_u32 v%d, %d, v12" % (234 + j, LDS_H))
            a("v_mul_u32_u24 v12, 1280, v10")
            a("v_lshl_add_u32 v12, v11, 4, v12")
            a("v_add_u32 v%d, s54, v12" % (242 + j))
            a("v_lshl_add_u32 v12, v10, 1, s55")
            a("global_load_ushort v%d, v12, %s" % (246 + 2 * j, sp(P_B2)))
        bg = self.wl_tr(k0, rem)
        for j in range(3):
            for p in range(4):
                bg.append("ds_write_b16 v%d, a%d offset:%d" % (251 + j, 224 + 4 * j + p, (2 * p) * 176))
                bg.append("ds_write_b16_d16_hi v%d, a%d offset:%d" % (251 + j, 224 + 4 * j + p, (2 * p + 1) * 176))
        self.gemm_main(14, False, s_short=S_SHORT, tag="g2", bgf=lambda s: bg[8 * s:8 * (s + 1)], lgk_at=k0 - 1)
        a("v_bfe_u32 v2, v1, 4, 1")
        a("v_mul_u32_u24 v2, 10240, v2")
        a("v_and_b32 v4, 15, v1")
        a("v_mul_u32_u24 v4, 10, v4")
        a("v_lshrrev_b32 v3, 5, v1")
        a("v_add_u32 v3, v3, v4")
        a("v_lshl_add_u32 v2, v3, 4, v2")
        a("s_mul_i32 s54, s%d, 20480" % S_WAVE)
        a("v_add_u32 v2, s54, v2")
        self.stamp("g2main")
        a("s_barrier")
        for nt in range(4):
            for mt in range(5):
                a("ds_write_b128 v2, %s offset:%d" % (v4(ACC0 + 4 * (nt * 5 + mt)), (nt * 160 + mt * 2) * 16))
        a("v_lshlrev_b32 v3, 4, v0")
        a("v_add_u32 v4, %d, v3" % (2 * 20480))
        for j in range(3):
            a("v_lshlrev_b32 v%d, 16, v%d" % (246 + 2 * j, 246 + 2 * j))
        a("s_waitcnt lgkmcnt(0)")
        a("s_barrier")
        lsk = self.lab("g2skip")
        def reads(j):
            b = 100 + 44 * j
            for w in range(4):
                for hh in range(2):
                    a("ds_read_b128 %s, v%d offset:%d" % (v4(b + 8 * w + 4 * hh), 3 if w < 2 else 4, (w & 1) * 20480 + hh * 10240 + 4096 * j))
            a("ds_read_b128 %s, v%d" % (v4(b + 32), 234 + j))
        reads(0)
        for j in range(3):
            if j == 2:
                a("s_cmp_ge_u32 s%d, 2" % S_WAVE)
                a("s_cbranch_scc1 %s" % lsk)
            b = 100 + 44 * j
            a("s_waitcnt lgkmcnt(0)")
            if j < 2:
                reads(j + 1)
            self.sum4(b)
            self.rnd8(b)
            for p in range(4):
                a("v_pk_add_f32 %s, %s, %s op_sel_hi:[1,0]" % (vp(b + 2 * p), vp(b + 2 * p), vp(246 + 2 * j)))
            self.rnd8(b)
            for p in range(4):
                a("v_lshlrev_b32 v%d, 16, v%d" % (b + 8 + 2 * p, b + 32 + p))
                a("v_and_b32 v%d, 0xffff0000, v%d" % (b + 9 + 2 * p, b + 32 + p))
            for p in range(4):
                a("v_pk_add_f32 %s, %s, %s" % (vp(b + 2 * p), vp(b + 2 * p), vp(b + 8 + 2 * p)))
            for p in range(4):
                a("v_cvt_pk_bf16_f32 v%d, v%d, v%d" % (b + 36 + p, b + 2 * p, b + 2 * p + 1))
            a("global_store_dwordx4 v%d, %s, %s %s" % (242 + j, v4(b + 36), sp(P_OUT), os.environ.get("OST", "")))
        a.label(lsk)
        self.stamp("g2done")

    def back_half(self):
        a = self.a
        N2 = int(os.environ.get("N2", "5"))
        N3 = int(os.environ.get("N3", "5"))
        for t in self.wl_tr(4, 4):
            a(t)
        a("s_lshl_b32 s54, s%d, 14" % S_WAVE)
        a("s_waitcnt lgkmcnt(0)")
        for nt in range(4):
            a("v_add_u32 v%d, s54, v%d" % (WT + nt, WT + nt))
        a.label("L_win2")
        a("s_barrier")
        self.wl_dma_loop(3456, N2, 15)
        a("v_add_u32 v233, 0x18000, v233")
        a("global_load_dword v247, v233, %s sc1" % sp(P_FL))
        self.phase4_pre()
        self.stamp("win2")
        self.phase4(N2)
        a("s_lshl_b32 s90, s%d, 5" % S_K2)
        a("s_lshl_b32 s91, s%d, 7" % S_SB)
        self.wl_setup(P_W2, 4096, 90, 91, None)
        a("v_bfe_u32 v9, v0, 4, 3")
        a("s_lshl_b32 s54, s%d, 7" % S_FB)
        a("v_lshl_add_u32 v9, v9, 4, s54")
        a("global_load_dwordx4 v[242:245], v9, %s" % sp(P_B1))
        a("s_waitcnt lgkmcnt(0)")
        self.wl_dma_loop(4096, N3, 15)
        self.flag_store(2, wait="vmcnt(%d)" % (4 * N3 + 1))
        self.stamp("win3")
        a("v_add_u32 v251, s97, v232")
        lg, lg2 = self.lab("nog1"), self.lab("g1join")
        a("s_cmp_eq_u32 s%d, 0" % S_G1)
        a("s_cbranch_scc1 %s" % lg)
        self.phase5(N2, N3)
        a("s_branch %s" % lg2)
        a.label(lg)
        a("global_load_dword v254, v251, %s" % sp(P_W2))
        a("s_waitcnt vmcnt(0)")
        for t in self.wl_tr(0, N3):
            a(t)
        a("s_waitcnt lgkmcnt(0)")
        a("s_barrier")
        self.w2_mid(N3)
        a("s_waitcnt vmcnt(0)")
        a.label(lg2)
        a("s_waitcnt vmcnt(2)")
        for t in self.wl_tr(N3, 4):
            a(t)
        a("s_waitcnt lgkmcnt(0)")
        a("s_mul_i32 s54, s%d, %d" % (S_WAVE, 32768 - 16384))
        a("s_sub_u32 s54, s54, %d" % LDS_MID)
        for nt in range(4):
            a("v_add_u32 v%d, s54, v%d" % (WT + nt, WT + nt))
        a("s_barrier")
        rem = 14 - N3 - 4
        a("s_sub_u32 s54, %d, s%d" % (rem, S_SHORT))
        self.phase6_pre(lambda: self.wl_dma_loop(4096, "s64", 15), rem)
        self.stamp("win4")
        self.phase6(N3 + 4, rem)

    def w2_mid(self, N3, groups=False):
        a = self.a
        a("s_mul_i32 s54, s%d, %d" % (S_WAVE, 32768 - 16384))
        a("s_sub_u32 s54, %d, s54" % LDS_MID)
        for nt in range(4):
            a("v_add_u32 v%d, s54, v%d" % (WT + nt, WT + nt))
        if groups:
            return self.wl_dma_groups(4096, 4, 14, slot0=LDS_MID // 4096)
        self.wl_dma_loop(4096, 4, 14, slot0=LDS_MID // 4096)

    def finish(self):
        a = self.a
        if self.timing:
            a("s_memrealtime s[98:99]")
            a("s_waitcnt lgkmcnt(0)")
            a("v_writelane_b32 v255, s98, 63")
            a("s_lshl_b32 s54, s2, 2")
            a("s_add_u32 s54, s54, s%d" % S_WAVE)
            a("s_lshl_b32 s54, s54, 8")
            a("s_add_u32 s54, s54, 0x%x" % WS_TIME)
            a("v_lshl_add_u32 v2, v1, 2, s54")
            a("global_store_dword v2, v255, %s" % sp(P_WS))
        l = self.lab("nn")
        a("s_or_b32 s54, s2, s%d" % S_WAVE)
        a("s_cmp_lg_u32 s54, 0")
        a("s_cbranch_scc1 %s" % l)
        a("v_mov_b32 v2, 0")
        a("v_mov_b32 v3, s%d" % S_TAG)
        a("s_mov_b64 exec, 1")
        a("global_store_dword v2, v3, %s" % sp(P_WS))
        a.label(l)
        a.label("L_end")
        a("s_endpgm")

    def build(self):
        self.phase0()
        self.phase1()
        self.phase2()
        self.phase3()
        self.back_half()
        self.finish()
        self.helper()
        self.a.label("L_codeend")
        self.emit_slowpaths()
        self.a("s_endpgm")
        body = self.a.finalize()
        hdr = open("cdna_kernels/%s.s.ref" % NAME).read().split("; Override launch")[0]
        hdr += "; @launch grid=(256,1,1) block=(256,1,1) lds=%d\n" % LDS_TOTAL
        hdr += '.amdgcn_target "amdgcn-amd-amdhsa--gfx950"\n.text\n.globl %s_kernel\n.p2align 8\n.type %s_kernel,@function\n%s_kernel:\n' % (NAME, NAME, NAME)
        ftr = """.section .rodata,"a"
.p2align 6
.amdhsa_kernel %s_kernel
  .amdhsa_next_free_vgpr 512
  .amdhsa_next_free_sgpr 102
  .amdhsa_accum_offset 256
  .amdhsa_group_segment_fixed_size 0
  .amdhsa_kernarg_size 120
  .amdhsa_user_sgpr_count 2
  .amdhsa_user_sgpr_kernarg_segment_ptr 1
  .amdhsa_system_sgpr_workgroup_id_x 1
.end_amdhsa_kernel
""" % NAME
        return hdr + body + ftr


if __name__ == "__main__":
    import argparse
    ap = argparse.ArgumentParser()
    ap.add_argument("-o", default="k.s")
    ap.add_argument("--timing", action="store_true")
    args = ap.parse_args()
    g = Gen(timing=args.timing)
    open(args.o, "w").write(g.build())
    if args.timing:
        open(args.o + ".names", "w").write(",".join(g.names))
```

```python
import re

REG_RE = re.compile(r'\b([vas])(\d+)\b|\b([vas])\[(\d+):(\d+)\]|\b(vcc|exec|m0|scc)\b')

def regs_in(op):
    out = set()
    for m in REG_RE.finditer(op):
        if m.group(1):
            out.add((m.group(1), int(m.group(2))))
        elif m.group(3):
            for i in range(int(m.group(4)), int(m.group(5)) + 1):
                out.add((m.group(3), i))
        else:
            out.add((m.group(6), 0))
    return out

TRANS = ('v_exp_f32', 'v_log_f32', 'v_rcp_f32', 'v_rsq_f32', 'v_sqrt_f32', 'v_sin_f32', 'v_cos_f32', 'v_rcp_iflag_f32')

class Ins:
    __slots__ = ('text', 'op', 'wr', 'rd', 'kind', 'passes', 'srcC', 'srcAB', 'dpp', 'sdata', 'states', 'target', 'islabel')
    def __init__(self, text):
        self.text = text
        self.islabel = False
        self.target = None
        t = text.split(';')[0].strip()
        self.wr = set(); self.rd = set(); self.kind = 'other'; self.passes = 0
        self.srcC = set(); self.srcAB = set(); self.dpp = False; self.sdata = set(); self.states = 1
        if t.endswith(':'):
            self.islabel = True; self.op = t[:-1]; self.states = 0; self.kind = 'label'
            return
        if t.startswith('@wait'):
            self.op = '@wait'; self.kind = 'salu'
            return
        if t.startswith('@mark'):
            self.op = '@mark'; self.kind = 'dir'; self.states = 0
            return
        if t.startswith('.') or not t:
            self.op = t; self.states = 0; self.kind = 'dir'
            return
        parts = t.split(None, 1)
        op = parts[0]; self.op = op
        rest = parts[1] if len(parts) > 1 else ''
        ops = []; cur = ''; depth = 0
        for ch in rest:
            if ch == '[': depth += 1
            if ch == ']': depth -= 1
            if ch == ',' and depth == 0:
                ops.append(cur.strip()); cur = ''
            else:
                cur += ch
        if cur.strip(): ops.append(cur.strip())
        def R(i):
            if i >= len(ops): return set()
            tok = ops[i]
            tok = re.sub(r'\b(op_sel|op_sel_hi|neg_lo|neg_hi|quad_perm):\[[^\]]*\]', '', tok)
            return regs_in(tok)
        allr = lambda a: set().union(*[R(i) for i in range(a, len(ops))]) if len(ops) > a else set()
        if op == 's_nop':
            self.states = int(ops[0], 0) + 1; self.kind = 'nop'
        elif op.startswith('v_mfma'):
            self.kind = 'mfma'
            self.passes = 8 if '32x32' in op else 4
            if op.endswith('_f32') and ('x2_f32' in op or 'x4_f32' in op): raise Exception('sgemm not modelled')
            self.wr = R(0); self.srcAB = R(1) | R(2); self.srcC = R(3); self.rd = self.srcAB | self.srcC
        elif op.startswith('v_cmp'):
            self.kind = 'valu'; self.wr = R(0); self.rd = allr(1)
        elif op.startswith('v_permlane') and 'swap' in op:
            self.kind = 'permlane'; self.wr = R(0) | R(1); self.rd = R(0) | R(1)
        elif op in ('v_readfirstlane_b32', 'v_readlane_b32'):
            self.kind = 'readlane'; self.wr = R(0); self.rd = allr(1)
        elif op.startswith('v_'):
            self.kind = 'valu'
            self.wr = R(0); self.rd = allr(1)
            if op.startswith(('v_add_co', 'v_sub_co', 'v_addc_co', 'v_subb_co', 'v_subrev_co')):
                self.wr |= R(1); self.rd = allr(2)
            if op.startswith(('v_fmac', 'v_dot2c', 'v_pk_fmac')): self.rd |= R(0)
            if op.startswith('v_cndmask') and len(ops) == 3: self.rd.add(('vcc', 0))
            if '_dpp' in op or 'quad_perm' in rest or 'row_' in rest or 'wave_' in rest:
                self.dpp = True; self.rd |= R(0)
            b = op.replace('_e32', '').replace('_e64', '')
            if b in TRANS: self.kind = 'trans'
            if op.startswith('v_dot'): self.kind = 'dot'
        elif op.startswith('ds_'):
            self.kind = 'mem'
            if op.startswith(('ds_read', 'ds_bpermute', 'ds_permute', 'ds_swizzle')):
                self.wr = R(0); self.rd = allr(1)
            else:
                self.rd = allr(0)
        elif op.startswith(('global_', 'buffer_', 'flat_')):
            self.kind = 'vmem'
            if op in ('buffer_inv', 'buffer_wbl2'):
                pass
            elif 'load_lds' in op or (' lds' in (' ' + rest) and 'load' in op):
                self.rd = allr(0) | {('m0', 0)}; self.kind = 'dma'
            elif 'load' in op:
                self.wr = R(0); self.rd = allr(1)
            else:
                self.rd = allr(0)
                if 'x4' in op or 'x3' in op:
                    self.sdata = R(1) if op.startswith('global_') else R(0)
        elif op.startswith('s_'):
            self.kind = 'salu'
            if op.startswith(('s_cbranch', 's_branch')):
                self.kind = 'branch'; self.target = ops[0]
                if 'vcc' in op: self.rd = {('vcc', 0)}
            elif op.startswith(('s_cmp', 's_waitcnt', 's_barrier', 's_sleep', 's_endpgm', 's_setprio', 's_bitcmp')):
                self.rd = allr(0)
            else:
                self.wr = R(0); self.rd = allr(1)
                if 'saveexec' in op: self.wr.add(('exec', 0))
        else:
            raise Exception('unknown instr: ' + text)

VALUK = ('valu', 'trans', 'dot', 'permlane', 'readlane')

def vec(s): return {r for r in s if r[0] in 'va'}
def sc(s): return {r for r in s if r[0] == 's' or r[0] == 'vcc'}

def need(p, c):
    n = 0
    if p.kind in VALUK:
        pw = vec(p.wr)
        if c.kind == 'mfma' and pw & c.rd: n = max(n, 2)
        if c.kind in VALUK and c.dpp and pw & c.rd: n = max(n, 2)
        if c.kind == 'permlane' and pw & c.rd: n = max(n, 2)
        if c.kind == 'readlane' and pw & c.rd: n = max(n, 1)
        if p.kind == 'trans' and c.kind != 'trans' and pw & c.rd: n = max(n, 1)
        if p.kind == 'dot' and (pw & (c.rd | c.wr)) and not (c.op == p.op): n = max(n, 3)
        if p.kind == 'dot' and c.op == p.op and pw & c.rd: n = max(n, 3) if False else n
        ps = sc(p.wr)
        if ps:
            if c.kind in VALUK and ps & c.rd: n = max(n, 4 if c.kind == 'readlane' else 2)
            if c.kind in ('vmem', 'dma') and ps & c.rd: n = max(n, 5)
            if c.kind in ('salu',) and ps & c.rd: n = max(n, 1)
    if p.kind == 'mfma':
        big = 12 if p.passes == 8 else 8
        if c.kind == 'mfma':
            if p.wr & c.srcAB: n = max(n, big)
            if p.wr & c.srcC and not (p.wr == c.srcC and p.passes == c.passes): n = max(n, 10 if p.passes == 8 else 6)
            if p.wr & c.wr and not (p.wr == c.srcC and p.passes == c.passes): n = max(n, 10 if p.passes == 8 else 6)
        elif c.kind in VALUK or c.kind in ('mem', 'vmem', 'dma'):
            if p.wr & (c.rd | c.wr): n = max(n, big)
            if c.kind in VALUK and p.srcC & c.wr: n = max(n, 7 if p.passes == 8 else 3)
    if p.sdata:
        if c.kind in VALUK and p.sdata & c.wr: n = max(n, 2)
        elif p.sdata & c.wr: n = max(n, 1)
    if p.kind == 'salu' and ('m0', 0) in p.wr and c.kind == 'dma': n = max(n, 1)
    return n

class Asm:
    def __init__(self):
        self.ins = []
    def __call__(self, text):
        for line in text.split('\n'):
            line = line.strip()
            if line: self.ins.append(Ins(line))
    def label(self, name): self(name + ':')
    def resolve_waits(self):
        for n, c in enumerate(self.ins):
            if c.op == '@wait':
                parts = c.text.split()
                tag = '#' + parts[1]
                extra = ' ' + ' '.join(parts[2:]) if len(parts) > 2 else ''
                cnt = 0; found = False
                for p in reversed(self.ins[:n]):
                    if '#loop' in p.text: raise Exception('wait across loop: ' + c.text)
                    if p.kind in ('vmem', 'dma'):
                        cm = p.text.split(';')[1].split() if ';' in p.text else []
                        if tag in cm:
                            found = True; break
                        if '#cond' not in cm: cnt += 1
                if not found: raise Exception('tag not found ' + c.text)
                self.ins[n] = Ins('s_waitcnt vmcnt(%d)%s' % (min(cnt, 63), extra))

    def finalize(self):
        self.ins = [i for i in self.ins if i.op != '@mark']
        self.resolve_waits()
        out = []
        WIN = 14
        for c in self.ins:
            if c.states:
                dist = 0; req = 0
                for p in reversed(out):
                    if dist >= WIN: break
                    if p.kind == 'branch' and p.op == 's_branch': break
                    if p.op == 's_endpgm': break
                    if p.states:
                        r = need(p, c) - dist
                        if r > req: req = r
                        dist += p.states
                while req > 0:
                    k = min(req, 16)
                    out.append(Ins('s_nop %d' % (k - 1)))
                    req -= k
            out.append(c)
        lab = {i.op: n for n, i in enumerate(out) if i.islabel}
        for n, b in enumerate(out):
            if b.kind == 'branch':
                tgt = lab[b.target]
                dist_c = 0
                for c in out[tgt:tgt + 40]:
                    if dist_c >= WIN: break
                    if c.states:
                        dist = dist_c
                        for p in reversed(out[max(0, n - 40):n + 1]):
                            if dist >= WIN: break
                            if p.states:
                                if need(p, c) - dist > 0:
                                    raise Exception('hazard across branch %s: %s -> %s' % (b.text, p.text, c.text))
                                dist += p.states
                        dist_c += c.states
                        if c.kind == 'branch' and c.op == 's_branch': break
        self.out = out
        return '\n'.join(('' if i.islabel else '    ') + i.text for i in out) + '\n'
```

```python
import sys, struct, os
from asmdsl import Asm

NAME = "sequential_preLN__ssm_conv_s4d__mixer_token_mlp__prompt"

def f32(x):
    return "0x%08x" % struct.unpack("<I", struct.pack("<f", x))[0]

LOG2E = 1.4426950408889634
INV2PI = 0.15915494309189535

WS_FL = 0x10000
WS_UT = 0x100000
WS_H2 = 0x380000
WS_YT = 0x600000
WS_HP = 0x900000
WS_G = 0xB80000
P2A = 7
P2KB = 19
WS_DBG = 0x1000000
WS_TIME = 0x2000000

ESTR = 528
E1SZ = 21 * ESTR
ECH = E1SZ + 32 * ESTR
LDS_E = 0
CSTR = 4640
CCH = 4 * CSTR
LDS_C = 84224
USTR = 4224
LDS_U = 139904
LDS_XR = LDS_U
XRS = 1344
LDS_SR = 152576
LDS_SC = 152704
LDS_SHP = 65536
LDS_SHF = 81920
OWNS = 24576 + 64
OHS = 12288 + 64
LDS_OWN = LDS_C
LDS_LN = 160000
LDS_MID = 81920
LDS_H = 147456
LDS_TOTAL = 163840

S_WAVE, S_XCD, S_IDX, S_OCT = 3, 4, 5, 6
S_CF, S_PAR, S_TAG = 7, 9, 10
P_UT, P_H2 = 12, 14
P_X, P_LOGA, P_AIM, P_CR, P_CI, P_LDT, P_DSK = 16, 18, 20, 22, 24, 26, 28
P_W1, P_B1, P_W2, P_B2, P_OUT, P_DBG, P_WS = 32, 34, 36, 38, 40, 42, 44
P_YT, P_HP, P_G, P_FL = 46, 48, 50, 52
S_DB, S_FB, S_SB, S_G1 = 76, 77, 78, 79
S_K2, S_SHORT = 92, 93
XG, TG = 200, 212
WD, WT = 234, 238
ACC0, SLOT0, NSLOT = 14, 94, 7
QA, QB = [7, 4, 3, 0], [6, 5, 2, 1]
SPIN = 200000
TLBW = int(os.environ.get('TLBW', '1'))
BGX = os.environ.get('BGX', 'z')

def sp(n): return "s[%d:%d]" % (n, n + 1)
def vp(n): return "v[%d:%d]" % (n, n + 1)
def v4(n): return "v[%d:%d]" % (n, n + 3)
def a4(n): return "a[%d:%d]" % (n, n + 3)
def a2(n): return "a[%d:%d]" % (n, n + 1)


class Gen:
    def __init__(self, debug=0, timing=False):
        self.a = Asm()
        self.debug = debug
        self.timing = timing
        self.nstamp = 0
        self.names = []
        self.uid = 0
        self.slowpaths = []

    def lab(self, base):
        self.uid += 1
        return "L_%s_%d" % (base, self.uid)

    def stamp(self, name=""):
        if not self.timing:
            return
        a = self.a
        a("s_memrealtime s[98:99]" if os.environ.get("RT") else "s_memtime s[98:99]")
        a("s_waitcnt lgkmcnt(0)")
        a("v_writelane_b32 v255, s98, %d" % self.nstamp)
        if self.nstamp >= 30:
            pass
        elif self.nstamp >= len(self.names):
            self.names.append(name)
        else:
            self.names[self.nstamp] += "/" + name
        self.nstamp += 1

    def weave(self, mark, bg, lo=0.0, hi=1.0):
        a = self.a
        seg = a.ins[mark:]
        del a.ins[mark:]
        n = len(seg)
        pos = [int(n * (lo + (hi - lo) * (k + 0.5) / len(bg))) for k in range(len(bg))]
        k = 0
        for i, ins in enumerate(seg):
            while k < len(bg) and pos[k] <= i:
                for t in bg[k]:
                    a(t)
                k += 1
            a.ins.append(ins)
        while k < len(bg):
            for t in bg[k]:
                a(t)
            k += 1

    def cmuls(self, lst):
        a = self.a
        for d, x, y in lst:
            a("v_pk_mul_f32 %s, %s, %s op_sel:[0,0] op_sel_hi:[0,1]" % (vp(d), vp(x), vp(y)))
        for d, x, y in lst:
            a("v_pk_fma_f32 %s, %s, %s, %s op_sel:[1,1,0] op_sel_hi:[1,0,1] neg_lo:[0,1,0]" % (vp(d), vp(x), vp(y), vp(d)))

    def cexps(self, items, tmp):
        a = self.a
        for n, (d, k, ar, ap) in enumerate(items):
            t = tmp + 2 * n
            a("v_mul_f32 v%d, %s, v%d" % (t, f32(float(2 ** k)), ar))
            a("v_mul_f32 v%d, %s, v%d" % (t + 1, f32(float(2 ** k)), ap))
        for n, it in enumerate(items):
            t = tmp + 2 * n
            a("v_exp_f32 v%d, v%d" % (t, t))
            a("v_fract_f32 v%d, v%d" % (t + 1, t + 1))
        for n, it in enumerate(items):
            t = tmp + 2 * n
            a("v_cos_f32 v%d, v%d" % (it[0], t + 1))
            a("v_sin_f32 v%d, v%d" % (it[0] + 1, t + 1))
        for n, it in enumerate(items):
            t = tmp + 2 * n
            a("v_pk_mul_f32 %s, %s, %s op_sel:[0,0] op_sel_hi:[0,1]" % (vp(it[0]), vp(t), vp(it[0])))

    def rowreduce16(self, regs, op="v_add_f32"):
        a = self.a
        for mode in ("quad_perm:[1,0,3,2]", "quad_perm:[2,3,0,1]", "row_half_mirror", "row_mirror"):
            for r in regs:
                a("%s_dpp v%d, v%d, v%d %s row_mask:0xf bank_mask:0xf" % (op, r, r, r, mode))

    def bf16_round(self, d, s):
        a = self.a
        a("v_cvt_pk_bf16_f32 v%d, v%d, v%d" % (d, s, s))
        a("v_and_b32 v%d, 0xffff0000, v%d" % (d, d))

    def spin_tail(self, lp, lok, sleep):
        a = self.a
        a("s_add_u32 s69, s69, 1")
        a("s_cmp_gt_u32 s69, %d" % SPIN)
        a("s_cbranch_scc1 %s" % lok)
        a("s_sleep %d" % sleep)
        a("s_branch %s" % lp)

    def wait_w3(self, n, extra):
        a = self.a
        if 'z' in BGX:
            a("s_waitcnt vmcnt(%d)%s" % (n, extra))
            return
        l = self.lab("ww3")
        a("s_waitcnt vmcnt(%d)%s" % (n + 4, extra))
        a("s_cmp_eq_u32 s%d, 3" % S_WAVE)
        a("s_cbranch_scc1 %s" % l)
        a("s_waitcnt vmcnt(%d)" % n)
        a.label(l)

    def flag_store(self, arr, per_wave=True, wait="vmcnt(0)"):
        a = self.a
        a("s_lshl_b32 s54, s%d, 7" % S_OCT)
        if arr:
            a("s_add_u32 s54, s54, %d" % (arr * 0x8000))
        if per_wave:
            a("s_lshl_b32 s55, s%d, 2" % S_WAVE)
            a("s_add_u32 s54, s54, s55")
        a("v_mov_b32 v2, s54")
        a("v_mov_b32 v3, s%d" % S_TAG)
        if wait:
            a("s_waitcnt %s" % wait)
        a("s_mov_b64 exec, 1")
        a("global_store_dword v2, v3, %s sc1" % sp(P_FL))
        a("s_mov_b64 exec, -1")

    def phase0(self):
        a = self.a
        a("s_cmp_ge_u32 s2, 256")
        a("s_cbranch_scc1 L_end")
        a("s_load_dwordx16 s[16:31], s[0:1], 0")
        a("s_load_dwordx8 s[32:39], s[0:1], 64")
        a("s_load_dwordx4 s[40:43], s[0:1], 96")
        a("s_load_dwordx2 s[44:45], s[0:1], 112")
        a("s_getpc_b64 s[94:95]")
        a.label("L_pc")
        a("v_lshrrev_b32 v2, 6, v0")
        a("v_and_b32 v1, 63, v0")
        a("v_readfirstlane_b32 s%d, v2" % S_WAVE)
        a("s_and_b32 s%d, s2, 7" % S_XCD)
        a("s_lshr_b32 s%d, s2, 3" % S_IDX)
        a("s_lshl_b32 s%d, s%d, 5" % (S_OCT, S_XCD))
        a("s_add_u32 s%d, s%d, s%d" % (S_OCT, S_OCT, S_IDX))
        a("s_lshl_b32 s54, s%d, 4" % S_IDX)
        a("v_add_u32 v3, s54, v0")
        a("v_lshlrev_b32 v3, 7, v3")
        a("v_min_u32 v3, (L_codeend-L_pc-4), v3")
        a("v_cmp_gt_u32 vcc, 16, v0")
        a("s_and_saveexec_b64 s[54:55], vcc")
        lq = self.lab("cpf")
        a("s_cbranch_execz %s" % lq)
        a("global_load_dword v254, v3, s[94:95]")
        a.label(lq)
        a("s_mov_b64 exec, -1")
        a("s_mul_i32 s54, s%d, 80" % S_XCD)
        a("s_min_u32 s55, s%d, 26" % S_IDX)
        a("s_mul_i32 s55, s55, 3")
        a("s_add_u32 s%d, s54, s55" % S_CF)
        a("s_lshl_b32 s54, s%d, 3" % S_OCT)
        a("s_lshl_b32 s55, s%d, 1" % S_WAVE)
        a("s_add_u32 s54, s54, s55")
        a("v_lshrrev_b32 v9, 5, v1")
        a("v_add_u32 v4, s54, v9")
        a("v_mul_u32_u24 v4, 1280, v4")
        a("v_and_b32 v5, 31, v1")
        a("v_lshl_add_u32 v4, v5, 3, v4")
        a("v_add_u32 v9, s55, v9")
        a("v_mul_u32_u24 v8, %d, v9" % XRS)
        a("v_lshl_add_u32 v8, v5, 3, v8")
        a("v_add_u32 v8, %d, v8" % LDS_XR)
        a("s_min_u32 s56, s%d, 2" % S_WAVE)
        a("s_add_u32 s56, s56, s%d" % S_CF)
        a("s_min_u32 s56, s56, 639")
        a("s_lshl_b32 s57, s56, 8")
        a("v_lshl_add_u32 v6, v1, 2, s57")
        a("v_lshlrev_b32 v7, 1, v0")
        a("v_min_u32 v181, 159, v0")
        a("v_lshrrev_b32 v182, 2, v181")
        a("v_mul_u32_u24 v183, 13108, v182")
        a("v_lshrrev_b32 v183, 16, v183")
        a("v_mul_u32_u24 v183, 27, v183")
        a("v_add3_u32 v182, v182, v183, 27")
        a("v_and_b32 v181, 3, v181")
        a("v_lshlrev_b32 v181, 2, v181")
        a("v_lshl_add_u32 v233, v182, 7, v181")
        a("v_add_u32 v233, 0x8000, v233")
        a("s_lshl_b32 s61, s2, 2")
        a("s_add_u32 s61, s61, s%d" % S_WAVE)
        a("s_lshr_b32 s62, s61, 8")
        a("s_and_b32 s61, s61, 255")
        a("s_lshl_b32 s63, s62, 9")
        a("s_add_u32 s63, s63, s61")
        a("s_mul_i32 s63, s63, 3456")
        a("v_min_u32 v231, 26, v1")
        a("v_lshl_add_u32 v231, v231, 7, s63")
        a("s_mul_i32 s63, s62, 448")
        a("s_min_u32 s63, s63, 1312")
        a("s_add_u32 s63, s63, s61")
        a("s_lshl_b32 s96, s63, 12")
        a("s_add_u32 s63, s63, 256")
        a("s_min_u32 s63, s63, 1727")
        a("s_lshl_b32 s97, s63, 12")
        a("v_and_b32 v232, 31, v1")
        a("v_lshlrev_b32 v232, 7, v232")
        if self.timing:
            a("v_mov_b32 v255, 0")
        a("s_waitcnt lgkmcnt(0)")
        self.stamp("start")
        if self.timing:
            a("s_memrealtime s[98:99]")
            a("s_waitcnt lgkmcnt(0)")
            a("v_writelane_b32 v255, s98, 62")
        for k in range(5):
            a("global_load_dwordx2 %s, v4, %s offset:%d" % (vp(10 + 2 * k), sp(P_X), 256 * k))
        a("global_load_ushort v228, v7, %s" % sp(P_DSK))
        a("global_load_ushort v229, v7, %s offset:512" % sp(P_DSK))
        a("v_min_u32 v7, 254, v7")
        a("global_load_ushort v230, v7, %s offset:1024" % sp(P_DSK))
        for n, p in enumerate((P_LOGA, P_AIM, P_CR, P_CI)):
            a("global_load_dword v%d, v6, %s" % (224 + n, sp(p)))
        a("global_load_dword v254, v231, %s" % sp(P_W1))
        a("v_add_u32 v231, %d, v231" % (256 * 3456))
        a("s_load_dword s%d, %s, 0" % (S_TAG, sp(P_WS)))
        a("s_lshl_b32 s57, s56, 1")
        a("s_and_b32 s57, s57, 0xfffffffc")
        a("s_load_dword s59, %s, s57" % sp(P_LDT))
        for p, off in ((P_YT, WS_YT), (P_HP, WS_HP), (P_G, WS_G), (P_FL, WS_FL), (P_UT, WS_UT), (P_H2, WS_H2)):
            a("s_add_u32 s%d, s%d, 0x%x" % (p, P_WS, off))
            a("s_addc_u32 s%d, s%d, 0" % (p + 1, P_WS + 1))
        a("s_and_b32 s54, s%d, 1" % S_XCD)
        a("s_lshl_b32 s54, s54, 2")
        a("s_and_b32 s55, s%d, 3" % S_IDX)
        a("s_add_u32 s%d, s54, s55" % S_DB)
        a("s_lshr_b32 s54, s%d, 1" % S_XCD)
        a("s_lshr_b32 s55, s%d, 2" % S_IDX)
        a("s_mul_i32 s%d, s54, 7" % S_FB)
        a("s_add_u32 s%d, s%d, s55" % (S_FB, S_FB))
        a("s_lshl_b32 s%d, s54, 3" % S_SB)
        a("s_add_u32 s%d, s%d, s55" % (S_SB, S_SB))
        a("s_mov_b32 s%d, 1" % S_G1)
        a("s_cmp_ge_u32 s55, 7")
        a("s_cmov_b32 s%d, 0" % S_G1)
        a("s_cmp_ge_u32 s%d, 27" % S_FB)
        a("s_cmov_b32 s%d, 0" % S_G1)
        a("s_min_u32 s%d, s%d, 26" % (S_FB, S_FB))
        a("s_mul_i32 s%d, s%d, 14" % (S_K2, S_WAVE))
        a("s_lshr_b32 s%d, s%d, 1" % (S_SHORT, S_WAVE))
        a("s_cmp_eq_u32 s%d, 3" % S_WAVE)
        a("s_cmov_b32 s%d, 41" % S_K2)

    def phase1(self):
        a = self.a
        a("v_mov_b32 v24, 0")
        a("v_mov_b32 v25, 0")
        a("v_mov_b32 v26, 0x3f803f80")
        a("v_bfe_u32 v27, v1, 2, 2")
        a("v_mul_u32_u24 v27, %d, v27" % XRS)
        a("v_lshrrev_b32 v28, 4, v0")
        a("v_lshl_add_u32 v27, v28, 5, v27")
        a("v_and_b32 v28, 3, v1")
        a("v_lshl_add_u32 v27, v28, 3, v27")
        a("v_add_u32 v27, %d, v27" % LDS_XR)
        a("v_lshlrev_b32 v29, 2, v9")
        a("v_add_u32 v29, %d, v29" % LDS_SR)
        a("v_mov_b32 v30, %d" % LDS_SR)
        a("s_mul_i32 s58, s%d, 10240" % S_OCT)
        a("v_lshl_add_u32 v2, v0, 4, s58")
        a("v_add_u32 v3, 4096, v2")
        a("v_add_u32 v4, 8192, v2")
        a("s_waitcnt vmcnt(8) lgkmcnt(0)")
        for k in range(5):
            a("ds_write_b64 v8, %s offset:%d" % (vp(10 + 2 * k), 256 * k))
        for k in range(10):
            a("v_dot2_f32_bf16 v24, v%d, v26, v24" % (10 + k))
            a("v_dot2_f32_bf16 v25, v%d, v%d, v25" % (10 + k, 10 + k))
        a("s_mul_i32 s%d, s%d, 1664525" % (S_TAG, S_TAG))
        a("s_add_u32 s%d, s%d, 1013904223" % (S_TAG, S_TAG))
        a("s_nop 1")
        self.rowreduce16([24, 25])
        a("v_mov_b32 v31, v24")
        a("v_mov_b32 v32, v25")
        a("v_permlane16_swap_b32 v24, v31")
        a("v_permlane16_swap_b32 v25, v32")
        a("v_add_f32 v24, v24, v31")
        a("v_add_f32 v25, v25, v32")
        a("v_mul_f32 v24, %s, v24" % f32(1.0 / 640))
        a("v_mul_f32 v25, %s, v25" % f32(1.0 / 640))
        a("v_fma_f32 v25, -v24, v24, v25")
        a("v_max_f32 v25, 0, v25")
        self.bf16_round(25, 25)
        self.bf16_round(24, 24)
        a("v_add_f32 v25, %s, v25" % f32(1e-5))
        self.bf16_round(25, 25)
        a("v_sqrt_f32 v25, v25")
        self.bf16_round(25, 25)
        a("v_rcp_f32 v25, v25")
        a("ds_write_b32 v29, v24")
        a("ds_write_b32 v29, v25 offset:32")
        a("s_waitcnt lgkmcnt(0)")
        a("s_barrier")
        self.stamp("stats")
        for j in range(3):
            for hh in range(2):
                a("ds_read_b64_tr_b16 %s, v27 offset:%d" % (vp(XG + 4 * j + 2 * hh), 512 * j + 4 * XRS * hh))
        for q in range(4):
            a("ds_read_b128 %s, v30 offset:%d" % (v4(32 + 4 * q), 16 * q))
        W = lambda n: 48 + 2 * n
        it = [(j, p) for j in range(3) for p in range(4)]
        def unpack(srcf):
            for n in range(12):
                a("v_lshlrev_b32 v%d, 16, v%d" % (W(n), srcf(n)))
                a("v_and_b32 v%d, 0xffff0000, v%d" % (W(n) + 1, srcf(n)))
        def cvt(dstf, op="v_cvt_pk_bf16_f32"):
            for n in range(12):
                a("%s v%d, v%d, v%d" % (op, dstf(n), W(n), W(n) + 1))
        a("s_waitcnt lgkmcnt(4)")
        unpack(lambda n: XG + n)
        a("s_waitcnt lgkmcnt(0)")
        for n, (j, p) in enumerate(it):
            a("v_pk_add_f32 %s, %s, %s neg_lo:[0,1] neg_hi:[0,1]" % (vp(W(n)), vp(W(n)), vp(32 + 2 * p)))
        cvt(lambda n: 72 + n)
        unpack(lambda n: 72 + n)
        for n, (j, p) in enumerate(it):
            a("v_pk_mul_f32 %s, %s, %s" % (vp(W(n)), vp(W(n)), vp(40 + 2 * p)))
        cvt(lambda n: 72 + n)
        unpack(lambda n: 72 + n)
        cvt(lambda n: 84 + n, "v_cvt_pk_f16_f32")
        a("s_waitcnt vmcnt(1)")
        a("global_store_dwordx4 v2, v[84:87], %s sc1" % sp(P_UT))
        a("global_store_dwordx4 v3, v[88:91], %s sc1" % sp(P_UT))
        l = self.lab("ut3")
        a("s_cmp_ge_u32 s%d, 2" % S_WAVE)
        a("s_cbranch_scc1 %s" % l)
        a("global_store_dwordx4 v4, v[92:95], %s sc1" % sp(P_UT))
        a.label(l)
        for j in range(3):
            a("v_lshlrev_b32 v%d, 16, v%d" % (100 + 2 * j, 228 + j))
        for n, (j, p) in enumerate(it):
            a("v_pk_mul_f32 %s, %s, %s op_sel_hi:[1,0]" % (vp(W(n)), vp(W(n)), vp(100 + 2 * j)))
        cvt(lambda n: TG + n)
        self.stamp("utstore")

    def wl_setup(self, ptr, rs, row0_sgpr, col_sgpr, stage_shift):
        a = self.a
        a("v_lshrrev_b32 v2, 3, v1")
        a("v_and_b32 v3, 7, v1")
        a("v_and_b32 v4, 2, v2")
        a("v_xor_b32 v3, v3, v4")
        a("v_mul_u32_u24 v2, %d, v2" % rs)
        a("v_lshl_add_u32 v%d, v3, 4, v2" % WD)
        a("v_xor_b32 v3, 4, v3")
        a("v_lshl_add_u32 v%d, v3, 4, v2" % (WD + 1))
        a("v_add_u32 v%d, %d, v%d" % (WD + 1, 8 * rs - 1024, WD + 1))
        a("v_add_u32 v%d, %d, v%d" % (WD + 2, 16 * rs - 2048, WD))
        a("v_add_u32 v%d, %d, v%d" % (WD + 3, 16 * rs - 2048, WD + 1))
        a("s_mul_i32 s54, s%d, %d" % (row0_sgpr, rs))
        a("s_add_u32 s54, s54, s%d" % col_sgpr)
        a("s_add_u32 s80, s%d, s54" % ptr)
        a("s_addc_u32 s81, s%d, 0" % (ptr + 1))
        if stage_shift is not None:
            a("v_lshrrev_b32 v2, 4, v1")
            a("v_bfe_u32 v3, v1, 2, 2")
            a("v_lshl_add_u32 v4, v2, 3, v3")
            a("v_lshlrev_b32 v4, 7, v4")
            a("v_and_b32 v5, 3, v1")
            a("v_lshl_add_u32 v4, v5, 3, v4")
            a("s_mul_i32 s54, s%d, %d" % (S_WAVE, stage_shift))
            a("v_add_u32 v4, s54, v4")
            a("v_lshrrev_b32 v3, 1, v3")
            a("v_and_b32 v2, 1, v2")
            a("v_lshl_add_u32 v2, v2, 1, v3")
            for nt in range(4):
                a("s_add_u32 s54, s%d, %d" % (S_WAVE, nt))
                a("s_and_b32 s54, s54, 3")
                a("v_xor_b32 v3, s54, v2")
                a("v_lshl_add_u32 v%d, v3, 5, v4" % (WT + nt))

    def wl_dma_groups(self, rs, nks, stage_shift, slot0=0, tag="wd"):
        G = []
        for s in range(nks):
            g = []
            if s == 0:
                g.append("s_mul_i32 s82, s%d, %d" % (S_WAVE, stage_shift))
                if slot0:
                    g.append("s_add_u32 s82, s82, %d" % (slot0))
            g.append("s_mov_b32 m0, s82")
            g.append("s_add_u32 s82, s82, 4096")
            g.append("global_load_lds_dwordx4 v%d, s[80:81]" % WD)
            g.append("global_load_lds_dwordx4 v%d, s[80:81] offset:1024" % (WD + 1))
            G.append(g)
            G.append(["global_load_lds_dwordx4 v%d, s[80:81] offset:2048" % (WD + 2),
                      "global_load_lds_dwordx4 v%d, s[80:81] offset:3072 ; #%s%d" % (WD + 3, tag, s),
                      "s_add_u32 s80, s80, %d" % (32 * rs), "s_addc_u32 s81, s81, 0"])
        return G

    def wl_dma_loop(self, rs, count, stage_shift, slot0=0):
        a = self.a
        a("s_mul_i32 s82, s%d, %d" % (S_WAVE, stage_shift))
        if slot0:
            a("s_add_u32 s82, s82, %d" % (slot0))
        a("s_mov_b32 s83, %s" % str(count))
        lp = self.lab("dma")
        a.label(lp)
        a("s_mov_b32 m0, s82 ; #loop")
        a("s_add_u32 s82, s82, 4096")
        for k in range(4):
            a("global_load_lds_dwordx4 v%d, s[80:81] offset:%d" % (WD + k, 1024 * k))
        a("s_add_u32 s80, s80, %d" % (32 * rs))
        a("s_addc_u32 s81, s81, 0")
        a("s_sub_u32 s83, s83, 1")
        a("s_cmp_gt_i32 s83, 0")
        a("s_cbranch_scc1 %s" % lp)

    def wl_tr(self, ks0, nks, slot0=0):
        return ["ds_read_b64_tr_b16 %s, v%d offset:%d" % (a2(((ks0 + s) * 4 + nt) * 4 + 2 * hf), WT + nt, slot0 + s * 4096 + hf * 512)
                for s in range(nks) for nt in range(4) for hf in range(2)]

    def phase2(self):
        a = self.a
        lW3 = self.lab("w3")
        lKd = self.lab("kdone")
        st0 = self.nstamp
        a("s_cmp_ge_u32 s%d, 27" % S_IDX)
        a("s_cbranch_scc1 L_helper")
        a("s_cmp_eq_u32 s%d, 3" % S_WAVE)
        a("s_cbranch_scc1 %s" % lW3)
        a("s_and_b32 s57, s56, 1")
        a("s_lshl_b32 s57, s57, 4")
        a("s_lshr_b32 s59, s59, s57")
        a("s_lshl_b32 s59, s59, 16")
        a("v_mov_b32 v242, %s" % f32(LOG2E))
        a("v_mul_f32 v242, s59, v242")
        a("v_exp_f32 v242, v242")
        a("v_and_b32 v243, 0x7fff7fff, v226")
        a("v_and_b32 v244, 0x7fff7fff, v227")
        a("v_pk_max_u16 v243, v243, v244")
        a("v_lshlrev_b32 v244, 16, v243")
        a("v_max_u32 v243, v243, v244")
        self.bf16_round(242, 242)
        a("v_lshlrev_b32 v246, 16, v224")
        a("v_and_b32 v250, 0xffff0000, v224")
        fill = [["v_mul_f32 v246, %s, v246" % f32(LOG2E), "v_mul_f32 v250, %s, v250" % f32(LOG2E)],
                ["v_exp_f32 v246, v246", "v_exp_f32 v250, v250"],
                ["v_lshlrev_b32 v247, 16, v225", "v_and_b32 v251, 0xffff0000, v225"],
                ["v_mul_f32 v247, v247, v242", "v_mul_f32 v251, v251, v242"]]
        for mode, fl in zip(("quad_perm:[1,0,3,2]", "quad_perm:[2,3,0,1]", "row_half_mirror", "row_mirror"), fill):
            a("v_max_u32_dpp v243, v243, v243 %s row_mask:0xf bank_mask:0xf" % mode)
            for t in fl:
                a(t)
        for sw, r, src in (("v_permlane16_swap_b32", 248, 226), ("v_permlane32_swap_b32", 249, 227)):
            a("v_mov_b32 v244, v243")
            a("v_lshlrev_b32 v%d, 16, v%d" % (r, src))
            a("v_and_b32 v%d, 0xffff0000, v%d" % (r + 4, src))
            a("%s v243, v244" % sw)
            a("v_max_u32 v243, v243, v244")
        self.bf16_round(246, 246)
        self.bf16_round(250, 250)
        a("v_mul_f32 v247, %s, v247" % f32(INV2PI))
        a("v_mul_f32 v251, %s, v251" % f32(INV2PI))
        a("v_mul_f32 v246, v246, v242")
        a("v_mul_f32 v250, v250, v242")
        a("v_mul_f32 v246, %s, v246" % f32(-LOG2E))
        a("v_mul_f32 v250, %s, v250" % f32(-LOG2E))
        SA, SB = 10, 100
        E = lambda S, j: S + 2 * j
        T = lambda S, j: S + 34 + 2 * j
        GK = lambda S, k: S + 66 + 2 * {0: 0, 1: 1, 2: 2, 8: 3, 9: 4, 10: 5, 11: 6}[k]
        self.cexps([(E(SA, 1), 3, 246, 247), (E(SB, 1), 3, 250, 251), (GK(SA, 0), 0, 246, 247), (GK(SB, 0), 0, 250, 251),
                    (GK(SA, 8), 8, 246, 247), (GK(SB, 8), 8, 250, 251)], 180)
        a("v_and_b32 v243, 0x7f800000, v243")
        a("v_max_u32 v243, 0x00800000, v243")
        a("v_min_u32 v243, 0x7e800000, v243")
        a("v_sub_u32 v244, 0x7f800000, v243")
        a("v_mul_f32 v245, v243, v242")
        for r in (248, 249, 252, 253):
            a("v_mul_f32 v%d, v%d, v244" % (r, r))
        a("s_lshl_b32 s54, s%d, 2" % S_WAVE)
        a("s_add_u32 s54, s54, %d" % LDS_SC)
        a("v_mov_b32 v5, s54")
        a("ds_write_b32 v5, v245")
        a("s_mul_i32 s60, s%d, %d" % (S_WAVE, ECH))
        a("v_lshl_add_u32 v6, v1, 3, s60")
        self.flag_store(0)
        a("global_load_dword v254, v231, %s" % sp(P_W1))
        self.stamp("flag")
        mark = len(a.ins)
        tmpn = [0]
        def st(off, ra, rb, neg=False):
            t = 188 + 2 * (tmpn[0] % 6)
            tmpn[0] += 1
            ng = "-" if neg else ""
            return ["v_cvt_pk_f16_f32 v%d, v%d, %sv%d" % (t, ra, ng, ra + 1),
                    "v_cvt_pk_f16_f32 v%d, v%d, %sv%d" % (t + 1, rb, ng, rb + 1),
                    "ds_write_b64 v6, %s offset:%d" % (vp(t), off)]
        sq = lambda d, x: (d, x, x)
        SS = (SA, SB)
        R = lambda S, r: ((248 if S == SA else 252) if r == 0 else S + 2 * r)
        a("v_mov_b32 v196, 0x00003c00")
        a("v_mov_b32 v197, 0x00003c00")
        a("ds_write_b64 v6, v[196:197] offset:%d" % (LDS_E + E1SZ))
        self.cmuls([sq(E(S, 2), E(S, 1)) for S in SS] + [sq(GK(S, 1), GK(S, 0)) for S in SS] + [sq(GK(S, 9), GK(S, 8)) for S in SS])
        self.cmuls([sq(E(S, 4), E(S, 2)) for S in SS] + [(E(S, 3), E(S, 1), E(S, 2)) for S in SS] +
                   [sq(GK(S, 2), GK(S, 1)) for S in SS] + [sq(GK(S, 10), GK(S, 9)) for S in SS])
        m2 = len(a.ins)
        self.cmuls([sq(E(S, 8), E(S, 4)) for S in SS] + [(E(S, 4 + j), E(S, j), E(S, 4)) for j in (1, 2, 3) for S in SS] +
                   [sq(GK(S, 11), GK(S, 10)) for S in SS])
        self.weave(m2, [st(LDS_E + E1SZ + j * ESTR, E(SA, j), E(SB, j)) for j in (1, 2, 3, 4)] + [st(LDS_E, R(SA, 0), R(SB, 0), True)])
        m2 = len(a.ins)
        self.cmuls([sq(E(S, 16), E(S, 8)) for S in SS] + [(E(S, 8 + j), E(S, j), E(S, 8)) for j in range(1, 8) for S in SS])
        self.weave(m2, [st(LDS_E + E1SZ + j * ESTR, E(SA, j), E(SB, j)) for j in (5, 6, 7, 8)])
        m2 = len(a.ins)
        self.cmuls([(T(S, j), E(S, j), E(S, 16)) for j in range(1, 16) for S in SS])
        self.weave(m2, [st(LDS_E + E1SZ + j * ESTR, E(SA, j), E(SB, j)) for j in range(9, 17)])
        R = lambda S, r: ((248 if S == SA else 252) if r == 0 else (S + 2 * r if r <= 16 else S + 80 + 2 * (r - 17)))
        l1 = [(1, 0, 0), (2, 0, 1), (4, 0, 2), (8, 0, 8), (12, 0, 9), (16, 0, 10), (20, 0, 11)]
        l2 = [(3, 1, 1), (5, 1, 2), (6, 2, 2), (9, 2, 8), (10, 4, 8), (13, 4, 9), (14, 8, 9), (17, 8, 10), (18, 12, 10)]
        l3 = [(7, 3, 2), (11, 6, 8), (15, 10, 9), (19, 14, 10)]
        tst = [st(LDS_E + E1SZ + (16 + j) * ESTR, T(SA, j), T(SB, j)) for j in range(1, 16)]
        m2 = len(a.ins)
        self.cmuls([(R(S, d), R(S, x), GK(S, k)) for d, x, k in l1 for S in SS])
        self.weave(m2, tst[:7])
        m2 = len(a.ins)
        self.cmuls([(R(S, d), R(S, x), GK(S, k)) for d, x, k in l2 for S in SS])
        self.weave(m2, tst[7:])
        m2 = len(a.ins)
        self.cmuls([(R(S, d), R(S, x), GK(S, k)) for d, x, k in l3 for S in SS])
        self.weave(m2, [st(LDS_E + d * ESTR, R(SA, d), R(SB, d), True) for d, x, k in l1])
        for d, x, k in l2 + l3:
            for t in st(LDS_E + d * ESTR, R(SA, d), R(SB, d), True):
                a(t)
        self.stamp("Edone")
        a("v_and_b32 v2, 31, v1")
        a("v_lshrrev_b32 v3, 5, v1")
        a("v_mul_u32_u24 v4, %d, v2" % ESTR)
        a("v_lshl_add_u32 v4, v3, 4, v4")
        a("v_add_u32 v4, s60, v4")
        for ks in range(16):
            a("ds_read_b128 %s, v4 offset:%d" % (v4(32 + 8 * ks), LDS_E + ks * 32))
            a("ds_read_b128 %s, v4 offset:%d" % (v4(36 + 8 * ks), LDS_E + E1SZ + ks * 32))
            if ks >= 6:
                k = ks - 6
                a("s_waitcnt lgkmcnt(12)")
                a("v_mfma_f32_32x32x16_f16 v[8:23], %s, %s, %s" % (v4(32 + 8 * k), v4(36 + 8 * k), "0" if k == 0 else "v[8:23]"))
        a("s_mul_i32 s55, s%d, %d" % (S_WAVE, CCH))
        a("s_add_u32 s55, s55, %d" % (LDS_C + 3 * CSTR))
        a("v_lshlrev_b32 v5, 4, v2")
        a("v_sub_u32 v5, s55, v5")
        a("v_lshlrev_b32 v6, 3, v3")
        a("v_sub_u32 v6, v5, v6")
        a("v_lshl_add_u32 v7, v1, 4, s55")
        for r in range(4):
            a("v_mov_b32 v%d, 0" % (164 + r))
        for k in range(10, 16):
            a("s_waitcnt lgkmcnt(%d)" % (2 * (15 - k)))
            a("v_mfma_f32_32x32x16_f16 v[8:23], %s, %s, v[8:23]" % (v4(32 + 8 * k), v4(36 + 8 * k)))
        a("v_cmp_gt_u32 vcc, 34, v1")
        a("s_and_saveexec_b64 s[62:63], vcc")
        a("ds_write_b128 v7, v[164:167] offset:4096")
        a("s_mov_b64 exec, -1")
        a("v_min_u32 v168, 23, v1")
        a("v_lshl_add_u32 v168, v168, 4, s55")
        a("v_add_u32 v168, 4096, v168")
        a("v_subrev_u32 v169, %d, v7" % (3 * CSTR))
        a("v_subrev_u32 v170, %d, v168" % (3 * CSTR))
        for i in range(4):
            a("v_cvt_pk_f16_f32 v%d, v%d, v%d" % (24 + 2 * i, 16 + i, 16 + i))
            a("v_cvt_pk_f16_f32 v%d, v%d, v%d" % (25 + 2 * i, 16 + i, 16 + i))
        for d, x, y in ((32, 13, 13), (34, 13, 12), (35, 12, 12), (36, 15, 15), (38, 15, 14), (39, 14, 14), (40, 14, 13),
                        (41, 12, 12), (42, 11, 10), (43, 9, 8)):
            a("v_cvt_pk_f16_f32 v%d, v%d, v%d" % (d, x, y))
        a("s_mov_b32 exec_hi, 0")
        for i in range(4):
            P = 1020 - 256 * i
            a("ds_write_b64 v5, %s offset:%d" % (vp(24 + 2 * i), 2 * P))
            a("ds_write_b64 v5, %s offset:%d" % (vp(24 + 2 * i), 2 * P + 8))
        a("s_mov_b32 exec_lo, 0x55555555")
        for i in range(4):
            P = 1019 - 256 * i
            a("ds_write_b16 v5, v%d offset:%d" % (24 + 2 * i, 2 * P))
        a("s_mov_b32 exec_lo, 0")
        a("s_mov_b32 exec_hi, 1")
        a("ds_write_b64 v5, %s" % vp(24))
        a("s_mov_b32 exec_hi, -1")
        for i, (bb, ba, aa) in enumerate(((32, 34, 35), (36, 38, 39))):
            P = 2042 - 512 - 256 * i
            a("ds_write_b32 v5, v%d offset:%d" % (bb, 2 * P))
            a("ds_write_b64 v5, %s offset:%d" % (vp(ba), 2 * P + 4))
            a("ds_write_b32 v5, v%d offset:%d" % (aa, 2 * P + 12))
        a("s_mov_b32 exec_lo, -1")
        a("s_mov_b32 exec_hi, 0")
        P = 2041 - 256
        a("ds_write_b16 v5, v36 offset:%d" % (2 * P))
        a("ds_write_b32 v5, v39 offset:%d" % (2 * P + 2))
        a("ds_write_b64 v5, %s offset:%d" % (vp(40), 2 * P + 6))
        a("ds_write_b16 v5, v35 offset:%d" % (2 * P + 14))
        a("s_mov_b64 exec, -1")
        a("ds_write_b64 v6, %s offset:%d" % (vp(42), 2 * 2044))
        self.stamp("Kexp")
        for rnd in range(5):
            b = 44 + 24 * rnd
            src = "v7 offset:%d" % (1024 * rnd) if rnd < 4 else "v168"
            src2 = "v7 offset:%d" % (1024 * rnd + 16) if rnd < 4 else "v168 offset:16"
            a("ds_read_b128 %s, %s" % (v4(b), src))
            a("ds_read_b64 %s, %s" % (vp(b + 4), src2))
        for rnd in range(5):
            b = 44 + 24 * rnd
            a("s_waitcnt lgkmcnt(%d)" % (2 * (4 - rnd) + 3 * rnd))
            for k in range(4):
                a("v_alignbit_b32 v%d, v%d, v%d, 16" % (b + 8 + k, b + k + 1, b + k))
            ad, o = ("v169", 1024 * rnd) if rnd < 4 else ("v170", 0)
            a("ds_write_b128 %s, %s offset:%d" % (ad, v4(b + 8), o + 2 * CSTR))
            for k in range(4):
                a("v_mov_b32 v%d, v%d" % (b + 12 + k, b + k + 1))
            a("ds_write_b128 %s, %s offset:%d" % (ad, v4(b + 12), o + 1 * CSTR))
            for k in range(4):
                a("v_alignbit_b32 v%d, v%d, v%d, 16" % (b + 16 + k, b + k + 2, b + k + 1))
            a("ds_write_b128 %s, %s offset:%d" % (ad, v4(b + 16), o))
        a("s_branch %s" % lKd)
        a.label(lW3)
        self.nstamp = st0
        self.flag_store(0)
        a("global_load_dword v254, v231, %s" % sp(P_W1))
        self.stamp("flag")
        a("s_lshl_b32 s54, s%d, 4" % S_CF)
        for j in range(12):
            a("v_add_u32 v7, %d, v1" % (64 * j))
            a("v_mul_u32_u24 v8, 21846, v7")
            a("v_lshrrev_b32 v8, 16, v8")
            a("v_mul_u32_u24 v9, 3, v8")
            a("v_sub_u32 v9, v7, v9")
            a("v_mul_u32_u24 v%d, 10240, v8" % (100 + j))
            a("v_lshl_add_u32 v%d, v9, 4, v%d" % (100 + j, 100 + j))
            a("v_add_u32 v%d, s54, v%d" % (100 + j, 100 + j))
            a("v_mul_u32_u24 v9, %d, v9" % USTR)
            a("v_lshl_add_u32 v%d, v8, 4, v9" % (112 + j))
            a("v_add_u32 v%d, %d, v%d" % (112 + j, LDS_U + 128, 112 + j))
        a("v_lshlrev_b32 v10, 7, v1")
        for k in range(1, 4):
            a("v_add_u32 v%d, %d, v10" % (10 + k, 8192 * k))
        a("s_waitcnt vmcnt(0)")
        a("s_sleep %d" % int(os.environ.get("SL1", "8")))
        a("s_mov_b32 s69, 0")
        lp, lok = self.lab("flpoll"), self.lab("flok")
        a.label(lp)
        for k in range(4):
            a("global_load_dwordx4 %s, v%d, %s sc1" % (v4(16 + 4 * k), 10 + k, sp(P_FL)))
        a("s_waitcnt vmcnt(0)")
        a("v_xor_b32 v6, s%d, v16" % S_TAG)
        for r in range(17, 32):
            a("v_xor_b32 v7, s%d, v%d" % (S_TAG, r))
            a("v_or_b32 v6, v6, v7")
        a("v_cmp_ne_u32 vcc, 0, v6")
        a("s_cbranch_vccz %s" % lok)
        self.spin_tail(lp, lok, 4)
        a.label(lok)
        if self.timing:
            a("v_writelane_b32 v255, s69, 32")
        self.stamp("flok")
        for j in range(12):
            a("global_load_dwordx4 %s, v%d, %s sc1" % (v4(32 + 4 * j), 100 + j, sp(P_UT)))
        a("v_mov_b32 v6, 0")
        a("v_and_b32 v5, 31, v1")
        a("v_lshlrev_b32 v5, 2, v5")
        a("v_add_u32 v5, %d, v5" % LDS_U)
        for pos in range(3):
            a("ds_write_b32 v5, v6 offset:%d" % (pos * USTR))
        self.conv_setup()
        for j in range(12):
            a("s_waitcnt vmcnt(%d)" % (11 - j))
            a("ds_write_b128 v%d, %s" % (112 + j, v4(32 + 4 * j)))
        self.stamp("gath")
        lK2 = self.lab("kd2")
        a("s_branch %s" % lK2)
        a.label(lKd)
        self.conv_setup()
        a.label(lK2)
        a("s_waitcnt lgkmcnt(0)")
        self.stamp("prebar")
        a("s_barrier")
        self.stamp("kbar")

    def conv_setup(self):
        a = self.a
        a("s_lshl_b32 s90, s%d, 9" % S_WAVE)
        a("s_lshl_b32 s91, s%d, 7" % S_FB)
        self.wl_setup(P_W1, 3456, 90, 91, 16384)
        a("v_and_b32 v2, 15, v1")
        a("v_lshrrev_b32 v3, 4, v1")
        a("v_and_b32 v4, 3, v1")
        a("v_bfe_u32 v5, v1, 2, 2")
        a("v_mul_u32_u24 v6, %d, v4" % CSTR)
        a("v_lshl_add_u32 v6, v3, 4, v6")
        a("v_lshlrev_b32 v7, 7, v5")
        a("v_sub_u32 v6, v6, v7")
        a("v_add_u32 v6, %d, v6" % (LDS_C + 832))
        a("v_lshlrev_b32 v7, 3, v2")
        a("v_lshl_add_u32 v7, v3, 4, v7")
        a("v_add_u32 v7, %d, v7" % (LDS_U + 456))
        for p in range(3):
            a("s_mul_i32 s54, s%d, 6" % S_WAVE)
            a("s_add_u32 s54, s54, %d" % (2 * p + 1))
            a("s_lshr_b32 s55, s54, 3")
            a("s_and_b32 s54, s54, 7")
            a("s_lshl_b32 s54, s54, 6")
            a("s_mul_i32 s60, s55, %d" % CCH)
            a("s_sub_u32 s60, s60, s54")
            a("v_add_u32 v%d, s60, v6" % (194 + 2 * p))
            a("s_mul_i32 s60, s55, %d" % USTR)
            a("s_sub_u32 s60, s60, s54")
            a("v_add_u32 v%d, s60, v7" % (195 + 2 * p))
        a("v_lshrrev_b32 v2, 1, v1")
        a("v_mul_u32_u24 v2, 48, v2")
        a("v_and_b32 v3, 1, v1")
        a("v_mul_u32_u24 v3, %d, v3" % OHS)
        a("s_min_u32 s54, s%d, 2" % S_WAVE)
        a("s_lshl_b32 s54, s54, 4")
        a("s_add_u32 s54, s54, %d" % LDS_OWN)
        a("s_add_u32 s55, s54, %d" % (2 * OHS))
        a("s_cmp_eq_u32 s%d, 3" % S_WAVE)
        a("s_cmov_b32 s54, s55")
        a("v_add3_u32 v242, v2, v3, s54")
        a("s_sub_u32 s55, s55, 16")
        a("v_add3_u32 v243, v2, v3, s55")
        for j in range(3):
            a("v_add_u32 v2, %d, v0" % (256 * j))
            a("v_mul_u32_u24 v3, 21846, v2")
            a("v_lshrrev_b32 v3, 16, v3")
            a("v_mul_u32_u24 v4, 3, v3")
            a("v_sub_u32 v2, v2, v4")
            a("v_lshlrev_b32 v2, 2, v2")
            a("v_add_u32 v%d, %d, v2" % (244 + j, LDS_SC))

    def w2a_addr(self):
        a = self.a
        a("s_lshl_b32 s64, s%d, 5" % S_K2)
        a("s_lshl_b32 s65, s%d, 3" % S_IDX)
        a("s_add_u32 s64, s64, s65")
        a("v_lshrrev_b32 v2, 3, v1")
        a("v_add_u32 v2, s64, v2")
        a("s_lshr_b32 s65, s%d, 1" % S_XCD)
        a("s_lshl_b32 s65, s65, 10")
        a("v_and_b32 v4, 7, v1")
        a("v_lshl_add_u32 v4, v4, 7, s65")
        a("v_lshl_add_u32 v193, v2, 12, v4")

    def cv_loads(self, setn, na, vA, vB, ex):
        Ab, Bb = ((64, 96), (128, 160))[setn]
        L = []
        for n in range(na):
            L.append("ds_read_b128 %s, v%d offset:%d" % (v4(Ab + 4 * n), vA, 512 * (7 - n) + ex))
            L.append("ds_read_b64 %s, v%d offset:%d" % (vp(Bb + 4 * n), vB, 512 * n + ex))
            L.append("ds_read_b64 %s, v%d offset:%d" % (vp(Bb + 4 * n + 2), vB, 512 * n + ex + 8))
        return L

    def cv_iter(self, setn, chunks, acc, first, bg, hi=0.85):
        a = self.a
        Ab, Bb = ((64, 96), (128, 160))[setn]
        a("s_waitcnt lgkmcnt(0)")
        mark = len(a.ins)
        seen = set()
        for aa in range(max(chunks) + 1):
            for q in sorted(chunks, reverse=True):
                if q >= aa:
                    c = v4(acc[q])
                    src = "0" if (first and q not in seen) else c
                    seen.add(q)
                    a("v_mfma_f32_16x16x32_f16 %s, %s, %s, %s" % (c, v4(Ab + 4 * aa), v4(Bb + 4 * (q - aa)), src))
        if bg:
            self.weave(mark + 1, bg, 0.0, hi)

    def phase3(self):
        a = self.a
        one = lambda L: [[x] for x in L]
        def mix(L1, L2):
            if not L2: return L1
            out = []
            i = j = 0
            while i < len(L1) or j < len(L2):
                if j >= len(L2) or (i < len(L1) and i * len(L2) <= j * len(L1)):
                    out.append(L1[i]); i += 1
                else:
                    out.append(L2[j]); j += 1
            return out
        acc = {q: 16 + 4 * q for q in range(8)}
        dmaA = self.wl_dma_groups(3456, 4, 16384)
        dmaB = self.wl_dma_groups(3456, 4, 16384)
        def lds(it):
            p = it >> 1
            return one(self.cv_loads(it & 1, 8, 194 + 2 * p, 195 + 2 * p, 64 * (1 - (it & 1))))
        for g in lds(0):
            a(g[0])
        for j in range(3):
            a("ds_read_b32 v%d, v%d" % (4 + 2 * j, 244 + j))
        pfs = [["v_add_u32 v231, s96, v232", "global_load_dword v254, v231, %s" % sp(P_W2)]]
        nop = []
        extra = {0: dmaA[:4], 1: dmaA[4:], 2: [nop] * 24 + [["s_waitcnt vmcnt(0)"]] + one(self.wl_tr(0, 4)),
                 3: dmaB[:5], 4: dmaB[5:] + [["global_load_dword v247, v233, %s sc1" % sp(P_FL)]] + pfs}
        for it in range(6):
            if it in (2, 4):
                lf = self.lab("flush")
                a("s_cmp_lg_u32 s%d, %d" % (S_WAVE, it >> 1))
                a("s_cbranch_scc1 %s" % lf)
                a("s_nop 7")
                for r in range(32):
                    a("v_accvgpr_write_b32 a%d, v%d" % (128 + r, 16 + r))
                for r in range(16):
                    a("v_pk_mov_b32 %s, 0, 0" % vp(16 + 2 * r))
                a("s_nop 1")
                a.label(lf)
            self.cv_iter(it & 1, list(range(8)), acc, it == 0, mix(lds(it + 1) if it < 5 else [], extra.get(it, [])), hi=0.92)
        a("s_mul_i32 s54, s%d, 12288" % S_OCT)
        a("v_lshl_add_u32 v10, v0, 4, s54")
        a("v_add_u32 v11, 4096, v10")
        a("v_add_u32 v12, 8192, v10")
        a("v_lshlrev_b32 v13, 4, v0")
        a("v_add_u32 v13, %d, v13" % LDS_OWN)
        self.stamp("convmf")
        a("s_barrier")
        for q in range(8):
            a("ds_write_b128 v242, %s offset:%d" % (v4(16 + 4 * q), 1536 * q))
        lw = self.lab("nofl")
        a("s_add_u32 s54, s%d, 1" % S_WAVE)
        a("s_bitcmp0_b32 s54, 1")
        a("s_cbranch_scc1 %s" % lw)
        for q in range(8):
            a("ds_write_b128 v243, %s offset:%d" % (a4(128 + 4 * q), 1536 * q))
        a.label(lw)
        self.pd_check(1)
        a("s_waitcnt lgkmcnt(0)")
        a("s_barrier")
        for j in range(3):
            b = 64 + 16 * j
            for k in range(2):
                for hh in range(2):
                    a("ds_read_b128 %s, v13 offset:%d" % (v4(b + 8 * k + 4 * hh), k * 2 * OHS + hh * OHS + 4096 * j))
        for j in range(3):
            b = 64 + 16 * j
            a("s_waitcnt lgkmcnt(%d)" % (4 * (2 - j)))
            for p in range(4):
                a("v_pk_add_f32 %s, %s, %s" % (vp(b + 2 * p), vp(b + 2 * p), vp(b + 8 + 2 * p)))
            for p in range(4):
                a("v_pk_mul_f32 %s, %s, %s op_sel_hi:[1,0]" % (vp(b + 2 * p), vp(b + 2 * p), vp(4 + 2 * j)))
            for p in range(4):
                a("v_cvt_pk_bf16_f32 v%d, v%d, v%d" % (b + 8 + p, b + 2 * p, b + 2 * p + 1))
            for p in range(4):
                a("v_min_u32 v%d, 0xfffffffe, v%d" % (b + 8 + p, b + 8 + p))
            a("global_store_dwordx4 v%d, %s, %s sc1" % (10 + j, v4(b + 8), sp(P_YT)))
        self.stamp("ytstore")

    def helper(self):
        a = self.a
        a.label("L_helper")
        self.flag_store(0)
        a("global_load_dword v254, v231, %s" % sp(P_W1))
        a("s_sub_u32 s60, s%d, 27" % S_IDX)
        a("s_lshl_b32 s60, s60, 2")
        a("s_add_u32 s60, s60, s%d" % S_WAVE)
        for r in range(4):
            a("v_mov_b32 v%d, -1" % (20 + r))
        a("v_lshrrev_b32 v5, 3, v1")
        a("v_and_b32 v6, 7, v1")
        a("s_lshr_b32 s62, s%d, 1" % S_XCD)
        def poison(ptr, per_xcd_kb, xcd_stride):
            a("s_mul_i32 s61, s%d, %d" % (S_XCD, xcd_stride))
            a("s_lshl_b32 s63, s60, 10")
            a("s_add_u32 s61, s61, s63")
            a("v_lshl_add_u32 v7, v1, 4, s61")
            a("s_mov_b32 s63, s60")
            lp = self.lab("poi")
            a.label(lp)
            a("global_store_dwordx4 v7, v[20:23], %s sc1" % sp(ptr))
            a("v_add_u32 v7, 20480, v7")
            a("s_add_u32 s63, s63, 20")
            a("s_cmp_lt_u32 s63, %d" % per_xcd_kb)
            a("s_cbranch_scc1 %s" % lp)
        def pref(ptr, rs, nline, maxline, rowf, ngroups):
            a("s_mul_i32 s61, s62, %d" % nline)
            a("v_min_u32 v8, %d, v6" % (nline - 1))
            a("v_add_u32 v8, s61, v8")
            a("v_min_u32 v8, %d, v8" % maxline)
            a("v_lshlrev_b32 v8, 7, v8")
            a("s_mov_b32 s63, s60")
            lp = self.lab("prf")
            a.label(lp)
            rowf()
            a("v_add_u32 v9, s64, v5")
            a("v_mul_u32_u24 v9, %d, v9" % rs)
            a("v_add_u32 v9, v9, v8")
            a("global_load_dword v254, v9, %s" % sp(ptr))
            a("s_add_u32 s63, s63, 20")
            a("s_cmp_lt_u32 s63, %d" % ngroups)
            a("s_cbranch_scc1 %s" % lp)
        def row_w1b():
            a("s_and_b32 s64, s63, 3")
            a("s_lshl_b32 s64, s64, 9")
            a("s_lshr_b32 s65, s63, 2")
            a("s_lshl_b32 s65, s65, 3")
            a("s_add_u32 s64, s64, s65")
            a("s_add_u32 s64, s64, 256")
        def row_w2():
            a("s_and_b32 s64, s63, 3")
            a("s_mul_i32 s64, s64, 448")
            a("s_min_u32 s64, s64, 1312")
            a("s_lshr_b32 s65, s63, 2")
            a("s_lshl_b32 s65, s65, 3")
            a("s_add_u32 s64, s64, s65")
            a("s_min_u32 s64, s64, 1720")
        poison(P_YT, 27 * 12, 32 * 12288)
        self.flag_store(1)
        a("v_add_u32 v231, s96, v232")
        a("global_load_dword v254, v231, %s" % sp(P_W2))
        poison(P_HP, 320, 327680)
        self.flag_store(4)
        a("s_lshl_b32 s90, s%d, 9" % S_WAVE)
        a("s_lshl_b32 s91, s%d, 7" % S_FB)
        self.wl_setup(P_W1, 3456, 90, 91, 16384)
        lh = self.lab("hskip")
        a("s_cmp_eq_u32 s%d, 0" % S_G1)
        a("s_cbranch_scc1 %s" % lh)
        self.wl_dma_loop(3456, 4, 16384)
        a("s_waitcnt vmcnt(0)")
        for t in self.wl_tr(0, 4):
            a(t)
        a("s_waitcnt lgkmcnt(0)")
        self.wl_dma_loop(3456, 4, 16384)
        a.label(lh)
        a("global_load_dword v247, v233, %s sc1" % sp(P_FL))
        self.pd_check(0)
        a("s_branch L_win2")

    def phase4_pre(self):
        a = self.a
        a("s_mul_i32 s55, s%d, 48" % S_OCT)
        for j in range(3):
            a("v_add_u32 v5, %d, v0" % (256 * j))
            if j == 2:
                a("v_min_u32 v5, 639, v5")
            a("v_mul_u32_u24 v6, 820, v5")
            a("v_lshrrev_b32 v6, 16, v6")
            a("v_mul_u32_u24 v7, 80, v6")
            a("v_sub_u32 v7, v5, v7")
            a("v_mul_u32_u24 v8, 21846, v7")
            a("v_lshrrev_b32 v8, 16, v8")
            a("v_lshl_add_u32 v6, v6, 5, v8")
            a("v_mul_u32_u24 v8, 3, v8")
            a("v_sub_u32 v7, v7, v8")
            a("v_mul_u32_u24 v6, 12288, v6")
            a("v_lshl_add_u32 v6, v7, 4, v6")
            a("v_add_u32 v%d, s55, v6" % (170 + j))
        for n in range(12):
            a("v_lshlrev_b32 v%d, 16, v%d" % (100 + 2 * n, XG + n))
            a("v_and_b32 v%d, 0xffff0000, v%d" % (101 + 2 * n, XG + n))
            a("v_lshlrev_b32 v%d, 16, v%d" % (124 + 2 * n, TG + n))
            a("v_and_b32 v%d, 0xffff0000, v%d" % (125 + 2 * n, TG + n))
        a("s_lshl_b32 s54, s%d, 8" % S_OCT)
        a("v_lshrrev_b32 v2, 4, v0")
        a("v_lshlrev_b32 v2, 16, v2")
        a("v_and_b32 v3, 15, v0")
        a("v_lshl_add_u32 v2, v3, 4, v2")
        a("v_add_u32 v173, s54, v2")
        a("v_add_u32 v174, 0x100000, v173")
        a("v_add_u32 v175, 0x200000, v173")
        a("s_mul_i32 s54, s%d, 10240" % S_OCT)
        a("v_lshl_add_u32 v176, v0, 4, s54")
        a("v_add_u32 v177, 4096, v176")
        a("v_add_u32 v178, 8192, v176")
        a("v_lshlrev_b32 v179, 2, v0")
        a("v_add_u32 v179, %d, v179" % LDS_LN)
        a("v_lshlrev_b32 v180, 2, v1")
        a("v_add_u32 v180, %d, v180" % LDS_LN)

    def pd_check(self, n):
        a = self.a
        a("s_mov_b32 s69, 0")
        lp, lok = self.lab("pdpoll"), self.lab("pdok")
        a("s_waitcnt vmcnt(%d)" % n)
        a.label(lp)
        a("v_cmp_ne_u32 vcc, s%d, v247" % S_TAG)
        a("s_cbranch_vccz %s" % lok)
        a("s_add_u32 s69, s69, 1")
        a("s_cmp_gt_u32 s69, %d" % SPIN)
        a("s_cbranch_scc1 %s" % lok)
        a("s_sleep 4")
        a("global_load_dword v247, v233, %s sc1" % sp(P_FL))
        a("s_waitcnt vmcnt(0)")
        a("s_branch %s" % lp)
        a.label(lok)

    def phase4(self, N2):
        a = self.a
        a("s_mov_b32 s69, 0")
        lp, lok, lf = self.lab("hpoll"), self.lab("hok"), self.lab("hfirst")
        for j in range(3):
            a("global_load_dwordx4 %s, v%d, %s sc1" % (v4(16 + 4 * j), 170 + j, sp(P_YT)))
        a("s_waitcnt vmcnt(3)")
        for t in self.wl_tr(8, N2):
            a(t)
        a("s_branch %s" % lf)
        a.label(lp)
        for j in range(3):
            a("global_load_dwordx4 %s, v%d, %s sc1" % (v4(16 + 4 * j), 170 + j, sp(P_YT)))
        a.label(lf)
        a("s_waitcnt vmcnt(0)")
        a("v_max3_u32 v5, v16, v17, v18")
        a("v_max3_u32 v6, v19, v20, v21")
        a("v_max3_u32 v7, v22, v23, v24")
        a("v_max3_u32 v8, v25, v26, v27")
        a("v_max3_u32 v5, v5, v6, v7")
        a("v_max_u32 v5, v5, v8")
        a("v_cmp_eq_u32 vcc, -1, v5")
        a("s_cbranch_vccz %s" % lok)
        self.spin_tail(lp, lok, 4)
        a.label(lok)
        self.stamp("hpoll")
        mark4 = len(a.ins)
        def unp(src):
            for n in range(12):
                a("v_lshlrev_b32 v%d, 16, v%d" % (32 + 2 * n, src + n))
                a("v_and_b32 v%d, 0xffff0000, v%d" % (33 + 2 * n, src + n))
        unp(16)
        for n in range(12):
            a("v_pk_add_f32 %s, %s, %s" % (vp(32 + 2 * n), vp(32 + 2 * n), vp(124 + 2 * n)))
        for n in range(12):
            a("v_cvt_pk_bf16_f32 v%d, v%d, v%d" % (16 + n, 32 + 2 * n, 33 + 2 * n))
        unp(16)
        for n in range(12):
            a("v_pk_add_f32 %s, %s, %s" % (vp(32 + 2 * n), vp(32 + 2 * n), vp(100 + 2 * n)))
        for n in range(12):
            a("v_cvt_pk_bf16_f32 v%d, v%d, v%d" % (150 + n, 32 + 2 * n, 33 + 2 * n))
        self.weave(mark4, self.wl_dma_groups(3456, 8 - N2, 32768, slot0=4096 * N2))
        lz = self.lab("hz")
        a("s_cmp_lt_u32 s%d, 2" % S_WAVE)
        a("s_cbranch_scc1 %s" % lz)
        for r in range(4):
            a("v_mov_b32 v%d, 0" % (158 + r))
        a.label(lz)
        unp(150)
        for p in range(4):
            a("v_pk_add_f32 %s, %s, %s" % (vp(64 + 2 * p), vp(32 + 2 * p), vp(40 + 2 * p)))
            a("v_pk_mul_f32 %s, %s, %s" % (vp(72 + 2 * p), vp(32 + 2 * p), vp(32 + 2 * p)))
        for p in range(4):
            a("v_pk_add_f32 %s, %s, %s" % (vp(64 + 2 * p), vp(64 + 2 * p), vp(48 + 2 * p)))
            a("v_pk_fma_f32 %s, %s, %s, %s" % (vp(72 + 2 * p), vp(40 + 2 * p), vp(40 + 2 * p), vp(72 + 2 * p)))
        for p in range(4):
            a("v_pk_fma_f32 %s, %s, %s, %s" % (vp(72 + 2 * p), vp(48 + 2 * p), vp(48 + 2 * p), vp(72 + 2 * p)))
        for k in range(8):
            a("v_permlane32_swap_b32 v%d, v%d" % (64 + k, 72 + k))
        for p in range(4):
            a("v_pk_add_f32 %s, %s, %s" % (vp(64 + 2 * p), vp(64 + 2 * p), vp(72 + 2 * p)))
        for k in range(4):
            a("v_permlane16_swap_b32 v%d, v%d" % (64 + k, 68 + k))
        for p in range(2):
            a("v_pk_add_f32 %s, %s, %s" % (vp(64 + 2 * p), vp(64 + 2 * p), vp(68 + 2 * p)))
        for k in range(2):
            a("v_add_f32_dpp v%d, v%d, v%d row_ror:8 row_mask:0xf bank_mask:0x3" % (72 + k, 64 + k, 64 + k))
        for k in range(2):
            a("v_add_f32_dpp v%d, v%d, v%d row_ror:8 row_mask:0xf bank_mask:0xc" % (72 + k, 66 + k, 66 + k))
        a("v_add_f32_dpp v64, v72, v72 row_half_mirror row_mask:0xf bank_mask:0x5")
        a("v_add_f32_dpp v64, v73, v73 row_half_mirror row_mask:0xf bank_mask:0xa")
        a("v_add_f32_dpp v64, v64, v64 quad_perm:[1,0,3,2] row_mask:0xf bank_mask:0xf")
        a("v_add_f32_dpp v64, v64, v64 quad_perm:[2,3,0,1] row_mask:0xf bank_mask:0xf")
        a("ds_write_b32 v179, v64")
        self.pd_check(63)
        for n in range(12):
            a("v_min_u32 v%d, 0xfffffffe, v%d" % (150 + n, 150 + n))
        a("s_waitcnt lgkmcnt(0)")
        a("s_barrier")
        for w in range(4):
            a("ds_read_b32 v%d, v180 offset:%d" % (64 + w, 256 * w))
        a("s_waitcnt lgkmcnt(0)")
        a("v_pk_add_f32 v[64:65], v[64:65], v[66:67]")
        a("v_add_f32 v64, v64, v65")
        a("v_mul_f32 v64, %s, v64" % f32(1.0 / 640))
        a("v_mov_b32 v65, v64")
        a("v_permlane32_swap_b32 v64, v65")
        a("v_fma_f32 v65, -v64, v64, v65")
        a("v_max_f32 v65, 0, v65")
        self.bf16_round(67, 65)
        self.bf16_round(66, 64)
        a("v_add_f32 v67, %s, v67" % f32(1e-5))
        self.bf16_round(67, 67)
        a("v_sqrt_f32 v67, v67")
        a("v_sub_f32 v68, v64, v66")
        self.bf16_round(67, 67)
        a("v_rcp_f32 v67, v67")
        a("v_mul_f32 v69, v65, v67")
        a("v_mul_f32 v68, v68, v67")
        a("v_mul_f32 v69, v69, v67")
        self.bf16_round(69, 69)
        self.bf16_round(68, 68)
        a("v_add_f32 v69, %s, v69" % f32(1e-5))
        self.bf16_round(69, 69)
        a("v_sqrt_f32 v69, v69")
        a("v_fma_f32 v70, v66, v67, v68")
        self.bf16_round(69, 69)
        a("v_rcp_f32 v69, v69")
        a("v_mul_f32 v70, -v70, v69")
        a("v_mul_f32 v71, v67, v69")
        for r in range(8):
            a("v_readlane_b32 s%d, v70, %d" % (54 + r, 4 * r))
        for r in range(8):
            a("v_readlane_b32 s%d, v71, %d" % (84 + r, 4 * r))
        for r in range(8):
            a("v_mov_b32 v%d, s%d" % (72 + r, 54 + r))
        l3 = self.lab("h3")
        for j in range(3):
            if j == 2:
                a("s_cmp_ge_u32 s%d, 2" % S_WAVE)
                a("s_cbranch_scc1 %s" % l3)
            for p in range(4):
                h = 32 + 8 * j + 2 * p
                a("v_pk_fma_f32 %s, %s, %s, %s" % (vp(h), vp(h), sp(84 + 2 * p), vp(72 + 2 * p)))
            for p in range(4):
                h = 32 + 8 * j + 2 * p
                a("v_cvt_pk_bf16_f32 v%d, v%d, v%d" % (16 + 4 * j + p, h, h + 1))
            for p in range(4):
                a("v_min_u32 v%d, 0xfffffffe, v%d" % (16 + 4 * j + p, 16 + 4 * j + p))
            a("global_store_dwordx4 v%d, %s, %s sc1" % (173 + j, v4(16 + 4 * j), sp(P_HP)))
        a("global_store_dwordx4 v178, v[158:161], %s sc1" % sp(P_H2))
        a.label(l3)
        a("global_store_dwordx4 v176, v[150:153], %s sc1" % sp(P_H2))
        a("global_store_dwordx4 v177, v[154:157], %s sc1" % sp(P_H2))
        self.stamp("hpstore")

    NP = 35
    def acc(self, j, mt): return ACC0 + 4 * (mt * 4 + j)
    def preg(self, k): return SLOT0 + 4 * (k % self.NP)

    def frag_load(self, name, seq0, mts, i):
        s, mt = i // len(mts), mts[i % len(mts)]
        base = (84 if name.startswith("g1") else 64) + (0 if s < 8 else 2)
        return "global_load_dwordx4 %s, v%d, %s offset:%d sc1 ; #%s_%d" % (
            v4(self.preg(seq0 + i)), 2 + mt, sp(base), (s % 8) * 1024 - 4096, name, s)

    def frag_check(self, seq0, mts, s):
        r = [self.preg(seq0 + s * len(mts) + m) + k for m in range(len(mts)) for k in range(4)]
        L = ["v_max3_u32 v7, v%d, v%d, v%d" % (r[0], r[1], r[2]), "v_max3_u32 v8, v%d, v%d, v%d" % (r[3], r[4], r[5])]
        rest = r[6:]
        t = 7
        while len(rest) >= 2:
            L.append("v_max3_u32 v%d, v%d, v%d, v%d" % (t, t, rest[0], rest[1]))
            rest = rest[2:]
            t = 15 - t
        L += ["v_max_u32 v7, v7, v8", "v_cmp_eq_u32 vcc, -1, v7"]
        return L

    def gpass(self, name, nsteps, mts, w_is_A, seq0, npre, bgf=None, s_short=None, hook=None):
        a = self.a
        nm = len(mts)
        tot = nsteps * nm
        ldone = self.lab("gdone")
        def branch_slow(s):
            ls, lb = self.lab("gslow"), self.lab("gback")
            a("s_cbranch_vccnz %s" % ls)
            a.label(lb)
            self.slowpaths.append((s, ls, lb, [self.frag_load(name, seq0, mts, s * nm + m).split(';')[0] for m in range(nm)],
                                   self.frag_check(seq0, mts, s)))
        a("@wait %s_0" % name)
        for l in self.frag_check(seq0, mts, 0):
            a(l)
        branch_slow(0)
        self.stamp(name + "f")
        for s in range(nsteps):
            if hook and s in hook:
                hook[s]()
            fill = []
            for g in (bgf(s) if bgf else []):
                fill.append(g)
            ck = []
            if s + 1 < nsteps:
                ck = [["@wait %s_%d" % (name, s + 1)]] + [[x] for x in self.frag_check(seq0, mts, s + 1)]
            items = fill + ck
            nmf = 4 * nm
            per = [len(items) * (k + 1) // nmf - len(items) * k // nmf for k in range(nmf)]
            n = 0
            for m, mt in enumerate(mts):
                for j in range(4):
                    c = v4(self.acc(j, mt))
                    w = a4((s * 4 + j) * 4)
                    f = v4(self.preg(seq0 + s * nm + m))
                    A, B = (w, f) if w_is_A else (f, w)
                    a("v_mfma_f32_16x16x32_bf16 %s, %s, %s, %s" % (c, A, B, "0" if s == 0 else c))
                    if j == 3:
                        a("@mark free%d" % (seq0 + s * nm + m))
                    for _ in range(per[n]):
                        for t in items.pop(0):
                            a(t)
                    n += 1
            if s + 1 < nsteps:
                if s_short is not None and s + 2 == nsteps:
                    a("@mark noins")
                    a("s_cmp_eq_u32 s%d, 1" % s_short)
                    a("s_cbranch_scc1 %s" % ldone)
                branch_slow(s + 1)
        a.label(ldone)
        a("@mark ins")
        self.stamp(name + "m")

    def est(self, ins):
        k = ins.kind
        if k == 'mfma': return 16
        if k in ('label', 'dir'): return 0
        if k == 'trans': return 8
        if k == 'mem': return 30 if 'write_b128' in ins.op else 8
        if ins.op == 's_barrier': return 60
        return 4.5

    def schedule(self, start, ops, per=None, lat=700, ahead=None):
        from asmdsl import Ins
        a = self.a
        per = per or float(os.environ.get("PER", "80"))
        ahead = ahead or float(os.environ.get("AHEAD", "320"))
        seg = a.ins[start:]
        del a.ins[start:]
        seen = set()
        t = 0.0; tm = 0.0
        pf = 0.0
        done = {}
        q = list(ops)
        noins = False
        noex = False
        def emit(op):
            nonlocal pf, t
            for x in op['ins']:
                a(x)
                t += 4.5
            pf = max(pf, t) + per * op.get('kb', 1)
            done[op['tag']] = pf + lat
        for n, ins in enumerate(seg):
            if ins.op == '@mark':
                seen.add(ins.text.split()[1])
            if ins.op == '@wait':
                tag = ins.text.split()[1]
                idx = [k for k, o in enumerate(q) if o['tag'] == tag]
                if idx:
                    for o in q[:idx[-1] + 1]:
                        assert all(m in seen for m in o['after']), (o, tag)
                        emit(o)
                    q = q[idx[-1] + 1:]
                if tag in done:
                    t = max(t, done[tag])
            a.ins.append(ins)
            if ins.kind == 'mfma':
                t = max(t, tm) + 8
                tm = t + 8
            else:
                t += self.est(ins)
            if ins.op.startswith('s_cmp') or ins.op.startswith('s_bitcmp'): continue
            if 'exec' in ins.text and ins.op.startswith('s_mov'):
                noex = '-1' not in ins.text
            if ins.op == '@mark' and ins.text.split()[1] in ('noins', 'ins'):
                noins = ins.text.split()[1] == 'noins'
            if noins or noex or ins.kind == 'branch': continue
            while q and all(m in seen for m in q[0]['after']) and pf - t < ahead:
                emit(q.pop(0))
        assert not q, q[:3]

    def emit_slowpaths(self):
        a = self.a
        for s, ls, lb, loads, chk in self.slowpaths:
            a.label(ls)
            a("s_add_u32 s69, s69, 1")
            a("s_cmp_gt_u32 s69, %d" % SPIN)
            a("s_cbranch_scc1 %s" % lb)
            a("s_sleep 2")
            for l in loads:
                a(l)
            a("s_waitcnt vmcnt(0)")
            for l in chk:
                a(l)
            a("s_cbranch_vccnz %s" % ls)
            a("s_branch %s" % lb)

    def rndp(self, regs):
        a = self.a
        for b in regs:
            a("v_cvt_pk_bf16_f32 v%d, v%d, v%d" % (b + 1, b, b + 1))
        for b in regs:
            a("v_lshlrev_b32 v%d, 16, v%d" % (b, b + 1))
            a("v_and_b32 v%d, 0xffff0000, v%d" % (b + 1, b + 1))

    def epilogue(self, kind, mts, mid=None, bg=None, post=None):
        a = self.a
        bg = list(bg or [])
        a("s_waitcnt lgkmcnt(0)")
        a("s_barrier")
        if post:
            post()
        mk = len(a.ins)
        for j in range(1, 4):
            for m, mt in enumerate(mts):
                a("ds_write_b128 v%d, %s offset:%d" % (241 + j, v4(self.acc(j, mt)), 1024 * m))
        if mid:
            mid()
        else:
            n1 = len(bg) // 4
            if n1:
                self.weave(mk, bg[:n1]); bg = bg[n1:]
        a("s_waitcnt lgkmcnt(0)")
        a("s_barrier")
        for m, mt in enumerate(mts):
            for j in range(1, 4):
                a("ds_read_b128 %s, v245 offset:%d" % (v4(self.acc(j, mt)), 3072 * (j - 1) + 1024 * m))
        mk = len(a.ins)
        P = [self.acc(0, mt) + 2 * h for mt in mts for h in range(2)]
        T = [self.acc(1, mt) + 2 * h for mt in mts for h in range(2)]
        for m, mt in enumerate(mts):
            a("s_waitcnt lgkmcnt(%d)" % (3 * (len(mts) - 1 - m)))
            for h in range(2):
                a("v_pk_add_f32 %s, %s, %s" % (vp(self.acc(0, mt) + 2 * h), vp(self.acc(0, mt) + 2 * h), vp(self.acc(1, mt) + 2 * h)))
                a("v_pk_add_f32 %s, %s, %s" % (vp(self.acc(2, mt) + 2 * h), vp(self.acc(2, mt) + 2 * h), vp(self.acc(3, mt) + 2 * h)))
        if kind == 2:
            for mt in mts:
                a("ds_read_b64 %s, v249 offset:%d" % (vp(self.acc(3, mt)), 32 * mt))
        for mt in mts:
            for h in range(2):
                a("v_pk_add_f32 %s, %s, %s" % (vp(self.acc(0, mt) + 2 * h), vp(self.acc(0, mt) + 2 * h), vp(self.acc(2, mt) + 2 * h)))
        self.rndp(P)
        for n, p in enumerate(P):
            if kind == 1:
                a("v_pk_add_f32 %s, %s, %s" % (vp(p), vp(p), vp(250 + 2 * (n & 1))))
            else:
                a("v_pk_add_f32 %s, %s, %s op_sel_hi:[1,0]" % (vp(p), vp(p), vp(250)))
        self.rndp(P)
        if kind == 1:
            for p, t in zip(P, T):
                a("v_pk_mul_f32 %s, %s, %s" % (vp(t), vp(p), vp(p)))
            for p, t in zip(P, T):
                a("v_pk_fma_f32 %s, %s, %s, %s op_sel_hi:[1,0,0]" % (vp(t), vp(t), vp(12), vp(10)))
            for p, t in zip(P, T):
                a("v_pk_mul_f32 %s, %s, %s" % (vp(t), vp(t), vp(p)))
            for t in T:
                a("v_exp_f32 v%d, v%d" % (t, t))
                a("v_exp_f32 v%d, v%d" % (t + 1, t + 1))
            for t in T:
                a("v_pk_add_f32 %s, %s, 1.0 op_sel_hi:[1,0]" % (vp(t), vp(t)))
            for t in T:
                a("v_rcp_f32 v%d, v%d" % (t, t))
                a("v_rcp_f32 v%d, v%d" % (t + 1, t + 1))
            for p, t in zip(P, T):
                a("v_pk_mul_f32 %s, %s, %s" % (vp(p), vp(p), vp(t)))
        else:
            a("s_waitcnt lgkmcnt(0)")
            for mt in mts:
                for h in range(2):
                    a("v_lshlrev_b32 v%d, 16, v%d" % (self.acc(1, mt) + 2 * h, self.acc(3, mt) + h))
                    a("v_and_b32 v%d, 0xffff0000, v%d" % (self.acc(1, mt) + 2 * h + 1, self.acc(3, mt) + h))
            for p, t in zip(P, T):
                a("v_pk_add_f32 %s, %s, %s" % (vp(p), vp(p), vp(t)))
        prs = [(mts[0], mts[1])] + ([(mts[2], mts[2])] if len(mts) == 3 else [])
        outs = []
        for ta, tb in prs:
            o = self.acc(2, ta)
            outs.append(o)
            for h in range(2):
                a("v_cvt_pk_bf16_f32 v%d, v%d, v%d" % (o + h, self.acc(0, ta) + 2 * h, self.acc(0, ta) + 2 * h + 1))
                a("v_cvt_pk_bf16_f32 v%d, v%d, v%d" % (o + 2 + h, self.acc(0, tb) + 2 * h, self.acc(0, tb) + 2 * h + 1))
        if kind == 1:
            for o in outs:
                for k in range(4):
                    a("v_min_u32 v%d, 0xfffffffe, v%d" % (o + k, o + k))
        if bg:
            self.weave(mk, bg)
        for o in outs:
            for h in range(2):
                a("v_permlane16_swap_b32 v%d, v%d" % (o + h, o + 2 + h))
        for n, ((ta, tb), o) in enumerate(zip(prs, outs)):
            ar = 246 + (0 if ta == 0 else (1 if ta == 2 else 2))
            if kind == 1:
                a("global_store_dwordx4 v%d, %s, %s sc1" % (ar, v4(o), sp(P_G)))
            else:
                a("global_store_dwordx4 v%d, %s, %s %s" % (ar, v4(o), sp(P_OUT), os.environ.get("OST", "")))

    def g_common_setup(self):
        a = self.a
        for j in range(1, 4):
            a("s_add_u32 s54, s%d, %d" % (S_WAVE, j))
            a("s_and_b32 s54, s54, 3")
            a("s_lshl_b32 s54, s54, 15")
            a("s_add_u32 s54, s54, %d" % (20480 + 3072 * (j - 1)))
            a("v_lshl_add_u32 v%d, v1, 4, s54" % (241 + j))
        a("s_lshl_b32 s54, s%d, 15" % S_WAVE)
        a("s_add_u32 s54, s54, 20480")
        a("v_lshl_add_u32 v245, v1, 4, s54")

    def g1_setup(self):
        a = self.a
        a("s_mul_i32 s54, s%d, %d" % (S_DB, 5 * 65536))
        a("v_lshl_add_u32 v2, v1, 4, s54")
        for mt in range(1, 5):
            a("v_add_u32 v%d, %d, v2" % (2 + mt, 65536 * mt))
        a("s_lshl_b32 s54, s%d, 14" % S_WAVE)
        a("s_add_u32 s54, s54, 4096")
        a("s_add_u32 s84, s%d, s54" % P_HP)
        a("s_addc_u32 s85, s%d, 0" % (P_HP + 1))
        a("s_add_u32 s86, s84, 8192")
        a("s_addc_u32 s87, s85, 0")
        a("s_mul_i32 s54, s%d, 270" % S_DB)
        a("s_lshl_b32 s55, s%d, 1" % S_FB)
        a("s_add_u32 s54, s54, s55")
        a("s_lshl_b32 s54, s54, 10")
        a("s_lshl_b32 s55, s%d, 9" % S_WAVE)
        a("s_add_u32 s54, s54, s55")
        a("v_and_b32 v7, 15, v1")
        a("v_lshrrev_b32 v8, 5, v1")
        a("v_lshl_add_u32 v7, v8, 4, v7")
        a("v_lshl_add_u32 v7, v7, 4, s54")
        a("v_add_u32 v247, %d, v7" % (2 * 54 * 1024))
        a("v_bfe_u32 v8, v1, 4, 1")
        a("v_mul_u32_u24 v8, %d, v8" % (54 * 1024))
        a("v_add_u32 v246, v7, v8")
        a("v_add_u32 v248, %d, v246" % (3 * 54 * 1024))
        for r in range(4):
            a("v_mov_b32 v%d, -1" % (10 + r))
        for r in (246, 247, 248):
            a("global_store_dwordx4 v%d, v[10:13], %s sc1 ; #gpoi" % (r, sp(P_G)))
        a("s_lshl_b32 s54, s%d, 7" % S_FB)
        a("s_lshl_b32 s55, s%d, 5" % S_WAVE)
        a("s_add_u32 s54, s54, s55")
        a("v_lshrrev_b32 v7, 4, v1")
        a("v_lshl_add_u32 v7, v7, 3, s54")
        a("global_load_dwordx2 v[252:253], v7, %s" % sp(P_B1))
        a("s_mul_i32 s54, s%d, 27" % S_DB)
        a("s_add_u32 s54, s54, s%d" % S_FB)
        a("s_lshl_b32 s54, s54, 7")
        a("s_add_u32 s54, s54, 0x18000")
        a("v_mov_b32 v249, s54")
        a("v_mov_b32 v9, s%d" % S_TAG)
        a("s_mov_b32 s69, 0")

    def g2_flag_addr(self):
        G = []
        G.append(["v_bfe_u32 v9, v1, 2, 3", "s_lshl_b32 s54, s%d, 3" % S_SB, "v_add_u32 v9, s54, v9", "v_lshlrev_b32 v9, 7, v9"])
        G.append(["v_and_b32 v13, 3, v1", "v_lshl_add_u32 v9, v13, 2, v9", "v_add_u32 v9, 0x10000, v9"])
        G.append(["s_mul_i32 s54, s%d, %d" % (S_DB, 27 * 128), "s_add_u32 s54, s54, 0x18000", "v_and_b32 v11, 31, v1",
                  "v_min_u32 v11, 26, v11", "v_lshl_add_u32 v11, v11, 7, s54"])
        G.append(["v_cmp_lt_u32 s[62:63], 31, v1", "s_nop 1", "v_cndmask_b32 v9, v9, v11, s[62:63]"])
        return G

    def g2_flag_loads(self):
        return ["global_load_dword v249, v9, %s sc1 ; #g2fl" % sp(P_FL)]

    def g2_check(self, first_wait):
        a = self.a
        lp, lok = self.lab("h2poll"), self.lab("h2ok")
        a(first_wait)
        a("@mark noins")
        a.label(lp)
        a("v_cmp_ne_u32 vcc, s%d, v249" % S_TAG)
        a("s_cbranch_vccz %s" % lok)
        a("s_add_u32 s69, s69, 1")
        a("s_cmp_gt_u32 s69, %d" % SPIN)
        a("s_cbranch_scc1 %s" % lok)
        a("s_sleep 8")
        for t in self.g2_flag_loads():
            a(t.split(';')[0] + " ; #cond")
        a("s_waitcnt vmcnt(0)")
        a("s_branch %s" % lp)
        a.label(lok)
        a("@mark ins")
        a("@mark g2a_ok")

    def g2_addr(self, mts):
        G = [["s_mul_i32 s54, s%d, %d" % (S_DB, 5 * 54 * 1024), "v_lshl_add_u32 v11, v1, 4, s54"]]
        G.append(["v_add_u32 v%d, %d, v11" % (2 + mt, 54 * 1024 * mt) for mt in mts])
        if 0 in mts:
            G.append(["s_lshl_b32 s54, s%d, 10" % S_K2, "s_add_u32 s54, s54, 4096", "@mark noins", "s_add_u32 s64, s%d, s54" % P_G,
                      "s_addc_u32 s65, s%d, 0" % (P_G + 1), "s_add_u32 s66, s64, 8192", "s_addc_u32 s67, s65, 0", "@mark ins"])
        return G

    def g2_late_setup(self):
        G = []
        G.append(["s_mul_i32 s60, s%d, %d" % (S_SB, 8 * 10240), "s_mul_i32 s61, s%d, 1280" % S_DB, "s_add_u32 s60, s60, s61"])
        for j in range(3):
            g = ["v_add_u32 v9, %d, v0" % (256 * j)]
            if j == 2:
                g.append("v_min_u32 v9, 639, v9")
            g += ["v_mul_u32_u24 v11, 820, v9", "v_lshrrev_b32 v11, 16, v11"]
            G.append(g)
            G.append(["v_mul_u32_u24 v13, 80, v11", "v_sub_u32 v13, v9, v13", "v_mul_u32_u24 v9, 10240, v11"])
            G.append(["v_lshl_add_u32 v9, v13, 4, v9", "v_add_u32 v9, s60, v9",
                      "global_load_dwordx4 %s, v9, %s sc1 ; #htile" % (a4(224 + 4 * j), sp(P_H2))])
            G.append(["v_mul_u32_u24 v9, %d, v11" % (8 * 176), "v_lshl_add_u32 v9, v13, 1, v9", "v_add_u32 v%d, %d, v9" % (251 + j, LDS_H)])
        G.append(["s_lshl_b32 s60, s%d, 4" % S_WAVE, "v_and_b32 v9, 15, v1", "v_add_u32 v9, s60, v9", "s_lshl_b32 s61, s%d, 7" % S_SB])
        G.append(["v_lshl_add_u32 v11, v9, 1, s61", "global_load_ushort v250, v11, %s ; #b2" % sp(P_B2), "v_lshrrev_b32 v13, 4, v1"])
        G.append(["v_mul_u32_u24 v11, 176, v9", "v_lshl_add_u32 v11, v13, 3, v11", "v_add_u32 v249, %d, v11" % LDS_H])
        G.append(["s_mul_i32 s60, s%d, %d" % (S_SB, 64 * 1280), "s_mul_i32 s61, s%d, 160" % S_DB, "s_add_u32 s60, s60, s61",
                  "v_mul_u32_u24 v11, 1280, v9"])
        G.append(["v_lshrrev_b32 v9, 1, v13", "v_lshl_add_u32 v11, v9, 4, v11", "v_add_u32 v11, s60, v11", "v_add_u32 v247, 64, v11"])
        G.append(["v_and_b32 v13, 1, v13", "v_lshl_add_u32 v246, v13, 5, v11", "v_add_u32 v248, 96, v246"])
        W = [["@wait htile"]]
        for j in range(3):
            for p in range(4):
                W.append(["ds_write_b16 v%d, a%d offset:%d" % (251 + j, 224 + 4 * j + p, (2 * p) * 176),
                          "ds_write_b16_d16_hi v%d, a%d offset:%d" % (251 + j, 224 + 4 * j + p, (2 * p + 1) * 176)])
        W.append(["@wait b2", "v_lshlrev_b32 v250, 16, v250"])
        return G, W

    def back_half(self):
        a = self.a
        one = lambda L: [[x] for x in L]
        N2 = 5
        MA, MB = [0, 1, 2], [3, 4]
        a.label("L_win2")
        for t in self.wl_tr(4, 4):
            a(t)
        a("s_lshl_b32 s54, s%d, 14" % S_WAVE)
        a("s_waitcnt lgkmcnt(0)")
        for nt in range(4):
            a("v_add_u32 v%d, s54, v%d" % (WT + nt, WT + nt))
        a("s_barrier")
        self.wl_dma_loop(3456, N2, 32768)
        a("v_add_u32 v233, 0x18000, v233")
        a("global_load_dword v247, v233, %s sc1" % sp(P_FL))
        self.phase4_pre()
        self.stamp("win2")
        self.phase4(N2)
        a("s_lshl_b32 s90, s%d, 5" % S_K2)
        a("s_lshl_b32 s91, s%d, 7" % S_SB)
        self.wl_setup(P_W2, 4096, 90, 91, None)
        a("s_waitcnt lgkmcnt(0)")
        self.wl_dma_loop(4096, 5, 32768)
        self.flag_store(2, wait="vmcnt(20)")
        self.g_common_setup()
        self.stamp("win3")
        lg = self.lab("nog1")
        a("s_cmp_eq_u32 s%d, 0" % S_G1)
        a("s_cbranch_scc1 %s" % lg)
        self.g1_setup()
        sched0 = len(a.ins)
        qA, qB, qC, qD = 0, 48, 80, 122
        def fr(name, q, mts, n, after=()):
            return [dict(ins=[self.frag_load(name, q, mts, i)], tag="%s_%d" % (name, i // len(mts)),
                         after=list(after) + (["free%d" % (q + i - self.NP)] if q + i >= self.NP else [])) for i in range(n)]
        def dmaops(groups, tag, afterf):
            return [dict(ins=g, tag="%s%d" % (tag, n // 2) if n & 1 else "x", kb=2, after=afterf(n // 2)) for n, g in enumerate(groups)]
        trw = one(self.wl_tr(13, 3, slot0=4096 * 5))
        def bgA(s):
            if s < 3: return trw[8 * s:8 * s + 8]
            if s == 7: return [["v_lshlrev_b32 v250, 16, v252", "v_and_b32 v251, 0xffff0000, v252"],
                               ["v_lshlrev_b32 v252, 16, v253", "v_and_b32 v253, 0xffff0000, v253"],
                               ["v_mov_b32 v10, %s" % f32(-2.0 * 0.7978845608028654 * LOG2E),
                                "v_mov_b32 v12, %s" % f32(-2.0 * 0.7978845608028654 * LOG2E * 0.044715)]]
            if s == 12: return [["s_waitcnt lgkmcnt(0)"]]
            return []
        self.gpass("g1a", 16, MA, True, qA, 0, bgA)
        def pd2():
            l = self.lab("pd2")
            a("@mark noins")
            a("s_cmp_lg_u32 s%d, 0" % S_WAVE)
            a("s_cbranch_scc1 %s" % l)
            a("s_mov_b64 exec, 1")
            a("global_store_dword v249, v9, %s sc1 ; #cond" % sp(P_FL))
            a("s_mov_b64 exec, -1")
            a("@mark noins")
            a.label(l)
            a("@mark ins")
        self.epilogue(1, MA, post=pd2)
        self.stamp("g1ae")
        tr0 = self.wl_tr(0, 5)
        tr1 = self.wl_tr(5, 5)
        fa = self.g2_flag_addr()
        FS = int(os.environ.get("FS", "8"))
        def bgB(s):
            L = []
            if 3 <= s <= 7:
                L += [["s_waitcnt lgkmcnt(8)" if s <= 5 else "s_waitcnt lgkmcnt(0)", "@mark s0_%d" % (s - 3)]]
            if 1 <= s <= 5:
                L += one(tr0[8 * (s - 1):8 * s])
            if s == 0:
                L += fa + self.g2_addr(MA)
            if s == FS - 3:
                L += one(self.g2_flag_loads())
            if s >= 11:
                L += [["@wait w2b%d" % (s - 11)]] + one(tr1[8 * (s - 11):8 * (s - 10)])
            return L
        self.gpass("g1b", 16, MB, True, qB, 32, bgB, hook={FS: lambda: self.g2_check("@wait g2fl")})
        def midB():
            for g in self.g2_addr(MB):
                for t in g:
                    a(t)
            a("@mark g2b_ok")
        self.epilogue(1, MB, mid=midB, post=lambda: a("@mark s1"))
        self.stamp("g1be")
        a("@mark preg2a")
        a.label("L_g2a")
        dm2 = self.wl_dma_groups(4096, 4, 32768, tag="w2c")
        dm2[5] = dm2[5][:2] + ["s_lshl_b32 s83, s%d, 17" % S_SHORT, "s_sub_u32 s83, %d, s83" % (32 * 4096),
                               "s_add_u32 s80, s80, s83", "s_addc_u32 s81, s81, 0"]
        tr2 = self.wl_tr(10, 4)
        LG, LW = self.g2_late_setup()
        def bgC(s):
            L = []
            if s < 5:
                L += LG[4 * s:4 * s + 4]
            if 5 <= s <= 8:
                L += [["@wait w2c%d" % (s - 5)]] + one(tr2[8 * (s - 5):8 * (s - 4)])
            if s == 9:
                L += [["s_waitcnt lgkmcnt(0)"]] + LW[:5]
            if s == 10:
                L += LW[5:10]
            if s == 11:
                L += LW[10:]
            return L
        self.gpass("g2a", 14, MA, False, qC, 33, bgC, s_short=S_SHORT)
        a("@mark ins")
        self.epilogue(2, MA, post=lambda: a("@mark ga_pub"))
        self.stamp("g2ae")
        self.gpass("g2b", 14, MB, False, qD, 28, None, s_short=S_SHORT)
        self.epilogue(2, MB)
        self.stamp("g2be")
        A1 = fr("g1a", qA, MA, 48)
        B1 = fr("g1b", qB, MB, 32)
        A2 = fr("g2a", qC, MA, 42, after=["g2a_ok"])
        B2 = fr("g2b", qD, MB, 28, after=["g2b_ok", os.environ.get("B2M", "free%d" % (qC + 20))])
        D1 = dmaops(self.wl_dma_groups(4096, 5, 32768, tag="w2b"), "w2b", lambda k: ["s0_%d" % k])
        D2 = dmaops(dm2, "w2c", lambda k: ["s1"])
        ops = A1 + B1 + D1 + A2[:15] + D2 + A2[15:] + B2
        self.schedule(sched0, ops)
        lab = [n for n, i in enumerate(a.ins) if i.islabel and i.op == "L_g2a"][0]
        pre = [i.text.split(';')[0] for i in a.ins[sched0:lab] if '#g2a_' in i.text or '#g2b_' in i.text]
        st = [n for n, i in enumerate(a.ins[:lab]) if i.text == dm2[0][0] and n > sched0]
        texts = [i.text for i in a.ins[sched0:lab]]
        npre_d = 0
        for n, g in enumerate(dm2):
            key = [x for x in g if 'load_lds' in x][-1]
            if n & 1 and key in texts: npre_d = n + 1
        cnt_lds = sum(1 for x in texts if 'load_lds' in x) - 20
        npre_d = cnt_lds // 2
        self.pre_inactive = (pre, dm2[:npre_d])
        self.inactive = (lg, qC, MA)

    def inactive_path(self):
        a = self.a
        lg, qC, MA = self.inactive
        a.label(lg)
        a("s_lshl_b32 s60, s%d, 2" % S_XCD)
        a("s_and_b32 s61, s%d, 3" % S_IDX)
        a("s_add_u32 s60, s60, s61")
        a("s_mul_i32 s60, s60, 6")
        a("s_lshl_b32 s61, s%d, 5" % S_K2)
        a("s_add_u32 s60, s60, s61")
        a("s_add_u32 s60, s60, 256")
        a("v_lshrrev_b32 v2, 5, v1")
        a("v_add_u32 v2, s60, v2")
        for i in range(3):
            a("v_add_u32 v3, %d, v2" % (2 * i))
            a("v_min_u32 v3, 1727, v3")
            a("v_lshl_add_u32 v3, v3, 12, v232")
            a("global_load_dword v254, v3, %s" % sp(P_W2))
        a("s_waitcnt vmcnt(0)")
        for t in self.wl_tr(0, 5):
            a(t)
        a("s_waitcnt lgkmcnt(0)")
        self.wl_dma_loop(4096, 5, 32768)
        for g in self.g2_flag_addr():
            for t in g:
                a(t)
        a("s_waitcnt vmcnt(0)")
        for t in self.wl_tr(5, 5):
            a(t)
        for t in self.g2_flag_loads():
            a(t.split(';')[0])
        a("s_mov_b32 s69, 0")
        self.g2_check("s_waitcnt vmcnt(0) lgkmcnt(0)")
        for g in self.g2_addr([0, 1, 2, 3, 4]):
            for t in g:
                a(t)
        for g in self.pre_inactive[1]:
            for t in g:
                a(t.split(';')[0])
        a("s_sleep %s" % os.environ.get("SLI", "60"))
        for t in self.pre_inactive[0]:
            a(t)
        a("s_waitcnt vmcnt(0)")
        a("s_branch L_g2a")

    def finish(self):
        a = self.a
        if self.timing:
            a("s_memrealtime s[98:99]")
            a("s_waitcnt lgkmcnt(0)")
            a("v_writelane_b32 v255, s98, 63")
            a("s_lshl_b32 s54, s2, 2")
            a("s_add_u32 s54, s54, s%d" % S_WAVE)
            a("s_lshl_b32 s54, s54, 8")
            a("s_add_u32 s54, s54, 0x%x" % WS_TIME)
            a("v_lshl_add_u32 v2, v1, 2, s54")
            a("global_store_dword v2, v255, %s" % sp(P_WS))
        l = self.lab("nn")
        a("s_or_b32 s54, s2, s%d" % S_WAVE)
        a("s_cmp_lg_u32 s54, 0")
        a("s_cbranch_scc1 %s" % l)
        a("v_mov_b32 v2, 0")
        a("v_mov_b32 v3, s%d" % S_TAG)
        a("s_mov_b64 exec, 1")
        a("global_store_dword v2, v3, %s" % sp(P_WS))
        a.label(l)
        a.label("L_end")
        a("s_endpgm")

    def build(self):
        self.phase0()
        self.phase1()
        self.phase2()
        self.phase3()
        self.back_half()
        self.finish()
        self.helper()
        self.inactive_path()
        self.a.label("L_codeend")
        self.emit_slowpaths()
        self.a("s_endpgm")
        body = self.a.finalize()
        hdr = open("cdna_kernels/%s.s.ref" % NAME).read().split("; Override launch")[0]
        hdr += "; @launch grid=(256,1,1) block=(256,1,1) lds=%d\n" % LDS_TOTAL
        hdr += '.amdgcn_target "amdgcn-amd-amdhsa--gfx950"\n.text\n.globl %s_kernel\n.p2align 8\n.type %s_kernel,@function\n%s_kernel:\n' % (NAME, NAME, NAME)
        ftr = """.section .rodata,"a"
.p2align 6
.amdhsa_kernel %s_kernel
  .amdhsa_next_free_vgpr 512
  .amdhsa_next_free_sgpr 102
  .amdhsa_accum_offset 256
  .amdhsa_group_segment_fixed_size 0
  .amdhsa_kernarg_size 120
  .amdhsa_user_sgpr_count 2
  .amdhsa_user_sgpr_kernarg_segment_ptr 1
  .amdhsa_system_sgpr_workgroup_id_x 1
.end_amdhsa_kernel
""" % NAME
        return hdr + body + ftr


if __name__ == "__main__":
    import argparse
    ap = argparse.ArgumentParser()
    ap.add_argument("-o", default="k.s")
    ap.add_argument("--timing", action="store_true")
    args = ap.parse_args()
    g = Gen(timing=args.timing)
    open(args.o, "w").write(g.build())
    if args.timing:
        open(args.o + ".names", "w").write(",".join(g.names))
```

```python
import sys, struct, os
from asmdsl import Asm

NAME = "sequential_preLN__ssm_conv_s4d__mixer_token_mlp__prompt"

def f32(x):
    return "0x%08x" % struct.unpack("<I", struct.pack("<f", x))[0]

LOG2E = 1.4426950408889634
INV2PI = 0.15915494309189535

WS_FL = 0x10000
WS_UT = 0x100000
WS_H2 = 0x380000
WS_YT = 0x600000
WS_HP = 0x900000
WS_G = 0xB80000
P2A = 7
P2KB = 19
WS_DBG = 0x1000000
WS_TIME = 0x2000000

ESTR = 528
E1SZ = 21 * ESTR
ECH = E1SZ + 32 * ESTR
LDS_E = 0
CSTR = 4640
CCH = 4 * CSTR
LDS_C = 84224
USTR = 4224
LDS_U = 139904
LDS_XR = LDS_U
XRS = 1344
LDS_SR = 152576
LDS_SC = 152704
LDS_SHP = 65536
LDS_SHF = 81920
OWNS = 24576 + 64
OHS = 12288 + 64
LDS_OWN = LDS_C
LDS_LN = 160000
LDS_MID = 81920
LDS_H = 147456
LDS_TOTAL = 163840

S_WAVE, S_XCD, S_IDX, S_OCT = 3, 4, 5, 6
S_CF, S_PAR, S_TAG = 7, 9, 10
P_UT, P_H2 = 12, 14
P_X, P_LOGA, P_AIM, P_CR, P_CI, P_LDT, P_DSK = 16, 18, 20, 22, 24, 26, 28
P_W1, P_B1, P_W2, P_B2, P_OUT, P_DBG, P_WS = 32, 34, 36, 38, 40, 42, 44
P_YT, P_HP, P_G, P_FL = 46, 48, 50, 52
S_DB, S_FB, S_SB, S_G1 = 76, 77, 78, 79
S_DB2 = 75
NT = os.environ.get('NT', 'nt')
NT2 = os.environ.get('NT2', '')
NTX = os.environ.get('NTX', 'nt')
S_K2, S_SHORT = 92, 93
XG, TG = 200, 212
WD, WT = 234, 238
ACC0, SLOT0, NSLOT = 14, 94, 7
QA, QB = [7, 4, 3, 0], [6, 5, 2, 1]
SPIN = 200000
TLBW = int(os.environ.get('TLBW', '1'))
BGX = os.environ.get('BGX', 'z')

def sp(n): return "s[%d:%d]" % (n, n + 1)
def vp(n): return "v[%d:%d]" % (n, n + 1)
def v4(n): return "v[%d:%d]" % (n, n + 3)
def a4(n): return "a[%d:%d]" % (n, n + 3)
def a2(n): return "a[%d:%d]" % (n, n + 1)


class Gen:
    def __init__(self, debug=0, timing=False):
        self.a = Asm()
        self.debug = debug
        self.timing = timing
        self.nstamp = 0
        self.names = []
        self.uid = 0
        self.slowpaths = []

    def lab(self, base):
        self.uid += 1
        return "L_%s_%d" % (base, self.uid)

    def stamp(self, name=""):
        if not self.timing:
            return
        a = self.a
        a("s_memrealtime s[98:99]" if os.environ.get("RT") else "s_memtime s[98:99]")
        a("s_waitcnt lgkmcnt(0)")
        a("v_writelane_b32 v255, s98, %d" % self.nstamp)
        if self.nstamp >= 30:
            pass
        elif self.nstamp >= len(self.names):
            self.names.append(name)
        else:
            self.names[self.nstamp] += "/" + name
        self.nstamp += 1

    def weave(self, mark, bg, lo=0.0, hi=1.0):
        a = self.a
        seg = a.ins[mark:]
        del a.ins[mark:]
        n = len(seg)
        pos = [int(n * (lo + (hi - lo) * (k + 0.5) / len(bg))) for k in range(len(bg))]
        k = 0
        for i, ins in enumerate(seg):
            while k < len(bg) and pos[k] <= i:
                for t in bg[k]:
                    a(t)
                k += 1
            a.ins.append(ins)
        while k < len(bg):
            for t in bg[k]:
                a(t)
            k += 1

    def cmuls(self, lst):
        a = self.a
        for d, x, y in lst:
            a("v_pk_mul_f32 %s, %s, %s op_sel:[0,0] op_sel_hi:[0,1]" % (vp(d), vp(x), vp(y)))
        for d, x, y in lst:
            a("v_pk_fma_f32 %s, %s, %s, %s op_sel:[1,1,0] op_sel_hi:[1,0,1] neg_lo:[0,1,0]" % (vp(d), vp(x), vp(y), vp(d)))

    def cexps(self, items, tmp):
        a = self.a
        for n, (d, k, ar, ap) in enumerate(items):
            t = tmp + 2 * n
            a("v_mul_f32 v%d, %s, v%d" % (t, f32(float(2 ** k)), ar))
            a("v_mul_f32 v%d, %s, v%d" % (t + 1, f32(float(2 ** k)), ap))
        for n, it in enumerate(items):
            t = tmp + 2 * n
            a("v_exp_f32 v%d, v%d" % (t, t))
            a("v_fract_f32 v%d, v%d" % (t + 1, t + 1))
        for n, it in enumerate(items):
            t = tmp + 2 * n
            a("v_cos_f32 v%d, v%d" % (it[0], t + 1))
            a("v_sin_f32 v%d, v%d" % (it[0] + 1, t + 1))
        for n, it in enumerate(items):
            t = tmp + 2 * n
            a("v_pk_mul_f32 %s, %s, %s op_sel:[0,0] op_sel_hi:[0,1]" % (vp(it[0]), vp(t), vp(it[0])))

    def rowreduce16(self, regs, op="v_add_f32"):
        a = self.a
        for mode in ("quad_perm:[1,0,3,2]", "quad_perm:[2,3,0,1]", "row_half_mirror", "row_mirror"):
            for r in regs:
                a("%s_dpp v%d, v%d, v%d %s row_mask:0xf bank_mask:0xf" % (op, r, r, r, mode))

    def bf16_round(self, d, s):
        a = self.a
        a("v_cvt_pk_bf16_f32 v%d, v%d, v%d" % (d, s, s))
        a("v_and_b32 v%d, 0xffff0000, v%d" % (d, d))

    def spin_tail(self, lp, lok, sleep):
        a = self.a
        a("s_add_u32 s69, s69, 1")
        a("s_cmp_gt_u32 s69, %d" % SPIN)
        a("s_cbranch_scc1 %s" % lok)
        a("s_sleep %d" % sleep)
        a("s_branch %s" % lp)

    def wait_w3(self, n, extra):
        a = self.a
        if 'z' in BGX:
            a("s_waitcnt vmcnt(%d)%s" % (n, extra))
            return
        l = self.lab("ww3")
        a("s_waitcnt vmcnt(%d)%s" % (n + 4, extra))
        a("s_cmp_eq_u32 s%d, 3" % S_WAVE)
        a("s_cbranch_scc1 %s" % l)
        a("s_waitcnt vmcnt(%d)" % n)
        a.label(l)

    def pf_w1(self):
        a = self.a
        a("global_load_dword v254, v231, %s nt" % sp(P_W1))
        a("v_add_u32 v231, %d, v231" % (256 * 3456))

    def flag_store(self, arr, per_wave=True, wait="vmcnt(0)"):
        a = self.a
        a("s_lshl_b32 s54, s%d, 7" % S_OCT)
        if arr:
            a("s_add_u32 s54, s54, %d" % (arr * 0x8000))
        if per_wave:
            a("s_lshl_b32 s55, s%d, 2" % S_WAVE)
            a("s_add_u32 s54, s54, s55")
        a("v_mov_b32 v2, s54")
        a("v_mov_b32 v3, s%d" % S_TAG)
        if wait:
            a("s_waitcnt %s" % wait)
        a("s_mov_b64 exec, 1")
        a("global_store_dword v2, v3, %s sc1" % sp(P_FL))
        a("s_mov_b64 exec, -1")

    def phase0(self):
        a = self.a
        a("s_cmp_ge_u32 s2, 256")
        a("s_cbranch_scc1 L_end")
        a("s_load_dwordx16 s[16:31], s[0:1], 0")
        a("s_load_dwordx8 s[32:39], s[0:1], 64")
        a("s_load_dwordx4 s[40:43], s[0:1], 96")
        a("s_load_dwordx2 s[44:45], s[0:1], 112")
        a("s_getpc_b64 s[94:95]")
        a.label("L_pc")
        a("v_lshrrev_b32 v2, 6, v0")
        a("v_and_b32 v1, 63, v0")
        a("v_readfirstlane_b32 s%d, v2" % S_WAVE)
        a("s_and_b32 s%d, s2, 7" % S_XCD)
        a("s_lshr_b32 s%d, s2, 3" % S_IDX)
        a("s_lshl_b32 s%d, s%d, 5" % (S_OCT, S_XCD))
        a("s_add_u32 s%d, s%d, s%d" % (S_OCT, S_OCT, S_IDX))
        a("s_lshl_b32 s54, s%d, 4" % S_IDX)
        a("v_add_u32 v3, s54, v0")
        a("v_lshlrev_b32 v3, 7, v3")
        a("v_min_u32 v3, (L_codeend-L_pc-4), v3")
        a("v_cmp_gt_u32 vcc, 16, v0")
        a("s_and_saveexec_b64 s[54:55], vcc")
        lq = self.lab("cpf")
        a("s_cbranch_execz %s" % lq)
        a("global_load_dword v254, v3, s[94:95]")
        a.label(lq)
        a("s_mov_b64 exec, -1")
        a("s_mul_i32 s54, s%d, 80" % S_XCD)
        a("s_min_u32 s55, s%d, 26" % S_IDX)
        a("s_mul_i32 s55, s55, 3")
        a("s_add_u32 s%d, s54, s55" % S_CF)
        a("s_lshl_b32 s54, s%d, 3" % S_OCT)
        a("s_lshl_b32 s55, s%d, 1" % S_WAVE)
        a("s_add_u32 s54, s54, s55")
        a("v_lshrrev_b32 v9, 5, v1")
        a("v_add_u32 v4, s54, v9")
        a("v_mul_u32_u24 v4, 1280, v4")
        a("v_and_b32 v5, 31, v1")
        a("v_lshl_add_u32 v4, v5, 3, v4")
        a("v_add_u32 v9, s55, v9")
        a("v_mul_u32_u24 v8, %d, v9" % XRS)
        a("v_lshl_add_u32 v8, v5, 3, v8")
        a("v_add_u32 v8, %d, v8" % LDS_XR)
        a("s_min_u32 s56, s%d, 2" % S_WAVE)
        a("s_add_u32 s56, s56, s%d" % S_CF)
        a("s_min_u32 s56, s56, 639")
        a("s_lshl_b32 s57, s56, 8")
        a("v_lshl_add_u32 v6, v1, 2, s57")
        a("v_lshlrev_b32 v7, 1, v0")
        a("v_min_u32 v181, 159, v0")
        a("v_lshrrev_b32 v182, 2, v181")
        a("v_mul_u32_u24 v183, 13108, v182")
        a("v_lshrrev_b32 v183, 16, v183")
        a("v_mul_u32_u24 v183, 27, v183")
        a("v_add3_u32 v182, v182, v183, 27")
        a("v_and_b32 v181, 3, v181")
        a("v_lshlrev_b32 v181, 2, v181")
        a("v_lshl_add_u32 v233, v182, 7, v181")
        a("v_add_u32 v233, 0x8000, v233")
        a("s_mul_i32 s61, s%d, 27" % S_XCD)
        a("s_add_u32 s62, s61, 26")
        a("s_lshr_b32 s61, s61, 3")
        a("s_lshr_b32 s62, s62, 3")
        a("v_and_b32 v231, 7, v1")
        a("v_add_u32 v231, s61, v231")
        a("v_min_u32 v231, s62, v231")
        a("s_lshl_b32 s61, s%d, 9" % S_WAVE)
        a("s_lshl_b32 s62, s%d, 3" % S_IDX)
        a("s_add_u32 s61, s61, s62")
        a("v_lshrrev_b32 v232, 3, v1")
        a("v_add_u32 v232, s61, v232")
        a("v_mul_u32_u24 v232, 3456, v232")
        a("v_lshl_add_u32 v231, v231, 7, v232")
        a("s_mul_i32 s61, s%d, 448" % S_WAVE)
        a("s_min_u32 s61, s61, 1312")
        a("s_mul_i32 s62, s%d, 5" % S_IDX)
        a("s_add_u32 s61, s61, s62")
        a("v_lshrrev_b32 v232, 2, v1")
        a("v_min_u32 v232, 4, v232")
        a("v_add_u32 v232, s61, v232")
        a("v_lshlrev_b32 v232, 12, v232")
        a("v_and_b32 v183, 3, v1")
        a("v_lshl_add_u32 v232, v183, 7, v232")
        a("s_lshl_b32 s61, s%d, 9" % S_XCD)
        a("v_add_u32 v232, s61, v232")
        if self.timing:
            a("v_mov_b32 v255, 0")
        a("s_waitcnt lgkmcnt(0)")
        self.stamp("start")
        if self.timing:
            a("s_memrealtime s[98:99]")
            a("s_waitcnt lgkmcnt(0)")
            a("v_writelane_b32 v255, s98, 62")
        for k in range(5):
            a("global_load_dwordx2 %s, v4, %s offset:%d %s" % (vp(10 + 2 * k), sp(P_X), 256 * k, NTX))
        a("global_load_ushort v228, v7, %s" % sp(P_DSK))
        a("global_load_ushort v229, v7, %s offset:512" % sp(P_DSK))
        a("v_min_u32 v7, 254, v7")
        a("global_load_ushort v230, v7, %s offset:1024" % sp(P_DSK))
        for n, p in enumerate((P_LOGA, P_AIM, P_CR, P_CI)):
            a("global_load_dword v%d, v6, %s %s" % (224 + n, sp(p), NTX))
        if 'a' in BGX:
            a("global_load_dword v254, v231, %s %s" % (sp(P_W1), NT))
        a("s_load_dword s%d, %s, 0" % (S_TAG, sp(P_WS)))
        a("s_lshl_b32 s57, s56, 1")
        a("s_and_b32 s57, s57, 0xfffffffc")
        a("s_load_dword s59, %s, s57" % sp(P_LDT))
        for p, off in ((P_YT, WS_YT), (P_HP, WS_HP), (P_G, WS_G), (P_FL, WS_FL), (P_UT, WS_UT), (P_H2, WS_H2)):
            a("s_add_u32 s%d, s%d, 0x%x" % (p, P_WS, off))
            a("s_addc_u32 s%d, s%d, 0" % (p + 1, P_WS + 1))
        a("s_mul_i32 s54, s%d, 27" % S_XCD)
        a("s_min_u32 s55, s%d, 26" % S_IDX)
        a("s_add_u32 s54, s54, s55")
        a("s_lshr_b32 s%d, s54, 3" % S_FB)
        a("s_and_b32 s%d, s54, 7" % S_DB)
        a("s_lshl_b32 s54, s%d, 2" % S_XCD)
        a("s_lshr_b32 s55, s%d, 3" % S_IDX)
        a("s_add_u32 s%d, s54, s55" % S_SB)
        a("s_and_b32 s%d, s%d, 7" % (S_DB2, S_IDX))
        a("s_mov_b32 s%d, 1" % S_G1)
        a("s_cmp_ge_u32 s%d, 27" % S_IDX)
        a("s_cmov_b32 s%d, 0" % S_G1)
        a("s_mul_i32 s%d, s%d, 14" % (S_K2, S_WAVE))
        a("s_lshr_b32 s%d, s%d, 1" % (S_SHORT, S_WAVE))
        a("s_cmp_eq_u32 s%d, 3" % S_WAVE)
        a("s_cmov_b32 s%d, 41" % S_K2)

    def phase1(self):
        a = self.a
        a("v_mov_b32 v24, 0")
        a("v_mov_b32 v25, 0")
        a("v_mov_b32 v26, 0x3f803f80")
        a("v_bfe_u32 v27, v1, 2, 2")
        a("v_mul_u32_u24 v27, %d, v27" % XRS)
        a("v_lshrrev_b32 v28, 4, v0")
        a("v_lshl_add_u32 v27, v28, 5, v27")
        a("v_and_b32 v28, 3, v1")
        a("v_lshl_add_u32 v27, v28, 3, v27")
        a("v_add_u32 v27, %d, v27" % LDS_XR)
        a("v_lshlrev_b32 v29, 2, v9")
        a("v_add_u32 v29, %d, v29" % LDS_SR)
        a("v_mov_b32 v30, %d" % LDS_SR)
        a("s_mul_i32 s58, s%d, 10240" % S_OCT)
        a("v_lshl_add_u32 v2, v0, 4, s58")
        a("v_add_u32 v3, 4096, v2")
        a("v_add_u32 v4, 8192, v2")
        a("s_waitcnt vmcnt(%d) lgkmcnt(0)" % (8 if "a" in BGX else 7))
        for k in range(5):
            a("ds_write_b64 v8, %s offset:%d" % (vp(10 + 2 * k), 256 * k))
        for k in range(10):
            a("v_dot2_f32_bf16 v24, v%d, v26, v24" % (10 + k))
            a("v_dot2_f32_bf16 v25, v%d, v%d, v25" % (10 + k, 10 + k))
        a("s_mul_i32 s%d, s%d, 1664525" % (S_TAG, S_TAG))
        a("s_add_u32 s%d, s%d, 1013904223" % (S_TAG, S_TAG))
        a("s_nop 1")
        self.rowreduce16([24, 25])
        a("v_mov_b32 v31, v24")
        a("v_mov_b32 v32, v25")
        a("v_permlane16_swap_b32 v24, v31")
        a("v_permlane16_swap_b32 v25, v32")
        a("v_add_f32 v24, v24, v31")
        a("v_add_f32 v25, v25, v32")
        a("v_mul_f32 v24, %s, v24" % f32(1.0 / 640))
        a("v_mul_f32 v25, %s, v25" % f32(1.0 / 640))
        a("v_fma_f32 v25, -v24, v24, v25")
        a("v_max_f32 v25, 0, v25")
        self.bf16_round(25, 25)
        self.bf16_round(24, 24)
        a("v_add_f32 v25, %s, v25" % f32(1e-5))
        self.bf16_round(25, 25)
        a("v_sqrt_f32 v25, v25")
        self.bf16_round(25, 25)
        a("v_rcp_f32 v25, v25")
        a("ds_write_b32 v29, v24")
        a("ds_write_b32 v29, v25 offset:32")
        a("s_waitcnt lgkmcnt(0)")
        a("s_barrier")
        self.stamp("stats")
        for j in range(3):
            for hh in range(2):
                a("ds_read_b64_tr_b16 %s, v27 offset:%d" % (vp(XG + 4 * j + 2 * hh), 512 * j + 4 * XRS * hh))
        for q in range(4):
            a("ds_read_b128 %s, v30 offset:%d" % (v4(32 + 4 * q), 16 * q))
        W = lambda n: 48 + 2 * n
        it = [(j, p) for j in range(3) for p in range(4)]
        def unpack(srcf):
            for n in range(12):
                a("v_lshlrev_b32 v%d, 16, v%d" % (W(n), srcf(n)))
                a("v_and_b32 v%d, 0xffff0000, v%d" % (W(n) + 1, srcf(n)))
        def cvt(dstf, op="v_cvt_pk_bf16_f32"):
            for n in range(12):
                a("%s v%d, v%d, v%d" % (op, dstf(n), W(n), W(n) + 1))
        a("s_waitcnt lgkmcnt(4)")
        unpack(lambda n: XG + n)
        a("s_waitcnt lgkmcnt(0)")
        for n, (j, p) in enumerate(it):
            a("v_pk_add_f32 %s, %s, %s neg_lo:[0,1] neg_hi:[0,1]" % (vp(W(n)), vp(W(n)), vp(32 + 2 * p)))
        cvt(lambda n: 72 + n)
        unpack(lambda n: 72 + n)
        for n, (j, p) in enumerate(it):
            a("v_pk_mul_f32 %s, %s, %s" % (vp(W(n)), vp(W(n)), vp(40 + 2 * p)))
        cvt(lambda n: 72 + n)
        unpack(lambda n: 72 + n)
        cvt(lambda n: 84 + n, "v_cvt_pk_f16_f32")
        a("s_waitcnt vmcnt(%d)" % (1 if "a" in BGX else 0))
        a("global_store_dwordx4 v2, v[84:87], %s sc1" % sp(P_UT))
        a("global_store_dwordx4 v3, v[88:91], %s sc1" % sp(P_UT))
        l = self.lab("ut3")
        a("s_cmp_ge_u32 s%d, 2" % S_WAVE)
        a("s_cbranch_scc1 %s" % l)
        a("global_store_dwordx4 v4, v[92:95], %s sc1" % sp(P_UT))
        a.label(l)
        for j in range(3):
            a("v_lshlrev_b32 v%d, 16, v%d" % (100 + 2 * j, 228 + j))
        for n, (j, p) in enumerate(it):
            a("v_pk_mul_f32 %s, %s, %s op_sel_hi:[1,0]" % (vp(W(n)), vp(W(n)), vp(100 + 2 * j)))
        cvt(lambda n: TG + n)
        self.stamp("utstore")

    def wl_setup(self, ptr, rs, row0_sgpr, col_sgpr, stage_shift):
        a = self.a
        a("v_lshrrev_b32 v2, 3, v1")
        a("v_and_b32 v3, 7, v1")
        a("v_and_b32 v4, 2, v2")
        a("v_xor_b32 v3, v3, v4")
        a("v_mul_u32_u24 v2, %d, v2" % rs)
        a("v_lshl_add_u32 v%d, v3, 4, v2" % WD)
        a("v_xor_b32 v3, 4, v3")
        a("v_lshl_add_u32 v%d, v3, 4, v2" % (WD + 1))
        a("v_add_u32 v%d, %d, v%d" % (WD + 1, 8 * rs - 1024, WD + 1))
        a("v_add_u32 v%d, %d, v%d" % (WD + 2, 16 * rs - 2048, WD))
        a("v_add_u32 v%d, %d, v%d" % (WD + 3, 16 * rs - 2048, WD + 1))
        a("s_mul_i32 s54, s%d, %d" % (row0_sgpr, rs))
        a("s_add_u32 s54, s54, s%d" % col_sgpr)
        a("s_add_u32 s80, s%d, s54" % ptr)
        a("s_addc_u32 s81, s%d, 0" % (ptr + 1))
        if stage_shift is not None:
            a("v_lshrrev_b32 v2, 4, v1")
            a("v_bfe_u32 v3, v1, 2, 2")
            a("v_lshl_add_u32 v4, v2, 3, v3")
            a("v_lshlrev_b32 v4, 7, v4")
            a("v_and_b32 v5, 3, v1")
            a("v_lshl_add_u32 v4, v5, 3, v4")
            a("s_mul_i32 s54, s%d, %d" % (S_WAVE, stage_shift))
            a("v_add_u32 v4, s54, v4")
            a("v_lshrrev_b32 v3, 1, v3")
            a("v_and_b32 v2, 1, v2")
            a("v_lshl_add_u32 v2, v2, 1, v3")
            for nt in range(4):
                a("s_add_u32 s54, s%d, %d" % (S_WAVE, nt))
                a("s_and_b32 s54, s54, 3")
                a("v_xor_b32 v3, s54, v2")
                a("v_lshl_add_u32 v%d, v3, 5, v4" % (WT + nt))

    def wl_dma_groups(self, rs, nks, stage_shift, slot0=0, tag="wd"):
        G = []
        for s in range(nks):
            g = []
            if s == 0:
                g.append("s_mul_i32 s82, s%d, %d" % (S_WAVE, stage_shift))
                if slot0:
                    g.append("s_add_u32 s82, s82, %d" % (slot0))
            g.append("s_mov_b32 m0, s82")
            g.append("s_add_u32 s82, s82, 4096")
            g.append("global_load_lds_dwordx4 v%d, s[80:81]" % WD)
            g.append("global_load_lds_dwordx4 v%d, s[80:81] offset:1024" % (WD + 1))
            G.append(g)
            G.append(["global_load_lds_dwordx4 v%d, s[80:81] offset:2048" % (WD + 2),
                      "global_load_lds_dwordx4 v%d, s[80:81] offset:3072 ; #%s%d" % (WD + 3, tag, s),
                      "s_add_u32 s80, s80, %d" % (32 * rs), "s_addc_u32 s81, s81, 0"])
        return G

    def wl_dma_loop(self, rs, count, stage_shift, slot0=0):
        a = self.a
        a("s_mul_i32 s82, s%d, %d" % (S_WAVE, stage_shift))
        if slot0:
            a("s_add_u32 s82, s82, %d" % (slot0))
        a("s_mov_b32 s83, %s" % str(count))
        lp = self.lab("dma")
        a.label(lp)
        a("s_mov_b32 m0, s82 ; #loop")
        a("s_add_u32 s82, s82, 4096")
        for k in range(4):
            a("global_load_lds_dwordx4 v%d, s[80:81] offset:%d" % (WD + k, 1024 * k))
        a("s_add_u32 s80, s80, %d" % (32 * rs))
        a("s_addc_u32 s81, s81, 0")
        a("s_sub_u32 s83, s83, 1")
        a("s_cmp_gt_i32 s83, 0")
        a("s_cbranch_scc1 %s" % lp)

    def wl_tr(self, ks0, nks, slot0=0):
        return ["ds_read_b64_tr_b16 %s, v%d offset:%d" % (a2(((ks0 + s) * 4 + nt) * 4 + 2 * hf), WT + nt, slot0 + s * 4096 + hf * 512)
                for s in range(nks) for nt in range(4) for hf in range(2)]

    def phase2(self):
        a = self.a
        lW3 = self.lab("w3")
        lKd = self.lab("kdone")
        st0 = self.nstamp
        a("s_cmp_ge_u32 s%d, 27" % S_IDX)
        a("s_cbranch_scc1 L_helper")
        a("s_cmp_eq_u32 s%d, 3" % S_WAVE)
        a("s_cbranch_scc1 %s" % lW3)
        a("s_and_b32 s57, s56, 1")
        a("s_lshl_b32 s57, s57, 4")
        a("s_lshr_b32 s59, s59, s57")
        a("s_lshl_b32 s59, s59, 16")
        a("v_mov_b32 v242, %s" % f32(LOG2E))
        a("v_mul_f32 v242, s59, v242")
        a("v_exp_f32 v242, v242")
        a("v_and_b32 v243, 0x7fff7fff, v226")
        a("v_and_b32 v244, 0x7fff7fff, v227")
        a("v_pk_max_u16 v243, v243, v244")
        a("v_lshlrev_b32 v244, 16, v243")
        a("v_max_u32 v243, v243, v244")
        self.bf16_round(242, 242)
        a("v_lshlrev_b32 v246, 16, v224")
        a("v_and_b32 v250, 0xffff0000, v224")
        fill = [["v_mul_f32 v246, %s, v246" % f32(LOG2E), "v_mul_f32 v250, %s, v250" % f32(LOG2E)],
                ["v_exp_f32 v246, v246", "v_exp_f32 v250, v250"],
                ["v_lshlrev_b32 v247, 16, v225", "v_and_b32 v251, 0xffff0000, v225"],
                ["v_mul_f32 v247, v247, v242", "v_mul_f32 v251, v251, v242"]]
        for mode, fl in zip(("quad_perm:[1,0,3,2]", "quad_perm:[2,3,0,1]", "row_half_mirror", "row_mirror"), fill):
            a("v_max_u32_dpp v243, v243, v243 %s row_mask:0xf bank_mask:0xf" % mode)
            for t in fl:
                a(t)
        for sw, r, src in (("v_permlane16_swap_b32", 248, 226), ("v_permlane32_swap_b32", 249, 227)):
            a("v_mov_b32 v244, v243")
            a("v_lshlrev_b32 v%d, 16, v%d" % (r, src))
            a("v_and_b32 v%d, 0xffff0000, v%d" % (r + 4, src))
            a("%s v243, v244" % sw)
            a("v_max_u32 v243, v243, v244")
        self.bf16_round(246, 246)
        self.bf16_round(250, 250)
        a("v_mul_f32 v247, %s, v247" % f32(INV2PI))
        a("v_mul_f32 v251, %s, v251" % f32(INV2PI))
        a("v_mul_f32 v246, v246, v242")
        a("v_mul_f32 v250, v250, v242")
        a("v_mul_f32 v246, %s, v246" % f32(-LOG2E))
        a("v_mul_f32 v250, %s, v250" % f32(-LOG2E))
        SA, SB = 10, 100
        E = lambda S, j: S + 2 * j
        T = lambda S, j: S + 34 + 2 * j
        GK = lambda S, k: S + 66 + 2 * {0: 0, 1: 1, 2: 2, 8: 3, 9: 4, 10: 5, 11: 6}[k]
        self.cexps([(E(SA, 1), 3, 246, 247), (E(SB, 1), 3, 250, 251), (GK(SA, 0), 0, 246, 247), (GK(SB, 0), 0, 250, 251),
                    (GK(SA, 8), 8, 246, 247), (GK(SB, 8), 8, 250, 251)], 180)
        a("v_and_b32 v243, 0x7f800000, v243")
        a("v_max_u32 v243, 0x00800000, v243")
        a("v_min_u32 v243, 0x7e800000, v243")
        a("v_sub_u32 v244, 0x7f800000, v243")
        a("v_mul_f32 v245, v243, v242")
        for r in (248, 249, 252, 253):
            a("v_mul_f32 v%d, v%d, v244" % (r, r))
        a("s_lshl_b32 s54, s%d, 2" % S_WAVE)
        a("s_add_u32 s54, s54, %d" % LDS_SC)
        a("v_mov_b32 v5, s54")
        a("ds_write_b32 v5, v245")
        a("s_mul_i32 s60, s%d, %d" % (S_WAVE, ECH))
        a("v_lshl_add_u32 v6, v1, 3, s60")
        self.flag_store(0)
        self.pf_w1()
        self.stamp("flag")
        mark = len(a.ins)
        tmpn = [0]
        def st(off, ra, rb, neg=False):
            t = 188 + 2 * (tmpn[0] % 6)
            tmpn[0] += 1
            ng = "-" if neg else ""
            return ["v_cvt_pk_f16_f32 v%d, v%d, %sv%d" % (t, ra, ng, ra + 1),
                    "v_cvt_pk_f16_f32 v%d, v%d, %sv%d" % (t + 1, rb, ng, rb + 1),
                    "ds_write_b64 v6, %s offset:%d" % (vp(t), off)]
        sq = lambda d, x: (d, x, x)
        SS = (SA, SB)
        R = lambda S, r: ((248 if S == SA else 252) if r == 0 else S + 2 * r)
        a("v_mov_b32 v196, 0x00003c00")
        a("v_mov_b32 v197, 0x00003c00")
        a("ds_write_b64 v6, v[196:197] offset:%d" % (LDS_E + E1SZ))
        self.cmuls([sq(E(S, 2), E(S, 1)) for S in SS] + [sq(GK(S, 1), GK(S, 0)) for S in SS] + [sq(GK(S, 9), GK(S, 8)) for S in SS])
        self.cmuls([sq(E(S, 4), E(S, 2)) for S in SS] + [(E(S, 3), E(S, 1), E(S, 2)) for S in SS] +
                   [sq(GK(S, 2), GK(S, 1)) for S in SS] + [sq(GK(S, 10), GK(S, 9)) for S in SS])
        m2 = len(a.ins)
        self.cmuls([sq(E(S, 8), E(S, 4)) for S in SS] + [(E(S, 4 + j), E(S, j), E(S, 4)) for j in (1, 2, 3) for S in SS] +
                   [sq(GK(S, 11), GK(S, 10)) for S in SS])
        self.weave(m2, [st(LDS_E + E1SZ + j * ESTR, E(SA, j), E(SB, j)) for j in (1, 2, 3, 4)] + [st(LDS_E, R(SA, 0), R(SB, 0), True)])
        m2 = len(a.ins)
        self.cmuls([sq(E(S, 16), E(S, 8)) for S in SS] + [(E(S, 8 + j), E(S, j), E(S, 8)) for j in range(1, 8) for S in SS])
        self.weave(m2, [st(LDS_E + E1SZ + j * ESTR, E(SA, j), E(SB, j)) for j in (5, 6, 7, 8)])
        m2 = len(a.ins)
        self.cmuls([(T(S, j), E(S, j), E(S, 16)) for j in range(1, 16) for S in SS])
        self.weave(m2, [st(LDS_E + E1SZ + j * ESTR, E(SA, j), E(SB, j)) for j in range(9, 17)])
        R = lambda S, r: ((248 if S == SA else 252) if r == 0 else (S + 2 * r if r <= 16 else S + 80 + 2 * (r - 17)))
        l1 = [(1, 0, 0), (2, 0, 1), (4, 0, 2), (8, 0, 8), (12, 0, 9), (16, 0, 10), (20, 0, 11)]
        l2 = [(3, 1, 1), (5, 1, 2), (6, 2, 2), (9, 2, 8), (10, 4, 8), (13, 4, 9), (14, 8, 9), (17, 8, 10), (18, 12, 10)]
        l3 = [(7, 3, 2), (11, 6, 8), (15, 10, 9), (19, 14, 10)]
        tst = [st(LDS_E + E1SZ + (16 + j) * ESTR, T(SA, j), T(SB, j)) for j in range(1, 16)]
        m2 = len(a.ins)
        self.cmuls([(R(S, d), R(S, x), GK(S, k)) for d, x, k in l1 for S in SS])
        self.weave(m2, tst[:7])
        m2 = len(a.ins)
        self.cmuls([(R(S, d), R(S, x), GK(S, k)) for d, x, k in l2 for S in SS])
        self.weave(m2, tst[7:])
        m2 = len(a.ins)
        self.cmuls([(R(S, d), R(S, x), GK(S, k)) for d, x, k in l3 for S in SS])
        self.weave(m2, [st(LDS_E + d * ESTR, R(SA, d), R(SB, d), True) for d, x, k in l1])
        for d, x, k in l2 + l3:
            for t in st(LDS_E + d * ESTR, R(SA, d), R(SB, d), True):
                a(t)
        self.stamp("Edone")
        a("v_and_b32 v2, 31, v1")
        a("v_lshrrev_b32 v3, 5, v1")
        a("v_mul_u32_u24 v4, %d, v2" % ESTR)
        a("v_lshl_add_u32 v4, v3, 4, v4")
        a("v_add_u32 v4, s60, v4")
        for ks in range(16):
            a("ds_read_b128 %s, v4 offset:%d" % (v4(32 + 8 * ks), LDS_E + ks * 32))
            a("ds_read_b128 %s, v4 offset:%d" % (v4(36 + 8 * ks), LDS_E + E1SZ + ks * 32))
            if ks >= 6:
                k = ks - 6
                a("s_waitcnt lgkmcnt(12)")
                a("v_mfma_f32_32x32x16_f16 v[8:23], %s, %s, %s" % (v4(32 + 8 * k), v4(36 + 8 * k), "0" if k == 0 else "v[8:23]"))
        a("s_mul_i32 s55, s%d, %d" % (S_WAVE, CCH))
        a("s_add_u32 s55, s55, %d" % (LDS_C + 3 * CSTR))
        a("v_lshlrev_b32 v5, 4, v2")
        a("v_sub_u32 v5, s55, v5")
        a("v_lshlrev_b32 v6, 3, v3")
        a("v_sub_u32 v6, v5, v6")
        a("v_lshl_add_u32 v7, v1, 4, s55")
        for r in range(4):
            a("v_mov_b32 v%d, 0" % (164 + r))
        for k in range(10, 16):
            a("s_waitcnt lgkmcnt(%d)" % (2 * (15 - k)))
            a("v_mfma_f32_32x32x16_f16 v[8:23], %s, %s, v[8:23]" % (v4(32 + 8 * k), v4(36 + 8 * k)))
        a("v_cmp_gt_u32 vcc, 34, v1")
        a("s_and_saveexec_b64 s[62:63], vcc")
        a("ds_write_b128 v7, v[164:167] offset:4096")
        a("s_mov_b64 exec, -1")
        a("v_min_u32 v168, 23, v1")
        a("v_lshl_add_u32 v168, v168, 4, s55")
        a("v_add_u32 v168, 4096, v168")
        a("v_subrev_u32 v169, %d, v7" % (3 * CSTR))
        a("v_subrev_u32 v170, %d, v168" % (3 * CSTR))
        for i in range(4):
            a("v_cvt_pk_f16_f32 v%d, v%d, v%d" % (24 + 2 * i, 16 + i, 16 + i))
            a("v_cvt_pk_f16_f32 v%d, v%d, v%d" % (25 + 2 * i, 16 + i, 16 + i))
        for d, x, y in ((32, 13, 13), (34, 13, 12), (35, 12, 12), (36, 15, 15), (38, 15, 14), (39, 14, 14), (40, 14, 13),
                        (41, 12, 12), (42, 11, 10), (43, 9, 8)):
            a("v_cvt_pk_f16_f32 v%d, v%d, v%d" % (d, x, y))
        a("s_mov_b32 exec_hi, 0")
        for i in range(4):
            P = 1020 - 256 * i
            a("ds_write_b64 v5, %s offset:%d" % (vp(24 + 2 * i), 2 * P))
            a("ds_write_b64 v5, %s offset:%d" % (vp(24 + 2 * i), 2 * P + 8))
        a("s_mov_b32 exec_lo, 0x55555555")
        for i in range(4):
            P = 1019 - 256 * i
            a("ds_write_b16 v5, v%d offset:%d" % (24 + 2 * i, 2 * P))
        a("s_mov_b32 exec_lo, 0")
        a("s_mov_b32 exec_hi, 1")
        a("ds_write_b64 v5, %s" % vp(24))
        a("s_mov_b32 exec_hi, -1")
        for i, (bb, ba, aa) in enumerate(((32, 34, 35), (36, 38, 39))):
            P = 2042 - 512 - 256 * i
            a("ds_write_b32 v5, v%d offset:%d" % (bb, 2 * P))
            a("ds_write_b64 v5, %s offset:%d" % (vp(ba), 2 * P + 4))
            a("ds_write_b32 v5, v%d offset:%d" % (aa, 2 * P + 12))
        a("s_mov_b32 exec_lo, -1")
        a("s_mov_b32 exec_hi, 0")
        P = 2041 - 256
        a("ds_write_b16 v5, v36 offset:%d" % (2 * P))
        a("ds_write_b32 v5, v39 offset:%d" % (2 * P + 2))
        a("ds_write_b64 v5, %s offset:%d" % (vp(40), 2 * P + 6))
        a("ds_write_b16 v5, v35 offset:%d" % (2 * P + 14))
        a("s_mov_b64 exec, -1")
        a("ds_write_b64 v6, %s offset:%d" % (vp(42), 2 * 2044))
        self.stamp("Kexp")
        for rnd in range(5):
            b = 44 + 24 * rnd
            src = "v7 offset:%d" % (1024 * rnd) if rnd < 4 else "v168"
            src2 = "v7 offset:%d" % (1024 * rnd + 16) if rnd < 4 else "v168 offset:16"
            a("ds_read_b128 %s, %s" % (v4(b), src))
            a("ds_read_b64 %s, %s" % (vp(b + 4), src2))
        for rnd in range(5):
            b = 44 + 24 * rnd
            a("s_waitcnt lgkmcnt(%d)" % (2 * (4 - rnd) + 3 * rnd))
            for k in range(4):
                a("v_alignbit_b32 v%d, v%d, v%d, 16" % (b + 8 + k, b + k + 1, b + k))
            ad, o = ("v169", 1024 * rnd) if rnd < 4 else ("v170", 0)
            a("ds_write_b128 %s, %s offset:%d" % (ad, v4(b + 8), o + 2 * CSTR))
            for k in range(4):
                a("v_mov_b32 v%d, v%d" % (b + 12 + k, b + k + 1))
            a("ds_write_b128 %s, %s offset:%d" % (ad, v4(b + 12), o + 1 * CSTR))
            for k in range(4):
                a("v_alignbit_b32 v%d, v%d, v%d, 16" % (b + 16 + k, b + k + 2, b + k + 1))
            a("ds_write_b128 %s, %s offset:%d" % (ad, v4(b + 16), o))
        a("s_branch %s" % lKd)
        a.label(lW3)
        self.nstamp = st0
        self.flag_store(0)
        self.pf_w1()
        self.stamp("flag")
        a("s_lshl_b32 s54, s%d, 4" % S_CF)
        for j in range(12):
            a("v_add_u32 v7, %d, v1" % (64 * j))
            a("v_mul_u32_u24 v8, 21846, v7")
            a("v_lshrrev_b32 v8, 16, v8")
            a("v_mul_u32_u24 v9, 3, v8")
            a("v_sub_u32 v9, v7, v9")
            a("v_mul_u32_u24 v%d, 10240, v8" % (100 + j))
            a("v_lshl_add_u32 v%d, v9, 4, v%d" % (100 + j, 100 + j))
            a("v_add_u32 v%d, s54, v%d" % (100 + j, 100 + j))
            a("v_mul_u32_u24 v9, %d, v9" % USTR)
            a("v_lshl_add_u32 v%d, v8, 4, v9" % (112 + j))
            a("v_add_u32 v%d, %d, v%d" % (112 + j, LDS_U + 128, 112 + j))
        a("v_lshlrev_b32 v10, 7, v1")
        for k in range(1, 4):
            a("v_add_u32 v%d, %d, v10" % (10 + k, 8192 * k))
        a("s_waitcnt vmcnt(0)")
        a("s_sleep %d" % int(os.environ.get("SL1", "8")))
        a("s_mov_b32 s69, 0")
        lp, lok = self.lab("flpoll"), self.lab("flok")
        a.label(lp)
        for k in range(4):
            a("global_load_dwordx4 %s, v%d, %s sc1" % (v4(16 + 4 * k), 10 + k, sp(P_FL)))
        a("s_waitcnt vmcnt(0)")
        a("v_xor_b32 v6, s%d, v16" % S_TAG)
        for r in range(17, 32):
            a("v_xor_b32 v7, s%d, v%d" % (S_TAG, r))
            a("v_or_b32 v6, v6, v7")
        a("v_cmp_ne_u32 vcc, 0, v6")
        a("s_cbranch_vccz %s" % lok)
        self.spin_tail(lp, lok, 4)
        a.label(lok)
        if self.timing:
            a("v_writelane_b32 v255, s69, 32")
        self.stamp("flok")
        for j in range(12):
            a("global_load_dwordx4 %s, v%d, %s sc1" % (v4(32 + 4 * j), 100 + j, sp(P_UT)))
        a("v_mov_b32 v6, 0")
        a("v_and_b32 v5, 31, v1")
        a("v_lshlrev_b32 v5, 2, v5")
        a("v_add_u32 v5, %d, v5" % LDS_U)
        for pos in range(3):
            a("ds_write_b32 v5, v6 offset:%d" % (pos * USTR))
        self.conv_setup()
        for j in range(12):
            a("s_waitcnt vmcnt(%d)" % (11 - j))
            a("ds_write_b128 v%d, %s" % (112 + j, v4(32 + 4 * j)))
        self.stamp("gath")
        lK2 = self.lab("kd2")
        a("s_branch %s" % lK2)
        a.label(lKd)
        self.conv_setup()
        a.label(lK2)
        a("s_waitcnt lgkmcnt(0)")
        self.stamp("prebar")
        a("s_barrier")
        self.stamp("kbar")

    def conv_setup(self):
        a = self.a
        a("s_lshl_b32 s90, s%d, 9" % S_WAVE)
        a("s_lshl_b32 s91, s%d, 7" % S_FB)
        self.wl_setup(P_W1, 3456, 90, 91, 16384)
        a("v_and_b32 v2, 15, v1")
        a("v_lshrrev_b32 v3, 4, v1")
        a("v_and_b32 v4, 3, v1")
        a("v_bfe_u32 v5, v1, 2, 2")
        a("v_mul_u32_u24 v6, %d, v4" % CSTR)
        a("v_lshl_add_u32 v6, v3, 4, v6")
        a("v_lshlrev_b32 v7, 7, v5")
        a("v_sub_u32 v6, v6, v7")
        a("v_add_u32 v6, %d, v6" % (LDS_C + 832))
        a("v_lshlrev_b32 v7, 3, v2")
        a("v_lshl_add_u32 v7, v3, 4, v7")
        a("v_add_u32 v7, %d, v7" % (LDS_U + 456))
        for p in range(3):
            a("s_mul_i32 s54, s%d, 6" % S_WAVE)
            a("s_add_u32 s54, s54, %d" % (2 * p + 1))
            a("s_lshr_b32 s55, s54, 3")
            a("s_and_b32 s54, s54, 7")
            a("s_lshl_b32 s54, s54, 6")
            a("s_mul_i32 s60, s55, %d" % CCH)
            a("s_sub_u32 s60, s60, s54")
            a("v_add_u32 v%d, s60, v6" % (194 + 2 * p))
            a("s_mul_i32 s60, s55, %d" % USTR)
            a("s_sub_u32 s60, s60, s54")
            a("v_add_u32 v%d, s60, v7" % (195 + 2 * p))
        a("v_lshrrev_b32 v2, 1, v1")
        a("v_mul_u32_u24 v2, 48, v2")
        a("v_and_b32 v3, 1, v1")
        a("v_mul_u32_u24 v3, %d, v3" % OHS)
        a("s_min_u32 s54, s%d, 2" % S_WAVE)
        a("s_lshl_b32 s54, s54, 4")
        a("s_add_u32 s54, s54, %d" % LDS_OWN)
        a("s_add_u32 s55, s54, %d" % (2 * OHS))
        a("s_cmp_eq_u32 s%d, 3" % S_WAVE)
        a("s_cmov_b32 s54, s55")
        a("v_add3_u32 v242, v2, v3, s54")
        a("s_sub_u32 s55, s55, 16")
        a("v_add3_u32 v243, v2, v3, s55")
        for j in range(3):
            a("v_add_u32 v2, %d, v0" % (256 * j))
            a("v_mul_u32_u24 v3, 21846, v2")
            a("v_lshrrev_b32 v3, 16, v3")
            a("v_mul_u32_u24 v4, 3, v3")
            a("v_sub_u32 v2, v2, v4")
            a("v_lshlrev_b32 v2, 2, v2")
            a("v_add_u32 v%d, %d, v2" % (244 + j, LDS_SC))

    def w2a_addr(self):
        a = self.a
        a("s_lshl_b32 s64, s%d, 5" % S_K2)
        a("s_lshl_b32 s65, s%d, 3" % S_IDX)
        a("s_add_u32 s64, s64, s65")
        a("v_lshrrev_b32 v2, 3, v1")
        a("v_add_u32 v2, s64, v2")
        a("s_lshr_b32 s65, s%d, 1" % S_XCD)
        a("s_lshl_b32 s65, s65, 10")
        a("v_and_b32 v4, 7, v1")
        a("v_lshl_add_u32 v4, v4, 7, s65")
        a("v_lshl_add_u32 v193, v2, 12, v4")

    def cv_loads(self, setn, na, vA, vB, ex):
        Ab, Bb = ((64, 96), (128, 160))[setn]
        L = []
        for n in range(na):
            L.append("ds_read_b128 %s, v%d offset:%d" % (v4(Ab + 4 * n), vA, 512 * (7 - n) + ex))
            L.append("ds_read_b64 %s, v%d offset:%d" % (vp(Bb + 4 * n), vB, 512 * n + ex))
            L.append("ds_read_b64 %s, v%d offset:%d" % (vp(Bb + 4 * n + 2), vB, 512 * n + ex + 8))
        return L

    def cv_iter(self, setn, chunks, acc, first, bg, hi=0.85):
        a = self.a
        Ab, Bb = ((64, 96), (128, 160))[setn]
        a("s_waitcnt lgkmcnt(0)")
        mark = len(a.ins)
        seen = set()
        for aa in range(max(chunks) + 1):
            for q in sorted(chunks, reverse=True):
                if q >= aa:
                    c = v4(acc[q])
                    src = "0" if (first and q not in seen) else c
                    seen.add(q)
                    a("v_mfma_f32_16x16x32_f16 %s, %s, %s, %s" % (c, v4(Ab + 4 * aa), v4(Bb + 4 * (q - aa)), src))
        if bg:
            self.weave(mark + 1, bg, 0.0, hi)

    def phase3(self):
        a = self.a
        one = lambda L: [[x] for x in L]
        def mix(L1, L2):
            if not L2: return L1
            out = []
            i = j = 0
            while i < len(L1) or j < len(L2):
                if j >= len(L2) or (i < len(L1) and i * len(L2) <= j * len(L1)):
                    out.append(L1[i]); i += 1
                else:
                    out.append(L2[j]); j += 1
            return out
        acc = {q: 16 + 4 * q for q in range(8)}
        dmaA = self.wl_dma_groups(3456, 4, 16384)
        dmaB = self.wl_dma_groups(3456, 4, 16384)
        def lds(it):
            p = it >> 1
            return one(self.cv_loads(it & 1, 8, 194 + 2 * p, 195 + 2 * p, 64 * (1 - (it & 1))))
        for g in lds(0):
            a(g[0])
        for j in range(3):
            a("ds_read_b32 v%d, v%d" % (4 + 2 * j, 244 + j))
        pfs = [["global_load_dword v254, v231, %s nt" % sp(P_W1)], ["global_load_dword v254, v232, %s nt" % sp(P_W2)]]
        nop = []
        extra = {0: dmaA[:4], 1: dmaA[4:], 2: [nop] * 24 + [["s_waitcnt vmcnt(0)"]] + one(self.wl_tr(0, 4)),
                 3: dmaB[:5], 4: dmaB[5:] + [["global_load_dword v247, v233, %s sc1" % sp(P_FL)]] + pfs}
        for it in range(6):
            if it in (2, 4):
                lf = self.lab("flush")
                a("s_cmp_lg_u32 s%d, %d" % (S_WAVE, it >> 1))
                a("s_cbranch_scc1 %s" % lf)
                a("s_nop 7")
                for r in range(32):
                    a("v_accvgpr_write_b32 a%d, v%d" % (128 + r, 16 + r))
                for r in range(16):
                    a("v_pk_mov_b32 %s, 0, 0" % vp(16 + 2 * r))
                a("s_nop 1")
                a.label(lf)
            self.cv_iter(it & 1, list(range(8)), acc, it == 0, mix(lds(it + 1) if it < 5 else [], extra.get(it, [])), hi=0.92)
        a("s_mul_i32 s54, s%d, 12288" % S_OCT)
        a("v_lshl_add_u32 v10, v0, 4, s54")
        a("v_add_u32 v11, 4096, v10")
        a("v_add_u32 v12, 8192, v10")
        a("v_lshlrev_b32 v13, 4, v0")
        a("v_add_u32 v13, %d, v13" % LDS_OWN)
        self.stamp("convmf")
        a("s_barrier")
        for q in range(8):
            a("ds_write_b128 v242, %s offset:%d" % (v4(16 + 4 * q), 1536 * q))
        lw = self.lab("nofl")
        a("s_add_u32 s54, s%d, 1" % S_WAVE)
        a("s_bitcmp0_b32 s54, 1")
        a("s_cbranch_scc1 %s" % lw)
        for q in range(8):
            a("ds_write_b128 v243, %s offset:%d" % (a4(128 + 4 * q), 1536 * q))
        a.label(lw)
        self.pd_check(len(pfs))
        a("s_waitcnt lgkmcnt(0)")
        a("s_barrier")
        for j in range(3):
            b = 64 + 16 * j
            for k in range(2):
                for hh in range(2):
                    a("ds_read_b128 %s, v13 offset:%d" % (v4(b + 8 * k + 4 * hh), k * 2 * OHS + hh * OHS + 4096 * j))
        for j in range(3):
            b = 64 + 16 * j
            a("s_waitcnt lgkmcnt(%d)" % (4 * (2 - j)))
            for p in range(4):
                a("v_pk_add_f32 %s, %s, %s" % (vp(b + 2 * p), vp(b + 2 * p), vp(b + 8 + 2 * p)))
            for p in range(4):
                a("v_pk_mul_f32 %s, %s, %s op_sel_hi:[1,0]" % (vp(b + 2 * p), vp(b + 2 * p), vp(4 + 2 * j)))
            for p in range(4):
                a("v_cvt_pk_bf16_f32 v%d, v%d, v%d" % (b + 8 + p, b + 2 * p, b + 2 * p + 1))
            for p in range(4):
                a("v_min_u32 v%d, 0xfffffffe, v%d" % (b + 8 + p, b + 8 + p))
            a("global_store_dwordx4 v%d, %s, %s sc1" % (10 + j, v4(b + 8), sp(P_YT)))
        self.stamp("ytstore")

    def helper(self):
        a = self.a
        a.label("L_helper")
        self.flag_store(0)
        self.pf_w1()
        a("s_sub_u32 s60, s%d, 27" % S_IDX)
        a("s_lshl_b32 s60, s60, 2")
        a("s_add_u32 s60, s60, s%d" % S_WAVE)
        for r in range(4):
            a("v_mov_b32 v%d, -1" % (20 + r))
        a("v_lshrrev_b32 v5, 3, v1")
        a("v_and_b32 v6, 7, v1")
        a("s_lshr_b32 s62, s%d, 1" % S_XCD)
        def poison(ptr, per_xcd_kb, xcd_stride):
            a("s_mul_i32 s61, s%d, %d" % (S_XCD, xcd_stride))
            a("s_lshl_b32 s63, s60, 10")
            a("s_add_u32 s61, s61, s63")
            a("v_lshl_add_u32 v7, v1, 4, s61")
            a("s_mov_b32 s63, s60")
            lp = self.lab("poi")
            a.label(lp)
            a("global_store_dwordx4 v7, v[20:23], %s sc1" % sp(ptr))
            a("v_add_u32 v7, 20480, v7")
            a("s_add_u32 s63, s63, 20")
            a("s_cmp_lt_u32 s63, %d" % per_xcd_kb)
            a("s_cbranch_scc1 %s" % lp)
        def pref(ptr, rs, nline, maxline, rowf, ngroups):
            a("s_mul_i32 s61, s62, %d" % nline)
            a("v_min_u32 v8, %d, v6" % (nline - 1))
            a("v_add_u32 v8, s61, v8")
            a("v_min_u32 v8, %d, v8" % maxline)
            a("v_lshlrev_b32 v8, 7, v8")
            a("s_mov_b32 s63, s60")
            lp = self.lab("prf")
            a.label(lp)
            rowf()
            a("v_add_u32 v9, s64, v5")
            a("v_mul_u32_u24 v9, %d, v9" % rs)
            a("v_add_u32 v9, v9, v8")
            a("global_load_dword v254, v9, %s" % sp(ptr))
            a("s_add_u32 s63, s63, 20")
            a("s_cmp_lt_u32 s63, %d" % ngroups)
            a("s_cbranch_scc1 %s" % lp)
        def row_w1b():
            a("s_and_b32 s64, s63, 3")
            a("s_lshl_b32 s64, s64, 9")
            a("s_lshr_b32 s65, s63, 2")
            a("s_lshl_b32 s65, s65, 3")
            a("s_add_u32 s64, s64, s65")
            a("s_add_u32 s64, s64, 256")
        def row_w2():
            a("s_and_b32 s64, s63, 3")
            a("s_mul_i32 s64, s64, 448")
            a("s_min_u32 s64, s64, 1312")
            a("s_lshr_b32 s65, s63, 2")
            a("s_lshl_b32 s65, s65, 3")
            a("s_add_u32 s64, s64, s65")
            a("s_min_u32 s64, s64, 1720")
        poison(P_YT, 27 * 12, 32 * 12288)
        self.flag_store(1)
        if 'h' in BGX:
            self.pf_w2b()
        poison(P_HP, 320, 327680)
        self.flag_store(4)
        a("global_load_dword v254, v231, %s nt" % sp(P_W1))
        a("global_load_dword v254, v232, %s nt" % sp(P_W2))
        if 'j' in BGX:
            self.pf_w2b((160,))
        a("s_lshl_b32 s90, s%d, 9" % S_WAVE)
        a("s_lshl_b32 s91, s%d, 7" % S_FB)
        self.wl_setup(P_W1, 3456, 90, 91, 16384)
        a("global_load_dword v247, v233, %s sc1" % sp(P_FL))
        self.pd_check(0)
        a("s_branch L_win2")

    def phase4_pre(self):
        a = self.a
        a("s_mul_i32 s55, s%d, 48" % S_OCT)
        for j in range(3):
            a("v_add_u32 v5, %d, v0" % (256 * j))
            if j == 2:
                a("v_min_u32 v5, 639, v5")
            a("v_mul_u32_u24 v6, 820, v5")
            a("v_lshrrev_b32 v6, 16, v6")
            a("v_mul_u32_u24 v7, 80, v6")
            a("v_sub_u32 v7, v5, v7")
            a("v_mul_u32_u24 v8, 21846, v7")
            a("v_lshrrev_b32 v8, 16, v8")
            a("v_lshl_add_u32 v6, v6, 5, v8")
            a("v_mul_u32_u24 v8, 3, v8")
            a("v_sub_u32 v7, v7, v8")
            a("v_mul_u32_u24 v6, 12288, v6")
            a("v_lshl_add_u32 v6, v7, 4, v6")
            a("v_add_u32 v%d, s55, v6" % (170 + j))
        for n in range(12):
            a("v_lshlrev_b32 v%d, 16, v%d" % (100 + 2 * n, XG + n))
            a("v_and_b32 v%d, 0xffff0000, v%d" % (101 + 2 * n, XG + n))
            a("v_lshlrev_b32 v%d, 16, v%d" % (124 + 2 * n, TG + n))
            a("v_and_b32 v%d, 0xffff0000, v%d" % (125 + 2 * n, TG + n))
        a("s_lshl_b32 s54, s%d, 8" % S_OCT)
        a("v_lshrrev_b32 v2, 4, v0")
        a("v_lshlrev_b32 v2, 16, v2")
        a("v_and_b32 v3, 15, v0")
        a("v_lshl_add_u32 v2, v3, 4, v2")
        a("v_add_u32 v173, s54, v2")
        a("v_add_u32 v174, 0x100000, v173")
        a("v_add_u32 v175, 0x200000, v173")
        a("s_mul_i32 s54, s%d, 10240" % S_OCT)
        a("v_lshl_add_u32 v176, v0, 4, s54")
        a("v_add_u32 v177, 4096, v176")
        a("v_add_u32 v178, 8192, v176")
        a("v_lshlrev_b32 v179, 2, v0")
        a("v_add_u32 v179, %d, v179" % LDS_LN)
        a("v_lshlrev_b32 v180, 2, v1")
        a("v_add_u32 v180, %d, v180" % LDS_LN)

    def pd_check(self, n):
        a = self.a
        a("s_mov_b32 s69, 0")
        lp, lok = self.lab("pdpoll"), self.lab("pdok")
        a("s_waitcnt vmcnt(%d)" % n)
        a.label(lp)
        a("v_cmp_ne_u32 vcc, s%d, v247" % S_TAG)
        a("s_cbranch_vccz %s" % lok)
        a("s_add_u32 s69, s69, 1")
        a("s_cmp_gt_u32 s69, %d" % SPIN)
        a("s_cbranch_scc1 %s" % lok)
        a("s_sleep 4")
        a("global_load_dword v247, v233, %s sc1" % sp(P_FL))
        a("s_waitcnt vmcnt(0)")
        a("s_branch %s" % lp)
        a.label(lok)

    def phase4(self, N2):
        a = self.a
        a("s_mov_b32 s69, 0")
        lp, lok, lf = self.lab("hpoll"), self.lab("hok"), self.lab("hfirst")
        for j in range(3):
            a("global_load_dwordx4 %s, v%d, %s sc1" % (v4(16 + 4 * j), 170 + j, sp(P_YT)))
        a("s_waitcnt vmcnt(3)")
        for t in self.wl_tr(8, N2):
            a(t)
        a("s_branch %s" % lf)
        a.label(lp)
        for j in range(3):
            a("global_load_dwordx4 %s, v%d, %s sc1" % (v4(16 + 4 * j), 170 + j, sp(P_YT)))
        a.label(lf)
        a("s_waitcnt vmcnt(0)")
        a("v_max3_u32 v5, v16, v17, v18")
        a("v_max3_u32 v6, v19, v20, v21")
        a("v_max3_u32 v7, v22, v23, v24")
        a("v_max3_u32 v8, v25, v26, v27")
        a("v_max3_u32 v5, v5, v6, v7")
        a("v_max_u32 v5, v5, v8")
        a("v_cmp_eq_u32 vcc, -1, v5")
        a("s_cbranch_vccz %s" % lok)
        self.spin_tail(lp, lok, 4)
        a.label(lok)
        self.stamp("hpoll")
        mark4 = len(a.ins)
        def unp(src):
            for n in range(12):
                a("v_lshlrev_b32 v%d, 16, v%d" % (32 + 2 * n, src + n))
                a("v_and_b32 v%d, 0xffff0000, v%d" % (33 + 2 * n, src + n))
        unp(16)
        for n in range(12):
            a("v_pk_add_f32 %s, %s, %s" % (vp(32 + 2 * n), vp(32 + 2 * n), vp(124 + 2 * n)))
        for n in range(12):
            a("v_cvt_pk_bf16_f32 v%d, v%d, v%d" % (16 + n, 32 + 2 * n, 33 + 2 * n))
        unp(16)
        for n in range(12):
            a("v_pk_add_f32 %s, %s, %s" % (vp(32 + 2 * n), vp(32 + 2 * n), vp(100 + 2 * n)))
        for n in range(12):
            a("v_cvt_pk_bf16_f32 v%d, v%d, v%d" % (150 + n, 32 + 2 * n, 33 + 2 * n))
        self.weave(mark4, self.wl_dma_groups(3456, 8 - N2, 32768, slot0=4096 * N2))
        lz = self.lab("hz")
        a("s_cmp_lt_u32 s%d, 2" % S_WAVE)
        a("s_cbranch_scc1 %s" % lz)
        for r in range(4):
            a("v_mov_b32 v%d, 0" % (158 + r))
        a.label(lz)
        unp(150)
        for p in range(4):
            a("v_pk_add_f32 %s, %s, %s" % (vp(64 + 2 * p), vp(32 + 2 * p), vp(40 + 2 * p)))
            a("v_pk_mul_f32 %s, %s, %s" % (vp(72 + 2 * p), vp(32 + 2 * p), vp(32 + 2 * p)))
        for p in range(4):
            a("v_pk_add_f32 %s, %s, %s" % (vp(64 + 2 * p), vp(64 + 2 * p), vp(48 + 2 * p)))
            a("v_pk_fma_f32 %s, %s, %s, %s" % (vp(72 + 2 * p), vp(40 + 2 * p), vp(40 + 2 * p), vp(72 + 2 * p)))
        for p in range(4):
            a("v_pk_fma_f32 %s, %s, %s, %s" % (vp(72 + 2 * p), vp(48 + 2 * p), vp(48 + 2 * p), vp(72 + 2 * p)))
        for k in range(8):
            a("v_permlane32_swap_b32 v%d, v%d" % (64 + k, 72 + k))
        for p in range(4):
            a("v_pk_add_f32 %s, %s, %s" % (vp(64 + 2 * p), vp(64 + 2 * p), vp(72 + 2 * p)))
        for k in range(4):
            a("v_permlane16_swap_b32 v%d, v%d" % (64 + k, 68 + k))
        for p in range(2):
            a("v_pk_add_f32 %s, %s, %s" % (vp(64 + 2 * p), vp(64 + 2 * p), vp(68 + 2 * p)))
        for k in range(2):
            a("v_add_f32_dpp v%d, v%d, v%d row_ror:8 row_mask:0xf bank_mask:0x3" % (72 + k, 64 + k, 64 + k))
        for k in range(2):
            a("v_add_f32_dpp v%d, v%d, v%d row_ror:8 row_mask:0xf bank_mask:0xc" % (72 + k, 66 + k, 66 + k))
        a("v_add_f32_dpp v64, v72, v72 row_half_mirror row_mask:0xf bank_mask:0x5")
        a("v_add_f32_dpp v64, v73, v73 row_half_mirror row_mask:0xf bank_mask:0xa")
        a("v_add_f32_dpp v64, v64, v64 quad_perm:[1,0,3,2] row_mask:0xf bank_mask:0xf")
        a("v_add_f32_dpp v64, v64, v64 quad_perm:[2,3,0,1] row_mask:0xf bank_mask:0xf")
        a("ds_write_b32 v179, v64")
        self.pd_check(63)
        for n in range(12):
            a("v_min_u32 v%d, 0xfffffffe, v%d" % (150 + n, 150 + n))
        a("s_waitcnt lgkmcnt(0)")
        a("s_barrier")
        for w in range(4):
            a("ds_read_b32 v%d, v180 offset:%d" % (64 + w, 256 * w))
        a("s_waitcnt lgkmcnt(0)")
        a("v_pk_add_f32 v[64:65], v[64:65], v[66:67]")
        a("v_add_f32 v64, v64, v65")
        a("v_mul_f32 v64, %s, v64" % f32(1.0 / 640))
        a("v_mov_b32 v65, v64")
        a("v_permlane32_swap_b32 v64, v65")
        a("v_fma_f32 v65, -v64, v64, v65")
        a("v_max_f32 v65, 0, v65")
        self.bf16_round(67, 65)
        self.bf16_round(66, 64)
        a("v_add_f32 v67, %s, v67" % f32(1e-5))
        self.bf16_round(67, 67)
        a("v_sqrt_f32 v67, v67")
        a("v_sub_f32 v68, v64, v66")
        self.bf16_round(67, 67)
        a("v_rcp_f32 v67, v67")
        a("v_mul_f32 v69, v65, v67")
        a("v_mul_f32 v68, v68, v67")
        a("v_mul_f32 v69, v69, v67")
        self.bf16_round(69, 69)
        self.bf16_round(68, 68)
        a("v_add_f32 v69, %s, v69" % f32(1e-5))
        self.bf16_round(69, 69)
        a("v_sqrt_f32 v69, v69")
        a("v_fma_f32 v70, v66, v67, v68")
        self.bf16_round(69, 69)
        a("v_rcp_f32 v69, v69")
        a("v_mul_f32 v70, -v70, v69")
        a("v_mul_f32 v71, v67, v69")
        for r in range(8):
            a("v_readlane_b32 s%d, v70, %d" % (54 + r, 4 * r))
        for r in range(8):
            a("v_readlane_b32 s%d, v71, %d" % (84 + r, 4 * r))
        for r in range(8):
            a("v_mov_b32 v%d, s%d" % (72 + r, 54 + r))
        l3 = self.lab("h3")
        for j in range(3):
            if j == 2:
                a("s_cmp_ge_u32 s%d, 2" % S_WAVE)
                a("s_cbranch_scc1 %s" % l3)
            for p in range(4):
                h = 32 + 8 * j + 2 * p
                a("v_pk_fma_f32 %s, %s, %s, %s" % (vp(h), vp(h), sp(84 + 2 * p), vp(72 + 2 * p)))
            for p in range(4):
                h = 32 + 8 * j + 2 * p
                a("v_cvt_pk_bf16_f32 v%d, v%d, v%d" % (16 + 4 * j + p, h, h + 1))
            for p in range(4):
                a("v_min_u32 v%d, 0xfffffffe, v%d" % (16 + 4 * j + p, 16 + 4 * j + p))
            a("global_store_dwordx4 v%d, %s, %s sc1" % (173 + j, v4(16 + 4 * j), sp(P_HP)))
        a("global_store_dwordx4 v178, v[158:161], %s sc1" % sp(P_H2))
        a.label(l3)
        a("global_store_dwordx4 v176, v[150:153], %s sc1" % sp(P_H2))
        a("global_store_dwordx4 v177, v[154:157], %s sc1" % sp(P_H2))
        self.stamp("hpstore")

    NP = 35
    def acc(self, j, mt): return ACC0 + 4 * (mt * 4 + j)
    def preg(self, k): return SLOT0 + 4 * (k % self.NP)

    def frag_load(self, name, seq0, mts, i):
        s, mt = i // len(mts), mts[i % len(mts)]
        base = (84 if name.startswith("g1") else 64) + (0 if s < 8 else 2)
        return "global_load_dwordx4 %s, v%d, %s offset:%d sc1 ; #%s_%d" % (
            v4(self.preg(seq0 + i)), 2 + mt, sp(base), (s % 8) * 1024 - 4096, name, s)

    def frag_check(self, seq0, mts, s):
        r = [self.preg(seq0 + s * len(mts) + m) + k for m in range(len(mts)) for k in range(4)]
        L = ["v_max3_u32 v7, v%d, v%d, v%d" % (r[0], r[1], r[2]), "v_max3_u32 v8, v%d, v%d, v%d" % (r[3], r[4], r[5])]
        rest = r[6:]
        t = 7
        while len(rest) >= 2:
            L.append("v_max3_u32 v%d, v%d, v%d, v%d" % (t, t, rest[0], rest[1]))
            rest = rest[2:]
            t = 15 - t
        L += ["v_max_u32 v7, v7, v8", "v_cmp_eq_u32 vcc, -1, v7"]
        return L

    def gpass(self, name, nsteps, mts, w_is_A, seq0, npre, bgf=None, s_short=None, hook=None):
        a = self.a
        nm = len(mts)
        tot = nsteps * nm
        ldone = self.lab("gdone")
        def branch_slow(s):
            ls, lb = self.lab("gslow"), self.lab("gback")
            a("s_cbranch_vccnz %s" % ls)
            a.label(lb)
            self.slowpaths.append((s, ls, lb, [self.frag_load(name, seq0, mts, s * nm + m).split(';')[0] for m in range(nm)],
                                   self.frag_check(seq0, mts, s)))
        a("@wait %s_0" % name)
        for l in self.frag_check(seq0, mts, 0):
            a(l)
        branch_slow(0)
        self.stamp(name + "f")
        for s in range(nsteps):
            if hook and s in hook:
                hook[s]()
            fill = []
            for g in (bgf(s) if bgf else []):
                fill.append(g)
            ck = []
            if s + 1 < nsteps:
                ck = [["@wait %s_%d" % (name, s + 1)]] + [[x] for x in self.frag_check(seq0, mts, s + 1)]
            items = fill + ck
            nmf = 4 * nm
            per = [len(items) * (k + 1) // nmf - len(items) * k // nmf for k in range(nmf)]
            n = 0
            for m, mt in enumerate(mts):
                for j in range(4):
                    c = v4(self.acc(j, mt))
                    w = a4((s * 4 + j) * 4)
                    f = v4(self.preg(seq0 + s * nm + m))
                    A, B = (w, f) if w_is_A else (f, w)
                    a("v_mfma_f32_16x16x32_bf16 %s, %s, %s, %s" % (c, A, B, "0" if s == 0 else c))
                    if j == 3:
                        a("@mark free%d" % (seq0 + s * nm + m))
                    for _ in range(per[n]):
                        for t in items.pop(0):
                            a(t)
                    n += 1
            if s + 1 < nsteps:
                if s_short is not None and s + 2 == nsteps:
                    a("@mark noins")
                    a("s_cmp_eq_u32 s%d, 1" % s_short)
                    a("s_cbranch_scc1 %s" % ldone)
                branch_slow(s + 1)
        a.label(ldone)
        a("@mark ins")
        self.stamp(name + "m")

    def est(self, ins):
        k = ins.kind
        if k == 'mfma': return 16
        if k in ('label', 'dir'): return 0
        if k == 'trans': return 8
        if k == 'mem': return 30 if 'write_b128' in ins.op else 8
        if ins.op == 's_barrier': return 60
        return 4.5

    def schedule(self, start, ops, per=None, lat=700, ahead=None):
        from asmdsl import Ins
        a = self.a
        per = per or float(os.environ.get("PER", "80"))
        ahead = ahead or float(os.environ.get("AHEAD", "320"))
        seg = a.ins[start:]
        del a.ins[start:]
        seen = set()
        t = 0.0; tm = 0.0
        pf = 0.0
        done = {}
        q = list(ops)
        noins = False
        noex = False
        def emit(op):
            nonlocal pf, t
            for x in op['ins']:
                a(x)
                t += 4.5
            pf = max(pf, t) + per * op.get('kb', 1)
            done[op['tag']] = pf + lat
        for n, ins in enumerate(seg):
            if ins.op == '@mark':
                seen.add(ins.text.split()[1])
            if ins.op == '@wait':
                tag = ins.text.split()[1]
                idx = [k for k, o in enumerate(q) if o['tag'] == tag]
                if idx:
                    for o in q[:idx[-1] + 1]:
                        assert all(m in seen for m in o['after']), (o, tag)
                        emit(o)
                    q = q[idx[-1] + 1:]
                if tag in done:
                    t = max(t, done[tag])
            a.ins.append(ins)
            if ins.kind == 'mfma':
                t = max(t, tm) + 8
                tm = t + 8
            else:
                t += self.est(ins)
            if ins.op.startswith('s_cmp') or ins.op.startswith('s_bitcmp'): continue
            if 'exec' in ins.text and ins.op.startswith('s_mov'):
                noex = '-1' not in ins.text
            if ins.op == '@mark' and ins.text.split()[1] in ('noins', 'ins'):
                noins = ins.text.split()[1] == 'noins'
            if noins or noex or ins.kind == 'branch': continue
            while q and all(m in seen for m in q[0]['after']) and pf - t < ahead:
                emit(q.pop(0))
        assert not q, q[:3]

    def emit_slowpaths(self):
        a = self.a
        for s, ls, lb, loads, chk in self.slowpaths:
            a.label(ls)
            a("s_add_u32 s69, s69, 1")
            a("s_cmp_gt_u32 s69, %d" % SPIN)
            a("s_cbranch_scc1 %s" % lb)
            a("s_sleep 2")
            for l in loads:
                a(l)
            a("s_waitcnt vmcnt(0)")
            for l in chk:
                a(l)
            a("s_cbranch_vccnz %s" % ls)
            a("s_branch %s" % lb)

    def rndp(self, regs):
        a = self.a
        for b in regs:
            a("v_cvt_pk_bf16_f32 v%d, v%d, v%d" % (b + 1, b, b + 1))
        for b in regs:
            a("v_lshlrev_b32 v%d, 16, v%d" % (b, b + 1))
            a("v_and_b32 v%d, 0xffff0000, v%d" % (b + 1, b + 1))

    def epilogue(self, kind, mts, mid=None, bg=None, post=None):
        a = self.a
        bg = list(bg or [])
        a("s_waitcnt lgkmcnt(0)")
        a("s_barrier")
        if post:
            post()
        mk = len(a.ins)
        for j in range(1, 4):
            for m, mt in enumerate(mts):
                a("ds_write_b128 v%d, %s offset:%d" % (241 + j, v4(self.acc(j, mt)), 1024 * m))
        if mid:
            mid()
        else:
            n1 = len(bg) // 4
            if n1:
                self.weave(mk, bg[:n1]); bg = bg[n1:]
        a("s_waitcnt lgkmcnt(0)")
        a("s_barrier")
        for m, mt in enumerate(mts):
            for j in range(1, 4):
                a("ds_read_b128 %s, v245 offset:%d" % (v4(self.acc(j, mt)), 3072 * (j - 1) + 1024 * m))
        mk = len(a.ins)
        P = [self.acc(0, mt) + 2 * h for mt in mts for h in range(2)]
        T = [self.acc(1, mt) + 2 * h for mt in mts for h in range(2)]
        for m, mt in enumerate(mts):
            a("s_waitcnt lgkmcnt(%d)" % (3 * (len(mts) - 1 - m)))
            for h in range(2):
                a("v_pk_add_f32 %s, %s, %s" % (vp(self.acc(0, mt) + 2 * h), vp(self.acc(0, mt) + 2 * h), vp(self.acc(1, mt) + 2 * h)))
                a("v_pk_add_f32 %s, %s, %s" % (vp(self.acc(2, mt) + 2 * h), vp(self.acc(2, mt) + 2 * h), vp(self.acc(3, mt) + 2 * h)))
        if kind == 2:
            for mt in mts:
                a("ds_read_b64 %s, v249 offset:%d" % (vp(self.acc(3, mt)), 32 * mt))
        for mt in mts:
            for h in range(2):
                a("v_pk_add_f32 %s, %s, %s" % (vp(self.acc(0, mt) + 2 * h), vp(self.acc(0, mt) + 2 * h), vp(self.acc(2, mt) + 2 * h)))
        self.rndp(P)
        for n, p in enumerate(P):
            if kind == 1:
                a("v_pk_add_f32 %s, %s, %s" % (vp(p), vp(p), vp(250 + 2 * (n & 1))))
            else:
                a("v_pk_add_f32 %s, %s, %s op_sel_hi:[1,0]" % (vp(p), vp(p), vp(250)))
        self.rndp(P)
        if kind == 1:
            for p, t in zip(P, T):
                a("v_pk_mul_f32 %s, %s, %s" % (vp(t), vp(p), vp(p)))
            for p, t in zip(P, T):
                a("v_pk_fma_f32 %s, %s, %s, %s op_sel_hi:[1,0,0]" % (vp(t), vp(t), vp(12), vp(10)))
            for p, t in zip(P, T):
                a("v_pk_mul_f32 %s, %s, %s" % (vp(t), vp(t), vp(p)))
            for t in T:
                a("v_exp_f32 v%d, v%d" % (t, t))
                a("v_exp_f32 v%d, v%d" % (t + 1, t + 1))
            for t in T:
                a("v_pk_add_f32 %s, %s, 1.0 op_sel_hi:[1,0]" % (vp(t), vp(t)))
            for t in T:
                a("v_rcp_f32 v%d, v%d" % (t, t))
                a("v_rcp_f32 v%d, v%d" % (t + 1, t + 1))
            for p, t in zip(P, T):
                a("v_pk_mul_f32 %s, %s, %s" % (vp(p), vp(p), vp(t)))
        else:
            a("s_waitcnt lgkmcnt(0)")
            for mt in mts:
                for h in range(2):
                    a("v_lshlrev_b32 v%d, 16, v%d" % (self.acc(1, mt) + 2 * h, self.acc(3, mt) + h))
                    a("v_and_b32 v%d, 0xffff0000, v%d" % (self.acc(1, mt) + 2 * h + 1, self.acc(3, mt) + h))
            for p, t in zip(P, T):
                a("v_pk_add_f32 %s, %s, %s" % (vp(p), vp(p), vp(t)))
        prs = [(mts[0], mts[1])] + ([(mts[2], mts[2])] if len(mts) == 3 else [])
        outs = []
        for ta, tb in prs:
            o = self.acc(2, ta)
            outs.append(o)
            for h in range(2):
                a("v_cvt_pk_bf16_f32 v%d, v%d, v%d" % (o + h, self.acc(0, ta) + 2 * h, self.acc(0, ta) + 2 * h + 1))
                a("v_cvt_pk_bf16_f32 v%d, v%d, v%d" % (o + 2 + h, self.acc(0, tb) + 2 * h, self.acc(0, tb) + 2 * h + 1))
        if kind == 1:
            for o in outs:
                for k in range(4):
                    a("v_min_u32 v%d, 0xfffffffe, v%d" % (o + k, o + k))
        if bg:
            self.weave(mk, bg)
        for o in outs:
            for h in range(2):
                a("v_permlane16_swap_b32 v%d, v%d" % (o + h, o + 2 + h))
        for n, ((ta, tb), o) in enumerate(zip(prs, outs)):
            ar = 246 + (0 if ta == 0 else (1 if ta == 2 else 2))
            if kind == 1:
                a("global_store_dwordx4 v%d, %s, %s sc1" % (ar, v4(o), sp(P_G)))
            else:
                a("global_store_dwordx4 v%d, %s, %s %s" % (ar, v4(o), sp(P_OUT), os.environ.get("OST", "")))

    def g_common_setup(self):
        a = self.a
        for j in range(1, 4):
            a("s_add_u32 s54, s%d, %d" % (S_WAVE, j))
            a("s_and_b32 s54, s54, 3")
            a("s_lshl_b32 s54, s54, 15")
            a("s_add_u32 s54, s54, %d" % (20480 + 3072 * (j - 1)))
            a("v_lshl_add_u32 v%d, v1, 4, s54" % (241 + j))
        a("s_lshl_b32 s54, s%d, 15" % S_WAVE)
        a("s_add_u32 s54, s54, 20480")
        a("v_lshl_add_u32 v245, v1, 4, s54")

    def g1_setup(self):
        a = self.a
        a("s_mul_i32 s54, s%d, %d" % (S_DB, 5 * 65536))
        a("v_lshl_add_u32 v2, v1, 4, s54")
        for mt in range(1, 5):
            a("v_add_u32 v%d, %d, v2" % (2 + mt, 65536 * mt))
        a("s_lshl_b32 s54, s%d, 14" % S_WAVE)
        a("s_add_u32 s54, s54, 4096")
        a("s_add_u32 s84, s%d, s54" % P_HP)
        a("s_addc_u32 s85, s%d, 0" % (P_HP + 1))
        a("s_add_u32 s86, s84, 8192")
        a("s_addc_u32 s87, s85, 0")
        a("s_mul_i32 s54, s%d, 270" % S_DB)
        a("s_lshl_b32 s55, s%d, 1" % S_FB)
        a("s_add_u32 s54, s54, s55")
        a("s_lshl_b32 s54, s54, 10")
        a("s_lshl_b32 s55, s%d, 9" % S_WAVE)
        a("s_add_u32 s54, s54, s55")
        a("v_and_b32 v7, 15, v1")
        a("v_lshrrev_b32 v8, 5, v1")
        a("v_lshl_add_u32 v7, v8, 4, v7")
        a("v_lshl_add_u32 v7, v7, 4, s54")
        a("v_add_u32 v247, %d, v7" % (2 * 54 * 1024))
        a("v_bfe_u32 v8, v1, 4, 1")
        a("v_mul_u32_u24 v8, %d, v8" % (54 * 1024))
        a("v_add_u32 v246, v7, v8")
        a("v_add_u32 v248, %d, v246" % (3 * 54 * 1024))
        for r in range(4):
            a("v_mov_b32 v%d, -1" % (10 + r))
        for r in (246, 247, 248):
            a("global_store_dwordx4 v%d, v[10:13], %s sc1 ; #gpoi" % (r, sp(P_G)))
        a("s_lshl_b32 s54, s%d, 7" % S_FB)
        a("s_lshl_b32 s55, s%d, 5" % S_WAVE)
        a("s_add_u32 s54, s54, s55")
        a("v_lshrrev_b32 v7, 4, v1")
        a("v_lshl_add_u32 v7, v7, 3, s54")
        a("global_load_dwordx2 v[252:253], v7, %s" % sp(P_B1))
        a("s_mul_i32 s54, s%d, 27" % S_DB)
        a("s_add_u32 s54, s54, s%d" % S_FB)
        a("s_lshl_b32 s54, s54, 7")
        a("s_add_u32 s54, s54, 0x18000")
        a("v_mov_b32 v249, s54")
        a("v_mov_b32 v9, s%d" % S_TAG)
        a("s_mov_b32 s69, 0")

    def g2_flag_addr(self):
        G = []
        G.append(["v_bfe_u32 v9, v1, 2, 3", "s_lshl_b32 s54, s%d, 3" % S_SB, "v_add_u32 v9, s54, v9", "v_lshlrev_b32 v9, 7, v9"])
        G.append(["v_and_b32 v13, 3, v1", "v_lshl_add_u32 v9, v13, 2, v9", "v_add_u32 v9, 0x10000, v9"])
        G.append(["s_mul_i32 s54, s%d, %d" % (S_DB2, 27 * 128), "s_add_u32 s54, s54, 0x18000", "v_and_b32 v11, 31, v1",
                  "v_min_u32 v11, 26, v11", "v_lshl_add_u32 v11, v11, 7, s54"])
        G.append(["v_cmp_lt_u32 s[62:63], 31, v1", "s_nop 1", "v_cndmask_b32 v9, v9, v11, s[62:63]"])
        return G

    def g2_flag_loads(self):
        return ["global_load_dword v249, v9, %s sc1 ; #g2fl" % sp(P_FL)]

    def g2_check(self, first_wait):
        a = self.a
        lp, lok = self.lab("h2poll"), self.lab("h2ok")
        a(first_wait)
        a("@mark noins")
        a.label(lp)
        a("v_cmp_ne_u32 vcc, s%d, v249" % S_TAG)
        a("s_cbranch_vccz %s" % lok)
        a("s_add_u32 s69, s69, 1")
        a("s_cmp_gt_u32 s69, %d" % SPIN)
        a("s_cbranch_scc1 %s" % lok)
        a("s_sleep 8")
        for t in self.g2_flag_loads():
            a(t.split(';')[0] + " ; #cond")
        a("s_waitcnt vmcnt(0)")
        a("s_branch %s" % lp)
        a.label(lok)
        a("@mark ins")
        a("@mark g2a_ok")

    def g2_addr(self, mts):
        G = [["s_mul_i32 s54, s%d, %d" % (S_DB2, 5 * 54 * 1024), "v_lshl_add_u32 v11, v1, 4, s54"]]
        G.append(["v_add_u32 v%d, %d, v11" % (2 + mt, 54 * 1024 * mt) for mt in mts])
        if 0 in mts:
            G.append(["s_lshl_b32 s54, s%d, 10" % S_K2, "s_add_u32 s54, s54, 4096", "@mark noins", "s_add_u32 s64, s%d, s54" % P_G,
                      "s_addc_u32 s65, s%d, 0" % (P_G + 1), "s_add_u32 s66, s64, 8192", "s_addc_u32 s67, s65, 0", "@mark ins"])
        return G

    def g2_late_setup(self):
        G = []
        G.append(["s_mul_i32 s60, s%d, %d" % (S_SB, 8 * 10240), "s_mul_i32 s61, s%d, 1280" % S_DB2, "s_add_u32 s60, s60, s61"])
        for j in range(3):
            g = ["v_add_u32 v9, %d, v0" % (256 * j)]
            if j == 2:
                g.append("v_min_u32 v9, 639, v9")
            g += ["v_mul_u32_u24 v11, 820, v9", "v_lshrrev_b32 v11, 16, v11"]
            G.append(g)
            G.append(["v_mul_u32_u24 v13, 80, v11", "v_sub_u32 v13, v9, v13", "v_mul_u32_u24 v9, 10240, v11"])
            G.append(["v_lshl_add_u32 v9, v13, 4, v9", "v_add_u32 v9, s60, v9",
                      "global_load_dwordx4 %s, v9, %s sc1 ; #htile" % (a4(224 + 4 * j), sp(P_H2))])
            G.append(["v_mul_u32_u24 v9, %d, v11" % (8 * 176), "v_lshl_add_u32 v9, v13, 1, v9", "v_add_u32 v%d, %d, v9" % (251 + j, LDS_H)])
        G.append(["s_lshl_b32 s60, s%d, 4" % S_WAVE, "v_and_b32 v9, 15, v1", "v_add_u32 v9, s60, v9", "s_lshl_b32 s61, s%d, 7" % S_SB])
        G.append(["v_lshl_add_u32 v11, v9, 1, s61", "global_load_ushort v250, v11, %s ; #b2" % sp(P_B2), "v_lshrrev_b32 v13, 4, v1"])
        G.append(["v_mul_u32_u24 v11, 176, v9", "v_lshl_add_u32 v11, v13, 3, v11", "v_add_u32 v249, %d, v11" % LDS_H])
        G.append(["s_mul_i32 s60, s%d, %d" % (S_SB, 64 * 1280), "s_mul_i32 s61, s%d, 160" % S_DB2, "s_add_u32 s60, s60, s61",
                  "v_mul_u32_u24 v11, 1280, v9"])
        G.append(["v_lshrrev_b32 v9, 1, v13", "v_lshl_add_u32 v11, v9, 4, v11", "v_add_u32 v11, s60, v11", "v_add_u32 v247, 64, v11"])
        G.append(["v_and_b32 v13, 1, v13", "v_lshl_add_u32 v246, v13, 5, v11", "v_add_u32 v248, 96, v246"])
        W = [["@wait htile"]]
        for j in range(3):
            for p in range(4):
                W.append(["ds_write_b16 v%d, a%d offset:%d" % (251 + j, 224 + 4 * j + p, (2 * p) * 176),
                          "ds_write_b16_d16_hi v%d, a%d offset:%d" % (251 + j, 224 + 4 * j + p, (2 * p + 1) * 176)])
        W.append(["@wait b2", "v_lshlrev_b32 v250, 16, v250"])
        return G, W

    def back_half(self):
        a = self.a
        one = lambda L: [[x] for x in L]
        N2 = 5
        MA, MB = [0, 1, 2], [3, 4]
        a.label("L_win2")
        for t in self.wl_tr(4, 4):
            a(t)
        a("s_lshl_b32 s54, s%d, 14" % S_WAVE)
        a("s_waitcnt lgkmcnt(0)")
        for nt in range(4):
            a("v_add_u32 v%d, s54, v%d" % (WT + nt, WT + nt))
        a("s_barrier")
        self.wl_dma_loop(3456, N2, 32768)
        a("v_add_u32 v233, 0x18000, v233")
        a("global_load_dword v247, v233, %s sc1" % sp(P_FL))
        self.phase4_pre()
        self.stamp("win2")
        self.phase4(N2)
        a("s_lshl_b32 s90, s%d, 5" % S_K2)
        a("s_lshl_b32 s91, s%d, 7" % S_SB)
        self.wl_setup(P_W2, 4096, 90, 91, None)
        a("s_waitcnt lgkmcnt(0)")
        self.wl_dma_loop(4096, 5, 32768)
        self.flag_store(2, wait="vmcnt(20)")
        self.g_common_setup()
        self.stamp("win3")
        lg = self.lab("nog1")
        a("s_cmp_eq_u32 s%d, 0" % S_G1)
        a("s_cbranch_scc1 %s" % lg)
        self.g1_setup()
        sched0 = len(a.ins)
        qA, qB, qC, qD = 0, 48, 80, 122
        def fr(name, q, mts, n, after=()):
            return [dict(ins=[self.frag_load(name, q, mts, i)], tag="%s_%d" % (name, i // len(mts)),
                         after=list(after) + (["free%d" % (q + i - self.NP)] if q + i >= self.NP else [])) for i in range(n)]
        def dmaops(groups, tag, afterf):
            return [dict(ins=g, tag="%s%d" % (tag, n // 2) if n & 1 else "x", kb=2, after=afterf(n // 2)) for n, g in enumerate(groups)]
        trw = one(self.wl_tr(13, 3, slot0=4096 * 5))
        def bgA(s):
            if s < 3: return trw[8 * s:8 * s + 8]
            if s == 7: return [["v_lshlrev_b32 v250, 16, v252", "v_and_b32 v251, 0xffff0000, v252"],
                               ["v_lshlrev_b32 v252, 16, v253", "v_and_b32 v253, 0xffff0000, v253"],
                               ["v_mov_b32 v10, %s" % f32(-2.0 * 0.7978845608028654 * LOG2E),
                                "v_mov_b32 v12, %s" % f32(-2.0 * 0.7978845608028654 * LOG2E * 0.044715)]]
            if s == 12: return [["s_waitcnt lgkmcnt(0)"]]
            return []
        self.gpass("g1a", 16, MA, True, qA, 0, bgA)
        def pd2():
            l = self.lab("pd2")
            a("@mark noins")
            a("s_cmp_lg_u32 s%d, 0" % S_WAVE)
            a("s_cbranch_scc1 %s" % l)
            a("s_mov_b64 exec, 1")
            a("global_store_dword v249, v9, %s sc1 ; #cond" % sp(P_FL))
            a("s_mov_b64 exec, -1")
            a("@mark noins")
            a.label(l)
            a("@mark ins")
        self.epilogue(1, MA, post=pd2)
        self.stamp("g1ae")
        tr0 = self.wl_tr(0, 5)
        tr1 = self.wl_tr(5, 5)
        fa = self.g2_flag_addr()
        FS = int(os.environ.get("FS", "8"))
        def bgB(s):
            L = []
            if 3 <= s <= 7:
                L += [["s_waitcnt lgkmcnt(8)" if s <= 5 else "s_waitcnt lgkmcnt(0)", "@mark s0_%d" % (s - 3)]]
            if 1 <= s <= 5:
                L += one(tr0[8 * (s - 1):8 * s])
            if s == 0:
                L += fa + self.g2_addr(MA)
            if s == FS - 3:
                L += one(self.g2_flag_loads())
            if s >= 11:
                L += [["@wait w2b%d" % (s - 11)]] + one(tr1[8 * (s - 11):8 * (s - 10)])
            return L
        self.gpass("g1b", 16, MB, True, qB, 32, bgB, hook={FS: lambda: self.g2_check("@wait g2fl")})
        def midB():
            for g in self.g2_addr(MB):
                for t in g:
                    a(t)
            a("@mark g2b_ok")
        self.epilogue(1, MB, mid=midB, post=lambda: a("@mark s1"))
        self.stamp("g1be")
        a("@mark preg2a")
        a.label("L_g2a")
        dm2 = self.wl_dma_groups(4096, 4, 32768, tag="w2c")
        dm2[5] = dm2[5][:2] + ["s_lshl_b32 s83, s%d, 17" % S_SHORT, "s_sub_u32 s83, %d, s83" % (32 * 4096),
                               "s_add_u32 s80, s80, s83", "s_addc_u32 s81, s81, 0"]
        tr2 = self.wl_tr(10, 4)
        LG, LW = self.g2_late_setup()
        def bgC(s):
            L = []
            if s < 5:
                L += LG[4 * s:4 * s + 4]
            if 5 <= s <= 8:
                L += [["@wait w2c%d" % (s - 5)]] + one(tr2[8 * (s - 5):8 * (s - 4)])
            if s == 9:
                L += [["s_waitcnt lgkmcnt(0)"]] + LW[:5]
            if s == 10:
                L += LW[5:10]
            if s == 11:
                L += LW[10:]
            return L
        self.gpass("g2a", 14, MA, False, qC, 33, bgC, s_short=S_SHORT)
        a("@mark ins")
        self.epilogue(2, MA, post=lambda: a("@mark ga_pub"))
        self.stamp("g2ae")
        self.gpass("g2b", 14, MB, False, qD, 28, None, s_short=S_SHORT)
        self.epilogue(2, MB)
        self.stamp("g2be")
        A1 = fr("g1a", qA, MA, 48)
        B1 = fr("g1b", qB, MB, 32)
        A2 = fr("g2a", qC, MA, 42, after=["g2a_ok"])
        B2 = fr("g2b", qD, MB, 28, after=["g2b_ok", os.environ.get("B2M", "free%d" % (qC + 20))])
        D1 = dmaops(self.wl_dma_groups(4096, 5, 32768, tag="w2b"), "w2b", lambda k: ["s0_%d" % k])
        D2 = dmaops(dm2, "w2c", lambda k: ["s1"])
        ops = A1 + B1 + D1 + A2[:15] + D2 + A2[15:] + B2
        self.schedule(sched0, ops)
        lab = [n for n, i in enumerate(a.ins) if i.islabel and i.op == "L_g2a"][0]
        pre = [i.text.split(';')[0] for i in a.ins[sched0:lab] if '#g2a_' in i.text or '#g2b_' in i.text]
        st = [n for n, i in enumerate(a.ins[:lab]) if i.text == dm2[0][0] and n > sched0]
        texts = [i.text for i in a.ins[sched0:lab]]
        npre_d = 0
        for n, g in enumerate(dm2):
            key = [x for x in g if 'load_lds' in x][-1]
            if n & 1 and key in texts: npre_d = n + 1
        cnt_lds = sum(1 for x in texts if 'load_lds' in x) - 20
        npre_d = cnt_lds // 2
        self.pre_inactive = (pre, dm2[:npre_d])
        self.inactive = (lg, qC, MA)

    def pf_w2b(self, parts=(160, 320)):
        a = self.a
        a("s_sub_u32 s66, s%d, 27" % S_IDX)
        a("s_add_u32 s66, s66, s%d" % S_K2)
        a("s_lshl_b32 s66, s66, 5")
        a("v_lshrrev_b32 v10, 2, v1")
        a("v_add_u32 v10, s66, v10")
        a("v_and_b32 v12, 3, v1")
        a("s_lshl_b32 s67, s%d, 9" % S_XCD)
        a("v_lshl_add_u32 v12, v12, 7, s67")
        def pfb(off):
            for i in range(2):
                a("v_add_u32 v11, %d, v10" % (off + 16 * i))
                a("v_min_u32 v11, 1727, v11")
                a("v_lshl_add_u32 v11, v11, 12, v12")
                a("global_load_dword v254, v11, %s" % sp(P_W2))
        for o in parts:
            pfb(o)

    def inactive_path(self):
        a = self.a
        lg, qC, MA = self.inactive
        a.label(lg)
        if 'j' in BGX:
            self.pf_w2b((320,))
        elif 'h' not in BGX:
            self.pf_w2b()
        a("s_waitcnt vmcnt(%d)" % (0 if 'h' in BGX else (2 if 'j' in BGX else 4)))
        for t in self.wl_tr(0, 5):
            a(t)
        a("s_waitcnt lgkmcnt(0)")
        self.wl_dma_loop(4096, 5, 32768)
        for g in self.g2_flag_addr():
            for t in g:
                a(t)
        a("s_waitcnt vmcnt(0)")
        for t in self.wl_tr(5, 5):
            a(t)
        for t in self.g2_flag_loads():
            a(t.split(';')[0])
        a("s_mov_b32 s69, 0")
        self.g2_check("s_waitcnt vmcnt(0) lgkmcnt(0)")
        for g in self.g2_addr([0, 1, 2, 3, 4]):
            for t in g:
                a(t)
        for g in self.pre_inactive[1]:
            for t in g:
                a(t.split(';')[0])
        a("s_sleep %s" % os.environ.get("SLI", "60"))
        for t in self.pre_inactive[0]:
            a(t)
        a("s_waitcnt vmcnt(0)")
        a("s_branch L_g2a")

    def finish(self):
        a = self.a
        if self.timing:
            a("s_memrealtime s[98:99]")
            a("s_waitcnt lgkmcnt(0)")
            a("v_writelane_b32 v255, s98, 63")
            a("s_lshl_b32 s54, s2, 2")
            a("s_add_u32 s54, s54, s%d" % S_WAVE)
            a("s_lshl_b32 s54, s54, 8")
            a("s_add_u32 s54, s54, 0x%x" % WS_TIME)
            a("v_lshl_add_u32 v2, v1, 2, s54")
            a("global_store_dword v2, v255, %s" % sp(P_WS))
        l = self.lab("nn")
        a("s_or_b32 s54, s2, s%d" % S_WAVE)
        a("s_cmp_lg_u32 s54, 0")
        a("s_cbranch_scc1 %s" % l)
        a("v_mov_b32 v2, 0")
        a("v_mov_b32 v3, s%d" % S_TAG)
        a("s_mov_b64 exec, 1")
        a("global_store_dword v2, v3, %s" % sp(P_WS))
        a.label(l)
        a.label("L_end")
        a("s_endpgm")

    def build(self):
        self.phase0()
        self.phase1()
        self.phase2()
        self.phase3()
        self.back_half()
        self.finish()
        self.helper()
        self.inactive_path()
        self.a.label("L_codeend")
        self.emit_slowpaths()
        self.a("s_endpgm")
        body = self.a.finalize()
        hdr = open("cdna_kernels/%s.s.ref" % NAME).read().split("; Override launch")[0]
        hdr += "; @launch grid=(256,1,1) block=(256,1,1) lds=%d\n" % LDS_TOTAL
        hdr += '.amdgcn_target "amdgcn-amd-amdhsa--gfx950"\n.text\n.globl %s_kernel\n.p2align 8\n.type %s_kernel,@function\n%s_kernel:\n' % (NAME, NAME, NAME)
        ftr = """.section .rodata,"a"
.p2align 6
.amdhsa_kernel %s_kernel
  .amdhsa_next_free_vgpr 512
  .amdhsa_next_free_sgpr 102
  .amdhsa_accum_offset 256
  .amdhsa_group_segment_fixed_size 0
  .amdhsa_kernarg_size 120
  .amdhsa_user_sgpr_count 2
  .amdhsa_user_sgpr_kernarg_segment_ptr 1
  .amdhsa_system_sgpr_workgroup_id_x 1
.end_amdhsa_kernel
""" % NAME
        return hdr + body + ftr


if __name__ == "__main__":
    import argparse
    ap = argparse.ArgumentParser()
    ap.add_argument("-o", default="k.s")
    ap.add_argument("--timing", action="store_true")
    args = ap.parse_args()
    g = Gen(timing=args.timing)
    open(args.o, "w").write(g.build())
    if args.timing:
        open(args.o + ".names", "w").write(",".join(g.names))
```

```python
import sys, struct, os
from asmdsl import Asm

NAME = "sequential_preLN__ssm_conv_s4d__mixer_token_mlp__prompt"

def f32(x):
    return "0x%08x" % struct.unpack("<I", struct.pack("<f", x))[0]

LOG2E = 1.4426950408889634
INV2PI = 0.15915494309189535

WS_FL = 0x10000
WS_UT = 0x100000
WS_H2 = 0x380000
WS_YT = 0x600000
WS_HP = 0x900000
WS_G = 0xB80000
P2A = 7
P2KB = 19
WS_DBG = 0x1000000
WS_TIME = 0x2000000

ESTR = 528
E1SZ = 21 * ESTR
ECH = E1SZ + 32 * ESTR
LDS_E = 0
CSTR = 4640
CCH = 4 * CSTR
LDS_C = 84224
USTR = 4224
LDS_U = 139904
LDS_XR = LDS_U
XRS = 1344
LDS_SR = 152576
LDS_SC = 152704
LDS_SHP = 65536
LDS_SHF = 81920
OWNS = 24576 + 64
OHS = 12288 + 64
LDS_OWN = LDS_C
LDS_LN = 160000
LDS_MID = 81920
LDS_H = 147456
LDS_TOTAL = 163840

S_WAVE, S_XCD, S_IDX, S_OCT = 3, 4, 5, 6
S_CF, S_PAR, S_TAG = 7, 9, 10
P_UT, P_H2 = 12, 14
P_X, P_LOGA, P_AIM, P_CR, P_CI, P_LDT, P_DSK = 16, 18, 20, 22, 24, 26, 28
P_W1, P_B1, P_W2, P_B2, P_OUT, P_DBG, P_WS = 32, 34, 36, 38, 40, 42, 44
P_YT, P_HP, P_G, P_FL = 46, 48, 50, 52
S_DB, S_FB, S_SB, S_G1 = 76, 77, 78, 79
S_K2, S_SHORT = 92, 93
XG, TG = 200, 212
WD, WT = 234, 238
ACC0, SLOT0, NSLOT = 14, 94, 7
QA, QB = [7, 4, 3, 0], [6, 5, 2, 1]
SPIN = 200000
TLBW = int(os.environ.get('TLBW', '1'))
BGX = os.environ.get('BGX', 'z')

def sp(n): return "s[%d:%d]" % (n, n + 1)
def vp(n): return "v[%d:%d]" % (n, n + 1)
def v4(n): return "v[%d:%d]" % (n, n + 3)
def a4(n): return "a[%d:%d]" % (n, n + 3)
def a2(n): return "a[%d:%d]" % (n, n + 1)


class Gen:
    def __init__(self, debug=0, timing=False):
        self.a = Asm()
        self.debug = debug
        self.timing = timing
        self.nstamp = 0
        self.names = []
        self.uid = 0
        self.slowpaths = []

    def lab(self, base):
        self.uid += 1
        return "L_%s_%d" % (base, self.uid)

    def stamp(self, name=""):
        if not self.timing:
            return
        a = self.a
        a("s_memrealtime s[98:99]" if os.environ.get("RT") else "s_memtime s[98:99]")
        a("s_waitcnt lgkmcnt(0)")
        a("v_writelane_b32 v255, s98, %d" % self.nstamp)
        if self.nstamp >= 30:
            pass
        elif self.nstamp >= len(self.names):
            self.names.append(name)
        else:
            self.names[self.nstamp] += "/" + name
        self.nstamp += 1

    def weave(self, mark, bg, lo=0.0, hi=1.0):
        a = self.a
        seg = a.ins[mark:]
        del a.ins[mark:]
        n = len(seg)
        pos = [int(n * (lo + (hi - lo) * (k + 0.5) / len(bg))) for k in range(len(bg))]
        k = 0
        for i, ins in enumerate(seg):
            while k < len(bg) and pos[k] <= i:
                for t in bg[k]:
                    a(t)
                k += 1
            a.ins.append(ins)
        while k < len(bg):
            for t in bg[k]:
                a(t)
            k += 1

    def cmuls(self, lst):
        a = self.a
        for d, x, y in lst:
            a("v_pk_mul_f32 %s, %s, %s op_sel:[0,0] op_sel_hi:[0,1]" % (vp(d), vp(x), vp(y)))
        for d, x, y in lst:
            a("v_pk_fma_f32 %s, %s, %s, %s op_sel:[1,1,0] op_sel_hi:[1,0,1] neg_lo:[0,1,0]" % (vp(d), vp(x), vp(y), vp(d)))

    def cexps(self, items, tmp):
        a = self.a
        for n, (d, k, ar, ap) in enumerate(items):
            t = tmp + 2 * n
            a("v_mul_f32 v%d, %s, v%d" % (t, f32(float(2 ** k)), ar))
            a("v_mul_f32 v%d, %s, v%d" % (t + 1, f32(float(2 ** k)), ap))
        for n, it in enumerate(items):
            t = tmp + 2 * n
            a("v_exp_f32 v%d, v%d" % (t, t))
            a("v_fract_f32 v%d, v%d" % (t + 1, t + 1))
        for n, it in enumerate(items):
            t = tmp + 2 * n
            a("v_cos_f32 v%d, v%d" % (it[0], t + 1))
            a("v_sin_f32 v%d, v%d" % (it[0] + 1, t + 1))
        for n, it in enumerate(items):
            t = tmp + 2 * n
            a("v_pk_mul_f32 %s, %s, %s op_sel:[0,0] op_sel_hi:[0,1]" % (vp(it[0]), vp(t), vp(it[0])))

    def rowreduce16(self, regs, op="v_add_f32"):
        a = self.a
        for mode in ("quad_perm:[1,0,3,2]", "quad_perm:[2,3,0,1]", "row_half_mirror", "row_mirror"):
            for r in regs:
                a("%s_dpp v%d, v%d, v%d %s row_mask:0xf bank_mask:0xf" % (op, r, r, r, mode))

    def bf16_round(self, d, s):
        a = self.a
        a("v_cvt_pk_bf16_f32 v%d, v%d, v%d" % (d, s, s))
        a("v_and_b32 v%d, 0xffff0000, v%d" % (d, d))

    def spin_tail(self, lp, lok, sleep):
        a = self.a
        a("s_add_u32 s69, s69, 1")
        a("s_cmp_gt_u32 s69, %d" % SPIN)
        a("s_cbranch_scc1 %s" % lok)
        a("s_sleep %d" % sleep)
        a("s_branch %s" % lp)

    def wait_w3(self, n, extra):
        a = self.a
        if 'z' in BGX:
            a("s_waitcnt vmcnt(%d)%s" % (n, extra))
            return
        l = self.lab("ww3")
        a("s_waitcnt vmcnt(%d)%s" % (n + 4, extra))
        a("s_cmp_eq_u32 s%d, 3" % S_WAVE)
        a("s_cbranch_scc1 %s" % l)
        a("s_waitcnt vmcnt(%d)" % n)
        a.label(l)

    def flag_store(self, arr, per_wave=True, wait="vmcnt(0)"):
        a = self.a
        a("s_lshl_b32 s54, s%d, 7" % S_OCT)
        if arr:
            a("s_add_u32 s54, s54, %d" % (arr * 0x8000))
        if per_wave:
            a("s_lshl_b32 s55, s%d, 2" % S_WAVE)
            a("s_add_u32 s54, s54, s55")
        a("v_mov_b32 v2, s54")
        a("v_mov_b32 v3, s%d" % S_TAG)
        if wait:
            a("s_waitcnt %s" % wait)
        a("s_mov_b64 exec, 1")
        a("global_store_dword v2, v3, %s sc1" % sp(P_FL))
        a("s_mov_b64 exec, -1")

    def phase0(self):
        a = self.a
        a("s_cmp_ge_u32 s2, 256")
        a("s_cbranch_scc1 L_end")
        a("s_load_dwordx16 s[16:31], s[0:1], 0")
        a("s_load_dwordx8 s[32:39], s[0:1], 64")
        a("s_load_dwordx4 s[40:43], s[0:1], 96")
        a("s_load_dwordx2 s[44:45], s[0:1], 112")
        a("s_getpc_b64 s[94:95]")
        a.label("L_pc")
        a("v_lshrrev_b32 v2, 6, v0")
        a("v_and_b32 v1, 63, v0")
        a("v_readfirstlane_b32 s%d, v2" % S_WAVE)
        a("s_and_b32 s%d, s2, 7" % S_XCD)
        a("s_lshr_b32 s%d, s2, 3" % S_IDX)
        a("s_lshl_b32 s%d, s%d, 5" % (S_OCT, S_XCD))
        a("s_add_u32 s%d, s%d, s%d" % (S_OCT, S_OCT, S_IDX))
        a("s_lshl_b32 s54, s%d, 4" % S_IDX)
        a("v_add_u32 v3, s54, v0")
        a("v_lshlrev_b32 v3, 7, v3")
        a("v_min_u32 v3, (L_codeend-L_pc-4), v3")
        a("v_cmp_gt_u32 vcc, 16, v0")
        a("s_and_saveexec_b64 s[54:55], vcc")
        lq = self.lab("cpf")
        a("s_cbranch_execz %s" % lq)
        a("global_load_dword v254, v3, s[94:95]")
        a.label(lq)
        a("s_mov_b64 exec, -1")
        a("s_mul_i32 s54, s%d, 80" % S_XCD)
        a("s_min_u32 s55, s%d, 26" % S_IDX)
        a("s_mul_i32 s55, s55, 3")
        a("s_add_u32 s%d, s54, s55" % S_CF)
        a("s_lshl_b32 s54, s%d, 3" % S_OCT)
        a("s_lshl_b32 s55, s%d, 1" % S_WAVE)
        a("s_add_u32 s54, s54, s55")
        a("v_lshrrev_b32 v9, 5, v1")
        a("v_add_u32 v4, s54, v9")
        a("v_mul_u32_u24 v4, 1280, v4")
        a("v_and_b32 v5, 31, v1")
        a("v_lshl_add_u32 v4, v5, 3, v4")
        a("v_add_u32 v9, s55, v9")
        a("v_mul_u32_u24 v8, %d, v9" % XRS)
        a("v_lshl_add_u32 v8, v5, 3, v8")
        a("v_add_u32 v8, %d, v8" % LDS_XR)
        a("s_min_u32 s56, s%d, 2" % S_WAVE)
        a("s_add_u32 s56, s56, s%d" % S_CF)
        a("s_min_u32 s56, s56, 639")
        a("s_lshl_b32 s57, s56, 8")
        a("v_lshl_add_u32 v6, v1, 2, s57")
        a("v_lshlrev_b32 v7, 1, v0")
        a("v_min_u32 v181, 159, v0")
        a("v_lshrrev_b32 v182, 2, v181")
        a("v_mul_u32_u24 v183, 13108, v182")
        a("v_lshrrev_b32 v183, 16, v183")
        a("v_mul_u32_u24 v183, 27, v183")
        a("v_add3_u32 v182, v182, v183, 27")
        a("v_and_b32 v181, 3, v181")
        a("v_lshlrev_b32 v181, 2, v181")
        a("v_lshl_add_u32 v233, v182, 7, v181")
        a("v_add_u32 v233, 0x8000, v233")
        a("s_lshl_b32 s61, s2, 2")
        a("s_add_u32 s61, s61, s%d" % S_WAVE)
        a("s_lshr_b32 s62, s61, 8")
        a("s_and_b32 s61, s61, 255")
        a("s_lshl_b32 s63, s62, 9")
        a("s_add_u32 s63, s63, s61")
        a("s_mul_i32 s63, s63, 3456")
        a("v_min_u32 v231, 26, v1")
        a("v_lshl_add_u32 v231, v231, 7, s63")
        a("s_mul_i32 s63, s62, 448")
        a("s_min_u32 s63, s63, 1312")
        a("s_add_u32 s63, s63, s61")
        a("s_lshl_b32 s96, s63, 12")
        a("s_add_u32 s63, s63, 256")
        a("s_min_u32 s63, s63, 1727")
        a("s_lshl_b32 s97, s63, 12")
        a("v_and_b32 v232, 31, v1")
        a("v_lshlrev_b32 v232, 7, v232")
        if self.timing:
            a("v_mov_b32 v255, 0")
        a("s_waitcnt lgkmcnt(0)")
        self.stamp("start")
        if self.timing:
            a("s_memrealtime s[98:99]")
            a("s_waitcnt lgkmcnt(0)")
            a("v_writelane_b32 v255, s98, 62")
        for k in range(5):
            a("global_load_dwordx2 %s, v4, %s offset:%d nt" % (vp(10 + 2 * k), sp(P_X), 256 * k))
        a("global_load_ushort v228, v7, %s" % sp(P_DSK))
        a("global_load_ushort v229, v7, %s offset:512" % sp(P_DSK))
        a("v_min_u32 v7, 254, v7")
        a("global_load_ushort v230, v7, %s offset:1024" % sp(P_DSK))
        for n, p in enumerate((P_LOGA, P_AIM, P_CR, P_CI)):
            a("global_load_dword v%d, v6, %s nt" % (224 + n, sp(p)))
        a("global_load_dword v254, v231, %s" % sp(P_W1))
        a("v_add_u32 v231, %d, v231" % (256 * 3456))
        if os.environ.get("DIAG"):
            a("s_getreg_b32 s100, hwreg(HW_REG_XCC_ID)")
            a("s_sub_u32 s100, s100, s2")
            a("s_and_b32 s100, s100, 7")
            a("s_lshl_b32 s100, 1, s100")
            a("v_mov_b32 v250, 0")
            a("v_mov_b32 v251, s100")
            a("s_mov_b64 exec, 1")
            a("global_atomic_or v250, v251, %s" % sp(P_DBG))
            a("s_mov_b64 exec, -1")
            a("s_waitcnt vmcnt(0)")
        a("s_load_dword s%d, %s, 0" % (S_TAG, sp(P_WS)))
        a("s_lshl_b32 s57, s56, 1")
        a("s_and_b32 s57, s57, 0xfffffffc")
        a("s_load_dword s59, %s, s57" % sp(P_LDT))
        for p, off in ((P_YT, WS_YT), (P_HP, WS_HP), (P_G, WS_G), (P_FL, WS_FL), (P_UT, WS_UT), (P_H2, WS_H2)):
            a("s_add_u32 s%d, s%d, 0x%x" % (p, P_WS, off))
            a("s_addc_u32 s%d, s%d, 0" % (p + 1, P_WS + 1))
        a("s_and_b32 s54, s%d, 1" % S_XCD)
        a("s_lshl_b32 s54, s54, 2")
        a("s_and_b32 s55, s%d, 3" % S_IDX)
        a("s_add_u32 s%d, s54, s55" % S_DB)
        a("s_lshr_b32 s54, s%d, 1" % S_XCD)
        a("s_lshr_b32 s55, s%d, 2" % S_IDX)
        a("s_mul_i32 s%d, s54, 7" % S_FB)
        a("s_add_u32 s%d, s%d, s55" % (S_FB, S_FB))
        a("s_lshl_b32 s%d, s54, 3" % S_SB)
        a("s_add_u32 s%d, s%d, s55" % (S_SB, S_SB))
        a("s_mov_b32 s%d, 1" % S_G1)
        a("s_cmp_ge_u32 s55, 7")
        a("s_cmov_b32 s%d, 0" % S_G1)
        a("s_cmp_ge_u32 s%d, 27" % S_FB)
        a("s_cmov_b32 s%d, 0" % S_G1)
        a("s_min_u32 s%d, s%d, 26" % (S_FB, S_FB))
        a("s_mul_i32 s%d, s%d, 14" % (S_K2, S_WAVE))
        a("s_lshr_b32 s%d, s%d, 1" % (S_SHORT, S_WAVE))
        a("s_cmp_eq_u32 s%d, 3" % S_WAVE)
        a("s_cmov_b32 s%d, 41" % S_K2)

    def phase1(self):
        a = self.a
        a("v_mov_b32 v24, 0")
        a("v_mov_b32 v25, 0")
        a("v_mov_b32 v26, 0x3f803f80")
        a("v_bfe_u32 v27, v1, 2, 2")
        a("v_mul_u32_u24 v27, %d, v27" % XRS)
        a("v_lshrrev_b32 v28, 4, v0")
        a("v_lshl_add_u32 v27, v28, 5, v27")
        a("v_and_b32 v28, 3, v1")
        a("v_lshl_add_u32 v27, v28, 3, v27")
        a("v_add_u32 v27, %d, v27" % LDS_XR)
        a("v_lshlrev_b32 v29, 2, v9")
        a("v_add_u32 v29, %d, v29" % LDS_SR)
        a("v_mov_b32 v30, %d" % LDS_SR)
        a("s_mul_i32 s58, s%d, 10240" % S_OCT)
        a("v_lshl_add_u32 v2, v0, 4, s58")
        a("v_add_u32 v3, 4096, v2")
        a("v_add_u32 v4, 8192, v2")
        a("s_waitcnt vmcnt(8) lgkmcnt(0)")
        for k in range(5):
            a("ds_write_b64 v8, %s offset:%d" % (vp(10 + 2 * k), 256 * k))
        for k in range(10):
            a("v_dot2_f32_bf16 v24, v%d, v26, v24" % (10 + k))
            a("v_dot2_f32_bf16 v25, v%d, v%d, v25" % (10 + k, 10 + k))
        a("s_mul_i32 s%d, s%d, 1664525" % (S_TAG, S_TAG))
        a("s_add_u32 s%d, s%d, 1013904223" % (S_TAG, S_TAG))
        a("s_nop 1")
        self.rowreduce16([24, 25])
        a("v_mov_b32 v31, v24")
        a("v_mov_b32 v32, v25")
        a("v_permlane16_swap_b32 v24, v31")
        a("v_permlane16_swap_b32 v25, v32")
        a("v_add_f32 v24, v24, v31")
        a("v_add_f32 v25, v25, v32")
        a("v_mul_f32 v24, %s, v24" % f32(1.0 / 640))
        a("v_mul_f32 v25, %s, v25" % f32(1.0 / 640))
        a("v_fma_f32 v25, -v24, v24, v25")
        a("v_max_f32 v25, 0, v25")
        self.bf16_round(25, 25)
        self.bf16_round(24, 24)
        a("v_add_f32 v25, %s, v25" % f32(1e-5))
        self.bf16_round(25, 25)
        a("v_sqrt_f32 v25, v25")
        self.bf16_round(25, 25)
        a("v_rcp_f32 v25, v25")
        a("ds_write_b32 v29, v24")
        a("ds_write_b32 v29, v25 offset:32")
        a("s_waitcnt lgkmcnt(0)")
        a("s_barrier")
        self.stamp("stats")
        for j in range(3):
            for hh in range(2):
                a("ds_read_b64_tr_b16 %s, v27 offset:%d" % (vp(XG + 4 * j + 2 * hh), 512 * j + 4 * XRS * hh))
        for q in range(4):
            a("ds_read_b128 %s, v30 offset:%d" % (v4(32 + 4 * q), 16 * q))
        W = lambda n: 48 + 2 * n
        it = [(j, p) for j in range(3) for p in range(4)]
        def unpack(srcf):
            for n in range(12):
                a("v_lshlrev_b32 v%d, 16, v%d" % (W(n), srcf(n)))
                a("v_and_b32 v%d, 0xffff0000, v%d" % (W(n) + 1, srcf(n)))
        def cvt(dstf, op="v_cvt_pk_bf16_f32"):
            for n in range(12):
                a("%s v%d, v%d, v%d" % (op, dstf(n), W(n), W(n) + 1))
        a("s_waitcnt lgkmcnt(4)")
        unpack(lambda n: XG + n)
        a("s_waitcnt lgkmcnt(0)")
        for n, (j, p) in enumerate(it):
            a("v_pk_add_f32 %s, %s, %s neg_lo:[0,1] neg_hi:[0,1]" % (vp(W(n)), vp(W(n)), vp(32 + 2 * p)))
        cvt(lambda n: 72 + n)
        unpack(lambda n: 72 + n)
        for n, (j, p) in enumerate(it):
            a("v_pk_mul_f32 %s, %s, %s" % (vp(W(n)), vp(W(n)), vp(40 + 2 * p)))
        cvt(lambda n: 72 + n)
        unpack(lambda n: 72 + n)
        cvt(lambda n: 84 + n, "v_cvt_pk_f16_f32")
        a("s_waitcnt vmcnt(1)")
        a("global_store_dwordx4 v2, v[84:87], %s sc1" % sp(P_UT))
        a("global_store_dwordx4 v3, v[88:91], %s sc1" % sp(P_UT))
        l = self.lab("ut3")
        a("s_cmp_ge_u32 s%d, 2" % S_WAVE)
        a("s_cbranch_scc1 %s" % l)
        a("global_store_dwordx4 v4, v[92:95], %s sc1" % sp(P_UT))
        a.label(l)
        for j in range(3):
            a("v_lshlrev_b32 v%d, 16, v%d" % (100 + 2 * j, 228 + j))
        for n, (j, p) in enumerate(it):
            a("v_pk_mul_f32 %s, %s, %s op_sel_hi:[1,0]" % (vp(W(n)), vp(W(n)), vp(100 + 2 * j)))
        cvt(lambda n: TG + n)
        self.stamp("utstore")

    def wl_setup(self, ptr, rs, row0_sgpr, col_sgpr, stage_shift):
        a = self.a
        a("v_lshrrev_b32 v2, 3, v1")
        a("v_and_b32 v3, 7, v1")
        a("v_and_b32 v4, 2, v2")
        a("v_xor_b32 v3, v3, v4")
        a("v_mul_u32_u24 v2, %d, v2" % rs)
        a("v_lshl_add_u32 v%d, v3, 4, v2" % WD)
        a("v_xor_b32 v3, 4, v3")
        a("v_lshl_add_u32 v%d, v3, 4, v2" % (WD + 1))
        a("v_add_u32 v%d, %d, v%d" % (WD + 1, 8 * rs - 1024, WD + 1))
        a("v_add_u32 v%d, %d, v%d" % (WD + 2, 16 * rs - 2048, WD))
        a("v_add_u32 v%d, %d, v%d" % (WD + 3, 16 * rs - 2048, WD + 1))
        a("s_mul_i32 s54, s%d, %d" % (row0_sgpr, rs))
        a("s_add_u32 s54, s54, s%d" % col_sgpr)
        a("s_add_u32 s80, s%d, s54" % ptr)
        a("s_addc_u32 s81, s%d, 0" % (ptr + 1))
        if stage_shift is not None:
            a("v_lshrrev_b32 v2, 4, v1")
            a("v_bfe_u32 v3, v1, 2, 2")
            a("v_lshl_add_u32 v4, v2, 3, v3")
            a("v_lshlrev_b32 v4, 7, v4")
            a("v_and_b32 v5, 3, v1")
            a("v_lshl_add_u32 v4, v5, 3, v4")
            a("s_mul_i32 s54, s%d, %d" % (S_WAVE, stage_shift))
            a("v_add_u32 v4, s54, v4")
            a("v_lshrrev_b32 v3, 1, v3")
            a("v_and_b32 v2, 1, v2")
            a("v_lshl_add_u32 v2, v2, 1, v3")
            for nt in range(4):
                a("s_add_u32 s54, s%d, %d" % (S_WAVE, nt))
                a("s_and_b32 s54, s54, 3")
                a("v_xor_b32 v3, s54, v2")
                a("v_lshl_add_u32 v%d, v3, 5, v4" % (WT + nt))

    def wl_dma_groups(self, rs, nks, stage_shift, slot0=0, tag="wd"):
        G = []
        for s in range(nks):
            g = []
            if s == 0:
                g.append("s_mul_i32 s82, s%d, %d" % (S_WAVE, stage_shift))
                if slot0:
                    g.append("s_add_u32 s82, s82, %d" % (slot0))
            g.append("s_mov_b32 m0, s82")
            g.append("s_add_u32 s82, s82, 4096")
            g.append("global_load_lds_dwordx4 v%d, s[80:81]" % WD)
            g.append("global_load_lds_dwordx4 v%d, s[80:81] offset:1024" % (WD + 1))
            G.append(g)
            G.append(["global_load_lds_dwordx4 v%d, s[80:81] offset:2048" % (WD + 2),
                      "global_load_lds_dwordx4 v%d, s[80:81] offset:3072 ; #%s%d" % (WD + 3, tag, s),
                      "s_add_u32 s80, s80, %d" % (32 * rs), "s_addc_u32 s81, s81, 0"])
        return G

    def wl_dma_loop(self, rs, count, stage_shift, slot0=0):
        a = self.a
        a("s_mul_i32 s82, s%d, %d" % (S_WAVE, stage_shift))
        if slot0:
            a("s_add_u32 s82, s82, %d" % (slot0))
        a("s_mov_b32 s83, %s" % str(count))
        lp = self.lab("dma")
        a.label(lp)
        a("s_mov_b32 m0, s82 ; #loop")
        a("s_add_u32 s82, s82, 4096")
        for k in range(4):
            a("global_load_lds_dwordx4 v%d, s[80:81] offset:%d" % (WD + k, 1024 * k))
        a("s_add_u32 s80, s80, %d" % (32 * rs))
        a("s_addc_u32 s81, s81, 0")
        a("s_sub_u32 s83, s83, 1")
        a("s_cmp_gt_i32 s83, 0")
        a("s_cbranch_scc1 %s" % lp)

    def wl_tr(self, ks0, nks, slot0=0):
        return ["ds_read_b64_tr_b16 %s, v%d offset:%d" % (a2(((ks0 + s) * 4 + nt) * 4 + 2 * hf), WT + nt, slot0 + s * 4096 + hf * 512)
                for s in range(nks) for nt in range(4) for hf in range(2)]

    def phase2(self):
        a = self.a
        lW3 = self.lab("w3")
        lKd = self.lab("kdone")
        st0 = self.nstamp
        a("s_cmp_ge_u32 s%d, 27" % S_IDX)
        a("s_cbranch_scc1 L_helper")
        a("s_cmp_eq_u32 s%d, 3" % S_WAVE)
        a("s_cbranch_scc1 %s" % lW3)
        a("s_and_b32 s57, s56, 1")
        a("s_lshl_b32 s57, s57, 4")
        a("s_lshr_b32 s59, s59, s57")
        a("s_lshl_b32 s59, s59, 16")
        a("v_mov_b32 v242, %s" % f32(LOG2E))
        a("v_mul_f32 v242, s59, v242")
        a("v_exp_f32 v242, v242")
        a("v_and_b32 v243, 0x7fff7fff, v226")
        a("v_and_b32 v244, 0x7fff7fff, v227")
        a("v_pk_max_u16 v243, v243, v244")
        a("v_lshlrev_b32 v244, 16, v243")
        a("v_max_u32 v243, v243, v244")
        self.bf16_round(242, 242)
        a("v_lshlrev_b32 v246, 16, v224")
        a("v_and_b32 v250, 0xffff0000, v224")
        fill = [["v_mul_f32 v246, %s, v246" % f32(LOG2E), "v_mul_f32 v250, %s, v250" % f32(LOG2E)],
                ["v_exp_f32 v246, v246", "v_exp_f32 v250, v250"],
                ["v_lshlrev_b32 v247, 16, v225", "v_and_b32 v251, 0xffff0000, v225"],
                ["v_mul_f32 v247, v247, v242", "v_mul_f32 v251, v251, v242"]]
        for mode, fl in zip(("quad_perm:[1,0,3,2]", "quad_perm:[2,3,0,1]", "row_half_mirror", "row_mirror"), fill):
            a("v_max_u32_dpp v243, v243, v243 %s row_mask:0xf bank_mask:0xf" % mode)
            for t in fl:
                a(t)
        for sw, r, src in (("v_permlane16_swap_b32", 248, 226), ("v_permlane32_swap_b32", 249, 227)):
            a("v_mov_b32 v244, v243")
            a("v_lshlrev_b32 v%d, 16, v%d" % (r, src))
            a("v_and_b32 v%d, 0xffff0000, v%d" % (r + 4, src))
            a("%s v243, v244" % sw)
            a("v_max_u32 v243, v243, v244")
        self.bf16_round(246, 246)
        self.bf16_round(250, 250)
        a("v_mul_f32 v247, %s, v247" % f32(INV2PI))
        a("v_mul_f32 v251, %s, v251" % f32(INV2PI))
        a("v_mul_f32 v246, v246, v242")
        a("v_mul_f32 v250, v250, v242")
        a("v_mul_f32 v246, %s, v246" % f32(-LOG2E))
        a("v_mul_f32 v250, %s, v250" % f32(-LOG2E))
        SA, SB = 10, 100
        E = lambda S, j: S + 2 * j
        T = lambda S, j: S + 34 + 2 * j
        GK = lambda S, k: S + 66 + 2 * {0: 0, 1: 1, 2: 2, 8: 3, 9: 4, 10: 5, 11: 6}[k]
        self.cexps([(E(SA, 1), 3, 246, 247), (E(SB, 1), 3, 250, 251), (GK(SA, 0), 0, 246, 247), (GK(SB, 0), 0, 250, 251),
                    (GK(SA, 8), 8, 246, 247), (GK(SB, 8), 8, 250, 251)], 180)
        a("v_and_b32 v243, 0x7f800000, v243")
        a("v_max_u32 v243, 0x00800000, v243")
        a("v_min_u32 v243, 0x7e800000, v243")
        a("v_sub_u32 v244, 0x7f800000, v243")
        a("v_mul_f32 v245, v243, v242")
        for r in (248, 249, 252, 253):
            a("v_mul_f32 v%d, v%d, v244" % (r, r))
        a("s_lshl_b32 s54, s%d, 2" % S_WAVE)
        a("s_add_u32 s54, s54, %d" % LDS_SC)
        a("v_mov_b32 v5, s54")
        a("ds_write_b32 v5, v245")
        a("s_mul_i32 s60, s%d, %d" % (S_WAVE, ECH))
        a("v_lshl_add_u32 v6, v1, 3, s60")
        self.flag_store(0)
        a("global_load_dword v254, v231, %s" % sp(P_W1))
        self.stamp("flag")
        mark = len(a.ins)
        tmpn = [0]
        def st(off, ra, rb, neg=False):
            t = 188 + 2 * (tmpn[0] % 6)
            tmpn[0] += 1
            ng = "-" if neg else ""
            return ["v_cvt_pk_f16_f32 v%d, v%d, %sv%d" % (t, ra, ng, ra + 1),
                    "v_cvt_pk_f16_f32 v%d, v%d, %sv%d" % (t + 1, rb, ng, rb + 1),
                    "ds_write_b64 v6, %s offset:%d" % (vp(t), off)]
        sq = lambda d, x: (d, x, x)
        SS = (SA, SB)
        R = lambda S, r: ((248 if S == SA else 252) if r == 0 else S + 2 * r)
        a("v_mov_b32 v196, 0x00003c00")
        a("v_mov_b32 v197, 0x00003c00")
        a("ds_write_b64 v6, v[196:197] offset:%d" % (LDS_E + E1SZ))
        self.cmuls([sq(E(S, 2), E(S, 1)) for S in SS] + [sq(GK(S, 1), GK(S, 0)) for S in SS] + [sq(GK(S, 9), GK(S, 8)) for S in SS])
        self.cmuls([sq(E(S, 4), E(S, 2)) for S in SS] + [(E(S, 3), E(S, 1), E(S, 2)) for S in SS] +
                   [sq(GK(S, 2), GK(S, 1)) for S in SS] + [sq(GK(S, 10), GK(S, 9)) for S in SS])
        m2 = len(a.ins)
        self.cmuls([sq(E(S, 8), E(S, 4)) for S in SS] + [(E(S, 4 + j), E(S, j), E(S, 4)) for j in (1, 2, 3) for S in SS] +
                   [sq(GK(S, 11), GK(S, 10)) for S in SS])
        self.weave(m2, [st(LDS_E + E1SZ + j * ESTR, E(SA, j), E(SB, j)) for j in (1, 2, 3, 4)] + [st(LDS_E, R(SA, 0), R(SB, 0), True)])
        m2 = len(a.ins)
        self.cmuls([sq(E(S, 16), E(S, 8)) for S in SS] + [(E(S, 8 + j), E(S, j), E(S, 8)) for j in range(1, 8) for S in SS])
        self.weave(m2, [st(LDS_E + E1SZ + j * ESTR, E(SA, j), E(SB, j)) for j in (5, 6, 7, 8)])
        m2 = len(a.ins)
        self.cmuls([(T(S, j), E(S, j), E(S, 16)) for j in range(1, 16) for S in SS])
        self.weave(m2, [st(LDS_E + E1SZ + j * ESTR, E(SA, j), E(SB, j)) for j in range(9, 17)])
        R = lambda S, r: ((248 if S == SA else 252) if r == 0 else (S + 2 * r if r <= 16 else S + 80 + 2 * (r - 17)))
        l1 = [(1, 0, 0), (2, 0, 1), (4, 0, 2), (8, 0, 8), (12, 0, 9), (16, 0, 10), (20, 0, 11)]
        l2 = [(3, 1, 1), (5, 1, 2), (6, 2, 2), (9, 2, 8), (10, 4, 8), (13, 4, 9), (14, 8, 9), (17, 8, 10), (18, 12, 10)]
        l3 = [(7, 3, 2), (11, 6, 8), (15, 10, 9), (19, 14, 10)]
        tst = [st(LDS_E + E1SZ + (16 + j) * ESTR, T(SA, j), T(SB, j)) for j in range(1, 16)]
        m2 = len(a.ins)
        self.cmuls([(R(S, d), R(S, x), GK(S, k)) for d, x, k in l1 for S in SS])
        self.weave(m2, tst[:7])
        m2 = len(a.ins)
        self.cmuls([(R(S, d), R(S, x), GK(S, k)) for d, x, k in l2 for S in SS])
        self.weave(m2, tst[7:])
        m2 = len(a.ins)
        self.cmuls([(R(S, d), R(S, x), GK(S, k)) for d, x, k in l3 for S in SS])
        self.weave(m2, [st(LDS_E + d * ESTR, R(SA, d), R(SB, d), True) for d, x, k in l1])
        for d, x, k in l2 + l3:
            for t in st(LDS_E + d * ESTR, R(SA, d), R(SB, d), True):
                a(t)
        self.stamp("Edone")
        a("v_and_b32 v2, 31, v1")
        a("v_lshrrev_b32 v3, 5, v1")
        a("v_mul_u32_u24 v4, %d, v2" % ESTR)
        a("v_lshl_add_u32 v4, v3, 4, v4")
        a("v_add_u32 v4, s60, v4")
        for ks in range(16):
            a("ds_read_b128 %s, v4 offset:%d" % (v4(32 + 8 * ks), LDS_E + ks * 32))
            a("ds_read_b128 %s, v4 offset:%d" % (v4(36 + 8 * ks), LDS_E + E1SZ + ks * 32))
            if ks >= 6:
                k = ks - 6
                a("s_waitcnt lgkmcnt(12)")
                a("v_mfma_f32_32x32x16_f16 v[8:23], %s, %s, %s" % (v4(32 + 8 * k), v4(36 + 8 * k), "0" if k == 0 else "v[8:23]"))
        a("s_mul_i32 s55, s%d, %d" % (S_WAVE, CCH))
        a("s_add_u32 s55, s55, %d" % (LDS_C + 3 * CSTR))
        a("v_lshlrev_b32 v5, 4, v2")
        a("v_sub_u32 v5, s55, v5")
        a("v_lshlrev_b32 v6, 3, v3")
        a("v_sub_u32 v6, v5, v6")
        a("v_lshl_add_u32 v7, v1, 4, s55")
        for r in range(4):
            a("v_mov_b32 v%d, 0" % (164 + r))
        for k in range(10, 16):
            a("s_waitcnt lgkmcnt(%d)" % (2 * (15 - k)))
            a("v_mfma_f32_32x32x16_f16 v[8:23], %s, %s, v[8:23]" % (v4(32 + 8 * k), v4(36 + 8 * k)))
        a("v_cmp_gt_u32 vcc, 34, v1")
        a("s_and_saveexec_b64 s[62:63], vcc")
        a("ds_write_b128 v7, v[164:167] offset:4096")
        a("s_mov_b64 exec, -1")
        a("v_min_u32 v168, 23, v1")
        a("v_lshl_add_u32 v168, v168, 4, s55")
        a("v_add_u32 v168, 4096, v168")
        a("v_subrev_u32 v169, %d, v7" % (3 * CSTR))
        a("v_subrev_u32 v170, %d, v168" % (3 * CSTR))
        for i in range(4):
            a("v_cvt_pk_f16_f32 v%d, v%d, v%d" % (24 + 2 * i, 16 + i, 16 + i))
            a("v_cvt_pk_f16_f32 v%d, v%d, v%d" % (25 + 2 * i, 16 + i, 16 + i))
        for d, x, y in ((32, 13, 13), (34, 13, 12), (35, 12, 12), (36, 15, 15), (38, 15, 14), (39, 14, 14), (40, 14, 13),
                        (41, 12, 12), (42, 11, 10), (43, 9, 8)):
            a("v_cvt_pk_f16_f32 v%d, v%d, v%d" % (d, x, y))
        a("s_mov_b32 exec_hi, 0")
        for i in range(4):
            P = 1020 - 256 * i
            a("ds_write_b64 v5, %s offset:%d" % (vp(24 + 2 * i), 2 * P))
            a("ds_write_b64 v5, %s offset:%d" % (vp(24 + 2 * i), 2 * P + 8))
        a("s_mov_b32 exec_lo, 0x55555555")
        for i in range(4):
            P = 1019 - 256 * i
            a("ds_write_b16 v5, v%d offset:%d" % (24 + 2 * i, 2 * P))
        a("s_mov_b32 exec_lo, 0")
        a("s_mov_b32 exec_hi, 1")
        a("ds_write_b64 v5, %s" % vp(24))
        a("s_mov_b32 exec_hi, -1")
        for i, (bb, ba, aa) in enumerate(((32, 34, 35), (36, 38, 39))):
            P = 2042 - 512 - 256 * i
            a("ds_write_b32 v5, v%d offset:%d" % (bb, 2 * P))
            a("ds_write_b64 v5, %s offset:%d" % (vp(ba), 2 * P + 4))
            a("ds_write_b32 v5, v%d offset:%d" % (aa, 2 * P + 12))
        a("s_mov_b32 exec_lo, -1")
        a("s_mov_b32 exec_hi, 0")
        P = 2041 - 256
        a("ds_write_b16 v5, v36 offset:%d" % (2 * P))
        a("ds_write_b32 v5, v39 offset:%d" % (2 * P + 2))
        a("ds_write_b64 v5, %s offset:%d" % (vp(40), 2 * P + 6))
        a("ds_write_b16 v5, v35 offset:%d" % (2 * P + 14))
        a("s_mov_b64 exec, -1")
        a("ds_write_b64 v6, %s offset:%d" % (vp(42), 2 * 2044))
        self.stamp("Kexp")
        for rnd in range(5):
            b = 44 + 24 * rnd
            src = "v7 offset:%d" % (1024 * rnd) if rnd < 4 else "v168"
            src2 = "v7 offset:%d" % (1024 * rnd + 16) if rnd < 4 else "v168 offset:16"
            a("ds_read_b128 %s, %s" % (v4(b), src))
            a("ds_read_b64 %s, %s" % (vp(b + 4), src2))
        for rnd in range(5):
            b = 44 + 24 * rnd
            a("s_waitcnt lgkmcnt(%d)" % (2 * (4 - rnd) + 3 * rnd))
            for k in range(4):
                a("v_alignbit_b32 v%d, v%d, v%d, 16" % (b + 8 + k, b + k + 1, b + k))
            ad, o = ("v169", 1024 * rnd) if rnd < 4 else ("v170", 0)
            a("ds_write_b128 %s, %s offset:%d" % (ad, v4(b + 8), o + 2 * CSTR))
            for k in range(4):
                a("v_mov_b32 v%d, v%d" % (b + 12 + k, b + k + 1))
            a("ds_write_b128 %s, %s offset:%d" % (ad, v4(b + 12), o + 1 * CSTR))
            for k in range(4):
                a("v_alignbit_b32 v%d, v%d, v%d, 16" % (b + 16 + k, b + k + 2, b + k + 1))
            a("ds_write_b128 %s, %s offset:%d" % (ad, v4(b + 16), o))
        a("s_branch %s" % lKd)
        a.label(lW3)
        self.nstamp = st0
        self.flag_store(0)
        a("global_load_dword v254, v231, %s" % sp(P_W1))
        self.stamp("flag")
        a("s_lshl_b32 s54, s%d, 4" % S_CF)
        for j in range(12):
            a("v_add_u32 v7, %d, v1" % (64 * j))
            a("v_mul_u32_u24 v8, 21846, v7")
            a("v_lshrrev_b32 v8, 16, v8")
            a("v_mul_u32_u24 v9, 3, v8")
            a("v_sub_u32 v9, v7, v9")
            a("v_mul_u32_u24 v%d, 10240, v8" % (100 + j))
            a("v_lshl_add_u32 v%d, v9, 4, v%d" % (100 + j, 100 + j))
            a("v_add_u32 v%d, s54, v%d" % (100 + j, 100 + j))
            a("v_mul_u32_u24 v9, %d, v9" % USTR)
            a("v_lshl_add_u32 v%d, v8, 4, v9" % (112 + j))
            a("v_add_u32 v%d, %d, v%d" % (112 + j, LDS_U + 128, 112 + j))
        a("v_lshlrev_b32 v10, 7, v1")
        for k in range(1, 4):
            a("v_add_u32 v%d, %d, v10" % (10 + k, 8192 * k))
        a("s_waitcnt vmcnt(0)")
        a("s_sleep %d" % int(os.environ.get("SL1", "8")))
        a("s_mov_b32 s69, 0")
        lp, lok = self.lab("flpoll"), self.lab("flok")
        a.label(lp)
        for k in range(4):
            a("global_load_dwordx4 %s, v%d, %s sc1" % (v4(16 + 4 * k), 10 + k, sp(P_FL)))
        a("s_waitcnt vmcnt(0)")
        a("v_xor_b32 v6, s%d, v16" % S_TAG)
        for r in range(17, 32):
            a("v_xor_b32 v7, s%d, v%d" % (S_TAG, r))
            a("v_or_b32 v6, v6, v7")
        a("v_cmp_ne_u32 vcc, 0, v6")
        a("s_cbranch_vccz %s" % lok)
        self.spin_tail(lp, lok, 4)
        a.label(lok)
        if self.timing:
            a("v_writelane_b32 v255, s69, 32")
        self.stamp("flok")
        for j in range(12):
            a("global_load_dwordx4 %s, v%d, %s sc1" % (v4(32 + 4 * j), 100 + j, sp(P_UT)))
        a("v_mov_b32 v6, 0")
        a("v_and_b32 v5, 31, v1")
        a("v_lshlrev_b32 v5, 2, v5")
        a("v_add_u32 v5, %d, v5" % LDS_U)
        for pos in range(3):
            a("ds_write_b32 v5, v6 offset:%d" % (pos * USTR))
        self.conv_setup()
        for j in range(12):
            a("s_waitcnt vmcnt(%d)" % (11 - j))
            a("ds_write_b128 v%d, %s" % (112 + j, v4(32 + 4 * j)))
        self.stamp("gath")
        lK2 = self.lab("kd2")
        a("s_branch %s" % lK2)
        a.label(lKd)
        self.conv_setup()
        a.label(lK2)
        a("s_waitcnt lgkmcnt(0)")
        self.stamp("prebar")
        a("s_barrier")
        self.stamp("kbar")

    def conv_setup(self):
        a = self.a
        a("s_lshl_b32 s90, s%d, 9" % S_WAVE)
        a("s_lshl_b32 s91, s%d, 7" % S_FB)
        self.wl_setup(P_W1, 3456, 90, 91, 16384)
        a("v_and_b32 v2, 15, v1")
        a("v_lshrrev_b32 v3, 4, v1")
        a("v_and_b32 v4, 3, v1")
        a("v_bfe_u32 v5, v1, 2, 2")
        a("v_mul_u32_u24 v6, %d, v4" % CSTR)
        a("v_lshl_add_u32 v6, v3, 4, v6")
        a("v_lshlrev_b32 v7, 7, v5")
        a("v_sub_u32 v6, v6, v7")
        a("v_add_u32 v6, %d, v6" % (LDS_C + 832))
        a("v_lshlrev_b32 v7, 3, v2")
        a("v_lshl_add_u32 v7, v3, 4, v7")
        a("v_add_u32 v7, %d, v7" % (LDS_U + 456))
        for p in range(3):
            a("s_mul_i32 s54, s%d, 6" % S_WAVE)
            a("s_add_u32 s54, s54, %d" % (2 * p + 1))
            a("s_lshr_b32 s55, s54, 3")
            a("s_and_b32 s54, s54, 7")
            a("s_lshl_b32 s54, s54, 6")
            a("s_mul_i32 s60, s55, %d" % CCH)
            a("s_sub_u32 s60, s60, s54")
            a("v_add_u32 v%d, s60, v6" % (194 + 2 * p))
            a("s_mul_i32 s60, s55, %d" % USTR)
            a("s_sub_u32 s60, s60, s54")
            a("v_add_u32 v%d, s60, v7" % (195 + 2 * p))
        a("v_lshrrev_b32 v2, 1, v1")
        a("v_mul_u32_u24 v2, 48, v2")
        a("v_and_b32 v3, 1, v1")
        a("v_mul_u32_u24 v3, %d, v3" % OHS)
        a("s_min_u32 s54, s%d, 2" % S_WAVE)
        a("s_lshl_b32 s54, s54, 4")
        a("s_add_u32 s54, s54, %d" % LDS_OWN)
        a("s_add_u32 s55, s54, %d" % (2 * OHS))
        a("s_cmp_eq_u32 s%d, 3" % S_WAVE)
        a("s_cmov_b32 s54, s55")
        a("v_add3_u32 v242, v2, v3, s54")
        a("s_sub_u32 s55, s55, 16")
        a("v_add3_u32 v243, v2, v3, s55")
        for j in range(3):
            a("v_add_u32 v2, %d, v0" % (256 * j))
            a("v_mul_u32_u24 v3, 21846, v2")
            a("v_lshrrev_b32 v3, 16, v3")
            a("v_mul_u32_u24 v4, 3, v3")
            a("v_sub_u32 v2, v2, v4")
            a("v_lshlrev_b32 v2, 2, v2")
            a("v_add_u32 v%d, %d, v2" % (244 + j, LDS_SC))

    def w2a_addr(self):
        a = self.a
        a("s_lshl_b32 s64, s%d, 5" % S_K2)
        a("s_lshl_b32 s65, s%d, 3" % S_IDX)
        a("s_add_u32 s64, s64, s65")
        a("v_lshrrev_b32 v2, 3, v1")
        a("v_add_u32 v2, s64, v2")
        a("s_lshr_b32 s65, s%d, 1" % S_XCD)
        a("s_lshl_b32 s65, s65, 10")
        a("v_and_b32 v4, 7, v1")
        a("v_lshl_add_u32 v4, v4, 7, s65")
        a("v_lshl_add_u32 v193, v2, 12, v4")

    def cv_loads(self, setn, na, vA, vB, ex):
        Ab, Bb = ((64, 96), (128, 160))[setn]
        L = []
        for n in range(na):
            L.append("ds_read_b128 %s, v%d offset:%d" % (v4(Ab + 4 * n), vA, 512 * (7 - n) + ex))
            L.append("ds_read_b64 %s, v%d offset:%d" % (vp(Bb + 4 * n), vB, 512 * n + ex))
            L.append("ds_read_b64 %s, v%d offset:%d" % (vp(Bb + 4 * n + 2), vB, 512 * n + ex + 8))
        return L

    def cv_iter(self, setn, chunks, acc, first, bg, hi=0.85):
        a = self.a
        Ab, Bb = ((64, 96), (128, 160))[setn]
        a("s_waitcnt lgkmcnt(0)")
        mark = len(a.ins)
        seen = set()
        for aa in range(max(chunks) + 1):
            for q in sorted(chunks, reverse=True):
                if q >= aa:
                    c = v4(acc[q])
                    src = "0" if (first and q not in seen) else c
                    seen.add(q)
                    a("v_mfma_f32_16x16x32_f16 %s, %s, %s, %s" % (c, v4(Ab + 4 * aa), v4(Bb + 4 * (q - aa)), src))
        if bg:
            self.weave(mark + 1, bg, 0.0, hi)

    def phase3(self):
        a = self.a
        one = lambda L: [[x] for x in L]
        def mix(L1, L2):
            if not L2: return L1
            out = []
            i = j = 0
            while i < len(L1) or j < len(L2):
                if j >= len(L2) or (i < len(L1) and i * len(L2) <= j * len(L1)):
                    out.append(L1[i]); i += 1
                else:
                    out.append(L2[j]); j += 1
            return out
        acc = {q: 16 + 4 * q for q in range(8)}
        dmaA = self.wl_dma_groups(3456, 4, 16384)
        dmaB = self.wl_dma_groups(3456, 4, 16384)
        def lds(it):
            p = it >> 1
            return one(self.cv_loads(it & 1, 8, 194 + 2 * p, 195 + 2 * p, 64 * (1 - (it & 1))))
        for g in lds(0):
            a(g[0])
        for j in range(3):
            a("ds_read_b32 v%d, v%d" % (4 + 2 * j, 244 + j))
        pfs = [["v_add_u32 v231, s96, v232", "global_load_dword v254, v231, %s" % sp(P_W2)]]
        nop = []
        extra = {0: dmaA[:4], 1: dmaA[4:], 2: [nop] * 24 + [["s_waitcnt vmcnt(0)"]] + one(self.wl_tr(0, 4)),
                 3: dmaB[:5], 4: dmaB[5:] + [["global_load_dword v247, v233, %s sc1" % sp(P_FL)]] + pfs}
        for it in range(6):
            if it in (2, 4):
                lf = self.lab("flush")
                a("s_cmp_lg_u32 s%d, %d" % (S_WAVE, it >> 1))
                a("s_cbranch_scc1 %s" % lf)
                a("s_nop 7")
                for r in range(32):
                    a("v_accvgpr_write_b32 a%d, v%d" % (128 + r, 16 + r))
                for r in range(16):
                    a("v_pk_mov_b32 %s, 0, 0" % vp(16 + 2 * r))
                a("s_nop 1")
                a.label(lf)
            self.cv_iter(it & 1, list(range(8)), acc, it == 0, mix(lds(it + 1) if it < 5 else [], extra.get(it, [])), hi=0.92)
        a("s_mul_i32 s54, s%d, 12288" % S_OCT)
        a("v_lshl_add_u32 v10, v0, 4, s54")
        a("v_add_u32 v11, 4096, v10")
        a("v_add_u32 v12, 8192, v10")
        a("v_lshlrev_b32 v13, 4, v0")
        a("v_add_u32 v13, %d, v13" % LDS_OWN)
        self.stamp("convmf")
        a("s_barrier")
        for q in range(8):
            a("ds_write_b128 v242, %s offset:%d" % (v4(16 + 4 * q), 1536 * q))
        lw = self.lab("nofl")
        a("s_add_u32 s54, s%d, 1" % S_WAVE)
        a("s_bitcmp0_b32 s54, 1")
        a("s_cbranch_scc1 %s" % lw)
        for q in range(8):
            a("ds_write_b128 v243, %s offset:%d" % (a4(128 + 4 * q), 1536 * q))
        a.label(lw)
        self.pd_check(1)
        a("s_waitcnt lgkmcnt(0)")
        a("s_barrier")
        for j in range(3):
            b = 64 + 16 * j
            for k in range(2):
                for hh in range(2):
                    a("ds_read_b128 %s, v13 offset:%d" % (v4(b + 8 * k + 4 * hh), k * 2 * OHS + hh * OHS + 4096 * j))
        for j in range(3):
            b = 64 + 16 * j
            a("s_waitcnt lgkmcnt(%d)" % (4 * (2 - j)))
            for p in range(4):
                a("v_pk_add_f32 %s, %s, %s" % (vp(b + 2 * p), vp(b + 2 * p), vp(b + 8 + 2 * p)))
            for p in range(4):
                a("v_pk_mul_f32 %s, %s, %s op_sel_hi:[1,0]" % (vp(b + 2 * p), vp(b + 2 * p), vp(4 + 2 * j)))
            for p in range(4):
                a("v_cvt_pk_bf16_f32 v%d, v%d, v%d" % (b + 8 + p, b + 2 * p, b + 2 * p + 1))
            for p in range(4):
                a("v_min_u32 v%d, 0xfffffffe, v%d" % (b + 8 + p, b + 8 + p))
            a("global_store_dwordx4 v%d, %s, %s sc1" % (10 + j, v4(b + 8), sp(P_YT)))
        self.stamp("ytstore")

    def helper(self):
        a = self.a
        a.label("L_helper")
        self.flag_store(0)
        a("global_load_dword v254, v231, %s" % sp(P_W1))
        a("s_sub_u32 s60, s%d, 27" % S_IDX)
        a("s_lshl_b32 s60, s60, 2")
        a("s_add_u32 s60, s60, s%d" % S_WAVE)
        for r in range(4):
            a("v_mov_b32 v%d, -1" % (20 + r))
        a("v_lshrrev_b32 v5, 3, v1")
        a("v_and_b32 v6, 7, v1")
        a("s_lshr_b32 s62, s%d, 1" % S_XCD)
        def poison(ptr, per_xcd_kb, xcd_stride):
            a("s_mul_i32 s61, s%d, %d" % (S_XCD, xcd_stride))
            a("s_lshl_b32 s63, s60, 10")
            a("s_add_u32 s61, s61, s63")
            a("v_lshl_add_u32 v7, v1, 4, s61")
            a("s_mov_b32 s63, s60")
            lp = self.lab("poi")
            a.label(lp)
            a("global_store_dwordx4 v7, v[20:23], %s sc1" % sp(ptr))
            a("v_add_u32 v7, 20480, v7")
            a("s_add_u32 s63, s63, 20")
            a("s_cmp_lt_u32 s63, %d" % per_xcd_kb)
            a("s_cbranch_scc1 %s" % lp)
        def pref(ptr, rs, nline, maxline, rowf, ngroups):
            a("s_mul_i32 s61, s62, %d" % nline)
            a("v_min_u32 v8, %d, v6" % (nline - 1))
            a("v_add_u32 v8, s61, v8")
            a("v_min_u32 v8, %d, v8" % maxline)
            a("v_lshlrev_b32 v8, 7, v8")
            a("s_mov_b32 s63, s60")
            lp = self.lab("prf")
            a.label(lp)
            rowf()
            a("v_add_u32 v9, s64, v5")
            a("v_mul_u32_u24 v9, %d, v9" % rs)
            a("v_add_u32 v9, v9, v8")
            a("global_load_dword v254, v9, %s" % sp(ptr))
            a("s_add_u32 s63, s63, 20")
            a("s_cmp_lt_u32 s63, %d" % ngroups)
            a("s_cbranch_scc1 %s" % lp)
        def row_w1b():
            a("s_and_b32 s64, s63, 3")
            a("s_lshl_b32 s64, s64, 9")
            a("s_lshr_b32 s65, s63, 2")
            a("s_lshl_b32 s65, s65, 3")
            a("s_add_u32 s64, s64, s65")
            a("s_add_u32 s64, s64, 256")
        def row_w2():
            a("s_and_b32 s64, s63, 3")
            a("s_mul_i32 s64, s64, 448")
            a("s_min_u32 s64, s64, 1312")
            a("s_lshr_b32 s65, s63, 2")
            a("s_lshl_b32 s65, s65, 3")
            a("s_add_u32 s64, s64, s65")
            a("s_min_u32 s64, s64, 1720")
        poison(P_YT, 27 * 12, 32 * 12288)
        self.flag_store(1)
        a("v_add_u32 v231, s96, v232")
        a("global_load_dword v254, v231, %s" % sp(P_W2))
        poison(P_HP, 320, 327680)
        self.flag_store(4)
        a("s_lshl_b32 s90, s%d, 9" % S_WAVE)
        a("s_lshl_b32 s91, s%d, 7" % S_FB)
        self.wl_setup(P_W1, 3456, 90, 91, 16384)
        lh = self.lab("hskip")
        a("s_cmp_eq_u32 s%d, 0" % S_G1)
        a("s_cbranch_scc1 %s" % lh)
        self.wl_dma_loop(3456, 4, 16384)
        a("s_waitcnt vmcnt(0)")
        for t in self.wl_tr(0, 4):
            a(t)
        a("s_waitcnt lgkmcnt(0)")
        self.wl_dma_loop(3456, 4, 16384)
        a.label(lh)
        a("global_load_dword v247, v233, %s sc1" % sp(P_FL))
        self.pd_check(0)
        a("s_branch L_win2")

    def phase4_pre(self):
        a = self.a
        a("s_mul_i32 s55, s%d, 48" % S_OCT)
        for j in range(3):
            a("v_add_u32 v5, %d, v0" % (256 * j))
            if j == 2:
                a("v_min_u32 v5, 639, v5")
            a("v_mul_u32_u24 v6, 820, v5")
            a("v_lshrrev_b32 v6, 16, v6")
            a("v_mul_u32_u24 v7, 80, v6")
            a("v_sub_u32 v7, v5, v7")
            a("v_mul_u32_u24 v8, 21846, v7")
            a("v_lshrrev_b32 v8, 16, v8")
            a("v_lshl_add_u32 v6, v6, 5, v8")
            a("v_mul_u32_u24 v8, 3, v8")
            a("v_sub_u32 v7, v7, v8")
            a("v_mul_u32_u24 v6, 12288, v6")
            a("v_lshl_add_u32 v6, v7, 4, v6")
            a("v_add_u32 v%d, s55, v6" % (170 + j))
        for n in range(12):
            a("v_lshlrev_b32 v%d, 16, v%d" % (100 + 2 * n, XG + n))
            a("v_and_b32 v%d, 0xffff0000, v%d" % (101 + 2 * n, XG + n))
            a("v_lshlrev_b32 v%d, 16, v%d" % (124 + 2 * n, TG + n))
            a("v_and_b32 v%d, 0xffff0000, v%d" % (125 + 2 * n, TG + n))
        a("s_lshl_b32 s54, s%d, 8" % S_OCT)
        a("v_lshrrev_b32 v2, 4, v0")
        a("v_lshlrev_b32 v2, 16, v2")
        a("v_and_b32 v3, 15, v0")
        a("v_lshl_add_u32 v2, v3, 4, v2")
        a("v_add_u32 v173, s54, v2")
        a("v_add_u32 v174, 0x100000, v173")
        a("v_add_u32 v175, 0x200000, v173")
        a("s_mul_i32 s54, s%d, 10240" % S_OCT)
        a("v_lshl_add_u32 v176, v0, 4, s54")
        a("v_add_u32 v177, 4096, v176")
        a("v_add_u32 v178, 8192, v176")
        a("v_lshlrev_b32 v179, 2, v0")
        a("v_add_u32 v179, %d, v179" % LDS_LN)
        a("v_lshlrev_b32 v180, 2, v1")
        a("v_add_u32 v180, %d, v180" % LDS_LN)

    def pd_check(self, n):
        a = self.a
        a("s_mov_b32 s69, 0")
        lp, lok = self.lab("pdpoll"), self.lab("pdok")
        a("s_waitcnt vmcnt(%d)" % n)
        a.label(lp)
        a("v_cmp_ne_u32 vcc, s%d, v247" % S_TAG)
        a("s_cbranch_vccz %s" % lok)
        a("s_add_u32 s69, s69, 1")
        a("s_cmp_gt_u32 s69, %d" % SPIN)
        a("s_cbranch_scc1 %s" % lok)
        a("s_sleep 4")
        a("global_load_dword v247, v233, %s sc1" % sp(P_FL))
        a("s_waitcnt vmcnt(0)")
        a("s_branch %s" % lp)
        a.label(lok)

    def phase4(self, N2):
        a = self.a
        a("s_mov_b32 s69, 0")
        lp, lok, lf = self.lab("hpoll"), self.lab("hok"), self.lab("hfirst")
        for j in range(3):
            a("global_load_dwordx4 %s, v%d, %s sc1" % (v4(16 + 4 * j), 170 + j, sp(P_YT)))
        a("s_waitcnt vmcnt(3)")
        for t in self.wl_tr(8, N2):
            a(t)
        a("s_branch %s" % lf)
        a.label(lp)
        for j in range(3):
            a("global_load_dwordx4 %s, v%d, %s sc1" % (v4(16 + 4 * j), 170 + j, sp(P_YT)))
        a.label(lf)
        a("s_waitcnt vmcnt(0)")
        a("v_max3_u32 v5, v16, v17, v18")
        a("v_max3_u32 v6, v19, v20, v21")
        a("v_max3_u32 v7, v22, v23, v24")
        a("v_max3_u32 v8, v25, v26, v27")
        a("v_max3_u32 v5, v5, v6, v7")
        a("v_max_u32 v5, v5, v8")
        a("v_cmp_eq_u32 vcc, -1, v5")
        a("s_cbranch_vccz %s" % lok)
        self.spin_tail(lp, lok, 4)
        a.label(lok)
        self.stamp("hpoll")
        mark4 = len(a.ins)
        def unp(src):
            for n in range(12):
                a("v_lshlrev_b32 v%d, 16, v%d" % (32 + 2 * n, src + n))
                a("v_and_b32 v%d, 0xffff0000, v%d" % (33 + 2 * n, src + n))
        unp(16)
        for n in range(12):
            a("v_pk_add_f32 %s, %s, %s" % (vp(32 + 2 * n), vp(32 + 2 * n), vp(124 + 2 * n)))
        for n in range(12):
            a("v_cvt_pk_bf16_f32 v%d, v%d, v%d" % (16 + n, 32 + 2 * n, 33 + 2 * n))
        unp(16)
        for n in range(12):
            a("v_pk_add_f32 %s, %s, %s" % (vp(32 + 2 * n), vp(32 + 2 * n), vp(100 + 2 * n)))
        for n in range(12):
            a("v_cvt_pk_bf16_f32 v%d, v%d, v%d" % (150 + n, 32 + 2 * n, 33 + 2 * n))
        self.weave(mark4, self.wl_dma_groups(3456, 8 - N2, 32768, slot0=4096 * N2))
        lz = self.lab("hz")
        a("s_cmp_lt_u32 s%d, 2" % S_WAVE)
        a("s_cbranch_scc1 %s" % lz)
        for r in range(4):
            a("v_mov_b32 v%d, 0" % (158 + r))
        a.label(lz)
        unp(150)
        for p in range(4):
            a("v_pk_add_f32 %s, %s, %s" % (vp(64 + 2 * p), vp(32 + 2 * p), vp(40 + 2 * p)))
            a("v_pk_mul_f32 %s, %s, %s" % (vp(72 + 2 * p), vp(32 + 2 * p), vp(32 + 2 * p)))
        for p in range(4):
            a("v_pk_add_f32 %s, %s, %s" % (vp(64 + 2 * p), vp(64 + 2 * p), vp(48 + 2 * p)))
            a("v_pk_fma_f32 %s, %s, %s, %s" % (vp(72 + 2 * p), vp(40 + 2 * p), vp(40 + 2 * p), vp(72 + 2 * p)))
        for p in range(4):
            a("v_pk_fma_f32 %s, %s, %s, %s" % (vp(72 + 2 * p), vp(48 + 2 * p), vp(48 + 2 * p), vp(72 + 2 * p)))
        for k in range(8):
            a("v_permlane32_swap_b32 v%d, v%d" % (64 + k, 72 + k))
        for p in range(4):
            a("v_pk_add_f32 %s, %s, %s" % (vp(64 + 2 * p), vp(64 + 2 * p), vp(72 + 2 * p)))
        for k in range(4):
            a("v_permlane16_swap_b32 v%d, v%d" % (64 + k, 68 + k))
        for p in range(2):
            a("v_pk_add_f32 %s, %s, %s" % (vp(64 + 2 * p), vp(64 + 2 * p), vp(68 + 2 * p)))
        for k in range(2):
            a("v_add_f32_dpp v%d, v%d, v%d row_ror:8 row_mask:0xf bank_mask:0x3" % (72 + k, 64 + k, 64 + k))
        for k in range(2):
            a("v_add_f32_dpp v%d, v%d, v%d row_ror:8 row_mask:0xf bank_mask:0xc" % (72 + k, 66 + k, 66 + k))
        a("v_add_f32_dpp v64, v72, v72 row_half_mirror row_mask:0xf bank_mask:0x5")
        a("v_add_f32_dpp v64, v73, v73 row_half_mirror row_mask:0xf bank_mask:0xa")
        a("v_add_f32_dpp v64, v64, v64 quad_perm:[1,0,3,2] row_mask:0xf bank_mask:0xf")
        a("v_add_f32_dpp v64, v64, v64 quad_perm:[2,3,0,1] row_mask:0xf bank_mask:0xf")
        a("ds_write_b32 v179, v64")
        self.pd_check(63)
        for n in range(12):
            a("v_min_u32 v%d, 0xfffffffe, v%d" % (150 + n, 150 + n))
        a("s_waitcnt lgkmcnt(0)")
        a("s_barrier")
        for w in range(4):
            a("ds_read_b32 v%d, v180 offset:%d" % (64 + w, 256 * w))
        a("s_waitcnt lgkmcnt(0)")
        a("v_pk_add_f32 v[64:65], v[64:65], v[66:67]")
        a("v_add_f32 v64, v64, v65")
        a("v_mul_f32 v64, %s, v64" % f32(1.0 / 640))
        a("v_mov_b32 v65, v64")
        a("v_permlane32_swap_b32 v64, v65")
        a("v_fma_f32 v65, -v64, v64, v65")
        a("v_max_f32 v65, 0, v65")
        self.bf16_round(67, 65)
        self.bf16_round(66, 64)
        a("v_add_f32 v67, %s, v67" % f32(1e-5))
        self.bf16_round(67, 67)
        a("v_sqrt_f32 v67, v67")
        a("v_sub_f32 v68, v64, v66")
        self.bf16_round(67, 67)
        a("v_rcp_f32 v67, v67")
        a("v_mul_f32 v69, v65, v67")
        a("v_mul_f32 v68, v68, v67")
        a("v_mul_f32 v69, v69, v67")
        self.bf16_round(69, 69)
        self.bf16_round(68, 68)
        a("v_add_f32 v69, %s, v69" % f32(1e-5))
        self.bf16_round(69, 69)
        a("v_sqrt_f32 v69, v69")
        a("v_fma_f32 v70, v66, v67, v68")
        self.bf16_round(69, 69)
        a("v_rcp_f32 v69, v69")
        a("v_mul_f32 v70, -v70, v69")
        a("v_mul_f32 v71, v67, v69")
        for r in range(8):
            a("v_readlane_b32 s%d, v70, %d" % (54 + r, 4 * r))
        for r in range(8):
            a("v_readlane_b32 s%d, v71, %d" % (84 + r, 4 * r))
        for r in range(8):
            a("v_mov_b32 v%d, s%d" % (72 + r, 54 + r))
        l3 = self.lab("h3")
        for j in range(3):
            if j == 2:
                a("s_cmp_ge_u32 s%d, 2" % S_WAVE)
                a("s_cbranch_scc1 %s" % l3)
            for p in range(4):
                h = 32 + 8 * j + 2 * p
                a("v_pk_fma_f32 %s, %s, %s, %s" % (vp(h), vp(h), sp(84 + 2 * p), vp(72 + 2 * p)))
            for p in range(4):
                h = 32 + 8 * j + 2 * p
                a("v_cvt_pk_bf16_f32 v%d, v%d, v%d" % (16 + 4 * j + p, h, h + 1))
            for p in range(4):
                a("v_min_u32 v%d, 0xfffffffe, v%d" % (16 + 4 * j + p, 16 + 4 * j + p))
            a("global_store_dwordx4 v%d, %s, %s sc1" % (173 + j, v4(16 + 4 * j), sp(P_HP)))
        a("global_store_dwordx4 v178, v[158:161], %s sc1" % sp(P_H2))
        a.label(l3)
        a("global_store_dwordx4 v176, v[150:153], %s sc1" % sp(P_H2))
        a("global_store_dwordx4 v177, v[154:157], %s sc1" % sp(P_H2))
        self.stamp("hpstore")

    NP = 35
    def acc(self, j, mt): return ACC0 + 4 * (mt * 4 + j)
    def preg(self, k): return SLOT0 + 4 * (k % self.NP)

    def frag_load(self, name, seq0, mts, i):
        s, mt = i // len(mts), mts[i % len(mts)]
        base = (84 if name.startswith("g1") else 64) + (0 if s < 8 else 2)
        return "global_load_dwordx4 %s, v%d, %s offset:%d sc1 ; #%s_%d" % (
            v4(self.preg(seq0 + i)), 2 + mt, sp(base), (s % 8) * 1024 - 4096, name, s)

    def frag_check(self, seq0, mts, s):
        r = [self.preg(seq0 + s * len(mts) + m) + k for m in range(len(mts)) for k in range(4)]
        L = ["v_max3_u32 v7, v%d, v%d, v%d" % (r[0], r[1], r[2]), "v_max3_u32 v8, v%d, v%d, v%d" % (r[3], r[4], r[5])]
        rest = r[6:]
        t = 7
        while len(rest) >= 2:
            L.append("v_max3_u32 v%d, v%d, v%d, v%d" % (t, t, rest[0], rest[1]))
            rest = rest[2:]
            t = 15 - t
        L += ["v_max_u32 v7, v7, v8", "v_cmp_eq_u32 vcc, -1, v7"]
        return L

    def gpass(self, name, nsteps, mts, w_is_A, seq0, npre, bgf=None, s_short=None, hook=None):
        a = self.a
        nm = len(mts)
        tot = nsteps * nm
        ldone = self.lab("gdone")
        def branch_slow(s):
            ls, lb = self.lab("gslow"), self.lab("gback")
            a("s_cbranch_vccnz %s" % ls)
            a.label(lb)
            self.slowpaths.append((s, ls, lb, [self.frag_load(name, seq0, mts, s * nm + m).split(';')[0] for m in range(nm)],
                                   self.frag_check(seq0, mts, s)))
        a("@wait %s_0" % name)
        for l in self.frag_check(seq0, mts, 0):
            a(l)
        branch_slow(0)
        self.stamp(name + "f")
        for s in range(nsteps):
            if hook and s in hook:
                hook[s]()
            fill = []
            for g in (bgf(s) if bgf else []):
                fill.append(g)
            ck = []
            if s + 1 < nsteps:
                ck = [["@wait %s_%d" % (name, s + 1)]] + [[x] for x in self.frag_check(seq0, mts, s + 1)]
            items = fill + ck
            nmf = 4 * nm
            per = [len(items) * (k + 1) // nmf - len(items) * k // nmf for k in range(nmf)]
            n = 0
            for m, mt in enumerate(mts):
                for j in range(4):
                    c = v4(self.acc(j, mt))
                    w = a4((s * 4 + j) * 4)
                    f = v4(self.preg(seq0 + s * nm + m))
                    A, B = (w, f) if w_is_A else (f, w)
                    a("v_mfma_f32_16x16x32_bf16 %s, %s, %s, %s" % (c, A, B, "0" if s == 0 else c))
                    if j == 3:
                        a("@mark free%d" % (seq0 + s * nm + m))
                    for _ in range(per[n]):
                        for t in items.pop(0):
                            a(t)
                    n += 1
            if s + 1 < nsteps:
                if s_short is not None and s + 2 == nsteps:
                    a("@mark noins")
                    a("s_cmp_eq_u32 s%d, 1" % s_short)
                    a("s_cbranch_scc1 %s" % ldone)
                branch_slow(s + 1)
        a.label(ldone)
        a("@mark ins")
        self.stamp(name + "m")

    def est(self, ins):
        k = ins.kind
        if k == 'mfma': return 16
        if k in ('label', 'dir'): return 0
        if k == 'trans': return 8
        if k == 'mem': return 30 if 'write_b128' in ins.op else 8
        if ins.op == 's_barrier': return 60
        return 4.5

    def schedule(self, start, ops, per=None, lat=700, ahead=None):
        from asmdsl import Ins
        a = self.a
        per = per or float(os.environ.get("PER", "80"))
        ahead = ahead or float(os.environ.get("AHEAD", "320"))
        seg = a.ins[start:]
        del a.ins[start:]
        seen = set()
        t = 0.0; tm = 0.0
        pf = 0.0
        done = {}
        q = list(ops)
        noins = False
        noex = False
        def emit(op):
            nonlocal pf, t
            for x in op['ins']:
                a(x)
                t += 4.5
            pf = max(pf, t) + per * op.get('kb', 1)
            done[op['tag']] = pf + lat
        for n, ins in enumerate(seg):
            if ins.op == '@mark':
                seen.add(ins.text.split()[1])
            if ins.op == '@wait':
                tag = ins.text.split()[1]
                idx = [k for k, o in enumerate(q) if o['tag'] == tag]
                if idx:
                    for o in q[:idx[-1] + 1]:
                        assert all(m in seen for m in o['after']), (o, tag)
                        emit(o)
                    q = q[idx[-1] + 1:]
                if tag in done:
                    t = max(t, done[tag])
            a.ins.append(ins)
            if ins.kind == 'mfma':
                t = max(t, tm) + 8
                tm = t + 8
            else:
                t += self.est(ins)
            if ins.op.startswith('s_cmp') or ins.op.startswith('s_bitcmp'): continue
            if 'exec' in ins.text and ins.op.startswith('s_mov'):
                noex = '-1' not in ins.text
            if ins.op == '@mark' and ins.text.split()[1] in ('noins', 'ins'):
                noins = ins.text.split()[1] == 'noins'
            if noins or noex or ins.kind == 'branch': continue
            while q and all(m in seen for m in q[0]['after']) and pf - t < ahead:
                emit(q.pop(0))
        assert not q, q[:3]

    def emit_slowpaths(self):
        a = self.a
        for s, ls, lb, loads, chk in self.slowpaths:
            a.label(ls)
            a("s_add_u32 s69, s69, 1")
            a("s_cmp_gt_u32 s69, %d" % SPIN)
            a("s_cbranch_scc1 %s" % lb)
            a("s_sleep 2")
            for l in loads:
                a(l)
            a("s_waitcnt vmcnt(0)")
            for l in chk:
                a(l)
            a("s_cbranch_vccnz %s" % ls)
            a("s_branch %s" % lb)

    def rndp(self, regs):
        a = self.a
        for b in regs:
            a("v_cvt_pk_bf16_f32 v%d, v%d, v%d" % (b + 1, b, b + 1))
        for b in regs:
            a("v_lshlrev_b32 v%d, 16, v%d" % (b, b + 1))
            a("v_and_b32 v%d, 0xffff0000, v%d" % (b + 1, b + 1))

    def epilogue(self, kind, mts, mid=None, bg=None, post=None):
        a = self.a
        bg = list(bg or [])
        a("s_waitcnt lgkmcnt(0)")
        a("s_barrier")
        if post:
            post()
        mk = len(a.ins)
        for j in range(1, 4):
            for m, mt in enumerate(mts):
                a("ds_write_b128 v%d, %s offset:%d" % (241 + j, v4(self.acc(j, mt)), 1024 * m))
        if mid:
            mid()
        else:
            n1 = len(bg) // 4
            if n1:
                self.weave(mk, bg[:n1]); bg = bg[n1:]
        a("s_waitcnt lgkmcnt(0)")
        a("s_barrier")
        for m, mt in enumerate(mts):
            for j in range(1, 4):
                a("ds_read_b128 %s, v245 offset:%d" % (v4(self.acc(j, mt)), 3072 * (j - 1) + 1024 * m))
        mk = len(a.ins)
        P = [self.acc(0, mt) + 2 * h for mt in mts for h in range(2)]
        T = [self.acc(1, mt) + 2 * h for mt in mts for h in range(2)]
        for m, mt in enumerate(mts):
            a("s_waitcnt lgkmcnt(%d)" % (3 * (len(mts) - 1 - m)))
            for h in range(2):
                a("v_pk_add_f32 %s, %s, %s" % (vp(self.acc(0, mt) + 2 * h), vp(self.acc(0, mt) + 2 * h), vp(self.acc(1, mt) + 2 * h)))
                a("v_pk_add_f32 %s, %s, %s" % (vp(self.acc(2, mt) + 2 * h), vp(self.acc(2, mt) + 2 * h), vp(self.acc(3, mt) + 2 * h)))
        if kind == 2:
            for mt in mts:
                a("ds_read_b64 %s, v249 offset:%d" % (vp(self.acc(3, mt)), 32 * mt))
        for mt in mts:
            for h in range(2):
                a("v_pk_add_f32 %s, %s, %s" % (vp(self.acc(0, mt) + 2 * h), vp(self.acc(0, mt) + 2 * h), vp(self.acc(2, mt) + 2 * h)))
        self.rndp(P)
        for n, p in enumerate(P):
            if kind == 1:
                a("v_pk_add_f32 %s, %s, %s" % (vp(p), vp(p), vp(250 + 2 * (n & 1))))
            else:
                a("v_pk_add_f32 %s, %s, %s op_sel_hi:[1,0]" % (vp(p), vp(p), vp(250)))
        self.rndp(P)
        if kind == 1:
            for p, t in zip(P, T):
                a("v_pk_mul_f32 %s, %s, %s" % (vp(t), vp(p), vp(p)))
            for p, t in zip(P, T):
                a("v_pk_fma_f32 %s, %s, %s, %s op_sel_hi:[1,0,0]" % (vp(t), vp(t), vp(12), vp(10)))
            for p, t in zip(P, T):
                a("v_pk_mul_f32 %s, %s, %s" % (vp(t), vp(t), vp(p)))
            for t in T:
                a("v_exp_f32 v%d, v%d" % (t, t))
                a("v_exp_f32 v%d, v%d" % (t + 1, t + 1))
            for t in T:
                a("v_pk_add_f32 %s, %s, 1.0 op_sel_hi:[1,0]" % (vp(t), vp(t)))
            for t in T:
                a("v_rcp_f32 v%d, v%d" % (t, t))
                a("v_rcp_f32 v%d, v%d" % (t + 1, t + 1))
            for p, t in zip(P, T):
                a("v_pk_mul_f32 %s, %s, %s" % (vp(p), vp(p), vp(t)))
        else:
            a("s_waitcnt lgkmcnt(0)")
            for mt in mts:
                for h in range(2):
                    a("v_lshlrev_b32 v%d, 16, v%d" % (self.acc(1, mt) + 2 * h, self.acc(3, mt) + h))
                    a("v_and_b32 v%d, 0xffff0000, v%d" % (self.acc(1, mt) + 2 * h + 1, self.acc(3, mt) + h))
            for p, t in zip(P, T):
                a("v_pk_add_f32 %s, %s, %s" % (vp(p), vp(p), vp(t)))
        prs = [(mts[0], mts[1])] + ([(mts[2], mts[2])] if len(mts) == 3 else [])
        outs = []
        for ta, tb in prs:
            o = self.acc(2, ta)
            outs.append(o)
            for h in range(2):
                a("v_cvt_pk_bf16_f32 v%d, v%d, v%d" % (o + h, self.acc(0, ta) + 2 * h, self.acc(0, ta) + 2 * h + 1))
                a("v_cvt_pk_bf16_f32 v%d, v%d, v%d" % (o + 2 + h, self.acc(0, tb) + 2 * h, self.acc(0, tb) + 2 * h + 1))
        if kind == 1:
            for o in outs:
                for k in range(4):
                    a("v_min_u32 v%d, 0xfffffffe, v%d" % (o + k, o + k))
        if bg:
            self.weave(mk, bg)
        for o in outs:
            for h in range(2):
                a("v_permlane16_swap_b32 v%d, v%d" % (o + h, o + 2 + h))
        for n, ((ta, tb), o) in enumerate(zip(prs, outs)):
            ar = 246 + (0 if ta == 0 else (1 if ta == 2 else 2))
            if kind == 1:
                a("global_store_dwordx4 v%d, %s, %s sc1" % (ar, v4(o), sp(P_G)))
            else:
                a("global_store_dwordx4 v%d, %s, %s %s" % (ar, v4(o), sp(P_OUT), os.environ.get("OST", "")))

    def g_common_setup(self):
        a = self.a
        for j in range(1, 4):
            a("s_add_u32 s54, s%d, %d" % (S_WAVE, j))
            a("s_and_b32 s54, s54, 3")
            a("s_lshl_b32 s54, s54, 15")
            a("s_add_u32 s54, s54, %d" % (20480 + 3072 * (j - 1)))
            a("v_lshl_add_u32 v%d, v1, 4, s54" % (241 + j))
        a("s_lshl_b32 s54, s%d, 15" % S_WAVE)
        a("s_add_u32 s54, s54, 20480")
        a("v_lshl_add_u32 v245, v1, 4, s54")

    def g1_setup(self):
        a = self.a
        a("s_mul_i32 s54, s%d, %d" % (S_DB, 5 * 65536))
        a("v_lshl_add_u32 v2, v1, 4, s54")
        for mt in range(1, 5):
            a("v_add_u32 v%d, %d, v2" % (2 + mt, 65536 * mt))
        a("s_lshl_b32 s54, s%d, 14" % S_WAVE)
        a("s_add_u32 s54, s54, 4096")
        a("s_add_u32 s84, s%d, s54" % P_HP)
        a("s_addc_u32 s85, s%d, 0" % (P_HP + 1))
        a("s_add_u32 s86, s84, 8192")
        a("s_addc_u32 s87, s85, 0")
        a("s_mul_i32 s54, s%d, 270" % S_DB)
        a("s_lshl_b32 s55, s%d, 1" % S_FB)
        a("s_add_u32 s54, s54, s55")
        a("s_lshl_b32 s54, s54, 10")
        a("s_lshl_b32 s55, s%d, 9" % S_WAVE)
        a("s_add_u32 s54, s54, s55")
        a("v_and_b32 v7, 15, v1")
        a("v_lshrrev_b32 v8, 5, v1")
        a("v_lshl_add_u32 v7, v8, 4, v7")
        a("v_lshl_add_u32 v7, v7, 4, s54")
        a("v_add_u32 v247, %d, v7" % (2 * 54 * 1024))
        a("v_bfe_u32 v8, v1, 4, 1")
        a("v_mul_u32_u24 v8, %d, v8" % (54 * 1024))
        a("v_add_u32 v246, v7, v8")
        a("v_add_u32 v248, %d, v246" % (3 * 54 * 1024))
        for r in range(4):
            a("v_mov_b32 v%d, -1" % (10 + r))
        for r in (246, 247, 248):
            a("global_store_dwordx4 v%d, v[10:13], %s sc1 ; #gpoi" % (r, sp(P_G)))
        a("s_lshl_b32 s54, s%d, 7" % S_FB)
        a("s_lshl_b32 s55, s%d, 5" % S_WAVE)
        a("s_add_u32 s54, s54, s55")
        a("v_lshrrev_b32 v7, 4, v1")
        a("v_lshl_add_u32 v7, v7, 3, s54")
        a("global_load_dwordx2 v[252:253], v7, %s" % sp(P_B1))
        a("s_mul_i32 s54, s%d, 27" % S_DB)
        a("s_add_u32 s54, s54, s%d" % S_FB)
        a("s_lshl_b32 s54, s54, 7")
        a("s_add_u32 s54, s54, 0x18000")
        a("v_mov_b32 v249, s54")
        a("v_mov_b32 v9, s%d" % S_TAG)
        a("s_mov_b32 s69, 0")

    def g2_flag_addr(self):
        G = []
        G.append(["v_bfe_u32 v9, v1, 2, 3", "s_lshl_b32 s54, s%d, 3" % S_SB, "v_add_u32 v9, s54, v9", "v_lshlrev_b32 v9, 7, v9"])
        G.append(["v_and_b32 v13, 3, v1", "v_lshl_add_u32 v9, v13, 2, v9", "v_add_u32 v9, 0x10000, v9"])
        G.append(["s_mul_i32 s54, s%d, %d" % (S_DB, 27 * 128), "s_add_u32 s54, s54, 0x18000", "v_and_b32 v11, 31, v1",
                  "v_min_u32 v11, 26, v11", "v_lshl_add_u32 v11, v11, 7, s54"])
        G.append(["v_cmp_lt_u32 s[62:63], 31, v1", "s_nop 1", "v_cndmask_b32 v9, v9, v11, s[62:63]"])
        return G

    def g2_flag_loads(self):
        return ["global_load_dword v249, v9, %s sc1 ; #g2fl" % sp(P_FL)]

    def g2_check(self, first_wait):
        a = self.a
        lp, lok = self.lab("h2poll"), self.lab("h2ok")
        a(first_wait)
        a("@mark noins")
        a.label(lp)
        a("v_cmp_ne_u32 vcc, s%d, v249" % S_TAG)
        a("s_cbranch_vccz %s" % lok)
        a("s_add_u32 s69, s69, 1")
        a("s_cmp_gt_u32 s69, %d" % SPIN)
        a("s_cbranch_scc1 %s" % lok)
        a("s_sleep 8")
        for t in self.g2_flag_loads():
            a(t.split(';')[0] + " ; #cond")
        a("s_waitcnt vmcnt(0)")
        a("s_branch %s" % lp)
        a.label(lok)
        a("@mark ins")
        a("@mark g2a_ok")

    def g2_addr(self, mts):
        G = [["s_mul_i32 s54, s%d, %d" % (S_DB, 5 * 54 * 1024), "v_lshl_add_u32 v11, v1, 4, s54"]]
        G.append(["v_add_u32 v%d, %d, v11" % (2 + mt, 54 * 1024 * mt) for mt in mts])
        if 0 in mts:
            G.append(["s_lshl_b32 s54, s%d, 10" % S_K2, "s_add_u32 s54, s54, 4096", "@mark noins", "s_add_u32 s64, s%d, s54" % P_G,
                      "s_addc_u32 s65, s%d, 0" % (P_G + 1), "s_add_u32 s66, s64, 8192", "s_addc_u32 s67, s65, 0", "@mark ins"])
        return G

    def g2_late_setup(self):
        G = []
        G.append(["s_mul_i32 s60, s%d, %d" % (S_SB, 8 * 10240), "s_mul_i32 s61, s%d, 1280" % S_DB, "s_add_u32 s60, s60, s61"])
        for j in range(3):
            g = ["v_add_u32 v9, %d, v0" % (256 * j)]
            if j == 2:
                g.append("v_min_u32 v9, 639, v9")
            g += ["v_mul_u32_u24 v11, 820, v9", "v_lshrrev_b32 v11, 16, v11"]
            G.append(g)
            G.append(["v_mul_u32_u24 v13, 80, v11", "v_sub_u32 v13, v9, v13", "v_mul_u32_u24 v9, 10240, v11"])
            G.append(["v_lshl_add_u32 v9, v13, 4, v9", "v_add_u32 v9, s60, v9",
                      "global_load_dwordx4 %s, v9, %s sc1 ; #htile" % (a4(224 + 4 * j), sp(P_H2))])
            G.append(["v_mul_u32_u24 v9, %d, v11" % (8 * 176), "v_lshl_add_u32 v9, v13, 1, v9", "v_add_u32 v%d, %d, v9" % (251 + j, LDS_H)])
        G.append(["s_lshl_b32 s60, s%d, 4" % S_WAVE, "v_and_b32 v9, 15, v1", "v_add_u32 v9, s60, v9", "s_lshl_b32 s61, s%d, 7" % S_SB])
        G.append(["v_lshl_add_u32 v11, v9, 1, s61", "global_load_ushort v250, v11, %s ; #b2" % sp(P_B2), "v_lshrrev_b32 v13, 4, v1"])
        G.append(["v_mul_u32_u24 v11, 176, v9", "v_lshl_add_u32 v11, v13, 3, v11", "v_add_u32 v249, %d, v11" % LDS_H])
        G.append(["s_mul_i32 s60, s%d, %d" % (S_SB, 64 * 1280), "s_mul_i32 s61, s%d, 160" % S_DB, "s_add_u32 s60, s60, s61",
                  "v_mul_u32_u24 v11, 1280, v9"])
        G.append(["v_lshrrev_b32 v9, 1, v13", "v_lshl_add_u32 v11, v9, 4, v11", "v_add_u32 v11, s60, v11", "v_add_u32 v247, 64, v11"])
        G.append(["v_and_b32 v13, 1, v13", "v_lshl_add_u32 v246, v13, 5, v11", "v_add_u32 v248, 96, v246"])
        W = [["@wait htile"]]
        for j in range(3):
            for p in range(4):
                W.append(["ds_write_b16 v%d, a%d offset:%d" % (251 + j, 224 + 4 * j + p, (2 * p) * 176),
                          "ds_write_b16_d16_hi v%d, a%d offset:%d" % (251 + j, 224 + 4 * j + p, (2 * p + 1) * 176)])
        W.append(["@wait b2", "v_lshlrev_b32 v250, 16, v250"])
        return G, W

    def back_half(self):
        a = self.a
        one = lambda L: [[x] for x in L]
        N2 = 5
        MA, MB = [0, 1, 2], [3, 4]
        a.label("L_win2")
        for t in self.wl_tr(4, 4):
            a(t)
        a("s_lshl_b32 s54, s%d, 14" % S_WAVE)
        a("s_waitcnt lgkmcnt(0)")
        for nt in range(4):
            a("v_add_u32 v%d, s54, v%d" % (WT + nt, WT + nt))
        a("s_barrier")
        self.wl_dma_loop(3456, N2, 32768)
        a("v_add_u32 v233, 0x18000, v233")
        a("global_load_dword v247, v233, %s sc1" % sp(P_FL))
        self.phase4_pre()
        self.stamp("win2")
        self.phase4(N2)
        a("s_lshl_b32 s90, s%d, 5" % S_K2)
        a("s_lshl_b32 s91, s%d, 7" % S_SB)
        self.wl_setup(P_W2, 4096, 90, 91, None)
        a("s_waitcnt lgkmcnt(0)")
        self.wl_dma_loop(4096, 5, 32768)
        self.flag_store(2, wait="vmcnt(20)")
        self.g_common_setup()
        self.stamp("win3")
        lg = self.lab("nog1")
        a("s_cmp_eq_u32 s%d, 0" % S_G1)
        a("s_cbranch_scc1 %s" % lg)
        self.g1_setup()
        sched0 = len(a.ins)
        qA, qB, qC, qD = 0, 48, 80, 122
        def fr(name, q, mts, n, after=()):
            return [dict(ins=[self.frag_load(name, q, mts, i)], tag="%s_%d" % (name, i // len(mts)),
                         after=list(after) + (["free%d" % (q + i - self.NP)] if q + i >= self.NP else [])) for i in range(n)]
        def dmaops(groups, tag, afterf):
            return [dict(ins=g, tag="%s%d" % (tag, n // 2) if n & 1 else "x", kb=2, after=afterf(n // 2)) for n, g in enumerate(groups)]
        trw = one(self.wl_tr(13, 3, slot0=4096 * 5))
        def bgA(s):
            if s < 3: return trw[8 * s:8 * s + 8]
            if s == 7: return [["v_lshlrev_b32 v250, 16, v252", "v_and_b32 v251, 0xffff0000, v252"],
                               ["v_lshlrev_b32 v252, 16, v253", "v_and_b32 v253, 0xffff0000, v253"],
                               ["v_mov_b32 v10, %s" % f32(-2.0 * 0.7978845608028654 * LOG2E),
                                "v_mov_b32 v12, %s" % f32(-2.0 * 0.7978845608028654 * LOG2E * 0.044715)]]
            if s == 12: return [["s_waitcnt lgkmcnt(0)"]]
            return []
        self.gpass("g1a", 16, MA, True, qA, 0, bgA)
        def pd2():
            l = self.lab("pd2")
            a("@mark noins")
            a("s_cmp_lg_u32 s%d, 0" % S_WAVE)
            a("s_cbranch_scc1 %s" % l)
            a("s_mov_b64 exec, 1")
            a("global_store_dword v249, v9, %s sc1 ; #cond" % sp(P_FL))
            a("s_mov_b64 exec, -1")
            a("@mark noins")
            a.label(l)
            a("@mark ins")
        self.epilogue(1, MA, post=pd2)
        self.stamp("g1ae")
        tr0 = self.wl_tr(0, 5)
        tr1 = self.wl_tr(5, 5)
        fa = self.g2_flag_addr()
        FS = int(os.environ.get("FS", "8"))
        def bgB(s):
            L = []
            if 3 <= s <= 7:
                L += [["s_waitcnt lgkmcnt(8)" if s <= 5 else "s_waitcnt lgkmcnt(0)", "@mark s0_%d" % (s - 3)]]
            if 1 <= s <= 5:
                L += one(tr0[8 * (s - 1):8 * s])
            if s == 0:
                L += fa + self.g2_addr(MA)
            if s == FS - 3:
                L += one(self.g2_flag_loads())
            if s >= 11:
                L += [["@wait w2b%d" % (s - 11)]] + one(tr1[8 * (s - 11):8 * (s - 10)])
            return L
        self.gpass("g1b", 16, MB, True, qB, 32, bgB, hook={FS: lambda: self.g2_check("@wait g2fl")})
        def midB():
            for g in self.g2_addr(MB):
                for t in g:
                    a(t)
            a("@mark g2b_ok")
        self.epilogue(1, MB, mid=midB, post=lambda: a("@mark s1"))
        self.stamp("g1be")
        a("@mark preg2a")
        a.label("L_g2a")
        dm2 = self.wl_dma_groups(4096, 4, 32768, tag="w2c")
        dm2[5] = dm2[5][:2] + ["s_lshl_b32 s83, s%d, 17" % S_SHORT, "s_sub_u32 s83, %d, s83" % (32 * 4096),
                               "s_add_u32 s80, s80, s83", "s_addc_u32 s81, s81, 0"]
        tr2 = self.wl_tr(10, 4)
        LG, LW = self.g2_late_setup()
        def bgC(s):
            L = []
            if s < 5:
                L += LG[4 * s:4 * s + 4]
            if 5 <= s <= 8:
                L += [["@wait w2c%d" % (s - 5)]] + one(tr2[8 * (s - 5):8 * (s - 4)])
            if s == 9:
                L += [["s_waitcnt lgkmcnt(0)"]] + LW[:5]
            if s == 10:
                L += LW[5:10]
            if s == 11:
                L += LW[10:]
            return L
        self.gpass("g2a", 14, MA, False, qC, 33, bgC, s_short=S_SHORT)
        a("@mark ins")
        self.epilogue(2, MA, post=lambda: a("@mark ga_pub"))
        self.stamp("g2ae")
        self.gpass("g2b", 14, MB, False, qD, 28, None, s_short=S_SHORT)
        self.epilogue(2, MB)
        self.stamp("g2be")
        A1 = fr("g1a", qA, MA, 48)
        B1 = fr("g1b", qB, MB, 32)
        A2 = fr("g2a", qC, MA, 42, after=["g2a_ok"])
        B2 = fr("g2b", qD, MB, 28, after=["g2b_ok", os.environ.get("B2M", "free%d" % (qC + 20))])
        D1 = dmaops(self.wl_dma_groups(4096, 5, 32768, tag="w2b"), "w2b", lambda k: ["s0_%d" % k])
        D2 = dmaops(dm2, "w2c", lambda k: ["s1"])
        ops = A1 + B1 + D1 + A2[:15] + D2 + A2[15:] + B2
        self.schedule(sched0, ops)
        lab = [n for n, i in enumerate(a.ins) if i.islabel and i.op == "L_g2a"][0]
        pre = [i.text.split(';')[0] for i in a.ins[sched0:lab] if '#g2a_' in i.text or '#g2b_' in i.text]
        st = [n for n, i in enumerate(a.ins[:lab]) if i.text == dm2[0][0] and n > sched0]
        texts = [i.text for i in a.ins[sched0:lab]]
        npre_d = 0
        for n, g in enumerate(dm2):
            key = [x for x in g if 'load_lds' in x][-1]
            if n & 1 and key in texts: npre_d = n + 1
        cnt_lds = sum(1 for x in texts if 'load_lds' in x) - 20
        npre_d = cnt_lds // 2
        self.pre_inactive = (pre, dm2[:npre_d])
        self.inactive = (lg, qC, MA)

    def inactive_path(self):
        a = self.a
        lg, qC, MA = self.inactive
        a.label(lg)
        a("s_lshl_b32 s60, s%d, 2" % S_XCD)
        a("s_and_b32 s61, s%d, 3" % S_IDX)
        a("s_add_u32 s60, s60, s61")
        a("s_mul_i32 s60, s60, 6")
        a("s_lshl_b32 s61, s%d, 5" % S_K2)
        a("s_add_u32 s60, s60, s61")
        a("s_add_u32 s60, s60, 256")
        a("v_lshrrev_b32 v2, 5, v1")
        a("v_add_u32 v2, s60, v2")
        for i in range(3):
            a("v_add_u32 v3, %d, v2" % (2 * i))
            a("v_min_u32 v3, 1727, v3")
            a("v_lshl_add_u32 v3, v3, 12, v232")
            a("global_load_dword v254, v3, %s" % sp(P_W2))
        a("s_waitcnt vmcnt(0)")
        for t in self.wl_tr(0, 5):
            a(t)
        a("s_waitcnt lgkmcnt(0)")
        self.wl_dma_loop(4096, 5, 32768)
        for g in self.g2_flag_addr():
            for t in g:
                a(t)
        a("s_waitcnt vmcnt(0)")
        for t in self.wl_tr(5, 5):
            a(t)
        for t in self.g2_flag_loads():
            a(t.split(';')[0])
        a("s_mov_b32 s69, 0")
        self.g2_check("s_waitcnt vmcnt(0) lgkmcnt(0)")
        for g in self.g2_addr([0, 1, 2, 3, 4]):
            for t in g:
                a(t)
        for g in self.pre_inactive[1]:
            for t in g:
                a(t.split(';')[0])
        a("s_sleep %s" % os.environ.get("SLI", "60"))
        for t in self.pre_inactive[0]:
            a(t)
        a("s_waitcnt vmcnt(0)")
        a("s_branch L_g2a")

    def finish(self):
        a = self.a
        if self.timing:
            a("s_memrealtime s[98:99]")
            a("s_waitcnt lgkmcnt(0)")
            a("v_writelane_b32 v255, s98, 63")
            a("s_lshl_b32 s54, s2, 2")
            a("s_add_u32 s54, s54, s%d" % S_WAVE)
            a("s_lshl_b32 s54, s54, 8")
            a("s_add_u32 s54, s54, 0x%x" % WS_TIME)
            a("v_lshl_add_u32 v2, v1, 2, s54")
            a("global_store_dword v2, v255, %s" % sp(P_WS))
        if os.environ.get("DIAG"):
            a("v_mov_b32 v250, 0")
            a("global_load_dword v251, v250, %s sc1" % sp(P_DBG))
            a("s_waitcnt vmcnt(0)")
            a("v_readfirstlane_b32 s100, v251")
            a("s_nop 3")
            ld = self.lab("diag")
            if os.environ["DIAG"] == "1":
                a("s_cmp_eq_u32 s100, 1")
            else:
                a("s_bcnt1_i32_b32 s100, s100")
                a("s_cmp_eq_u32 s100, 1")
            a("s_cbranch_scc1 %s" % ld)
            for k in range(8):
                a("s_sleep 127")
            a.label(ld)
        l = self.lab("nn")
        a("s_or_b32 s54, s2, s%d" % S_WAVE)
        a("s_cmp_lg_u32 s54, 0")
        a("s_cbranch_scc1 %s" % l)
        a("v_mov_b32 v2, 0")
        a("v_mov_b32 v3, s%d" % S_TAG)
        a("s_mov_b64 exec, 1")
        a("global_store_dword v2, v3, %s" % sp(P_WS))
        a.label(l)
        a.label("L_end")
        a("s_endpgm")

    def build(self):
        self.phase0()
        self.phase1()
        self.phase2()
        self.phase3()
        self.back_half()
        self.finish()
        self.helper()
        self.inactive_path()
        self.a.label("L_codeend")
        self.emit_slowpaths()
        self.a("s_endpgm")
        body = self.a.finalize()
        hdr = open("cdna_kernels/%s.s.ref" % NAME).read().split("; Override launch")[0]
        hdr += "; @launch grid=(256,1,1) block=(256,1,1) lds=%d\n" % LDS_TOTAL
        hdr += '.amdgcn_target "amdgcn-amd-amdhsa--gfx950"\n.text\n.globl %s_kernel\n.p2align 8\n.type %s_kernel,@function\n%s_kernel:\n' % (NAME, NAME, NAME)
        ftr = """.section .rodata,"a"
.p2align 6
.amdhsa_kernel %s_kernel
  .amdhsa_next_free_vgpr 512
  .amdhsa_next_free_sgpr 102
  .amdhsa_accum_offset 256
  .amdhsa_group_segment_fixed_size 0
  .amdhsa_kernarg_size 120
  .amdhsa_user_sgpr_count 2
  .amdhsa_user_sgpr_kernarg_segment_ptr 1
  .amdhsa_system_sgpr_workgroup_id_x 1
.end_amdhsa_kernel
""" % NAME
        return hdr + body + ftr


if __name__ == "__main__":
    import argparse
    ap = argparse.ArgumentParser()
    ap.add_argument("-o", default="k.s")
    ap.add_argument("--timing", action="store_true")
    args = ap.parse_args()
    g = Gen(timing=args.timing)
    open(args.o, "w").write(g.build())
    if args.timing:
        open(args.o + ".names", "w").write(",".join(g.names))
```

```python
import sys, struct, os
from asmdsl import Asm

NAME = "sequential_preLN__ssm_conv_s4d__mixer_token_mlp__prompt"

def f32(x):
    return "0x%08x" % struct.unpack("<I", struct.pack("<f", x))[0]

LOG2E = 1.4426950408889634
INV2PI = 0.15915494309189535

WS_FL = 0x10000
WS_UT = 0x100000
WS_H2 = 0x380000
WS_YT = 0x600000
WS_HP = 0x900000
WS_G = 0xB80000
P2A = 7
P2KB = 19
WS_DBG = 0x1000000
WS_TIME = 0x2000000

ESTR = 528
E1SZ = 21 * ESTR
ECH = E1SZ + 32 * ESTR
LDS_E = 0
CSTR = 4640
CCH = 4 * CSTR
LDS_C = 84224
USTR = 4224
LDS_U = 139904
LDS_XR = LDS_U
XRS = 1344
LDS_SR = 152576
LDS_SC = 152704
LDS_SHP = 65536
LDS_SHF = 81920
OWNS = 24576 + 64
OHS = 12288 + 64
LDS_OWN = LDS_C
LDS_LN = 160000
LDS_MID = 81920
LDS_H = 147456
LDS_TOTAL = 163840

S_WAVE, S_XCD, S_IDX, S_OCT = 3, 4, 5, 6
S_CF, S_PAR, S_TAG = 7, 9, 10
P_UT, P_H2 = 12, 14
P_X, P_LOGA, P_AIM, P_CR, P_CI, P_LDT, P_DSK = 16, 18, 20, 22, 24, 26, 28
P_W1, P_B1, P_W2, P_B2, P_OUT, P_DBG, P_WS = 32, 34, 36, 38, 40, 42, 44
P_YT, P_HP, P_G, P_FL = 46, 48, 50, 52
S_DB, S_FB, S_SB, S_G1 = 76, 77, 78, 79
S_DB2 = 75
NT = os.environ.get('NT', '')
NT2 = os.environ.get('NT2', '')
NTX = os.environ.get('NTX', '')
S_K2, S_SHORT = 92, 93
XG, TG = 200, 212
WD, WT = 234, 238
ACC0, SLOT0, NSLOT = 14, 94, 7
QA, QB = [7, 4, 3, 0], [6, 5, 2, 1]
SPIN = 200000
CK1 = int(os.environ.get('CK1', '0'))
MERGE = int(os.environ.get('MERGE', '2'))
TLBW = int(os.environ.get('TLBW', '1'))
BGX = os.environ.get('BGX', 'zh')

def sp(n): return "s[%d:%d]" % (n, n + 1)
def vp(n): return "v[%d:%d]" % (n, n + 1)
def v4(n): return "v[%d:%d]" % (n, n + 3)
def a4(n): return "a[%d:%d]" % (n, n + 3)
def a2(n): return "a[%d:%d]" % (n, n + 1)


class Gen:
    def __init__(self, debug=0, timing=False):
        self.a = Asm()
        self.debug = debug
        self.timing = timing
        self.nstamp = 0
        self.names = []
        self.uid = 0
        self.slowpaths = []

    def lab(self, base):
        self.uid += 1
        return "L_%s_%d" % (base, self.uid)

    def stamp(self, name=""):
        if not self.timing:
            return
        a = self.a
        a("s_memrealtime s[98:99]" if os.environ.get("RT") else "s_memtime s[98:99]")
        a("s_waitcnt lgkmcnt(0)")
        a("v_writelane_b32 v255, s98, %d" % self.nstamp)
        if self.nstamp >= 30:
            pass
        elif self.nstamp >= len(self.names):
            self.names.append(name)
        else:
            self.names[self.nstamp] += "/" + name
        self.nstamp += 1

    def weave(self, mark, bg, lo=0.0, hi=1.0):
        a = self.a
        seg = a.ins[mark:]
        del a.ins[mark:]
        n = len(seg)
        pos = [int(n * (lo + (hi - lo) * (k + 0.5) / len(bg))) for k in range(len(bg))]
        k = 0
        for i, ins in enumerate(seg):
            while k < len(bg) and pos[k] <= i:
                for t in bg[k]:
                    a(t)
                k += 1
            a.ins.append(ins)
        while k < len(bg):
            for t in bg[k]:
                a(t)
            k += 1

    def cmuls(self, lst):
        a = self.a
        for d, x, y in lst:
            a("v_pk_mul_f32 %s, %s, %s op_sel:[0,0] op_sel_hi:[0,1]" % (vp(d), vp(x), vp(y)))
        for d, x, y in lst:
            a("v_pk_fma_f32 %s, %s, %s, %s op_sel:[1,1,0] op_sel_hi:[1,0,1] neg_lo:[0,1,0]" % (vp(d), vp(x), vp(y), vp(d)))

    def cexps(self, items, tmp):
        a = self.a
        for n, (d, k, ar, ap) in enumerate(items):
            t = tmp + 2 * n
            a("v_mul_f32 v%d, %s, v%d" % (t, f32(float(2 ** k)), ar))
            a("v_mul_f32 v%d, %s, v%d" % (t + 1, f32(float(2 ** k)), ap))
        for n, it in enumerate(items):
            t = tmp + 2 * n
            a("v_exp_f32 v%d, v%d" % (t, t))
            a("v_fract_f32 v%d, v%d" % (t + 1, t + 1))
        for n, it in enumerate(items):
            t = tmp + 2 * n
            a("v_cos_f32 v%d, v%d" % (it[0], t + 1))
            a("v_sin_f32 v%d, v%d" % (it[0] + 1, t + 1))
        for n, it in enumerate(items):
            t = tmp + 2 * n
            a("v_pk_mul_f32 %s, %s, %s op_sel:[0,0] op_sel_hi:[0,1]" % (vp(it[0]), vp(t), vp(it[0])))

    def rowreduce16(self, regs, op="v_add_f32"):
        a = self.a
        for mode in ("quad_perm:[1,0,3,2]", "quad_perm:[2,3,0,1]", "row_half_mirror", "row_mirror"):
            for r in regs:
                a("%s_dpp v%d, v%d, v%d %s row_mask:0xf bank_mask:0xf" % (op, r, r, r, mode))

    def bf16_round(self, d, s):
        a = self.a
        a("v_cvt_pk_bf16_f32 v%d, v%d, v%d" % (d, s, s))
        a("v_and_b32 v%d, 0xffff0000, v%d" % (d, d))

    def spin_tail(self, lp, lok, sleep):
        a = self.a
        a("s_add_u32 s69, s69, 1")
        a("s_cmp_gt_u32 s69, %d" % SPIN)
        a("s_cbranch_scc1 %s" % lok)
        a("s_sleep %d" % sleep)
        a("s_branch %s" % lp)

    def wait_w3(self, n, extra):
        a = self.a
        if 'z' in BGX:
            a("s_waitcnt vmcnt(%d)%s" % (n, extra))
            return
        l = self.lab("ww3")
        a("s_waitcnt vmcnt(%d)%s" % (n + 4, extra))
        a("s_cmp_eq_u32 s%d, 3" % S_WAVE)
        a("s_cbranch_scc1 %s" % l)
        a("s_waitcnt vmcnt(%d)" % n)
        a.label(l)

    def pf_w1(self):
        a = self.a
        a("global_load_dword v254, v231, %s %s" % (sp(P_W1), NT))
        a("v_add_u32 v231, %d, v231" % (256 * 3456))

    def flag_store(self, arr, per_wave=True, wait="vmcnt(0)"):
        a = self.a
        a("s_lshl_b32 s54, s%d, 7" % S_OCT)
        if arr:
            a("s_add_u32 s54, s54, %d" % (arr * 0x8000))
        if per_wave:
            a("s_lshl_b32 s55, s%d, 2" % S_WAVE)
            a("s_add_u32 s54, s54, s55")
        a("v_mov_b32 v2, s54")
        a("v_mov_b32 v3, s%d" % S_TAG)
        if wait:
            a("s_waitcnt %s" % wait)
        a("s_mov_b64 exec, 1")
        a("global_store_dword v2, v3, %s sc1" % sp(P_FL))
        a("s_mov_b64 exec, -1")

    def phase0(self):
        a = self.a
        a("s_cmp_ge_u32 s2, 256")
        a("s_cbranch_scc1 L_end")
        a("s_load_dwordx16 s[16:31], s[0:1], 0")
        a("s_load_dwordx8 s[32:39], s[0:1], 64")
        a("s_load_dwordx4 s[40:43], s[0:1], 96")
        a("s_load_dwordx2 s[44:45], s[0:1], 112")
        a("s_getpc_b64 s[94:95]")
        a.label("L_pc")
        a("v_lshrrev_b32 v2, 6, v0")
        a("v_and_b32 v1, 63, v0")
        a("v_readfirstlane_b32 s%d, v2" % S_WAVE)
        a("s_and_b32 s%d, s2, 7" % S_XCD)
        a("s_lshr_b32 s%d, s2, 3" % S_IDX)
        a("s_lshl_b32 s%d, s%d, 5" % (S_OCT, S_XCD))
        a("s_add_u32 s%d, s%d, s%d" % (S_OCT, S_OCT, S_IDX))
        a("s_lshl_b32 s54, s%d, 4" % S_IDX)
        a("v_add_u32 v3, s54, v0")
        a("v_lshlrev_b32 v3, 7, v3")
        a("v_min_u32 v3, (L_codeend-L_pc-4), v3")
        a("v_cmp_gt_u32 vcc, 16, v0")
        a("s_and_saveexec_b64 s[54:55], vcc")
        lq = self.lab("cpf")
        a("s_cbranch_execz %s" % lq)
        a("global_load_dword v254, v3, s[94:95]")
        a.label(lq)
        a("s_mov_b64 exec, -1")
        a("s_mul_i32 s54, s%d, 80" % S_XCD)
        a("s_min_u32 s55, s%d, 26" % S_IDX)
        a("s_mul_i32 s55, s55, 3")
        a("s_add_u32 s%d, s54, s55" % S_CF)
        a("s_lshl_b32 s54, s%d, 3" % S_OCT)
        a("s_lshl_b32 s55, s%d, 1" % S_WAVE)
        a("s_add_u32 s54, s54, s55")
        a("v_lshrrev_b32 v9, 5, v1")
        a("v_add_u32 v4, s54, v9")
        a("v_mul_u32_u24 v4, 1280, v4")
        a("v_and_b32 v5, 31, v1")
        a("v_lshl_add_u32 v4, v5, 3, v4")
        a("v_add_u32 v9, s55, v9")
        a("v_mul_u32_u24 v8, %d, v9" % XRS)
        a("v_lshl_add_u32 v8, v5, 3, v8")
        a("v_add_u32 v8, %d, v8" % LDS_XR)
        a("s_min_u32 s56, s%d, 2" % S_WAVE)
        a("s_add_u32 s56, s56, s%d" % S_CF)
        a("s_min_u32 s56, s56, 639")
        a("s_lshl_b32 s57, s56, 8")
        a("v_lshl_add_u32 v6, v1, 2, s57")
        a("v_lshlrev_b32 v7, 1, v0")
        a("v_min_u32 v181, 159, v0")
        a("v_lshrrev_b32 v182, 2, v181")
        a("v_mul_u32_u24 v183, 13108, v182")
        a("v_lshrrev_b32 v183, 16, v183")
        a("v_mul_u32_u24 v183, 27, v183")
        a("v_add3_u32 v182, v182, v183, 27")
        a("v_and_b32 v181, 3, v181")
        a("v_lshlrev_b32 v181, 2, v181")
        a("v_lshl_add_u32 v233, v182, 7, v181")
        a("v_add_u32 v233, 0x8000, v233")
        a("s_mul_i32 s61, s%d, 27" % S_XCD)
        a("s_add_u32 s62, s61, 26")
        a("s_lshr_b32 s61, s61, 3")
        a("s_lshr_b32 s62, s62, 3")
        a("v_and_b32 v231, 7, v1")
        a("v_add_u32 v231, s61, v231")
        a("v_min_u32 v231, s62, v231")
        a("s_lshl_b32 s61, s%d, 9" % S_WAVE)
        a("s_lshl_b32 s62, s%d, 3" % S_IDX)
        a("s_add_u32 s61, s61, s62")
        a("v_lshrrev_b32 v232, 3, v1")
        a("v_add_u32 v232, s61, v232")
        a("v_mul_u32_u24 v232, 3456, v232")
        a("v_lshl_add_u32 v231, v231, 7, v232")
        a("s_mul_i32 s61, s%d, 448" % S_WAVE)
        a("s_min_u32 s61, s61, 1312")
        a("s_mul_i32 s62, s%d, 5" % S_IDX)
        a("s_add_u32 s61, s61, s62")
        a("v_lshrrev_b32 v232, 2, v1")
        a("v_min_u32 v232, 4, v232")
        a("v_add_u32 v232, s61, v232")
        a("v_lshlrev_b32 v232, 12, v232")
        a("v_and_b32 v183, 3, v1")
        a("v_lshl_add_u32 v232, v183, 7, v232")
        a("s_lshl_b32 s61, s%d, 9" % S_XCD)
        a("v_add_u32 v232, s61, v232")
        if self.timing:
            a("v_mov_b32 v255, 0")
        a("s_waitcnt lgkmcnt(0)")
        self.stamp("start")
        if self.timing:
            a("s_memrealtime s[98:99]")
            a("s_waitcnt lgkmcnt(0)")
            a("v_writelane_b32 v255, s98, 62")
        for k in range(5):
            a("global_load_dwordx2 %s, v4, %s offset:%d %s" % (vp(10 + 2 * k), sp(P_X), 256 * k, NTX))
        a("global_load_ushort v228, v7, %s" % sp(P_DSK))
        a("global_load_ushort v229, v7, %s offset:512" % sp(P_DSK))
        a("v_min_u32 v7, 254, v7")
        a("global_load_ushort v230, v7, %s offset:1024" % sp(P_DSK))
        for n, p in enumerate((P_LOGA, P_AIM, P_CR, P_CI)):
            a("global_load_dword v%d, v6, %s %s" % (224 + n, sp(p), NTX))
        if 'a' in BGX:
            a("global_load_dword v254, v231, %s %s" % (sp(P_W1), NT))
        a("s_load_dword s%d, %s, 0" % (S_TAG, sp(P_WS)))
        a("s_lshl_b32 s57, s56, 1")
        a("s_and_b32 s57, s57, 0xfffffffc")
        a("s_load_dword s59, %s, s57" % sp(P_LDT))
        for p, off in ((P_YT, WS_YT), (P_HP, WS_HP), (P_G, WS_G), (P_FL, WS_FL), (P_UT, WS_UT), (P_H2, WS_H2)):
            a("s_add_u32 s%d, s%d, 0x%x" % (p, P_WS, off))
            a("s_addc_u32 s%d, s%d, 0" % (p + 1, P_WS + 1))
        a("s_mul_i32 s54, s%d, 27" % S_XCD)
        a("s_min_u32 s55, s%d, 26" % S_IDX)
        a("s_add_u32 s54, s54, s55")
        a("s_lshr_b32 s%d, s54, 3" % S_FB)
        a("s_and_b32 s%d, s54, 7" % S_DB)
        a("s_lshl_b32 s54, s%d, 2" % S_XCD)
        a("s_lshr_b32 s55, s%d, 3" % S_IDX)
        a("s_add_u32 s%d, s54, s55" % S_SB)
        a("s_and_b32 s%d, s%d, 7" % (S_DB2, S_IDX))
        a("s_mov_b32 s%d, 1" % S_G1)
        a("s_cmp_ge_u32 s%d, 27" % S_IDX)
        a("s_cmov_b32 s%d, 0" % S_G1)
        a("s_mul_i32 s%d, s%d, 14" % (S_K2, S_WAVE))
        a("s_lshr_b32 s%d, s%d, 1" % (S_SHORT, S_WAVE))
        a("s_cmp_eq_u32 s%d, 3" % S_WAVE)
        a("s_cmov_b32 s%d, 41" % S_K2)

    def phase1(self):
        a = self.a
        a("v_mov_b32 v24, 0")
        a("v_mov_b32 v25, 0")
        a("v_mov_b32 v26, 0x3f803f80")
        a("v_bfe_u32 v27, v1, 2, 2")
        a("v_mul_u32_u24 v27, %d, v27" % XRS)
        a("v_lshrrev_b32 v28, 4, v0")
        a("v_lshl_add_u32 v27, v28, 5, v27")
        a("v_and_b32 v28, 3, v1")
        a("v_lshl_add_u32 v27, v28, 3, v27")
        a("v_add_u32 v27, %d, v27" % LDS_XR)
        a("v_lshlrev_b32 v29, 2, v9")
        a("v_add_u32 v29, %d, v29" % LDS_SR)
        a("v_mov_b32 v30, %d" % LDS_SR)
        a("s_mul_i32 s58, s%d, 10240" % S_OCT)
        a("v_lshl_add_u32 v2, v0, 4, s58")
        a("v_add_u32 v3, 4096, v2")
        a("v_add_u32 v4, 8192, v2")
        a("s_waitcnt vmcnt(%d) lgkmcnt(0)" % (8 if "a" in BGX else 7))
        for k in range(5):
            a("ds_write_b64 v8, %s offset:%d" % (vp(10 + 2 * k), 256 * k))
        for k in range(10):
            a("v_dot2_f32_bf16 v24, v%d, v26, v24" % (10 + k))
            a("v_dot2_f32_bf16 v25, v%d, v%d, v25" % (10 + k, 10 + k))
        a("s_mul_i32 s%d, s%d, 1664525" % (S_TAG, S_TAG))
        a("s_add_u32 s%d, s%d, 1013904223" % (S_TAG, S_TAG))
        a("s_nop 1")
        self.rowreduce16([24, 25])
        a("v_mov_b32 v31, v24")
        a("v_mov_b32 v32, v25")
        a("v_permlane16_swap_b32 v24, v31")
        a("v_permlane16_swap_b32 v25, v32")
        a("v_add_f32 v24, v24, v31")
        a("v_add_f32 v25, v25, v32")
        a("v_mul_f32 v24, %s, v24" % f32(1.0 / 640))
        a("v_mul_f32 v25, %s, v25" % f32(1.0 / 640))
        a("v_fma_f32 v25, -v24, v24, v25")
        a("v_max_f32 v25, 0, v25")
        self.bf16_round(25, 25)
        self.bf16_round(24, 24)
        a("v_add_f32 v25, %s, v25" % f32(1e-5))
        self.bf16_round(25, 25)
        a("v_sqrt_f32 v25, v25")
        self.bf16_round(25, 25)
        a("v_rcp_f32 v25, v25")
        a("ds_write_b32 v29, v24")
        a("ds_write_b32 v29, v25 offset:32")
        a("s_waitcnt lgkmcnt(0)")
        a("s_barrier")
        self.stamp("stats")
        for j in range(3):
            for hh in range(2):
                a("ds_read_b64_tr_b16 %s, v27 offset:%d" % (vp(XG + 4 * j + 2 * hh), 512 * j + 4 * XRS * hh))
        for q in range(4):
            a("ds_read_b128 %s, v30 offset:%d" % (v4(32 + 4 * q), 16 * q))
        W = lambda n: 48 + 2 * n
        it = [(j, p) for j in range(3) for p in range(4)]
        def unpack(srcf):
            for n in range(12):
                a("v_lshlrev_b32 v%d, 16, v%d" % (W(n), srcf(n)))
                a("v_and_b32 v%d, 0xffff0000, v%d" % (W(n) + 1, srcf(n)))
        def cvt(dstf, op="v_cvt_pk_bf16_f32"):
            for n in range(12):
                a("%s v%d, v%d, v%d" % (op, dstf(n), W(n), W(n) + 1))
        a("s_waitcnt lgkmcnt(4)")
        unpack(lambda n: XG + n)
        a("s_waitcnt lgkmcnt(0)")
        for n, (j, p) in enumerate(it):
            a("v_pk_add_f32 %s, %s, %s neg_lo:[0,1] neg_hi:[0,1]" % (vp(W(n)), vp(W(n)), vp(32 + 2 * p)))
        cvt(lambda n: 72 + n)
        unpack(lambda n: 72 + n)
        for n, (j, p) in enumerate(it):
            a("v_pk_mul_f32 %s, %s, %s" % (vp(W(n)), vp(W(n)), vp(40 + 2 * p)))
        cvt(lambda n: 72 + n)
        unpack(lambda n: 72 + n)
        cvt(lambda n: 84 + n, "v_cvt_pk_f16_f32")
        a("s_waitcnt vmcnt(%d)" % (1 if "a" in BGX else 0))
        a("global_store_dwordx4 v2, v[84:87], %s sc1" % sp(P_UT))
        a("global_store_dwordx4 v3, v[88:91], %s sc1" % sp(P_UT))
        l = self.lab("ut3")
        a("s_cmp_ge_u32 s%d, 2" % S_WAVE)
        a("s_cbranch_scc1 %s" % l)
        a("global_store_dwordx4 v4, v[92:95], %s sc1" % sp(P_UT))
        a.label(l)
        for j in range(3):
            a("v_lshlrev_b32 v%d, 16, v%d" % (100 + 2 * j, 228 + j))
        for n, (j, p) in enumerate(it):
            a("v_pk_mul_f32 %s, %s, %s op_sel_hi:[1,0]" % (vp(W(n)), vp(W(n)), vp(100 + 2 * j)))
        cvt(lambda n: TG + n)
        self.stamp("utstore")

    def wl_setup(self, ptr, rs, row0_sgpr, col_sgpr, stage_shift, tmp=2):
        a = self.a
        T2, T3, T4 = "v%d" % tmp, "v%d" % (tmp + 1), "v%d" % (tmp + 2)
        aa = lambda x: a(x.replace("V2", T2).replace("V3", T3).replace("V4", T4))
        aa("v_lshrrev_b32 V2, 3, v1")
        aa("v_and_b32 V3, 7, v1")
        aa("v_and_b32 V4, 2, V2")
        aa("v_xor_b32 V3, V3, V4")
        aa("v_mul_u32_u24 V2, %d, V2" % rs)
        aa("v_lshl_add_u32 v%d, V3, 4, V2" % WD)
        aa("v_xor_b32 V3, 4, V3")
        aa("v_lshl_add_u32 v%d, V3, 4, V2" % (WD + 1))
        a("v_add_u32 v%d, %d, v%d" % (WD + 1, 8 * rs - 1024, WD + 1))
        a("v_add_u32 v%d, %d, v%d" % (WD + 2, 16 * rs - 2048, WD))
        a("v_add_u32 v%d, %d, v%d" % (WD + 3, 16 * rs - 2048, WD + 1))
        a("s_mul_i32 s54, s%d, %d" % (row0_sgpr, rs))
        a("s_add_u32 s54, s54, s%d" % col_sgpr)
        a("s_add_u32 s80, s%d, s54" % ptr)
        a("s_addc_u32 s81, s%d, 0" % (ptr + 1))
        if stage_shift is not None:
            a("v_lshrrev_b32 v2, 4, v1")
            a("v_bfe_u32 v3, v1, 2, 2")
            a("v_lshl_add_u32 v4, v2, 3, v3")
            a("v_lshlrev_b32 v4, 7, v4")
            a("v_and_b32 v5, 3, v1")
            a("v_lshl_add_u32 v4, v5, 3, v4")
            a("s_mul_i32 s54, s%d, %d" % (S_WAVE, stage_shift))
            a("v_add_u32 v4, s54, v4")
            a("v_lshrrev_b32 v3, 1, v3")
            a("v_and_b32 v2, 1, v2")
            a("v_lshl_add_u32 v2, v2, 1, v3")
            for nt in range(4):
                a("s_add_u32 s54, s%d, %d" % (S_WAVE, nt))
                a("s_and_b32 s54, s54, 3")
                a("v_xor_b32 v3, s54, v2")
                a("v_lshl_add_u32 v%d, v3, 5, v4" % (WT + nt))

    def wl_dma_groups(self, rs, nks, stage_shift, slot0=0, tag="wd"):
        G = []
        for s in range(nks):
            g = []
            if s == 0:
                g.append("s_mul_i32 s82, s%d, %d" % (S_WAVE, stage_shift))
                if slot0:
                    g.append("s_add_u32 s82, s82, %d" % (slot0))
            g.append("s_mov_b32 m0, s82")
            g.append("s_add_u32 s82, s82, 4096")
            g.append("global_load_lds_dwordx4 v%d, s[80:81]" % WD)
            g.append("global_load_lds_dwordx4 v%d, s[80:81] offset:1024" % (WD + 1))
            G.append(g)
            G.append(["global_load_lds_dwordx4 v%d, s[80:81] offset:2048" % (WD + 2),
                      "global_load_lds_dwordx4 v%d, s[80:81] offset:3072 ; #%s%d" % (WD + 3, tag, s),
                      "s_add_u32 s80, s80, %d" % (32 * rs), "s_addc_u32 s81, s81, 0"])
        return G

    def wl_dma_loop(self, rs, count, stage_shift, slot0=0):
        a = self.a
        a("s_mul_i32 s82, s%d, %d" % (S_WAVE, stage_shift))
        if slot0:
            a("s_add_u32 s82, s82, %d" % (slot0))
        a("s_mov_b32 s83, %s" % str(count))
        lp = self.lab("dma")
        a.label(lp)
        a("s_mov_b32 m0, s82 ; #loop")
        a("s_add_u32 s82, s82, 4096")
        for k in range(4):
            a("global_load_lds_dwordx4 v%d, s[80:81] offset:%d" % (WD + k, 1024 * k))
        a("s_add_u32 s80, s80, %d" % (32 * rs))
        a("s_addc_u32 s81, s81, 0")
        a("s_sub_u32 s83, s83, 1")
        a("s_cmp_gt_i32 s83, 0")
        a("s_cbranch_scc1 %s" % lp)

    def wl_tr(self, ks0, nks, slot0=0):
        return ["ds_read_b64_tr_b16 %s, v%d offset:%d" % (a2(((ks0 + s) * 4 + nt) * 4 + 2 * hf), WT + nt, slot0 + s * 4096 + hf * 512)
                for s in range(nks) for nt in range(4) for hf in range(2)]

    def phase2(self):
        a = self.a
        lW3 = self.lab("w3")
        lKd = self.lab("kdone")
        st0 = self.nstamp
        a("s_cmp_ge_u32 s%d, 27" % S_IDX)
        a("s_cbranch_scc1 L_helper")
        a("s_cmp_eq_u32 s%d, 3" % S_WAVE)
        a("s_cbranch_scc1 %s" % lW3)
        a("s_and_b32 s57, s56, 1")
        a("s_lshl_b32 s57, s57, 4")
        a("s_lshr_b32 s59, s59, s57")
        a("s_lshl_b32 s59, s59, 16")
        a("v_mov_b32 v242, %s" % f32(LOG2E))
        a("v_mul_f32 v242, s59, v242")
        a("v_exp_f32 v242, v242")
        a("v_and_b32 v243, 0x7fff7fff, v226")
        a("v_and_b32 v244, 0x7fff7fff, v227")
        a("v_pk_max_u16 v243, v243, v244")
        a("v_lshlrev_b32 v244, 16, v243")
        a("v_max_u32 v243, v243, v244")
        self.bf16_round(242, 242)
        a("v_lshlrev_b32 v246, 16, v224")
        a("v_and_b32 v250, 0xffff0000, v224")
        fill = [["v_mul_f32 v246, %s, v246" % f32(LOG2E), "v_mul_f32 v250, %s, v250" % f32(LOG2E)],
                ["v_exp_f32 v246, v246", "v_exp_f32 v250, v250"],
                ["v_lshlrev_b32 v247, 16, v225", "v_and_b32 v251, 0xffff0000, v225"],
                ["v_mul_f32 v247, v247, v242", "v_mul_f32 v251, v251, v242"]]
        for mode, fl in zip(("quad_perm:[1,0,3,2]", "quad_perm:[2,3,0,1]", "row_half_mirror", "row_mirror"), fill):
            a("v_max_u32_dpp v243, v243, v243 %s row_mask:0xf bank_mask:0xf" % mode)
            for t in fl:
                a(t)
        for sw, r, src in (("v_permlane16_swap_b32", 248, 226), ("v_permlane32_swap_b32", 249, 227)):
            a("v_mov_b32 v244, v243")
            a("v_lshlrev_b32 v%d, 16, v%d" % (r, src))
            a("v_and_b32 v%d, 0xffff0000, v%d" % (r + 4, src))
            a("%s v243, v244" % sw)
            a("v_max_u32 v243, v243, v244")
        self.bf16_round(246, 246)
        self.bf16_round(250, 250)
        a("v_mul_f32 v247, %s, v247" % f32(INV2PI))
        a("v_mul_f32 v251, %s, v251" % f32(INV2PI))
        a("v_mul_f32 v246, v246, v242")
        a("v_mul_f32 v250, v250, v242")
        a("v_mul_f32 v246, %s, v246" % f32(-LOG2E))
        a("v_mul_f32 v250, %s, v250" % f32(-LOG2E))
        SA, SB = 10, 100
        E = lambda S, j: S + 2 * j
        T = lambda S, j: S + 34 + 2 * j
        GK = lambda S, k: S + 66 + 2 * {0: 0, 1: 1, 2: 2, 8: 3, 9: 4, 10: 5, 11: 6}[k]
        self.cexps([(E(SA, 1), 3, 246, 247), (E(SB, 1), 3, 250, 251), (GK(SA, 0), 0, 246, 247), (GK(SB, 0), 0, 250, 251),
                    (GK(SA, 8), 8, 246, 247), (GK(SB, 8), 8, 250, 251)], 180)
        a("v_and_b32 v243, 0x7f800000, v243")
        a("v_max_u32 v243, 0x00800000, v243")
        a("v_min_u32 v243, 0x7e800000, v243")
        a("v_sub_u32 v244, 0x7f800000, v243")
        a("v_mul_f32 v245, v243, v242")
        for r in (248, 249, 252, 253):
            a("v_mul_f32 v%d, v%d, v244" % (r, r))
        a("s_lshl_b32 s54, s%d, 2" % S_WAVE)
        a("s_add_u32 s54, s54, %d" % LDS_SC)
        a("v_mov_b32 v5, s54")
        a("ds_write_b32 v5, v245")
        a("s_mul_i32 s60, s%d, %d" % (S_WAVE, ECH))
        a("v_lshl_add_u32 v6, v1, 3, s60")
        self.flag_store(0)
        self.pf_w1()
        self.stamp("flag")
        mark = len(a.ins)
        tmpn = [0]
        def st(off, ra, rb, neg=False):
            t = 188 + 2 * (tmpn[0] % 6)
            tmpn[0] += 1
            ng = "-" if neg else ""
            return ["v_cvt_pk_f16_f32 v%d, v%d, %sv%d" % (t, ra, ng, ra + 1),
                    "v_cvt_pk_f16_f32 v%d, v%d, %sv%d" % (t + 1, rb, ng, rb + 1),
                    "ds_write_b64 v6, %s offset:%d" % (vp(t), off)]
        sq = lambda d, x: (d, x, x)
        SS = (SA, SB)
        R = lambda S, r: ((248 if S == SA else 252) if r == 0 else S + 2 * r)
        a("v_mov_b32 v196, 0x00003c00")
        a("v_mov_b32 v197, 0x00003c00")
        a("ds_write_b64 v6, v[196:197] offset:%d" % (LDS_E + E1SZ))
        self.cmuls([sq(E(S, 2), E(S, 1)) for S in SS] + [sq(GK(S, 1), GK(S, 0)) for S in SS] + [sq(GK(S, 9), GK(S, 8)) for S in SS])
        self.cmuls([sq(E(S, 4), E(S, 2)) for S in SS] + [(E(S, 3), E(S, 1), E(S, 2)) for S in SS] +
                   [sq(GK(S, 2), GK(S, 1)) for S in SS] + [sq(GK(S, 10), GK(S, 9)) for S in SS])
        m2 = len(a.ins)
        self.cmuls([sq(E(S, 8), E(S, 4)) for S in SS] + [(E(S, 4 + j), E(S, j), E(S, 4)) for j in (1, 2, 3) for S in SS] +
                   [sq(GK(S, 11), GK(S, 10)) for S in SS])
        self.weave(m2, [st(LDS_E + E1SZ + j * ESTR, E(SA, j), E(SB, j)) for j in (1, 2, 3, 4)] + [st(LDS_E, R(SA, 0), R(SB, 0), True)])
        m2 = len(a.ins)
        self.cmuls([sq(E(S, 16), E(S, 8)) for S in SS] + [(E(S, 8 + j), E(S, j), E(S, 8)) for j in range(1, 8) for S in SS])
        self.weave(m2, [st(LDS_E + E1SZ + j * ESTR, E(SA, j), E(SB, j)) for j in (5, 6, 7, 8)])
        m2 = len(a.ins)
        self.cmuls([(T(S, j), E(S, j), E(S, 16)) for j in range(1, 16) for S in SS])
        self.weave(m2, [st(LDS_E + E1SZ + j * ESTR, E(SA, j), E(SB, j)) for j in range(9, 17)])
        R = lambda S, r: ((248 if S == SA else 252) if r == 0 else (S + 2 * r if r <= 16 else S + 80 + 2 * (r - 17)))
        l1 = [(1, 0, 0), (2, 0, 1), (4, 0, 2), (8, 0, 8), (12, 0, 9), (16, 0, 10), (20, 0, 11)]
        l2 = [(3, 1, 1), (5, 1, 2), (6, 2, 2), (9, 2, 8), (10, 4, 8), (13, 4, 9), (14, 8, 9), (17, 8, 10), (18, 12, 10)]
        l3 = [(7, 3, 2), (11, 6, 8), (15, 10, 9), (19, 14, 10)]
        tst = [st(LDS_E + E1SZ + (16 + j) * ESTR, T(SA, j), T(SB, j)) for j in range(1, 16)]
        m2 = len(a.ins)
        self.cmuls([(R(S, d), R(S, x), GK(S, k)) for d, x, k in l1 for S in SS])
        self.weave(m2, tst[:7])
        m2 = len(a.ins)
        self.cmuls([(R(S, d), R(S, x), GK(S, k)) for d, x, k in l2 for S in SS])
        self.weave(m2, tst[7:])
        m2 = len(a.ins)
        self.cmuls([(R(S, d), R(S, x), GK(S, k)) for d, x, k in l3 for S in SS])
        self.weave(m2, [st(LDS_E + d * ESTR, R(SA, d), R(SB, d), True) for d, x, k in l1])
        for d, x, k in l2 + l3:
            for t in st(LDS_E + d * ESTR, R(SA, d), R(SB, d), True):
                a(t)
        self.stamp("Edone")
        a("v_and_b32 v2, 31, v1")
        a("v_lshrrev_b32 v3, 5, v1")
        a("v_mul_u32_u24 v4, %d, v2" % ESTR)
        a("v_lshl_add_u32 v4, v3, 4, v4")
        a("v_add_u32 v4, s60, v4")
        for ks in range(16):
            a("ds_read_b128 %s, v4 offset:%d" % (v4(32 + 8 * ks), LDS_E + ks * 32))
            a("ds_read_b128 %s, v4 offset:%d" % (v4(36 + 8 * ks), LDS_E + E1SZ + ks * 32))
            if ks >= 6:
                k = ks - 6
                a("s_waitcnt lgkmcnt(12)")
                a("v_mfma_f32_32x32x16_f16 v[8:23], %s, %s, %s" % (v4(32 + 8 * k), v4(36 + 8 * k), "0" if k == 0 else "v[8:23]"))
        a("s_mul_i32 s55, s%d, %d" % (S_WAVE, CCH))
        a("s_add_u32 s55, s55, %d" % (LDS_C + 3 * CSTR))
        a("v_lshlrev_b32 v5, 4, v2")
        a("v_sub_u32 v5, s55, v5")
        a("v_lshlrev_b32 v6, 3, v3")
        a("v_sub_u32 v6, v5, v6")
        a("v_lshl_add_u32 v7, v1, 4, s55")
        for r in range(4):
            a("v_mov_b32 v%d, 0" % (164 + r))
        for k in range(10, 16):
            a("s_waitcnt lgkmcnt(%d)" % (2 * (15 - k)))
            a("v_mfma_f32_32x32x16_f16 v[8:23], %s, %s, v[8:23]" % (v4(32 + 8 * k), v4(36 + 8 * k)))
        a("v_cmp_gt_u32 vcc, 34, v1")
        a("s_and_saveexec_b64 s[62:63], vcc")
        a("ds_write_b128 v7, v[164:167] offset:4096")
        a("s_mov_b64 exec, -1")
        a("v_min_u32 v168, 23, v1")
        a("v_lshl_add_u32 v168, v168, 4, s55")
        a("v_add_u32 v168, 4096, v168")
        a("v_subrev_u32 v169, %d, v7" % (3 * CSTR))
        a("v_subrev_u32 v170, %d, v168" % (3 * CSTR))
        for i in range(4):
            a("v_cvt_pk_f16_f32 v%d, v%d, v%d" % (24 + 2 * i, 16 + i, 16 + i))
            a("v_cvt_pk_f16_f32 v%d, v%d, v%d" % (25 + 2 * i, 16 + i, 16 + i))
        for d, x, y in ((32, 13, 13), (34, 13, 12), (35, 12, 12), (36, 15, 15), (38, 15, 14), (39, 14, 14), (40, 14, 13),
                        (41, 12, 12), (42, 11, 10), (43, 9, 8)):
            a("v_cvt_pk_f16_f32 v%d, v%d, v%d" % (d, x, y))
        a("s_mov_b32 exec_hi, 0")
        for i in range(4):
            P = 1020 - 256 * i
            a("ds_write_b64 v5, %s offset:%d" % (vp(24 + 2 * i), 2 * P))
            a("ds_write_b64 v5, %s offset:%d" % (vp(24 + 2 * i), 2 * P + 8))
        a("s_mov_b32 exec_lo, 0x55555555")
        for i in range(4):
            P = 1019 - 256 * i
            a("ds_write_b16 v5, v%d offset:%d" % (24 + 2 * i, 2 * P))
        a("s_mov_b32 exec_lo, 0")
        a("s_mov_b32 exec_hi, 1")
        a("ds_write_b64 v5, %s" % vp(24))
        a("s_mov_b32 exec_hi, -1")
        for i, (bb, ba, aa) in enumerate(((32, 34, 35), (36, 38, 39))):
            P = 2042 - 512 - 256 * i
            a("ds_write_b32 v5, v%d offset:%d" % (bb, 2 * P))
            a("ds_write_b64 v5, %s offset:%d" % (vp(ba), 2 * P + 4))
            a("ds_write_b32 v5, v%d offset:%d" % (aa, 2 * P + 12))
        a("s_mov_b32 exec_lo, -1")
        a("s_mov_b32 exec_hi, 0")
        P = 2041 - 256
        a("ds_write_b16 v5, v36 offset:%d" % (2 * P))
        a("ds_write_b32 v5, v39 offset:%d" % (2 * P + 2))
        a("ds_write_b64 v5, %s offset:%d" % (vp(40), 2 * P + 6))
        a("ds_write_b16 v5, v35 offset:%d" % (2 * P + 14))
        a("s_mov_b64 exec, -1")
        a("ds_write_b64 v6, %s offset:%d" % (vp(42), 2 * 2044))
        self.stamp("Kexp")
        for rnd in range(5):
            b = 44 + 24 * rnd
            src = "v7 offset:%d" % (1024 * rnd) if rnd < 4 else "v168"
            src2 = "v7 offset:%d" % (1024 * rnd + 16) if rnd < 4 else "v168 offset:16"
            a("ds_read_b128 %s, %s" % (v4(b), src))
            a("ds_read_b64 %s, %s" % (vp(b + 4), src2))
        for rnd in range(5):
            b = 44 + 24 * rnd
            a("s_waitcnt lgkmcnt(%d)" % (2 * (4 - rnd) + 3 * rnd))
            for k in range(4):
                a("v_alignbit_b32 v%d, v%d, v%d, 16" % (b + 8 + k, b + k + 1, b + k))
            ad, o = ("v169", 1024 * rnd) if rnd < 4 else ("v170", 0)
            a("ds_write_b128 %s, %s offset:%d" % (ad, v4(b + 8), o + 2 * CSTR))
            for k in range(4):
                a("v_mov_b32 v%d, v%d" % (b + 12 + k, b + k + 1))
            a("ds_write_b128 %s, %s offset:%d" % (ad, v4(b + 12), o + 1 * CSTR))
            for k in range(4):
                a("v_alignbit_b32 v%d, v%d, v%d, 16" % (b + 16 + k, b + k + 2, b + k + 1))
            a("ds_write_b128 %s, %s offset:%d" % (ad, v4(b + 16), o))
        a("s_branch %s" % lKd)
        a.label(lW3)
        self.nstamp = st0
        self.flag_store(0)
        self.pf_w1()
        self.stamp("flag")
        a("s_lshl_b32 s54, s%d, 4" % S_CF)
        for j in range(12):
            a("v_add_u32 v7, %d, v1" % (64 * j))
            a("v_mul_u32_u24 v8, 21846, v7")
            a("v_lshrrev_b32 v8, 16, v8")
            a("v_mul_u32_u24 v9, 3, v8")
            a("v_sub_u32 v9, v7, v9")
            a("v_mul_u32_u24 v%d, 10240, v8" % (100 + j))
            a("v_lshl_add_u32 v%d, v9, 4, v%d" % (100 + j, 100 + j))
            a("v_add_u32 v%d, s54, v%d" % (100 + j, 100 + j))
            a("v_mul_u32_u24 v9, %d, v9" % USTR)
            a("v_lshl_add_u32 v%d, v8, 4, v9" % (112 + j))
            a("v_add_u32 v%d, %d, v%d" % (112 + j, LDS_U + 128, 112 + j))
        a("v_lshlrev_b32 v10, 7, v1")
        for k in range(1, 4):
            a("v_add_u32 v%d, %d, v10" % (10 + k, 8192 * k))
        a("s_waitcnt vmcnt(0)")
        a("s_sleep %d" % int(os.environ.get("SL1", "8")))
        a("s_mov_b32 s69, 0")
        lp, lok = self.lab("flpoll"), self.lab("flok")
        a.label(lp)
        for k in range(4):
            a("global_load_dwordx4 %s, v%d, %s sc1" % (v4(16 + 4 * k), 10 + k, sp(P_FL)))
        a("s_waitcnt vmcnt(0)")
        a("v_xor_b32 v6, s%d, v16" % S_TAG)
        for r in range(17, 32):
            a("v_xor_b32 v7, s%d, v%d" % (S_TAG, r))
            a("v_or_b32 v6, v6, v7")
        a("v_cmp_ne_u32 vcc, 0, v6")
        a("s_cbranch_vccz %s" % lok)
        self.spin_tail(lp, lok, 4)
        a.label(lok)
        if self.timing:
            a("v_writelane_b32 v255, s69, 32")
        self.stamp("flok")
        for j in range(12):
            a("global_load_dwordx4 %s, v%d, %s sc1" % (v4(32 + 4 * j), 100 + j, sp(P_UT)))
        a("v_mov_b32 v6, 0")
        a("v_and_b32 v5, 31, v1")
        a("v_lshlrev_b32 v5, 2, v5")
        a("v_add_u32 v5, %d, v5" % LDS_U)
        for pos in range(3):
            a("ds_write_b32 v5, v6 offset:%d" % (pos * USTR))
        self.conv_setup()
        for j in range(12):
            a("s_waitcnt vmcnt(%d)" % (11 - j))
            a("ds_write_b128 v%d, %s" % (112 + j, v4(32 + 4 * j)))
        self.stamp("gath")
        lK2 = self.lab("kd2")
        a("s_branch %s" % lK2)
        a.label(lKd)
        self.conv_setup()
        a.label(lK2)
        a("s_waitcnt lgkmcnt(0)")
        self.stamp("prebar")
        a("s_barrier")
        self.stamp("kbar")

    def conv_setup(self):
        a = self.a
        a("s_lshl_b32 s90, s%d, 9" % S_WAVE)
        a("s_lshl_b32 s91, s%d, 7" % S_FB)
        self.wl_setup(P_W1, 3456, 90, 91, 16384)
        a("v_and_b32 v2, 15, v1")
        a("v_lshrrev_b32 v3, 4, v1")
        a("v_and_b32 v4, 3, v1")
        a("v_bfe_u32 v5, v1, 2, 2")
        a("v_mul_u32_u24 v6, %d, v4" % CSTR)
        a("v_lshl_add_u32 v6, v3, 4, v6")
        a("v_lshlrev_b32 v7, 7, v5")
        a("v_sub_u32 v6, v6, v7")
        a("v_add_u32 v6, %d, v6" % (LDS_C + 832))
        a("v_lshlrev_b32 v7, 3, v2")
        a("v_lshl_add_u32 v7, v3, 4, v7")
        a("v_add_u32 v7, %d, v7" % (LDS_U + 456))
        for p in range(3):
            a("s_mul_i32 s54, s%d, 6" % S_WAVE)
            a("s_add_u32 s54, s54, %d" % (2 * p + 1))
            a("s_lshr_b32 s55, s54, 3")
            a("s_and_b32 s54, s54, 7")
            a("s_lshl_b32 s54, s54, 6")
            a("s_mul_i32 s60, s55, %d" % CCH)
            a("s_sub_u32 s60, s60, s54")
            a("v_add_u32 v%d, s60, v6" % (194 + 2 * p))
            a("s_mul_i32 s60, s55, %d" % USTR)
            a("s_sub_u32 s60, s60, s54")
            a("v_add_u32 v%d, s60, v7" % (195 + 2 * p))
        a("v_lshrrev_b32 v2, 1, v1")
        a("v_mul_u32_u24 v2, 48, v2")
        a("v_and_b32 v3, 1, v1")
        a("v_mul_u32_u24 v3, %d, v3" % OHS)
        a("s_min_u32 s54, s%d, 2" % S_WAVE)
        a("s_lshl_b32 s54, s54, 4")
        a("s_add_u32 s54, s54, %d" % LDS_OWN)
        a("s_add_u32 s55, s54, %d" % (2 * OHS))
        a("s_cmp_eq_u32 s%d, 3" % S_WAVE)
        a("s_cmov_b32 s54, s55")
        a("v_add3_u32 v242, v2, v3, s54")
        a("s_sub_u32 s55, s55, 16")
        a("v_add3_u32 v243, v2, v3, s55")
        for j in range(3):
            a("v_add_u32 v2, %d, v0" % (256 * j))
            a("v_mul_u32_u24 v3, 21846, v2")
            a("v_lshrrev_b32 v3, 16, v3")
            a("v_mul_u32_u24 v4, 3, v3")
            a("v_sub_u32 v2, v2, v4")
            a("v_lshlrev_b32 v2, 2, v2")
            a("v_add_u32 v%d, %d, v2" % (244 + j, LDS_SC))

    def w2a_addr(self):
        a = self.a
        a("s_lshl_b32 s64, s%d, 5" % S_K2)
        a("s_lshl_b32 s65, s%d, 3" % S_IDX)
        a("s_add_u32 s64, s64, s65")
        a("v_lshrrev_b32 v2, 3, v1")
        a("v_add_u32 v2, s64, v2")
        a("s_lshr_b32 s65, s%d, 1" % S_XCD)
        a("s_lshl_b32 s65, s65, 10")
        a("v_and_b32 v4, 7, v1")
        a("v_lshl_add_u32 v4, v4, 7, s65")
        a("v_lshl_add_u32 v193, v2, 12, v4")

    def cv_loads(self, setn, na, vA, vB, ex):
        Ab, Bb = ((64, 96), (128, 160))[setn]
        L = []
        for n in range(na):
            L.append("ds_read_b128 %s, v%d offset:%d" % (v4(Ab + 4 * n), vA, 512 * (7 - n) + ex))
            L.append("ds_read_b64 %s, v%d offset:%d" % (vp(Bb + 4 * n), vB, 512 * n + ex))
            L.append("ds_read_b64 %s, v%d offset:%d" % (vp(Bb + 4 * n + 2), vB, 512 * n + ex + 8))
        return L

    def cv_iter(self, setn, chunks, acc, first, bg, hi=0.85):
        a = self.a
        Ab, Bb = ((64, 96), (128, 160))[setn]
        a("s_waitcnt lgkmcnt(0)")
        mark = len(a.ins)
        seen = set()
        for aa in range(max(chunks) + 1):
            for q in sorted(chunks, reverse=True):
                if q >= aa:
                    c = v4(acc[q])
                    src = "0" if (first and q not in seen) else c
                    seen.add(q)
                    a("v_mfma_f32_16x16x32_f16 %s, %s, %s, %s" % (c, v4(Ab + 4 * aa), v4(Bb + 4 * (q - aa)), src))
        if bg:
            self.weave(mark + 1, bg, 0.0, hi)

    def phase3(self):
        a = self.a
        one = lambda L: [[x] for x in L]
        def mix(L1, L2):
            if not L2: return L1
            out = []
            i = j = 0
            while i < len(L1) or j < len(L2):
                if j >= len(L2) or (i < len(L1) and i * len(L2) <= j * len(L1)):
                    out.append(L1[i]); i += 1
                else:
                    out.append(L2[j]); j += 1
            return out
        acc = {q: 16 + 4 * q for q in range(8)}
        dmaA = self.wl_dma_groups(3456, 4, 16384)
        dmaB = self.wl_dma_groups(3456, 4, 16384)
        def lds(it):
            p = it >> 1
            return one(self.cv_loads(it & 1, 8, 194 + 2 * p, 195 + 2 * p, 64 * (1 - (it & 1))))
        for g in lds(0):
            a(g[0])
        for j in range(3):
            a("ds_read_b32 v%d, v%d" % (4 + 2 * j, 244 + j))
        pfs = [["global_load_dword v192, v231, %s %s" % (sp(P_W1), NT)], ["global_load_dword v192, v232, %s %s" % (sp(P_W2), NT)]]
        nop = []
        extra = {0: dmaA[:4], 1: dmaA[4:], 2: [nop] * 24 + [["s_waitcnt vmcnt(0)"]] + one(self.wl_tr(0, 4)),
                 3: dmaB[:5], 4: dmaB[5:] + [["global_load_dword v193, v233, %s sc1" % sp(P_FL)]] + pfs}
        for it in range(6):
            if it in (2, 4):
                lf = self.lab("flush")
                a("s_cmp_lg_u32 s%d, %d" % (S_WAVE, it >> 1))
                a("s_cbranch_scc1 %s" % lf)
                a("s_nop 7")
                for r in range(32):
                    a("v_accvgpr_write_b32 a%d, v%d" % (128 + r, 16 + r))
                for r in range(16):
                    a("v_pk_mov_b32 %s, 0, 0" % vp(16 + 2 * r))
                a("s_nop 1")
                a.label(lf)
            self.cv_iter(it & 1, list(range(8)), acc, it == 0, mix(lds(it + 1) if it < 5 else [], extra.get(it, [])), hi=0.92)
        a("s_mul_i32 s54, s%d, 12288" % S_OCT)
        a("v_lshl_add_u32 v10, v0, 4, s54")
        a("v_add_u32 v11, 4096, v10")
        a("v_add_u32 v12, 8192, v10")
        a("v_lshlrev_b32 v13, 4, v0")
        a("v_add_u32 v13, %d, v13" % LDS_OWN)
        self.stamp("convmf")
        a("s_barrier")
        for q in range(8):
            a("ds_write_b128 v242, %s offset:%d" % (v4(16 + 4 * q), 1536 * q))
        lw = self.lab("nofl")
        a("s_add_u32 s54, s%d, 1" % S_WAVE)
        a("s_bitcmp0_b32 s54, 1")
        a("s_cbranch_scc1 %s" % lw)
        for q in range(8):
            a("ds_write_b128 v243, %s offset:%d" % (a4(128 + 4 * q), 1536 * q))
        a.label(lw)
        self.pd_check(len(pfs))
        a("s_waitcnt lgkmcnt(0)")
        a("s_barrier")
        for j in range(3):
            b = 64 + 16 * j
            for k in range(2):
                for hh in range(2):
                    a("ds_read_b128 %s, v13 offset:%d" % (v4(b + 8 * k + 4 * hh), k * 2 * OHS + hh * OHS + 4096 * j))
        for j in range(3):
            b = 64 + 16 * j
            a("s_waitcnt lgkmcnt(%d)" % (4 * (2 - j)))
            for p in range(4):
                a("v_pk_add_f32 %s, %s, %s" % (vp(b + 2 * p), vp(b + 2 * p), vp(b + 8 + 2 * p)))
            for p in range(4):
                a("v_pk_mul_f32 %s, %s, %s op_sel_hi:[1,0]" % (vp(b + 2 * p), vp(b + 2 * p), vp(4 + 2 * j)))
            for p in range(4):
                a("v_cvt_pk_bf16_f32 v%d, v%d, v%d" % (b + 8 + p, b + 2 * p, b + 2 * p + 1))
            for p in range(4):
                a("v_min_u32 v%d, 0xfffffffe, v%d" % (b + 8 + p, b + 8 + p))
            a("global_store_dwordx4 v%d, %s, %s sc1" % (10 + j, v4(b + 8), sp(P_YT)))
        self.stamp("ytstore")

    def helper(self):
        a = self.a
        a.label("L_helper")
        self.flag_store(0)
        self.pf_w1()
        a("s_sub_u32 s60, s%d, 27" % S_IDX)
        a("s_lshl_b32 s60, s60, 2")
        a("s_add_u32 s60, s60, s%d" % S_WAVE)
        for r in range(4):
            a("v_mov_b32 v%d, -1" % (20 + r))
        a("v_lshrrev_b32 v5, 3, v1")
        a("v_and_b32 v6, 7, v1")
        a("s_lshr_b32 s62, s%d, 1" % S_XCD)
        def poison(ptr, per_xcd_kb, xcd_stride):
            a("s_mul_i32 s61, s%d, %d" % (S_XCD, xcd_stride))
            a("s_lshl_b32 s63, s60, 10")
            a("s_add_u32 s61, s61, s63")
            a("v_lshl_add_u32 v7, v1, 4, s61")
            a("s_mov_b32 s63, s60")
            lp = self.lab("poi")
            a.label(lp)
            a("global_store_dwordx4 v7, v[20:23], %s sc1" % sp(ptr))
            a("v_add_u32 v7, 20480, v7")
            a("s_add_u32 s63, s63, 20")
            a("s_cmp_lt_u32 s63, %d" % per_xcd_kb)
            a("s_cbranch_scc1 %s" % lp)
        def pref(ptr, rs, nline, maxline, rowf, ngroups):
            a("s_mul_i32 s61, s62, %d" % nline)
            a("v_min_u32 v8, %d, v6" % (nline - 1))
            a("v_add_u32 v8, s61, v8")
            a("v_min_u32 v8, %d, v8" % maxline)
            a("v_lshlrev_b32 v8, 7, v8")
            a("s_mov_b32 s63, s60")
            lp = self.lab("prf")
            a.label(lp)
            rowf()
            a("v_add_u32 v9, s64, v5")
            a("v_mul_u32_u24 v9, %d, v9" % rs)
            a("v_add_u32 v9, v9, v8")
            a("global_load_dword v254, v9, %s" % sp(ptr))
            a("s_add_u32 s63, s63, 20")
            a("s_cmp_lt_u32 s63, %d" % ngroups)
            a("s_cbranch_scc1 %s" % lp)
        def row_w1b():
            a("s_and_b32 s64, s63, 3")
            a("s_lshl_b32 s64, s64, 9")
            a("s_lshr_b32 s65, s63, 2")
            a("s_lshl_b32 s65, s65, 3")
            a("s_add_u32 s64, s64, s65")
            a("s_add_u32 s64, s64, 256")
        def row_w2():
            a("s_and_b32 s64, s63, 3")
            a("s_mul_i32 s64, s64, 448")
            a("s_min_u32 s64, s64, 1312")
            a("s_lshr_b32 s65, s63, 2")
            a("s_lshl_b32 s65, s65, 3")
            a("s_add_u32 s64, s64, s65")
            a("s_min_u32 s64, s64, 1720")
        poison(P_YT, 27 * 12, 32 * 12288)
        self.flag_store(1)
        if 'h' in BGX:
            self.pf_w2b()
        poison(P_HP, 320, 327680)
        self.flag_store(4)
        a("global_load_dword v254, v231, %s %s" % (sp(P_W1), NT))
        a("global_load_dword v254, v232, %s %s" % (sp(P_W2), NT))
        if 'j' in BGX:
            self.pf_w2b((160,))
        a("s_lshl_b32 s90, s%d, 9" % S_WAVE)
        a("s_lshl_b32 s91, s%d, 7" % S_FB)
        self.wl_setup(P_W1, 3456, 90, 91, 16384)
        a("global_load_dword v193, v233, %s sc1" % sp(P_FL))
        self.pd_check(0)
        a("s_branch L_win2")

    def phase4_pre(self):
        a = self.a
        a("s_mul_i32 s55, s%d, 48" % S_OCT)
        for j in range(3):
            a("v_add_u32 v5, %d, v0" % (256 * j))
            if j == 2:
                a("v_min_u32 v5, 639, v5")
            a("v_mul_u32_u24 v6, 820, v5")
            a("v_lshrrev_b32 v6, 16, v6")
            a("v_mul_u32_u24 v7, 80, v6")
            a("v_sub_u32 v7, v5, v7")
            a("v_mul_u32_u24 v8, 21846, v7")
            a("v_lshrrev_b32 v8, 16, v8")
            a("v_lshl_add_u32 v6, v6, 5, v8")
            a("v_mul_u32_u24 v8, 3, v8")
            a("v_sub_u32 v7, v7, v8")
            a("v_mul_u32_u24 v6, 12288, v6")
            a("v_lshl_add_u32 v6, v7, 4, v6")
            a("v_add_u32 v%d, s55, v6" % (170 + j))
        for n in range(12):
            a("v_lshlrev_b32 v%d, 16, v%d" % (100 + 2 * n, XG + n))
            a("v_and_b32 v%d, 0xffff0000, v%d" % (101 + 2 * n, XG + n))
            a("v_lshlrev_b32 v%d, 16, v%d" % (124 + 2 * n, TG + n))
            a("v_and_b32 v%d, 0xffff0000, v%d" % (125 + 2 * n, TG + n))
        a("s_lshl_b32 s54, s%d, 8" % S_OCT)
        a("v_lshrrev_b32 v2, 4, v0")
        a("v_lshlrev_b32 v2, 16, v2")
        a("v_and_b32 v3, 15, v0")
        a("v_lshl_add_u32 v2, v3, 4, v2")
        a("v_add_u32 v173, s54, v2")
        a("v_add_u32 v174, 0x100000, v173")
        a("v_add_u32 v175, 0x200000, v173")
        a("s_mul_i32 s54, s%d, 10240" % S_OCT)
        a("v_lshl_add_u32 v176, v0, 4, s54")
        a("v_add_u32 v177, 4096, v176")
        a("v_add_u32 v178, 8192, v176")
        a("v_lshlrev_b32 v179, 2, v0")
        a("v_add_u32 v179, %d, v179" % LDS_LN)
        a("v_lshlrev_b32 v180, 2, v1")
        a("v_add_u32 v180, %d, v180" % LDS_LN)

    def pd_check(self, n):
        a = self.a
        a("s_mov_b32 s69, 0")
        lp, lok = self.lab("pdpoll"), self.lab("pdok")
        a("s_waitcnt vmcnt(%d)" % n)
        a.label(lp)
        a("v_cmp_ne_u32 vcc, s%d, v193" % S_TAG)
        a("s_cbranch_vccz %s" % lok)
        a("s_add_u32 s69, s69, 1")
        a("s_cmp_gt_u32 s69, %d" % SPIN)
        a("s_cbranch_scc1 %s" % lok)
        a("s_sleep 4")
        a("global_load_dword v193, v233, %s sc1" % sp(P_FL))
        a("s_waitcnt vmcnt(0)")
        a("s_branch %s" % lp)
        a.label(lok)

    def phase4(self, N2):
        a = self.a
        a("s_mov_b32 s69, 0")
        lp, lok, lf = self.lab("hpoll"), self.lab("hok"), self.lab("hfirst")
        for j in range(3):
            a("global_load_dwordx4 %s, v%d, %s sc1" % (v4(16 + 4 * j), 170 + j, sp(P_YT)))
        a("s_waitcnt vmcnt(3)")
        for t in self.wl_tr(8, N2):
            a(t)
        a("s_branch %s" % lf)
        a.label(lp)
        for j in range(3):
            a("global_load_dwordx4 %s, v%d, %s sc1" % (v4(16 + 4 * j), 170 + j, sp(P_YT)))
        a.label(lf)
        a("s_waitcnt vmcnt(0)")
        a("v_max3_u32 v28, v16, v17, v18")
        a("v_max3_u32 v29, v19, v20, v21")
        a("v_max3_u32 v30, v22, v23, v24")
        a("v_max3_u32 v31, v25, v26, v27")
        a("v_max3_u32 v28, v28, v29, v30")
        a("v_max_u32 v28, v28, v31")
        a("v_cmp_eq_u32 vcc, -1, v28")
        a("s_cbranch_vccz %s" % lok)
        self.spin_tail(lp, lok, 4)
        a.label(lok)
        self.stamp("hpoll")
        mark4 = len(a.ins)
        def unp(src):
            for n in range(12):
                a("v_lshlrev_b32 v%d, 16, v%d" % (32 + 2 * n, src + n))
                a("v_and_b32 v%d, 0xffff0000, v%d" % (33 + 2 * n, src + n))
        unp(16)
        for n in range(12):
            a("v_pk_add_f32 %s, %s, %s" % (vp(32 + 2 * n), vp(32 + 2 * n), vp(124 + 2 * n)))
        for n in range(12):
            a("v_cvt_pk_bf16_f32 v%d, v%d, v%d" % (16 + n, 32 + 2 * n, 33 + 2 * n))
        unp(16)
        for n in range(12):
            a("v_pk_add_f32 %s, %s, %s" % (vp(32 + 2 * n), vp(32 + 2 * n), vp(100 + 2 * n)))
        for n in range(12):
            a("v_cvt_pk_bf16_f32 v%d, v%d, v%d" % (150 + n, 32 + 2 * n, 33 + 2 * n))
        self.weave(mark4, self.wl_dma_groups(3456, 8 - N2, 32768, slot0=4096 * N2))
        lz = self.lab("hz")
        a("s_cmp_lt_u32 s%d, 2" % S_WAVE)
        a("s_cbranch_scc1 %s" % lz)
        for r in range(4):
            a("v_mov_b32 v%d, 0" % (158 + r))
        a.label(lz)
        unp(150)
        for p in range(4):
            a("v_pk_add_f32 %s, %s, %s" % (vp(64 + 2 * p), vp(32 + 2 * p), vp(40 + 2 * p)))
            a("v_pk_mul_f32 %s, %s, %s" % (vp(72 + 2 * p), vp(32 + 2 * p), vp(32 + 2 * p)))
        for p in range(4):
            a("v_pk_add_f32 %s, %s, %s" % (vp(64 + 2 * p), vp(64 + 2 * p), vp(48 + 2 * p)))
            a("v_pk_fma_f32 %s, %s, %s, %s" % (vp(72 + 2 * p), vp(40 + 2 * p), vp(40 + 2 * p), vp(72 + 2 * p)))
        for p in range(4):
            a("v_pk_fma_f32 %s, %s, %s, %s" % (vp(72 + 2 * p), vp(48 + 2 * p), vp(48 + 2 * p), vp(72 + 2 * p)))
        for k in range(8):
            a("v_permlane32_swap_b32 v%d, v%d" % (64 + k, 72 + k))
        for p in range(4):
            a("v_pk_add_f32 %s, %s, %s" % (vp(64 + 2 * p), vp(64 + 2 * p), vp(72 + 2 * p)))
        for k in range(4):
            a("v_permlane16_swap_b32 v%d, v%d" % (64 + k, 68 + k))
        for p in range(2):
            a("v_pk_add_f32 %s, %s, %s" % (vp(64 + 2 * p), vp(64 + 2 * p), vp(68 + 2 * p)))
        for k in range(2):
            a("v_add_f32_dpp v%d, v%d, v%d row_ror:8 row_mask:0xf bank_mask:0x3" % (72 + k, 64 + k, 64 + k))
        for k in range(2):
            a("v_add_f32_dpp v%d, v%d, v%d row_ror:8 row_mask:0xf bank_mask:0xc" % (72 + k, 66 + k, 66 + k))
        a("v_add_f32_dpp v64, v72, v72 row_half_mirror row_mask:0xf bank_mask:0x5")
        a("v_add_f32_dpp v64, v73, v73 row_half_mirror row_mask:0xf bank_mask:0xa")
        a("v_add_f32_dpp v64, v64, v64 quad_perm:[1,0,3,2] row_mask:0xf bank_mask:0xf")
        a("v_add_f32_dpp v64, v64, v64 quad_perm:[2,3,0,1] row_mask:0xf bank_mask:0xf")
        a("ds_write_b32 v179, v64")
        self.pd_check(63)
        for n in range(12):
            a("v_min_u32 v%d, 0xfffffffe, v%d" % (150 + n, 150 + n))
        a("s_waitcnt lgkmcnt(0)")
        a("s_barrier")
        for w in range(4):
            a("ds_read_b32 v%d, v180 offset:%d" % (64 + w, 256 * w))
        a("s_waitcnt lgkmcnt(0)")
        a("v_pk_add_f32 v[64:65], v[64:65], v[66:67]")
        a("v_add_f32 v64, v64, v65")
        a("v_mul_f32 v64, %s, v64" % f32(1.0 / 640))
        a("v_mov_b32 v65, v64")
        a("v_permlane32_swap_b32 v64, v65")
        a("v_fma_f32 v65, -v64, v64, v65")
        a("v_max_f32 v65, 0, v65")
        self.bf16_round(67, 65)
        self.bf16_round(66, 64)
        a("v_add_f32 v67, %s, v67" % f32(1e-5))
        self.bf16_round(67, 67)
        a("v_sqrt_f32 v67, v67")
        a("v_sub_f32 v68, v64, v66")
        self.bf16_round(67, 67)
        a("v_rcp_f32 v67, v67")
        a("v_mul_f32 v69, v65, v67")
        a("v_mul_f32 v68, v68, v67")
        a("v_mul_f32 v69, v69, v67")
        self.bf16_round(69, 69)
        self.bf16_round(68, 68)
        a("v_add_f32 v69, %s, v69" % f32(1e-5))
        self.bf16_round(69, 69)
        a("v_sqrt_f32 v69, v69")
        a("v_fma_f32 v70, v66, v67, v68")
        self.bf16_round(69, 69)
        a("v_rcp_f32 v69, v69")
        a("v_mul_f32 v70, -v70, v69")
        a("v_mul_f32 v71, v67, v69")
        for r in range(8):
            a("v_readlane_b32 s%d, v70, %d" % (54 + r, 4 * r))
        for r in range(8):
            a("v_readlane_b32 s%d, v71, %d" % ((62, 63, 64, 65, 66, 67, 70, 71)[r], 4 * r))
        for r in range(8):
            a("v_mov_b32 v%d, s%d" % (72 + r, 54 + r))
        l3 = self.lab("h3")
        for j in range(3):
            if j == 2:
                a("s_cmp_ge_u32 s%d, 2" % S_WAVE)
                a("s_cbranch_scc1 %s" % l3)
            for p in range(4):
                h = 32 + 8 * j + 2 * p
                a("v_pk_fma_f32 %s, %s, %s, %s" % (vp(h), vp(h), sp((62, 64, 66, 70)[p]), vp(72 + 2 * p)))
            for p in range(4):
                h = 32 + 8 * j + 2 * p
                a("v_cvt_pk_bf16_f32 v%d, v%d, v%d" % (16 + 4 * j + p, h, h + 1))
            for p in range(4):
                a("v_min_u32 v%d, 0xfffffffe, v%d" % (16 + 4 * j + p, 16 + 4 * j + p))
            a("global_store_dwordx4 v%d, %s, %s sc1" % (173 + j, v4(16 + 4 * j), sp(P_HP)))
        a("global_store_dwordx4 v178, v[158:161], %s sc1" % sp(P_H2))
        a.label(l3)
        a("global_store_dwordx4 v176, v[150:153], %s sc1" % sp(P_H2))
        a("global_store_dwordx4 v177, v[154:157], %s sc1" % sp(P_H2))
        self.stamp("hpstore")

    NP = 35
    def acc(self, j, mt): return ACC0 + 4 * (mt * 4 + j)
    def preg(self, k): return SLOT0 + 4 * (k % self.NP)

    def frag_load(self, name, seq0, mts, i):
        s, mt = i // len(mts), mts[i % len(mts)]
        base = (84 if name.startswith("g1") else 64) + (0 if s < 8 else 2)
        return "global_load_dwordx4 %s, v%d, %s offset:%d sc1 ; #%s_%d" % (
            v4(self.preg(seq0 + i)), 2 + mt, sp(base), (s % 8) * 1024 - 4096, name, s)

    def frag_check(self, seq0, mts, s):
        if CK1:
            r = [self.preg(seq0 + s * len(mts) + m) + 3 for m in range(len(mts))]
            if len(r) == 3:
                return ["v_max3_u32 v7, v%d, v%d, v%d" % tuple(r), "v_cmp_eq_u32 vcc, -1, v7"]
            return ["v_max_u32 v7, v%d, v%d" % tuple(r), "v_cmp_eq_u32 vcc, -1, v7"]
        r = [self.preg(seq0 + s * len(mts) + m) + k for m in range(len(mts)) for k in range(4)]
        L = ["v_max3_u32 v7, v%d, v%d, v%d" % (r[0], r[1], r[2]), "v_max3_u32 v8, v%d, v%d, v%d" % (r[3], r[4], r[5])]
        rest = r[6:]
        t = 7
        while len(rest) >= 2:
            L.append("v_max3_u32 v%d, v%d, v%d, v%d" % (t, t, rest[0], rest[1]))
            rest = rest[2:]
            t = 15 - t
        L += ["v_max_u32 v7, v7, v8", "v_cmp_eq_u32 vcc, -1, v7"]
        return L

    def gpass(self, name, nsteps, mts, w_is_A, seq0, npre, bgf=None, s_short=None, hook=None):
        a = self.a
        nm = len(mts)
        tot = nsteps * nm
        ldone = self.lab("gdone")
        def branch_slow(s):
            ls, lb = self.lab("gslow"), self.lab("gback")
            a("s_cbranch_vccnz %s" % ls)
            a.label(lb)
            self.slowpaths.append((s, ls, lb, [self.frag_load(name, seq0, mts, s * nm + m).split(';')[0] for m in range(nm)],
                                   self.frag_check(seq0, mts, s)))
        a("@wait %s_0" % name)
        for l in self.frag_check(seq0, mts, 0):
            a(l)
        branch_slow(0)
        self.stamp(name + "f")
        for s in range(nsteps):
            if hook and s in hook:
                hook[s]()
            fill = []
            for g in (bgf(s) if bgf else []):
                fill.append(g)
            ck = []
            if s + 1 < nsteps:
                ck = [["@wait %s_%d" % (name, s + 1)]] + [[x] for x in self.frag_check(seq0, mts, s + 1)]
            items = fill + ck
            nmf = 4 * nm
            per = [len(items) * (k + 1) // nmf - len(items) * k // nmf for k in range(nmf)]
            n = 0
            for m, mt in enumerate(mts):
                for j in range(4):
                    c = v4(self.acc(j, mt))
                    w = a4((s * 4 + j) * 4)
                    f = v4(self.preg(seq0 + s * nm + m))
                    A, B = (w, f) if w_is_A else (f, w)
                    a("v_mfma_f32_16x16x32_bf16 %s, %s, %s, %s" % (c, A, B, "0" if s == 0 else c))
                    if j == 3:
                        a("@mark free%d" % (seq0 + s * nm + m))
                    for _ in range(per[n]):
                        for t in items.pop(0):
                            a(t)
                    n += 1
            if s + 1 < nsteps:
                if s_short is not None and s + 2 == nsteps:
                    a("@mark noins")
                    a("s_cmp_eq_u32 s%d, 1" % s_short)
                    a("s_cbranch_scc1 %s" % ldone)
                branch_slow(s + 1)
        a.label(ldone)
        a("@mark ins")
        self.stamp(name + "m")

    def est(self, ins):
        k = ins.kind
        if k == 'mfma': return 16
        if k in ('label', 'dir'): return 0
        if k == 'trans': return 8
        if k == 'mem': return 30 if 'write_b128' in ins.op else 8
        if ins.op == 's_barrier': return 60
        return 4.5

    def schedule(self, start, ops, per=None, lat=700, ahead=None):
        from asmdsl import Ins
        a = self.a
        per = per or float(os.environ.get("PER", "70"))
        ahead = ahead or float(os.environ.get("AHEAD", "400"))
        seg = a.ins[start:]
        del a.ins[start:]
        seen = set()
        t = 0.0; tm = 0.0
        pf = 0.0
        done = {}
        q = list(ops)
        noins = False
        noex = False
        def emit(op):
            nonlocal pf, t
            for x in op['ins']:
                a(x)
                t += 4.5
            pf = max(pf, t) + per * op.get('kb', 1)
            done[op['tag']] = pf + lat
        for n, ins in enumerate(seg):
            if ins.op == '@mark':
                seen.add(ins.text.split()[1])
            if ins.op == '@wait':
                tag = ins.text.split()[1]
                idx = [k for k, o in enumerate(q) if o['tag'] == tag]
                if idx:
                    for o in q[:idx[-1] + 1]:
                        assert all(m in seen for m in o['after']), (o, tag)
                        emit(o)
                    q = q[idx[-1] + 1:]
                if tag in done:
                    t = max(t, done[tag])
            a.ins.append(ins)
            if ins.kind == 'mfma':
                t = max(t, tm) + 8
                tm = t + 8
            else:
                t += self.est(ins)
            if ins.op.startswith('s_cmp') or ins.op.startswith('s_bitcmp'): continue
            if 'exec' in ins.text and ins.op.startswith('s_mov'):
                noex = '-1' not in ins.text
            if ins.op == '@mark' and ins.text.split()[1] in ('noins', 'ins'):
                noins = ins.text.split()[1] == 'noins'
            if noins or noex or ins.kind == 'branch': continue
            while q and all(m in seen for m in q[0]['after']) and pf - t < ahead:
                emit(q.pop(0))
        assert not q, q[:3]

    def emit_slowpaths(self):
        a = self.a
        for s, ls, lb, loads, chk in self.slowpaths:
            a.label(ls)
            a("s_add_u32 s69, s69, 1")
            a("s_cmp_gt_u32 s69, %d" % SPIN)
            a("s_cbranch_scc1 %s" % lb)
            a("s_sleep 2")
            for l in loads:
                a(l)
            a("s_waitcnt vmcnt(0)")
            for l in chk:
                a(l)
            a("s_cbranch_vccnz %s" % ls)
            a("s_branch %s" % lb)

    def rndp(self, regs):
        a = self.a
        for b in regs:
            a("v_cvt_pk_bf16_f32 v%d, v%d, v%d" % (b + 1, b, b + 1))
        for b in regs:
            a("v_lshlrev_b32 v%d, 16, v%d" % (b, b + 1))
            a("v_and_b32 v%d, 0xffff0000, v%d" % (b + 1, b + 1))

    def epilogue(self, kind, mts, mid=None, bg=None, post=None, js=3072):
        a = self.a
        bg = list(bg or [])
        a("s_waitcnt lgkmcnt(0)")
        a("s_barrier")
        if post:
            post()
        mk = len(a.ins)
        for j in range(1, 4):
            for m, mt in enumerate(mts):
                a("ds_write_b128 v%d, %s offset:%d" % (241 + j, v4(self.acc(j, mt)), 1024 * m))
        if mid:
            mid()
        else:
            n1 = len(bg) // 4
            if n1:
                self.weave(mk, bg[:n1]); bg = bg[n1:]
        a("s_waitcnt lgkmcnt(0)")
        a("s_barrier")
        for m, mt in enumerate(mts):
            for j in range(1, 4):
                a("ds_read_b128 %s, v245 offset:%d" % (v4(self.acc(j, mt)), js * (j - 1) + 1024 * m))
        mk = len(a.ins)
        P = [self.acc(0, mt) + 2 * h for mt in mts for h in range(2)]
        T = [self.acc(1, mt) + 2 * h for mt in mts for h in range(2)]
        for m, mt in enumerate(mts):
            a("s_waitcnt lgkmcnt(%d)" % (3 * (len(mts) - 1 - m)))
            for h in range(2):
                a("v_pk_add_f32 %s, %s, %s" % (vp(self.acc(0, mt) + 2 * h), vp(self.acc(0, mt) + 2 * h), vp(self.acc(1, mt) + 2 * h)))
                a("v_pk_add_f32 %s, %s, %s" % (vp(self.acc(2, mt) + 2 * h), vp(self.acc(2, mt) + 2 * h), vp(self.acc(3, mt) + 2 * h)))
        if kind == 2:
            for mt in mts:
                a("ds_read_b64 %s, v249 offset:%d" % (vp(self.acc(3, mt)), 32 * mt))
        for mt in mts:
            for h in range(2):
                a("v_pk_add_f32 %s, %s, %s" % (vp(self.acc(0, mt) + 2 * h), vp(self.acc(0, mt) + 2 * h), vp(self.acc(2, mt) + 2 * h)))
        self.rndp(P)
        for n, p in enumerate(P):
            if kind == 1:
                a("v_pk_add_f32 %s, %s, %s" % (vp(p), vp(p), vp(250 + 2 * (n & 1))))
            else:
                a("v_pk_add_f32 %s, %s, %s op_sel_hi:[1,0]" % (vp(p), vp(p), vp(250)))
        self.rndp(P)
        if kind == 1:
            for p, t in zip(P, T):
                a("v_pk_mul_f32 %s, %s, %s" % (vp(t), vp(p), vp(p)))
            for p, t in zip(P, T):
                a("v_pk_fma_f32 %s, %s, %s, %s op_sel_hi:[1,0,0]" % (vp(t), vp(t), vp(12), vp(10)))
            for p, t in zip(P, T):
                a("v_pk_mul_f32 %s, %s, %s" % (vp(t), vp(t), vp(p)))
            for t in T:
                a("v_exp_f32 v%d, v%d" % (t, t))
                a("v_exp_f32 v%d, v%d" % (t + 1, t + 1))
            for t in T:
                a("v_pk_add_f32 %s, %s, 1.0 op_sel_hi:[1,0]" % (vp(t), vp(t)))
            for t in T:
                a("v_rcp_f32 v%d, v%d" % (t, t))
                a("v_rcp_f32 v%d, v%d" % (t + 1, t + 1))
            for p, t in zip(P, T):
                a("v_pk_mul_f32 %s, %s, %s" % (vp(p), vp(p), vp(t)))
        else:
            a("s_waitcnt lgkmcnt(0)")
            for mt in mts:
                for h in range(2):
                    a("v_lshlrev_b32 v%d, 16, v%d" % (self.acc(1, mt) + 2 * h, self.acc(3, mt) + h))
                    a("v_and_b32 v%d, 0xffff0000, v%d" % (self.acc(1, mt) + 2 * h + 1, self.acc(3, mt) + h))
            for p, t in zip(P, T):
                a("v_pk_add_f32 %s, %s, %s" % (vp(p), vp(p), vp(t)))
        prs = {2: [(3, 4)], 3: [(0, 1), (2, 2)], 5: [(0, 1), (2, 2), (3, 4)]}[len(mts)]
        outs = []
        for ta, tb in prs:
            o = self.acc(2, ta)
            outs.append(o)
            for h in range(2):
                a("v_cvt_pk_bf16_f32 v%d, v%d, v%d" % (o + h, self.acc(0, ta) + 2 * h, self.acc(0, ta) + 2 * h + 1))
                a("v_cvt_pk_bf16_f32 v%d, v%d, v%d" % (o + 2 + h, self.acc(0, tb) + 2 * h, self.acc(0, tb) + 2 * h + 1))
        if kind == 1:
            for o in outs:
                for k in range(4):
                    a("v_min_u32 v%d, 0xfffffffe, v%d" % (o + k, o + k))
        if bg:
            self.weave(mk, bg)
        for o in outs:
            for h in range(2):
                a("v_permlane16_swap_b32 v%d, v%d" % (o + h, o + 2 + h))
        for n, ((ta, tb), o) in enumerate(zip(prs, outs)):
            ar = 246 + (0 if ta == 0 else (1 if ta == 2 else 2))
            if kind == 1:
                a("global_store_dwordx4 v%d, %s, %s sc1" % (ar, v4(o), sp(P_G)))
            else:
                a("global_store_dwordx4 v%d, %s, %s %s" % (ar, v4(o), sp(P_OUT), os.environ.get("OST", "")))

    def g_common_setup(self):
        a = self.a
        for j in range(1, 4):
            a("s_add_u32 s54, s%d, %d" % (S_WAVE, j))
            a("s_and_b32 s54, s54, 3")
            a("s_lshl_b32 s54, s54, 15")
            a("s_add_u32 s54, s54, %d" % (20480 + 3072 * (j - 1)))
            a("v_lshl_add_u32 v%d, v1, 4, s54" % (241 + j))
        a("s_lshl_b32 s54, s%d, 15" % S_WAVE)
        a("s_add_u32 s54, s54, 20480")
        a("v_lshl_add_u32 v245, v1, 4, s54")

    def g1_setup(self):
        a = self.a
        a("s_mul_i32 s54, s%d, %d" % (S_DB, 5 * 65536))
        a("v_lshl_add_u32 v2, v1, 4, s54")
        for mt in range(1, 5):
            a("v_add_u32 v%d, %d, v2" % (2 + mt, 65536 * mt))
        a("s_lshl_b32 s54, s%d, 14" % S_WAVE)
        a("s_add_u32 s54, s54, 4096")
        a("s_add_u32 s84, s%d, s54" % P_HP)
        a("s_addc_u32 s85, s%d, 0" % (P_HP + 1))
        a("s_add_u32 s86, s84, 8192")
        a("s_addc_u32 s87, s85, 0")
        a("s_mul_i32 s54, s%d, 270" % S_DB)
        a("s_lshl_b32 s55, s%d, 1" % S_FB)
        a("s_add_u32 s54, s54, s55")
        a("s_lshl_b32 s54, s54, 10")
        a("s_lshl_b32 s55, s%d, 9" % S_WAVE)
        a("s_add_u32 s54, s54, s55")
        a("v_and_b32 v7, 15, v1")
        a("v_lshrrev_b32 v8, 5, v1")
        a("v_lshl_add_u32 v7, v8, 4, v7")
        a("v_lshl_add_u32 v7, v7, 4, s54")
        a("v_add_u32 v247, %d, v7" % (2 * 54 * 1024))
        a("v_bfe_u32 v8, v1, 4, 1")
        a("v_mul_u32_u24 v8, %d, v8" % (54 * 1024))
        a("v_add_u32 v246, v7, v8")
        a("v_add_u32 v248, %d, v246" % (3 * 54 * 1024))
        for r in range(4):
            a("v_mov_b32 v%d, -1" % (10 + r))
        for r in (246, 247, 248):
            a("global_store_dwordx4 v%d, v[10:13], %s sc1 ; #gpoi" % (r, sp(P_G)))
        a("s_lshl_b32 s54, s%d, 7" % S_FB)
        a("s_lshl_b32 s55, s%d, 5" % S_WAVE)
        a("s_add_u32 s54, s54, s55")
        a("v_lshrrev_b32 v7, 4, v1")
        a("v_lshl_add_u32 v7, v7, 3, s54")
        a("global_load_dwordx2 v[252:253], v7, %s" % sp(P_B1))
        a("s_mul_i32 s54, s%d, 27" % S_DB)
        a("s_add_u32 s54, s54, s%d" % S_FB)
        a("s_lshl_b32 s54, s54, 7")
        a("s_add_u32 s54, s54, 0x18000")
        a("v_mov_b32 v249, s54")
        a("v_mov_b32 v9, s%d" % S_TAG)
        a("s_mov_b32 s69, 0")

    def g2_flag_addr(self):
        G = []
        G.append(["v_bfe_u32 v9, v1, 2, 3", "s_lshl_b32 s54, s%d, 3" % S_SB, "v_add_u32 v9, s54, v9", "v_lshlrev_b32 v9, 7, v9"])
        G.append(["v_and_b32 v13, 3, v1", "v_lshl_add_u32 v9, v13, 2, v9", "v_add_u32 v9, 0x10000, v9"])
        G.append(["s_mul_i32 s54, s%d, %d" % (S_DB2, 27 * 128), "s_add_u32 s54, s54, 0x18000", "v_and_b32 v11, 31, v1",
                  "v_min_u32 v11, 26, v11", "v_lshl_add_u32 v11, v11, 7, s54"])
        G.append(["v_cmp_lt_u32 s[62:63], 31, v1", "s_nop 1", "v_cndmask_b32 v9, v9, v11, s[62:63]"])
        return G

    def g2_flag_loads(self):
        return ["global_load_dword v249, v9, %s sc1 ; #g2fl" % sp(P_FL)]

    def g2_check(self, first_wait):
        a = self.a
        lp, lok = self.lab("h2poll"), self.lab("h2ok")
        a(first_wait)
        a("@mark noins")
        a.label(lp)
        a("v_cmp_ne_u32 vcc, s%d, v249" % S_TAG)
        a("s_cbranch_vccz %s" % lok)
        a("s_add_u32 s69, s69, 1")
        a("s_cmp_gt_u32 s69, %d" % SPIN)
        a("s_cbranch_scc1 %s" % lok)
        a("s_sleep 8")
        for t in self.g2_flag_loads():
            a(t.split(';')[0] + " ; #cond")
        a("s_waitcnt vmcnt(0)")
        a("s_branch %s" % lp)
        a.label(lok)
        a("@mark ins")
        a("@mark g2a_ok")

    def g2_addr(self, mts):
        G = [["s_mul_i32 s54, s%d, %d" % (S_DB2, 5 * 54 * 1024), "v_lshl_add_u32 v11, v1, 4, s54"]]
        G.append(["v_add_u32 v%d, %d, v11" % (2 + mt, 54 * 1024 * mt) for mt in mts])
        if 0 in mts:
            G.append(["s_lshl_b32 s54, s%d, 10" % S_K2, "s_add_u32 s54, s54, 4096", "@mark noins", "s_add_u32 s64, s%d, s54" % P_G,
                      "s_addc_u32 s65, s%d, 0" % (P_G + 1), "s_add_u32 s66, s64, 8192", "s_addc_u32 s67, s65, 0", "@mark ins"])
        return G

    def g2_late_setup(self):
        G = []
        G.append(["s_mul_i32 s60, s%d, %d" % (S_SB, 8 * 10240), "s_mul_i32 s61, s%d, 1280" % S_DB2, "s_add_u32 s60, s60, s61"])
        for j in range(3):
            g = ["v_add_u32 v9, %d, v0" % (256 * j)]
            if j == 2:
                g.append("v_min_u32 v9, 639, v9")
            g += ["v_mul_u32_u24 v11, 820, v9", "v_lshrrev_b32 v11, 16, v11"]
            G.append(g)
            G.append(["v_mul_u32_u24 v13, 80, v11", "v_sub_u32 v13, v9, v13", "v_mul_u32_u24 v9, 10240, v11"])
            G.append(["v_lshl_add_u32 v9, v13, 4, v9", "v_add_u32 v9, s60, v9",
                      "global_load_dwordx4 %s, v9, %s sc1 ; #htile" % (a4(224 + 4 * j), sp(P_H2))])
            G.append(["v_mul_u32_u24 v9, %d, v11" % (8 * 176), "v_lshl_add_u32 v9, v13, 1, v9", "v_add_u32 v%d, %d, v9" % (251 + j, LDS_H)])
        G.append(["s_lshl_b32 s60, s%d, 4" % S_WAVE, "v_and_b32 v9, 15, v1", "v_add_u32 v9, s60, v9", "s_lshl_b32 s61, s%d, 7" % S_SB])
        G.append(["v_lshl_add_u32 v11, v9, 1, s61", "global_load_ushort v250, v11, %s ; #b2" % sp(P_B2), "v_lshrrev_b32 v13, 4, v1"])
        G.append(["v_mul_u32_u24 v11, 176, v9", "v_lshl_add_u32 v11, v13, 3, v11", "v_add_u32 v249, %d, v11" % LDS_H])
        G.append(["s_mul_i32 s60, s%d, %d" % (S_SB, 64 * 1280), "s_mul_i32 s61, s%d, 160" % S_DB2, "s_add_u32 s60, s60, s61",
                  "v_mul_u32_u24 v11, 1280, v9"])
        G.append(["v_lshrrev_b32 v9, 1, v13", "v_lshl_add_u32 v11, v9, 4, v11", "v_add_u32 v11, s60, v11", "v_add_u32 v247, 64, v11"])
        G.append(["v_and_b32 v13, 1, v13", "v_lshl_add_u32 v246, v13, 5, v11", "v_add_u32 v248, 96, v246"])
        W = [["@wait htile"]]
        for j in range(3):
            for p in range(4):
                W.append(["ds_write_b16 v%d, a%d offset:%d" % (251 + j, 224 + 4 * j + p, (2 * p) * 176),
                          "ds_write_b16_d16_hi v%d, a%d offset:%d" % (251 + j, 224 + 4 * j + p, (2 * p + 1) * 176)])
        W.append(["@wait b2", "v_lshlrev_b32 v250, 16, v250"])
        return G, W

    def back_half(self):
        a = self.a
        one = lambda L: [[x] for x in L]
        N2 = int(os.environ.get('N2', '5'))
        MA, MB = [0, 1, 2], [3, 4]
        a.label("L_win2")
        for t in self.wl_tr(4, 4):
            a(t)
        a("s_lshl_b32 s54, s%d, 14" % S_WAVE)
        a("s_waitcnt lgkmcnt(0)")
        for nt in range(4):
            a("v_add_u32 v%d, s54, v%d" % (WT + nt, WT + nt))
        a("s_barrier")
        a("v_add_u32 v233, 0x18000, v233")
        a("global_load_dword v193, v233, %s sc1" % sp(P_FL))
        mk2 = len(a.ins)
        self.phase4_pre()
        self.g_common_setup()
        self.weave(mk2, self.wl_dma_groups(3456, N2, 32768), 0.0, 0.9)
        lq = self.lab("nog1s")
        a("s_cmp_eq_u32 s%d, 0" % S_G1)
        a("s_cbranch_scc1 %s" % lq)
        self.g1_setup()
        a("s_lshl_b32 s54, s%d, 7" % S_OCT)
        a("s_lshl_b32 s55, s%d, 2" % S_WAVE)
        a("s_add_u32 s54, s54, s55")
        a("s_add_u32 s54, s54, 0x10000")
        a("v_mov_b32 v254, s54")
        a.label(lq)
        self.stamp("win2")
        self.phase4(N2)
        a("s_lshl_b32 s90, s%d, 5" % S_K2)
        a("s_lshl_b32 s91, s%d, 7" % S_SB)
        self.wl_setup(P_W2, 4096, 90, 91, None, tmp=28)
        lg = self.lab("nog1")
        a("s_waitcnt lgkmcnt(0)")
        a("s_cmp_eq_u32 s%d, 0" % S_G1)
        a("s_cbranch_scc1 %s" % lg)
        a("s_mov_b32 s69, 0")
        N3A = int(os.environ.get("N3A", "5"))
        d3 = self.wl_dma_groups(4096, 5, 32768, tag="w2a")
        for g in d3[:2 * N3A]:
            for t in g:
                a(t)
        self.stamp("win3")
        sched0 = len(a.ins)
        qA, qB, qC, qD = 0, 48, 80, 122
        def fr(name, q, mts, n, after=()):
            return [dict(ins=[self.frag_load(name, q, mts, i)], tag="%s_%d" % (name, i // len(mts)),
                         after=list(after) + (["free%d" % (q + i - self.NP)] if q + i >= self.NP else [])) for i in range(n)]
        def dmaops(groups, tag, afterf):
            return [dict(ins=g, tag="%s%d" % (tag, n // 2) if n & 1 else "x", kb=2, after=afterf(n // 2)) for n, g in enumerate(groups)]
        trw = one(self.wl_tr(8 + N2, 8 - N2, slot0=4096 * N2))
        def bgA(s):
            if s < 8 - N2: return trw[8 * s:8 * s + 8]
            if s == 7: return [["v_lshlrev_b32 v250, 16, v252", "v_and_b32 v251, 0xffff0000, v252"],
                               ["v_lshlrev_b32 v252, 16, v253", "v_and_b32 v253, 0xffff0000, v253"],
                               ["v_mov_b32 v10, %s" % f32(-2.0 * 0.7978845608028654 * LOG2E),
                                "v_mov_b32 v12, %s" % f32(-2.0 * 0.7978845608028654 * LOG2E * 0.044715)]]
            if s == 7 + N2: return [["s_waitcnt lgkmcnt(0)"]]
            if s == 4: return [["s_mov_b64 exec, 1", "global_store_dword v254, v9, %s sc1" % sp(P_FL), "s_mov_b64 exec, -1"]]
            return []
        self.gpass("g1a", 16, MA, True, qA, 0, bgA)
        def pd2():
            l = self.lab("pd2")
            a("@mark noins")
            a("s_cmp_lg_u32 s%d, 0" % S_WAVE)
            a("s_cbranch_scc1 %s" % l)
            a("s_mov_b64 exec, 1")
            a("global_store_dword v249, v9, %s sc1 ; #cond" % sp(P_FL))
            a("s_mov_b64 exec, -1")
            a("@mark noins")
            a.label(l)
            a("@mark ins")
        self.epilogue(1, MA, post=pd2)
        self.stamp("g1ae")
        tr0 = self.wl_tr(0, 5)
        tr1 = self.wl_tr(5, 5)
        fa = self.g2_flag_addr()
        FS = int(os.environ.get("FS", "8"))
        def bgB(s):
            L = []
            if 3 <= s <= 7:
                L += [["s_waitcnt lgkmcnt(8)" if s <= 5 else "s_waitcnt lgkmcnt(0)", "@mark s0_%d" % (s - 3)]]
            if 1 <= s <= 5:
                L += [["@wait w2a%d" % (s - 1)]] + one(tr0[8 * (s - 1):8 * s])
            if s == 0:
                L += fa + self.g2_addr(MA)
            if s == FS - 3:
                L += one(self.g2_flag_loads())
            if s >= 11:
                L += [["@wait w2b%d" % (s - 11)]] + one(tr1[8 * (s - 11):8 * (s - 10)])
            return L
        self.gpass("g1b", 16, MB, True, qB, 32, bgB, hook={FS: lambda: self.g2_check("@wait g2fl")})
        def midB():
            for g in self.g2_addr(MB):
                for t in g:
                    a(t)
            a("@mark g2b_ok")
        self.epilogue(1, MB, mid=midB, post=lambda: a("@mark s1"))
        self.stamp("g1be")
        a("@mark preg2a")
        a.label("L_g2a")
        dm2 = self.wl_dma_groups(4096, 4, 32768, tag="w2c")
        dm2[5] = dm2[5][:2] + ["s_lshl_b32 s83, s%d, 17" % S_SHORT, "s_sub_u32 s83, %d, s83" % (32 * 4096),
                               "s_add_u32 s80, s80, s83", "s_addc_u32 s81, s81, 0"]
        tr2 = self.wl_tr(10, 4)
        LG, LW = self.g2_late_setup()
        def bgC(s):
            L = []
            if s < 5:
                L += LG[4 * s:4 * s + 4]
            if 5 <= s <= 8:
                L += [["@wait w2c%d" % (s - 5)]] + one(tr2[8 * (s - 5):8 * (s - 4)])
            if s == 9:
                L += [["s_waitcnt lgkmcnt(0)"]] + LW[:5]
            if s == 10:
                L += LW[5:10]
            if s == 11:
                L += LW[10:]
            return L
        self.gpass("g2a", 14, MA, False, qC, 33, bgC, s_short=S_SHORT)
        a("@mark ins")
        bgD = None
        if MERGE == 0:
            self.epilogue(2, MA)
        if MERGE == 2:
            mkE = len(a.ins)
            self.epilogue(2, MA)
            ep = [i.text for i in a.ins[mkE:]]
            del a.ins[mkE:]
            grp = []
            for t in ep:
                if grp and grp[-1][-1].startswith("s_waitcnt") and t == "s_barrier":
                    grp[-1].append(t)
                else:
                    grp.append([t])
            NSD = 12
            bgD = lambda s: grp[len(grp) * s // NSD:len(grp) * (s + 1) // NSD] if s < NSD else []
        self.stamp("g2ae")
        self.gpass("g2b", 14, MB, False, qD, 28, bgD, s_short=S_SHORT)
        if MERGE == 1:
            for j in range(1, 4):
                a("v_add_u32 v%d, %d, v%d" % (241 + j, (5120 - 3072) * (j - 1) - 20480, 241 + j))
            a("v_subrev_u32 v245, 20480, v245")
            self.epilogue(2, MA + MB, js=5120)
        else:
            self.epilogue(2, MB)
        self.stamp("g2be")
        A1 = fr("g1a", qA, MA, 48)
        B1 = fr("g1b", qB, MB, 32)
        A2 = fr("g2a", qC, MA, 42, after=["g2a_ok"])
        B2 = fr("g2b", qD, MB, 28, after=["g2b_ok", os.environ.get("B2M", "free%d" % (qC + 20))])
        D1 = dmaops(self.wl_dma_groups(4096, 5, 32768, tag="w2b"), "w2b", lambda k: ["s0_%d" % k])
        D2 = dmaops(dm2, "w2c", lambda k: ["s1"])
        D0 = dmaops(d3, "w2a", lambda k: [])[2 * N3A:]
        ops = A1 + D0 + B1 + D1 + A2[:15] + D2 + A2[15:] + B2
        self.schedule(sched0, ops)
        lab = [n for n, i in enumerate(a.ins) if i.islabel and i.op == "L_g2a"][0]
        pre = [i.text.split(';')[0] for i in a.ins[sched0:lab] if '#g2a_' in i.text or '#g2b_' in i.text]
        st = [n for n, i in enumerate(a.ins[:lab]) if i.text == dm2[0][0] and n > sched0]
        texts = [i.text for i in a.ins[sched0:lab]]
        npre_d = 0
        for n, g in enumerate(dm2):
            key = [x for x in g if 'load_lds' in x][-1]
            if n & 1 and key in texts: npre_d = n + 1
        cnt_lds = sum(1 for x in texts if 'load_lds' in x) - 20 - 4 * (5 - N3A)
        npre_d = cnt_lds // 2
        self.pre_inactive = (pre, dm2[:npre_d])
        self.inactive = (lg, qC, MA)

    def pf_w2b(self, parts=(160, 320)):
        a = self.a
        a("s_sub_u32 s66, s%d, 27" % S_IDX)
        a("s_add_u32 s66, s66, s%d" % S_K2)
        a("s_lshl_b32 s66, s66, 5")
        a("v_lshrrev_b32 v10, 2, v1")
        a("v_add_u32 v10, s66, v10")
        a("v_and_b32 v12, 3, v1")
        a("s_lshl_b32 s67, s%d, 9" % S_XCD)
        a("v_lshl_add_u32 v12, v12, 7, s67")
        def pfb(off):
            for i in range(2):
                a("v_add_u32 v11, %d, v10" % (off + 16 * i))
                a("v_min_u32 v11, 1727, v11")
                a("v_lshl_add_u32 v11, v11, 12, v12")
                a("global_load_dword v254, v11, %s" % sp(P_W2))
        for o in parts:
            pfb(o)

    def inactive_path(self):
        a = self.a
        lg, qC, MA = self.inactive
        a.label(lg)
        self.wl_dma_loop(4096, 5, 32768)
        self.flag_store(2, wait="vmcnt(20)")
        if 'j' in BGX:
            self.pf_w2b((320,))
        elif 'h' not in BGX:
            self.pf_w2b()
        a("s_waitcnt vmcnt(%d)" % (0 if 'h' in BGX else (2 if 'j' in BGX else 4)))
        for t in self.wl_tr(0, 5):
            a(t)
        a("s_waitcnt lgkmcnt(0)")
        self.wl_dma_loop(4096, 5, 32768)
        for g in self.g2_flag_addr():
            for t in g:
                a(t)
        a("s_waitcnt vmcnt(0)")
        for t in self.wl_tr(5, 5):
            a(t)
        a("s_sleep %s" % os.environ.get("SLF", "110"))
        for t in self.g2_flag_loads():
            a(t.split(';')[0])
        a("s_mov_b32 s69, 0")
        self.g2_check("s_waitcnt vmcnt(0) lgkmcnt(0)")
        for g in self.g2_addr([0, 1, 2, 3, 4]):
            for t in g:
                a(t)
        for g in self.pre_inactive[1]:
            for t in g:
                a(t.split(';')[0])
        a("s_sleep %s" % os.environ.get("SLI", "30"))
        for t in self.pre_inactive[0]:
            a(t)
        a("s_waitcnt vmcnt(0)")
        a("s_branch L_g2a")

    def finish(self):
        a = self.a
        if self.timing:
            a("s_memrealtime s[98:99]")
            a("s_waitcnt lgkmcnt(0)")
            a("v_writelane_b32 v255, s98, 63")
            a("s_lshl_b32 s54, s2, 2")
            a("s_add_u32 s54, s54, s%d" % S_WAVE)
            a("s_lshl_b32 s54, s54, 8")
            a("s_add_u32 s54, s54, 0x%x" % WS_TIME)
            a("v_lshl_add_u32 v2, v1, 2, s54")
            a("global_store_dword v2, v255, %s" % sp(P_WS))
        l = self.lab("nn")
        a("s_or_b32 s54, s2, s%d" % S_WAVE)
        a("s_cmp_lg_u32 s54, 0")
        a("s_cbranch_scc1 %s" % l)
        a("v_mov_b32 v2, 0")
        a("v_mov_b32 v3, s%d" % S_TAG)
        a("s_mov_b64 exec, 1")
        a("global_store_dword v2, v3, %s" % sp(P_WS))
        a.label(l)
        a.label("L_end")
        a("s_endpgm")

    def build(self):
        self.phase0()
        self.phase1()
        self.phase2()
        self.phase3()
        self.back_half()
        self.finish()
        self.helper()
        self.inactive_path()
        self.a.label("L_codeend")
        self.emit_slowpaths()
        self.a("s_endpgm")
        body = self.a.finalize()
        hdr = open("cdna_kernels/%s.s.ref" % NAME).read().split("; Override launch")[0]
        hdr += "; @launch grid=(256,1,1) block=(256,1,1) lds=%d\n" % LDS_TOTAL
        hdr += '.amdgcn_target "amdgcn-amd-amdhsa--gfx950"\n.text\n.globl %s_kernel\n.p2align 8\n.type %s_kernel,@function\n%s_kernel:\n' % (NAME, NAME, NAME)
        ftr = """.section .rodata,"a"
.p2align 6
.amdhsa_kernel %s_kernel
  .amdhsa_next_free_vgpr 512
  .amdhsa_next_free_sgpr 102
  .amdhsa_accum_offset 256
  .amdhsa_group_segment_fixed_size 0
  .amdhsa_kernarg_size 120
  .amdhsa_user_sgpr_count 2
  .amdhsa_user_sgpr_kernarg_segment_ptr 1
  .amdhsa_system_sgpr_workgroup_id_x 1
.end_amdhsa_kernel
""" % NAME
        return hdr + body + ftr


if __name__ == "__main__":
    import argparse
    ap = argparse.ArgumentParser()
    ap.add_argument("-o", default="k.s")
    ap.add_argument("--timing", action="store_true")
    args = ap.parse_args()
    g = Gen(timing=args.timing)
    open(args.o, "w").write(g.build())
    if args.timing:
        open(args.o + ".names", "w").write(",".join(g.names))
```

```python
import sys, struct, os
from asmdsl import Asm

NAME = "sequential_preLN__ssm_conv_s4d__mixer_token_mlp__prompt"

def f32(x):
    return "0x%08x" % struct.unpack("<I", struct.pack("<f", x))[0]

LOG2E = 1.4426950408889634
INV2PI = 0.15915494309189535

WS_FL = 0x10000
WS_UT = 0x100000
WS_H2 = 0x380000
WS_YT = 0x600000
WS_HP = 0x900000
WS_G = 0xB80000
P2A = 7
P2KB = 19
WS_DBG = 0x1000000
WS_TIME = 0x2000000

ESTR = 528
E1SZ = 21 * ESTR
ECH = E1SZ + 32 * ESTR
LDS_E = 0
CSTR = 4640
CCH = 4 * CSTR
LDS_C = 84224
USTR = 4224
LDS_U = 139904
LDS_XR = LDS_U
XRS = 1344
LDS_SR = 152576
LDS_SC = 152704
LDS_SHP = 65536
LDS_SHF = 81920
OWNS = 24576 + 64
OHS = 12288 + 64
LDS_OWN = LDS_C
LDS_LN = 160000
LDS_MID = 81920
LDS_H = 147456
LDS_TOTAL = 163840

S_WAVE, S_XCD, S_IDX, S_OCT = 3, 4, 5, 6
S_CF, S_PAR, S_TAG = 7, 9, 10
P_UT, P_H2 = 12, 14
P_X, P_LOGA, P_AIM, P_CR, P_CI, P_LDT, P_DSK = 16, 18, 20, 22, 24, 26, 28
P_W1, P_B1, P_W2, P_B2, P_OUT, P_DBG, P_WS = 32, 34, 36, 38, 40, 42, 44
P_YT, P_HP, P_G, P_FL = 46, 48, 50, 52
S_DB, S_FB, S_SB, S_G1 = 76, 77, 78, 79
S_DB2 = 75
NT = os.environ.get('NT', '')
NT2 = os.environ.get('NT2', '')
NTX = os.environ.get('NTX', '')
S_K2, S_SHORT = 92, 93
XG, TG = 200, 212
WD, WT = 234, 238
ACC0, SLOT0, NSLOT = 14, 94, 7
QA, QB = [7, 4, 3, 0], [6, 5, 2, 1]
SPIN = 200000
CK1 = int(os.environ.get('CK1', '0'))
MERGE = int(os.environ.get('MERGE', '2'))
TLBW = int(os.environ.get('TLBW', '1'))
BGX = os.environ.get('BGX', 'zh')

def sp(n): return "s[%d:%d]" % (n, n + 1)
def vp(n): return "v[%d:%d]" % (n, n + 1)
def v4(n): return "v[%d:%d]" % (n, n + 3)
def a4(n): return "a[%d:%d]" % (n, n + 3)
def a2(n): return "a[%d:%d]" % (n, n + 1)


class Gen:
    def __init__(self, debug=0, timing=False):
        self.a = Asm()
        self.debug = debug
        self.timing = timing
        self.nstamp = 0
        self.names = []
        self.uid = 0
        self.slowpaths = []

    def lab(self, base):
        self.uid += 1
        return "L_%s_%d" % (base, self.uid)

    def stamp(self, name=""):
        if not self.timing:
            return
        a = self.a
        a("s_memrealtime s[98:99]" if os.environ.get("RT") else "s_memtime s[98:99]")
        a("s_waitcnt lgkmcnt(0)")
        a("v_writelane_b32 v255, s98, %d" % self.nstamp)
        if self.nstamp >= 30:
            pass
        elif self.nstamp >= len(self.names):
            self.names.append(name)
        else:
            self.names[self.nstamp] += "/" + name
        self.nstamp += 1

    def weave(self, mark, bg, lo=0.0, hi=1.0):
        a = self.a
        seg = a.ins[mark:]
        del a.ins[mark:]
        n = len(seg)
        pos = [int(n * (lo + (hi - lo) * (k + 0.5) / len(bg))) for k in range(len(bg))]
        k = 0
        for i, ins in enumerate(seg):
            while k < len(bg) and pos[k] <= i:
                for t in bg[k]:
                    a(t)
                k += 1
            a.ins.append(ins)
        while k < len(bg):
            for t in bg[k]:
                a(t)
            k += 1

    def cmuls(self, lst):
        a = self.a
        for d, x, y in lst:
            a("v_pk_mul_f32 %s, %s, %s op_sel:[0,0] op_sel_hi:[0,1]" % (vp(d), vp(x), vp(y)))
        for d, x, y in lst:
            a("v_pk_fma_f32 %s, %s, %s, %s op_sel:[1,1,0] op_sel_hi:[1,0,1] neg_lo:[0,1,0]" % (vp(d), vp(x), vp(y), vp(d)))

    def cexps(self, items, tmp):
        a = self.a
        for n, (d, k, ar, ap) in enumerate(items):
            t = tmp + 2 * n
            a("v_mul_f32 v%d, %s, v%d" % (t, f32(float(2 ** k)), ar))
            a("v_mul_f32 v%d, %s, v%d" % (t + 1, f32(float(2 ** k)), ap))
        for n, it in enumerate(items):
            t = tmp + 2 * n
            a("v_exp_f32 v%d, v%d" % (t, t))
            a("v_fract_f32 v%d, v%d" % (t + 1, t + 1))
        for n, it in enumerate(items):
            t = tmp + 2 * n
            a("v_cos_f32 v%d, v%d" % (it[0], t + 1))
            a("v_sin_f32 v%d, v%d" % (it[0] + 1, t + 1))
        for n, it in enumerate(items):
            t = tmp + 2 * n
            a("v_pk_mul_f32 %s, %s, %s op_sel:[0,0] op_sel_hi:[0,1]" % (vp(it[0]), vp(t), vp(it[0])))

    def rowreduce16(self, regs, op="v_add_f32"):
        a = self.a
        for mode in ("quad_perm:[1,0,3,2]", "quad_perm:[2,3,0,1]", "row_half_mirror", "row_mirror"):
            for r in regs:
                a("%s_dpp v%d, v%d, v%d %s row_mask:0xf bank_mask:0xf" % (op, r, r, r, mode))

    def bf16_round(self, d, s):
        a = self.a
        a("v_cvt_pk_bf16_f32 v%d, v%d, v%d" % (d, s, s))
        a("v_and_b32 v%d, 0xffff0000, v%d" % (d, d))

    def spin_tail(self, lp, lok, sleep):
        a = self.a
        a("s_add_u32 s69, s69, 1")
        a("s_cmp_gt_u32 s69, %d" % SPIN)
        a("s_cbranch_scc1 %s" % lok)
        a("s_sleep %d" % sleep)
        a("s_branch %s" % lp)

    def wait_w3(self, n, extra):
        a = self.a
        if 'z' in BGX:
            a("s_waitcnt vmcnt(%d)%s" % (n, extra))
            return
        l = self.lab("ww3")
        a("s_waitcnt vmcnt(%d)%s" % (n + 4, extra))
        a("s_cmp_eq_u32 s%d, 3" % S_WAVE)
        a("s_cbranch_scc1 %s" % l)
        a("s_waitcnt vmcnt(%d)" % n)
        a.label(l)

    def pf_w1(self):
        a = self.a
        a("global_load_dword v254, v231, %s %s" % (sp(P_W1), NT))
        a("v_add_u32 v231, %d, v231" % (256 * 3456))

    def flag_store(self, arr, per_wave=True, wait="vmcnt(0)"):
        a = self.a
        a("s_lshl_b32 s54, s%d, 7" % S_OCT)
        if arr:
            a("s_add_u32 s54, s54, %d" % (arr * 0x8000))
        if per_wave:
            a("s_lshl_b32 s55, s%d, 2" % S_WAVE)
            a("s_add_u32 s54, s54, s55")
        a("v_mov_b32 v2, s54")
        a("v_mov_b32 v3, s%d" % S_TAG)
        if wait:
            a("s_waitcnt %s" % wait)
        a("s_mov_b64 exec, 1")
        a("global_store_dword v2, v3, %s sc1" % sp(P_FL))
        a("s_mov_b64 exec, -1")

    def phase0(self):
        a = self.a
        a("s_cmp_ge_u32 s2, 256")
        a("s_cbranch_scc1 L_end")
        a("s_load_dwordx16 s[16:31], s[0:1], 0")
        a("s_load_dwordx8 s[32:39], s[0:1], 64")
        a("s_load_dwordx4 s[40:43], s[0:1], 96")
        a("s_load_dwordx2 s[44:45], s[0:1], 112")
        if os.environ.get("PAD"):
            a("s_memrealtime s[100:101]")
        a("s_getpc_b64 s[94:95]")
        a.label("L_pc")
        a("v_lshrrev_b32 v2, 6, v0")
        a("v_and_b32 v1, 63, v0")
        a("v_readfirstlane_b32 s%d, v2" % S_WAVE)
        a("s_and_b32 s%d, s2, 7" % S_XCD)
        a("s_lshr_b32 s%d, s2, 3" % S_IDX)
        a("s_lshl_b32 s%d, s%d, 5" % (S_OCT, S_XCD))
        a("s_add_u32 s%d, s%d, s%d" % (S_OCT, S_OCT, S_IDX))
        a("s_lshl_b32 s54, s%d, 4" % S_IDX)
        a("v_add_u32 v3, s54, v0")
        a("v_lshlrev_b32 v3, 7, v3")
        a("v_min_u32 v3, (L_codeend-L_pc-4), v3")
        a("v_cmp_gt_u32 vcc, 16, v0")
        a("s_and_saveexec_b64 s[54:55], vcc")
        lq = self.lab("cpf")
        a("s_cbranch_execz %s" % lq)
        a("global_load_dword v254, v3, s[94:95]")
        a.label(lq)
        a("s_mov_b64 exec, -1")
        a("s_mul_i32 s54, s%d, 80" % S_XCD)
        a("s_min_u32 s55, s%d, 26" % S_IDX)
        a("s_mul_i32 s55, s55, 3")
        a("s_add_u32 s%d, s54, s55" % S_CF)
        a("s_lshl_b32 s54, s%d, 3" % S_OCT)
        a("s_lshl_b32 s55, s%d, 1" % S_WAVE)
        a("s_add_u32 s54, s54, s55")
        a("v_lshrrev_b32 v9, 5, v1")
        a("v_add_u32 v4, s54, v9")
        a("v_mul_u32_u24 v4, 1280, v4")
        a("v_and_b32 v5, 31, v1")
        a("v_lshl_add_u32 v4, v5, 3, v4")
        a("v_add_u32 v9, s55, v9")
        a("v_mul_u32_u24 v8, %d, v9" % XRS)
        a("v_lshl_add_u32 v8, v5, 3, v8")
        a("v_add_u32 v8, %d, v8" % LDS_XR)
        a("s_min_u32 s56, s%d, 2" % S_WAVE)
        a("s_add_u32 s56, s56, s%d" % S_CF)
        a("s_min_u32 s56, s56, 639")
        a("s_lshl_b32 s57, s56, 8")
        a("v_lshl_add_u32 v6, v1, 2, s57")
        a("v_lshlrev_b32 v7, 1, v0")
        a("v_min_u32 v181, 159, v0")
        a("v_lshrrev_b32 v182, 2, v181")
        a("v_mul_u32_u24 v183, 13108, v182")
        a("v_lshrrev_b32 v183, 16, v183")
        a("v_mul_u32_u24 v183, 27, v183")
        a("v_add3_u32 v182, v182, v183, 27")
        a("v_and_b32 v181, 3, v181")
        a("v_lshlrev_b32 v181, 2, v181")
        a("v_lshl_add_u32 v233, v182, 7, v181")
        a("v_add_u32 v233, 0x8000, v233")
        a("s_mul_i32 s61, s%d, 27" % S_XCD)
        a("s_add_u32 s62, s61, 26")
        a("s_lshr_b32 s61, s61, 3")
        a("s_lshr_b32 s62, s62, 3")
        a("v_and_b32 v231, 7, v1")
        a("v_add_u32 v231, s61, v231")
        a("v_min_u32 v231, s62, v231")
        a("s_lshl_b32 s61, s%d, 9" % S_WAVE)
        a("s_lshl_b32 s62, s%d, 3" % S_IDX)
        a("s_add_u32 s61, s61, s62")
        a("v_lshrrev_b32 v232, 3, v1")
        a("v_add_u32 v232, s61, v232")
        a("v_mul_u32_u24 v232, 3456, v232")
        a("v_lshl_add_u32 v231, v231, 7, v232")
        a("s_mul_i32 s61, s%d, 448" % S_WAVE)
        a("s_min_u32 s61, s61, 1312")
        a("s_mul_i32 s62, s%d, 5" % S_IDX)
        a("s_add_u32 s61, s61, s62")
        a("v_lshrrev_b32 v232, 2, v1")
        a("v_min_u32 v232, 4, v232")
        a("v_add_u32 v232, s61, v232")
        a("v_lshlrev_b32 v232, 12, v232")
        a("v_and_b32 v183, 3, v1")
        a("v_lshl_add_u32 v232, v183, 7, v232")
        a("s_lshl_b32 s61, s%d, 9" % S_XCD)
        a("v_add_u32 v232, s61, v232")
        if self.timing:
            a("v_mov_b32 v255, 0")
        a("s_waitcnt lgkmcnt(0)")
        self.stamp("start")
        if self.timing:
            a("s_memrealtime s[98:99]")
            a("s_waitcnt lgkmcnt(0)")
            a("v_writelane_b32 v255, s98, 62")
        for k in range(5):
            a("global_load_dwordx2 %s, v4, %s offset:%d %s" % (vp(10 + 2 * k), sp(P_X), 256 * k, NTX))
        a("global_load_ushort v228, v7, %s" % sp(P_DSK))
        a("global_load_ushort v229, v7, %s offset:512" % sp(P_DSK))
        a("v_min_u32 v7, 254, v7")
        a("global_load_ushort v230, v7, %s offset:1024" % sp(P_DSK))
        for n, p in enumerate((P_LOGA, P_AIM, P_CR, P_CI)):
            a("global_load_dword v%d, v6, %s %s" % (224 + n, sp(p), NTX))
        if 'a' in BGX:
            a("global_load_dword v254, v231, %s %s" % (sp(P_W1), NT))
        a("s_load_dword s%d, %s, 0" % (S_TAG, sp(P_WS)))
        a("s_lshl_b32 s57, s56, 1")
        a("s_and_b32 s57, s57, 0xfffffffc")
        a("s_load_dword s59, %s, s57" % sp(P_LDT))
        for p, off in ((P_YT, WS_YT), (P_HP, WS_HP), (P_G, WS_G), (P_FL, WS_FL), (P_UT, WS_UT), (P_H2, WS_H2)):
            a("s_add_u32 s%d, s%d, 0x%x" % (p, P_WS, off))
            a("s_addc_u32 s%d, s%d, 0" % (p + 1, P_WS + 1))
        a("s_mul_i32 s54, s%d, 27" % S_XCD)
        a("s_min_u32 s55, s%d, 26" % S_IDX)
        a("s_add_u32 s54, s54, s55")
        a("s_lshr_b32 s%d, s54, 3" % S_FB)
        a("s_and_b32 s%d, s54, 7" % S_DB)
        a("s_lshl_b32 s54, s%d, 2" % S_XCD)
        a("s_lshr_b32 s55, s%d, 3" % S_IDX)
        a("s_add_u32 s%d, s54, s55" % S_SB)
        a("s_and_b32 s%d, s%d, 7" % (S_DB2, S_IDX))
        a("s_mov_b32 s%d, 1" % S_G1)
        a("s_cmp_ge_u32 s%d, 27" % S_IDX)
        a("s_cmov_b32 s%d, 0" % S_G1)
        a("s_mul_i32 s%d, s%d, 14" % (S_K2, S_WAVE))
        a("s_lshr_b32 s%d, s%d, 1" % (S_SHORT, S_WAVE))
        a("s_cmp_eq_u32 s%d, 3" % S_WAVE)
        a("s_cmov_b32 s%d, 41" % S_K2)

    def phase1(self):
        a = self.a
        a("v_mov_b32 v24, 0")
        a("v_mov_b32 v25, 0")
        a("v_mov_b32 v26, 0x3f803f80")
        a("v_bfe_u32 v27, v1, 2, 2")
        a("v_mul_u32_u24 v27, %d, v27" % XRS)
        a("v_lshrrev_b32 v28, 4, v0")
        a("v_lshl_add_u32 v27, v28, 5, v27")
        a("v_and_b32 v28, 3, v1")
        a("v_lshl_add_u32 v27, v28, 3, v27")
        a("v_add_u32 v27, %d, v27" % LDS_XR)
        a("v_lshlrev_b32 v29, 2, v9")
        a("v_add_u32 v29, %d, v29" % LDS_SR)
        a("v_mov_b32 v30, %d" % LDS_SR)
        a("s_mul_i32 s58, s%d, 10240" % S_OCT)
        a("v_lshl_add_u32 v2, v0, 4, s58")
        a("v_add_u32 v3, 4096, v2")
        a("v_add_u32 v4, 8192, v2")
        a("s_waitcnt vmcnt(%d) lgkmcnt(0)" % (8 if "a" in BGX else 7))
        for k in range(5):
            a("ds_write_b64 v8, %s offset:%d" % (vp(10 + 2 * k), 256 * k))
        for k in range(10):
            a("v_dot2_f32_bf16 v24, v%d, v26, v24" % (10 + k))
            a("v_dot2_f32_bf16 v25, v%d, v%d, v25" % (10 + k, 10 + k))
        a("s_mul_i32 s%d, s%d, 1664525" % (S_TAG, S_TAG))
        a("s_add_u32 s%d, s%d, 1013904223" % (S_TAG, S_TAG))
        a("s_nop 1")
        self.rowreduce16([24, 25])
        a("v_mov_b32 v31, v24")
        a("v_mov_b32 v32, v25")
        a("v_permlane16_swap_b32 v24, v31")
        a("v_permlane16_swap_b32 v25, v32")
        a("v_add_f32 v24, v24, v31")
        a("v_add_f32 v25, v25, v32")
        a("v_mul_f32 v24, %s, v24" % f32(1.0 / 640))
        a("v_mul_f32 v25, %s, v25" % f32(1.0 / 640))
        a("v_fma_f32 v25, -v24, v24, v25")
        a("v_max_f32 v25, 0, v25")
        self.bf16_round(25, 25)
        self.bf16_round(24, 24)
        a("v_add_f32 v25, %s, v25" % f32(1e-5))
        self.bf16_round(25, 25)
        a("v_sqrt_f32 v25, v25")
        self.bf16_round(25, 25)
        a("v_rcp_f32 v25, v25")
        a("ds_write_b32 v29, v24")
        a("ds_write_b32 v29, v25 offset:32")
        a("s_waitcnt lgkmcnt(0)")
        a("s_barrier")
        self.stamp("stats")
        for j in range(3):
            for hh in range(2):
                a("ds_read_b64_tr_b16 %s, v27 offset:%d" % (vp(XG + 4 * j + 2 * hh), 512 * j + 4 * XRS * hh))
        for q in range(4):
            a("ds_read_b128 %s, v30 offset:%d" % (v4(32 + 4 * q), 16 * q))
        W = lambda n: 48 + 2 * n
        it = [(j, p) for j in range(3) for p in range(4)]
        def unpack(srcf):
            for n in range(12):
                a("v_lshlrev_b32 v%d, 16, v%d" % (W(n), srcf(n)))
                a("v_and_b32 v%d, 0xffff0000, v%d" % (W(n) + 1, srcf(n)))
        def cvt(dstf, op="v_cvt_pk_bf16_f32"):
            for n in range(12):
                a("%s v%d, v%d, v%d" % (op, dstf(n), W(n), W(n) + 1))
        a("s_waitcnt lgkmcnt(4)")
        unpack(lambda n: XG + n)
        a("s_waitcnt lgkmcnt(0)")
        for n, (j, p) in enumerate(it):
            a("v_pk_add_f32 %s, %s, %s neg_lo:[0,1] neg_hi:[0,1]" % (vp(W(n)), vp(W(n)), vp(32 + 2 * p)))
        cvt(lambda n: 72 + n)
        unpack(lambda n: 72 + n)
        for n, (j, p) in enumerate(it):
            a("v_pk_mul_f32 %s, %s, %s" % (vp(W(n)), vp(W(n)), vp(40 + 2 * p)))
        cvt(lambda n: 72 + n)
        unpack(lambda n: 72 + n)
        cvt(lambda n: 84 + n, "v_cvt_pk_f16_f32")
        a("s_waitcnt vmcnt(%d)" % (1 if "a" in BGX else 0))
        a("global_store_dwordx4 v2, v[84:87], %s sc1" % sp(P_UT))
        a("global_store_dwordx4 v3, v[88:91], %s sc1" % sp(P_UT))
        l = self.lab("ut3")
        a("s_cmp_ge_u32 s%d, 2" % S_WAVE)
        a("s_cbranch_scc1 %s" % l)
        a("global_store_dwordx4 v4, v[92:95], %s sc1" % sp(P_UT))
        a.label(l)
        for j in range(3):
            a("v_lshlrev_b32 v%d, 16, v%d" % (100 + 2 * j, 228 + j))
        for n, (j, p) in enumerate(it):
            a("v_pk_mul_f32 %s, %s, %s op_sel_hi:[1,0]" % (vp(W(n)), vp(W(n)), vp(100 + 2 * j)))
        cvt(lambda n: TG + n)
        self.stamp("utstore")

    def wl_setup(self, ptr, rs, row0_sgpr, col_sgpr, stage_shift, tmp=2):
        a = self.a
        T2, T3, T4 = "v%d" % tmp, "v%d" % (tmp + 1), "v%d" % (tmp + 2)
        aa = lambda x: a(x.replace("V2", T2).replace("V3", T3).replace("V4", T4))
        aa("v_lshrrev_b32 V2, 3, v1")
        aa("v_and_b32 V3, 7, v1")
        aa("v_and_b32 V4, 2, V2")
        aa("v_xor_b32 V3, V3, V4")
        aa("v_mul_u32_u24 V2, %d, V2" % rs)
        aa("v_lshl_add_u32 v%d, V3, 4, V2" % WD)
        aa("v_xor_b32 V3, 4, V3")
        aa("v_lshl_add_u32 v%d, V3, 4, V2" % (WD + 1))
        a("v_add_u32 v%d, %d, v%d" % (WD + 1, 8 * rs - 1024, WD + 1))
        a("v_add_u32 v%d, %d, v%d" % (WD + 2, 16 * rs - 2048, WD))
        a("v_add_u32 v%d, %d, v%d" % (WD + 3, 16 * rs - 2048, WD + 1))
        a("s_mul_i32 s54, s%d, %d" % (row0_sgpr, rs))
        a("s_add_u32 s54, s54, s%d" % col_sgpr)
        a("s_add_u32 s80, s%d, s54" % ptr)
        a("s_addc_u32 s81, s%d, 0" % (ptr + 1))
        if stage_shift is not None:
            a("v_lshrrev_b32 v2, 4, v1")
            a("v_bfe_u32 v3, v1, 2, 2")
            a("v_lshl_add_u32 v4, v2, 3, v3")
            a("v_lshlrev_b32 v4, 7, v4")
            a("v_and_b32 v5, 3, v1")
            a("v_lshl_add_u32 v4, v5, 3, v4")
            a("s_mul_i32 s54, s%d, %d" % (S_WAVE, stage_shift))
            a("v_add_u32 v4, s54, v4")
            a("v_lshrrev_b32 v3, 1, v3")
            a("v_and_b32 v2, 1, v2")
            a("v_lshl_add_u32 v2, v2, 1, v3")
            for nt in range(4):
                a("s_add_u32 s54, s%d, %d" % (S_WAVE, nt))
                a("s_and_b32 s54, s54, 3")
                a("v_xor_b32 v3, s54, v2")
                a("v_lshl_add_u32 v%d, v3, 5, v4" % (WT + nt))

    def wl_dma_groups(self, rs, nks, stage_shift, slot0=0, tag="wd"):
        G = []
        for s in range(nks):
            g = []
            if s == 0:
                g.append("s_mul_i32 s82, s%d, %d" % (S_WAVE, stage_shift))
                if slot0:
                    g.append("s_add_u32 s82, s82, %d" % (slot0))
            g.append("s_mov_b32 m0, s82")
            g.append("s_add_u32 s82, s82, 4096")
            g.append("global_load_lds_dwordx4 v%d, s[80:81]" % WD)
            g.append("global_load_lds_dwordx4 v%d, s[80:81] offset:1024" % (WD + 1))
            G.append(g)
            G.append(["global_load_lds_dwordx4 v%d, s[80:81] offset:2048" % (WD + 2),
                      "global_load_lds_dwordx4 v%d, s[80:81] offset:3072 ; #%s%d" % (WD + 3, tag, s),
                      "s_add_u32 s80, s80, %d" % (32 * rs), "s_addc_u32 s81, s81, 0"])
        return G

    def wl_dma_loop(self, rs, count, stage_shift, slot0=0):
        a = self.a
        a("s_mul_i32 s82, s%d, %d" % (S_WAVE, stage_shift))
        if slot0:
            a("s_add_u32 s82, s82, %d" % (slot0))
        a("s_mov_b32 s83, %s" % str(count))
        lp = self.lab("dma")
        a.label(lp)
        a("s_mov_b32 m0, s82 ; #loop")
        a("s_add_u32 s82, s82, 4096")
        for k in range(4):
            a("global_load_lds_dwordx4 v%d, s[80:81] offset:%d" % (WD + k, 1024 * k))
        a("s_add_u32 s80, s80, %d" % (32 * rs))
        a("s_addc_u32 s81, s81, 0")
        a("s_sub_u32 s83, s83, 1")
        a("s_cmp_gt_i32 s83, 0")
        a("s_cbranch_scc1 %s" % lp)

    def wl_tr(self, ks0, nks, slot0=0):
        return ["ds_read_b64_tr_b16 %s, v%d offset:%d" % (a2(((ks0 + s) * 4 + nt) * 4 + 2 * hf), WT + nt, slot0 + s * 4096 + hf * 512)
                for s in range(nks) for nt in range(4) for hf in range(2)]

    def phase2(self):
        a = self.a
        lW3 = self.lab("w3")
        lKd = self.lab("kdone")
        st0 = self.nstamp
        a("s_cmp_ge_u32 s%d, 27" % S_IDX)
        a("s_cbranch_scc1 L_helper")
        a("s_cmp_eq_u32 s%d, 3" % S_WAVE)
        a("s_cbranch_scc1 %s" % lW3)
        a("s_and_b32 s57, s56, 1")
        a("s_lshl_b32 s57, s57, 4")
        a("s_lshr_b32 s59, s59, s57")
        a("s_lshl_b32 s59, s59, 16")
        a("v_mov_b32 v242, %s" % f32(LOG2E))
        a("v_mul_f32 v242, s59, v242")
        a("v_exp_f32 v242, v242")
        a("v_and_b32 v243, 0x7fff7fff, v226")
        a("v_and_b32 v244, 0x7fff7fff, v227")
        a("v_pk_max_u16 v243, v243, v244")
        a("v_lshlrev_b32 v244, 16, v243")
        a("v_max_u32 v243, v243, v244")
        self.bf16_round(242, 242)
        a("v_lshlrev_b32 v246, 16, v224")
        a("v_and_b32 v250, 0xffff0000, v224")
        fill = [["v_mul_f32 v246, %s, v246" % f32(LOG2E), "v_mul_f32 v250, %s, v250" % f32(LOG2E)],
                ["v_exp_f32 v246, v246", "v_exp_f32 v250, v250"],
                ["v_lshlrev_b32 v247, 16, v225", "v_and_b32 v251, 0xffff0000, v225"],
                ["v_mul_f32 v247, v247, v242", "v_mul_f32 v251, v251, v242"]]
        for mode, fl in zip(("quad_perm:[1,0,3,2]", "quad_perm:[2,3,0,1]", "row_half_mirror", "row_mirror"), fill):
            a("v_max_u32_dpp v243, v243, v243 %s row_mask:0xf bank_mask:0xf" % mode)
            for t in fl:
                a(t)
        for sw, r, src in (("v_permlane16_swap_b32", 248, 226), ("v_permlane32_swap_b32", 249, 227)):
            a("v_mov_b32 v244, v243")
            a("v_lshlrev_b32 v%d, 16, v%d" % (r, src))
            a("v_and_b32 v%d, 0xffff0000, v%d" % (r + 4, src))
            a("%s v243, v244" % sw)
            a("v_max_u32 v243, v243, v244")
        self.bf16_round(246, 246)
        self.bf16_round(250, 250)
        a("v_mul_f32 v247, %s, v247" % f32(INV2PI))
        a("v_mul_f32 v251, %s, v251" % f32(INV2PI))
        a("v_mul_f32 v246, v246, v242")
        a("v_mul_f32 v250, v250, v242")
        a("v_mul_f32 v246, %s, v246" % f32(-LOG2E))
        a("v_mul_f32 v250, %s, v250" % f32(-LOG2E))
        SA, SB = 10, 100
        E = lambda S, j: S + 2 * j
        T = lambda S, j: S + 34 + 2 * j
        GK = lambda S, k: S + 66 + 2 * {0: 0, 1: 1, 2: 2, 8: 3, 9: 4, 10: 5, 11: 6}[k]
        self.cexps([(E(SA, 1), 3, 246, 247), (E(SB, 1), 3, 250, 251), (GK(SA, 0), 0, 246, 247), (GK(SB, 0), 0, 250, 251),
                    (GK(SA, 8), 8, 246, 247), (GK(SB, 8), 8, 250, 251)], 180)
        a("v_and_b32 v243, 0x7f800000, v243")
        a("v_max_u32 v243, 0x00800000, v243")
        a("v_min_u32 v243, 0x7e800000, v243")
        a("v_sub_u32 v244, 0x7f800000, v243")
        a("v_mul_f32 v245, v243, v242")
        for r in (248, 249, 252, 253):
            a("v_mul_f32 v%d, v%d, v244" % (r, r))
        a("s_lshl_b32 s54, s%d, 2" % S_WAVE)
        a("s_add_u32 s54, s54, %d" % LDS_SC)
        a("v_mov_b32 v5, s54")
        a("ds_write_b32 v5, v245")
        a("s_mul_i32 s60, s%d, %d" % (S_WAVE, ECH))
        a("v_lshl_add_u32 v6, v1, 3, s60")
        self.flag_store(0)
        self.pf_w1()
        self.stamp("flag")
        mark = len(a.ins)
        tmpn = [0]
        def st(off, ra, rb, neg=False):
            t = 188 + 2 * (tmpn[0] % 6)
            tmpn[0] += 1
            ng = "-" if neg else ""
            return ["v_cvt_pk_f16_f32 v%d, v%d, %sv%d" % (t, ra, ng, ra + 1),
                    "v_cvt_pk_f16_f32 v%d, v%d, %sv%d" % (t + 1, rb, ng, rb + 1),
                    "ds_write_b64 v6, %s offset:%d" % (vp(t), off)]
        sq = lambda d, x: (d, x, x)
        SS = (SA, SB)
        R = lambda S, r: ((248 if S == SA else 252) if r == 0 else S + 2 * r)
        a("v_mov_b32 v196, 0x00003c00")
        a("v_mov_b32 v197, 0x00003c00")
        a("ds_write_b64 v6, v[196:197] offset:%d" % (LDS_E + E1SZ))
        self.cmuls([sq(E(S, 2), E(S, 1)) for S in SS] + [sq(GK(S, 1), GK(S, 0)) for S in SS] + [sq(GK(S, 9), GK(S, 8)) for S in SS])
        self.cmuls([sq(E(S, 4), E(S, 2)) for S in SS] + [(E(S, 3), E(S, 1), E(S, 2)) for S in SS] +
                   [sq(GK(S, 2), GK(S, 1)) for S in SS] + [sq(GK(S, 10), GK(S, 9)) for S in SS])
        m2 = len(a.ins)
        self.cmuls([sq(E(S, 8), E(S, 4)) for S in SS] + [(E(S, 4 + j), E(S, j), E(S, 4)) for j in (1, 2, 3) for S in SS] +
                   [sq(GK(S, 11), GK(S, 10)) for S in SS])
        self.weave(m2, [st(LDS_E + E1SZ + j * ESTR, E(SA, j), E(SB, j)) for j in (1, 2, 3, 4)] + [st(LDS_E, R(SA, 0), R(SB, 0), True)])
        m2 = len(a.ins)
        self.cmuls([sq(E(S, 16), E(S, 8)) for S in SS] + [(E(S, 8 + j), E(S, j), E(S, 8)) for j in range(1, 8) for S in SS])
        self.weave(m2, [st(LDS_E + E1SZ + j * ESTR, E(SA, j), E(SB, j)) for j in (5, 6, 7, 8)])
        m2 = len(a.ins)
        self.cmuls([(T(S, j), E(S, j), E(S, 16)) for j in range(1, 16) for S in SS])
        self.weave(m2, [st(LDS_E + E1SZ + j * ESTR, E(SA, j), E(SB, j)) for j in range(9, 17)])
        R = lambda S, r: ((248 if S == SA else 252) if r == 0 else (S + 2 * r if r <= 16 else S + 80 + 2 * (r - 17)))
        l1 = [(1, 0, 0), (2, 0, 1), (4, 0, 2), (8, 0, 8), (12, 0, 9), (16, 0, 10), (20, 0, 11)]
        l2 = [(3, 1, 1), (5, 1, 2), (6, 2, 2), (9, 2, 8), (10, 4, 8), (13, 4, 9), (14, 8, 9), (17, 8, 10), (18, 12, 10)]
        l3 = [(7, 3, 2), (11, 6, 8), (15, 10, 9), (19, 14, 10)]
        tst = [st(LDS_E + E1SZ + (16 + j) * ESTR, T(SA, j), T(SB, j)) for j in range(1, 16)]
        m2 = len(a.ins)
        self.cmuls([(R(S, d), R(S, x), GK(S, k)) for d, x, k in l1 for S in SS])
        self.weave(m2, tst[:7])
        m2 = len(a.ins)
        self.cmuls([(R(S, d), R(S, x), GK(S, k)) for d, x, k in l2 for S in SS])
        self.weave(m2, tst[7:])
        m2 = len(a.ins)
        self.cmuls([(R(S, d), R(S, x), GK(S, k)) for d, x, k in l3 for S in SS])
        self.weave(m2, [st(LDS_E + d * ESTR, R(SA, d), R(SB, d), True) for d, x, k in l1])
        for d, x, k in l2 + l3:
            for t in st(LDS_E + d * ESTR, R(SA, d), R(SB, d), True):
                a(t)
        self.stamp("Edone")
        a("v_and_b32 v2, 31, v1")
        a("v_lshrrev_b32 v3, 5, v1")
        a("v_mul_u32_u24 v4, %d, v2" % ESTR)
        a("v_lshl_add_u32 v4, v3, 4, v4")
        a("v_add_u32 v4, s60, v4")
        for ks in range(16):
            a("ds_read_b128 %s, v4 offset:%d" % (v4(32 + 8 * ks), LDS_E + ks * 32))
            a("ds_read_b128 %s, v4 offset:%d" % (v4(36 + 8 * ks), LDS_E + E1SZ + ks * 32))
            if ks >= 6:
                k = ks - 6
                a("s_waitcnt lgkmcnt(12)")
                a("v_mfma_f32_32x32x16_f16 v[8:23], %s, %s, %s" % (v4(32 + 8 * k), v4(36 + 8 * k), "0" if k == 0 else "v[8:23]"))
        a("s_mul_i32 s55, s%d, %d" % (S_WAVE, CCH))
        a("s_add_u32 s55, s55, %d" % (LDS_C + 3 * CSTR))
        a("v_lshlrev_b32 v5, 4, v2")
        a("v_sub_u32 v5, s55, v5")
        a("v_lshlrev_b32 v6, 3, v3")
        a("v_sub_u32 v6, v5, v6")
        a("v_lshl_add_u32 v7, v1, 4, s55")
        for r in range(4):
            a("v_mov_b32 v%d, 0" % (164 + r))
        for k in range(10, 16):
            a("s_waitcnt lgkmcnt(%d)" % (2 * (15 - k)))
            a("v_mfma_f32_32x32x16_f16 v[8:23], %s, %s, v[8:23]" % (v4(32 + 8 * k), v4(36 + 8 * k)))
        a("v_cmp_gt_u32 vcc, 34, v1")
        a("s_and_saveexec_b64 s[62:63], vcc")
        a("ds_write_b128 v7, v[164:167] offset:4096")
        a("s_mov_b64 exec, -1")
        a("v_min_u32 v168, 23, v1")
        a("v_lshl_add_u32 v168, v168, 4, s55")
        a("v_add_u32 v168, 4096, v168")
        a("v_subrev_u32 v169, %d, v7" % (3 * CSTR))
        a("v_subrev_u32 v170, %d, v168" % (3 * CSTR))
        for i in range(4):
            a("v_cvt_pk_f16_f32 v%d, v%d, v%d" % (24 + 2 * i, 16 + i, 16 + i))
            a("v_cvt_pk_f16_f32 v%d, v%d, v%d" % (25 + 2 * i, 16 + i, 16 + i))
        for d, x, y in ((32, 13, 13), (34, 13, 12), (35, 12, 12), (36, 15, 15), (38, 15, 14), (39, 14, 14), (40, 14, 13),
                        (41, 12, 12), (42, 11, 10), (43, 9, 8)):
            a("v_cvt_pk_f16_f32 v%d, v%d, v%d" % (d, x, y))
        a("s_mov_b32 exec_hi, 0")
        for i in range(4):
            P = 1020 - 256 * i
            a("ds_write_b64 v5, %s offset:%d" % (vp(24 + 2 * i), 2 * P))
            a("ds_write_b64 v5, %s offset:%d" % (vp(24 + 2 * i), 2 * P + 8))
        a("s_mov_b32 exec_lo, 0x55555555")
        for i in range(4):
            P = 1019 - 256 * i
            a("ds_write_b16 v5, v%d offset:%d" % (24 + 2 * i, 2 * P))
        a("s_mov_b32 exec_lo, 0")
        a("s_mov_b32 exec_hi, 1")
        a("ds_write_b64 v5, %s" % vp(24))
        a("s_mov_b32 exec_hi, -1")
        for i, (bb, ba, aa) in enumerate(((32, 34, 35), (36, 38, 39))):
            P = 2042 - 512 - 256 * i
            a("ds_write_b32 v5, v%d offset:%d" % (bb, 2 * P))
            a("ds_write_b64 v5, %s offset:%d" % (vp(ba), 2 * P + 4))
            a("ds_write_b32 v5, v%d offset:%d" % (aa, 2 * P + 12))
        a("s_mov_b32 exec_lo, -1")
        a("s_mov_b32 exec_hi, 0")
        P = 2041 - 256
        a("ds_write_b16 v5, v36 offset:%d" % (2 * P))
        a("ds_write_b32 v5, v39 offset:%d" % (2 * P + 2))
        a("ds_write_b64 v5, %s offset:%d" % (vp(40), 2 * P + 6))
        a("ds_write_b16 v5, v35 offset:%d" % (2 * P + 14))
        a("s_mov_b64 exec, -1")
        a("ds_write_b64 v6, %s offset:%d" % (vp(42), 2 * 2044))
        self.stamp("Kexp")
        for rnd in range(5):
            b = 44 + 24 * rnd
            src = "v7 offset:%d" % (1024 * rnd) if rnd < 4 else "v168"
            src2 = "v7 offset:%d" % (1024 * rnd + 16) if rnd < 4 else "v168 offset:16"
            a("ds_read_b128 %s, %s" % (v4(b), src))
            a("ds_read_b64 %s, %s" % (vp(b + 4), src2))
        for rnd in range(5):
            b = 44 + 24 * rnd
            a("s_waitcnt lgkmcnt(%d)" % (2 * (4 - rnd) + 3 * rnd))
            for k in range(4):
                a("v_alignbit_b32 v%d, v%d, v%d, 16" % (b + 8 + k, b + k + 1, b + k))
            ad, o = ("v169", 1024 * rnd) if rnd < 4 else ("v170", 0)
            a("ds_write_b128 %s, %s offset:%d" % (ad, v4(b + 8), o + 2 * CSTR))
            for k in range(4):
                a("v_mov_b32 v%d, v%d" % (b + 12 + k, b + k + 1))
            a("ds_write_b128 %s, %s offset:%d" % (ad, v4(b + 12), o + 1 * CSTR))
            for k in range(4):
                a("v_alignbit_b32 v%d, v%d, v%d, 16" % (b + 16 + k, b + k + 2, b + k + 1))
            a("ds_write_b128 %s, %s offset:%d" % (ad, v4(b + 16), o))
        a("s_branch %s" % lKd)
        a.label(lW3)
        self.nstamp = st0
        self.flag_store(0)
        self.pf_w1()
        self.stamp("flag")
        a("s_lshl_b32 s54, s%d, 4" % S_CF)
        for j in range(12):
            a("v_add_u32 v7, %d, v1" % (64 * j))
            a("v_mul_u32_u24 v8, 21846, v7")
            a("v_lshrrev_b32 v8, 16, v8")
            a("v_mul_u32_u24 v9, 3, v8")
            a("v_sub_u32 v9, v7, v9")
            a("v_mul_u32_u24 v%d, 10240, v8" % (100 + j))
            a("v_lshl_add_u32 v%d, v9, 4, v%d" % (100 + j, 100 + j))
            a("v_add_u32 v%d, s54, v%d" % (100 + j, 100 + j))
            a("v_mul_u32_u24 v9, %d, v9" % USTR)
            a("v_lshl_add_u32 v%d, v8, 4, v9" % (112 + j))
            a("v_add_u32 v%d, %d, v%d" % (112 + j, LDS_U + 128, 112 + j))
        a("v_lshlrev_b32 v10, 7, v1")
        for k in range(1, 4):
            a("v_add_u32 v%d, %d, v10" % (10 + k, 8192 * k))
        a("s_waitcnt vmcnt(0)")
        a("s_sleep %d" % int(os.environ.get("SL1", "8")))
        a("s_mov_b32 s69, 0")
        lp, lok = self.lab("flpoll"), self.lab("flok")
        a.label(lp)
        for k in range(4):
            a("global_load_dwordx4 %s, v%d, %s sc1" % (v4(16 + 4 * k), 10 + k, sp(P_FL)))
        a("s_waitcnt vmcnt(0)")
        a("v_xor_b32 v6, s%d, v16" % S_TAG)
        for r in range(17, 32):
            a("v_xor_b32 v7, s%d, v%d" % (S_TAG, r))
            a("v_or_b32 v6, v6, v7")
        a("v_cmp_ne_u32 vcc, 0, v6")
        a("s_cbranch_vccz %s" % lok)
        self.spin_tail(lp, lok, 4)
        a.label(lok)
        if self.timing:
            a("v_writelane_b32 v255, s69, 32")
        self.stamp("flok")
        for j in range(12):
            a("global_load_dwordx4 %s, v%d, %s sc1" % (v4(32 + 4 * j), 100 + j, sp(P_UT)))
        a("v_mov_b32 v6, 0")
        a("v_and_b32 v5, 31, v1")
        a("v_lshlrev_b32 v5, 2, v5")
        a("v_add_u32 v5, %d, v5" % LDS_U)
        for pos in range(3):
            a("ds_write_b32 v5, v6 offset:%d" % (pos * USTR))
        self.conv_setup()
        for j in range(12):
            a("s_waitcnt vmcnt(%d)" % (11 - j))
            a("ds_write_b128 v%d, %s" % (112 + j, v4(32 + 4 * j)))
        self.stamp("gath")
        lK2 = self.lab("kd2")
        a("s_branch %s" % lK2)
        a.label(lKd)
        self.conv_setup()
        a.label(lK2)
        a("s_waitcnt lgkmcnt(0)")
        self.stamp("prebar")
        a("s_barrier")
        self.stamp("kbar")

    def conv_setup(self):
        a = self.a
        a("s_lshl_b32 s90, s%d, 9" % S_WAVE)
        a("s_lshl_b32 s91, s%d, 7" % S_FB)
        self.wl_setup(P_W1, 3456, 90, 91, 16384)
        a("v_and_b32 v2, 15, v1")
        a("v_lshrrev_b32 v3, 4, v1")
        a("v_and_b32 v4, 3, v1")
        a("v_bfe_u32 v5, v1, 2, 2")
        a("v_mul_u32_u24 v6, %d, v4" % CSTR)
        a("v_lshl_add_u32 v6, v3, 4, v6")
        a("v_lshlrev_b32 v7, 7, v5")
        a("v_sub_u32 v6, v6, v7")
        a("v_add_u32 v6, %d, v6" % (LDS_C + 832))
        a("v_lshlrev_b32 v7, 3, v2")
        a("v_lshl_add_u32 v7, v3, 4, v7")
        a("v_add_u32 v7, %d, v7" % (LDS_U + 456))
        for p in range(3):
            a("s_mul_i32 s54, s%d, 6" % S_WAVE)
            a("s_add_u32 s54, s54, %d" % (2 * p + 1))
            a("s_lshr_b32 s55, s54, 3")
            a("s_and_b32 s54, s54, 7")
            a("s_lshl_b32 s54, s54, 6")
            a("s_mul_i32 s60, s55, %d" % CCH)
            a("s_sub_u32 s60, s60, s54")
            a("v_add_u32 v%d, s60, v6" % (194 + 2 * p))
            a("s_mul_i32 s60, s55, %d" % USTR)
            a("s_sub_u32 s60, s60, s54")
            a("v_add_u32 v%d, s60, v7" % (195 + 2 * p))
        a("v_lshrrev_b32 v2, 1, v1")
        a("v_mul_u32_u24 v2, 48, v2")
        a("v_and_b32 v3, 1, v1")
        a("v_mul_u32_u24 v3, %d, v3" % OHS)
        a("s_min_u32 s54, s%d, 2" % S_WAVE)
        a("s_lshl_b32 s54, s54, 4")
        a("s_add_u32 s54, s54, %d" % LDS_OWN)
        a("s_add_u32 s55, s54, %d" % (2 * OHS))
        a("s_cmp_eq_u32 s%d, 3" % S_WAVE)
        a("s_cmov_b32 s54, s55")
        a("v_add3_u32 v242, v2, v3, s54")
        a("s_sub_u32 s55, s55, 16")
        a("v_add3_u32 v243, v2, v3, s55")
        for j in range(3):
            a("v_add_u32 v2, %d, v0" % (256 * j))
            a("v_mul_u32_u24 v3, 21846, v2")
            a("v_lshrrev_b32 v3, 16, v3")
            a("v_mul_u32_u24 v4, 3, v3")
            a("v_sub_u32 v2, v2, v4")
            a("v_lshlrev_b32 v2, 2, v2")
            a("v_add_u32 v%d, %d, v2" % (244 + j, LDS_SC))

    def w2a_addr(self):
        a = self.a
        a("s_lshl_b32 s64, s%d, 5" % S_K2)
        a("s_lshl_b32 s65, s%d, 3" % S_IDX)
        a("s_add_u32 s64, s64, s65")
        a("v_lshrrev_b32 v2, 3, v1")
        a("v_add_u32 v2, s64, v2")
        a("s_lshr_b32 s65, s%d, 1" % S_XCD)
        a("s_lshl_b32 s65, s65, 10")
        a("v_and_b32 v4, 7, v1")
        a("v_lshl_add_u32 v4, v4, 7, s65")
        a("v_lshl_add_u32 v193, v2, 12, v4")

    def cv_loads(self, setn, na, vA, vB, ex):
        Ab, Bb = ((64, 96), (128, 160))[setn]
        L = []
        for n in range(na):
            L.append("ds_read_b128 %s, v%d offset:%d" % (v4(Ab + 4 * n), vA, 512 * (7 - n) + ex))
            L.append("ds_read_b64 %s, v%d offset:%d" % (vp(Bb + 4 * n), vB, 512 * n + ex))
            L.append("ds_read_b64 %s, v%d offset:%d" % (vp(Bb + 4 * n + 2), vB, 512 * n + ex + 8))
        return L

    def cv_iter(self, setn, chunks, acc, first, bg, hi=0.85):
        a = self.a
        Ab, Bb = ((64, 96), (128, 160))[setn]
        a("s_waitcnt lgkmcnt(0)")
        mark = len(a.ins)
        seen = set()
        for aa in range(max(chunks) + 1):
            for q in sorted(chunks, reverse=True):
                if q >= aa:
                    c = v4(acc[q])
                    src = "0" if (first and q not in seen) else c
                    seen.add(q)
                    a("v_mfma_f32_16x16x32_f16 %s, %s, %s, %s" % (c, v4(Ab + 4 * aa), v4(Bb + 4 * (q - aa)), src))
        if bg:
            self.weave(mark + 1, bg, 0.0, hi)

    def phase3(self):
        a = self.a
        one = lambda L: [[x] for x in L]
        def mix(L1, L2):
            if not L2: return L1
            out = []
            i = j = 0
            while i < len(L1) or j < len(L2):
                if j >= len(L2) or (i < len(L1) and i * len(L2) <= j * len(L1)):
                    out.append(L1[i]); i += 1
                else:
                    out.append(L2[j]); j += 1
            return out
        acc = {q: 16 + 4 * q for q in range(8)}
        dmaA = self.wl_dma_groups(3456, 4, 16384)
        dmaB = self.wl_dma_groups(3456, 4, 16384)
        def lds(it):
            p = it >> 1
            return one(self.cv_loads(it & 1, 8, 194 + 2 * p, 195 + 2 * p, 64 * (1 - (it & 1))))
        for g in lds(0):
            a(g[0])
        for j in range(3):
            a("ds_read_b32 v%d, v%d" % (4 + 2 * j, 244 + j))
        pfs = [["global_load_dword v192, v231, %s %s" % (sp(P_W1), NT)], ["global_load_dword v192, v232, %s %s" % (sp(P_W2), NT)]]
        nop = []
        extra = {0: dmaA[:4], 1: dmaA[4:], 2: [nop] * 24 + [["s_waitcnt vmcnt(0)"]] + one(self.wl_tr(0, 4)),
                 3: dmaB[:5], 4: dmaB[5:] + [["global_load_dword v193, v233, %s sc1" % sp(P_FL)]] + pfs}
        for it in range(6):
            if it in (2, 4):
                lf = self.lab("flush")
                a("s_cmp_lg_u32 s%d, %d" % (S_WAVE, it >> 1))
                a("s_cbranch_scc1 %s" % lf)
                a("s_nop 7")
                for r in range(32):
                    a("v_accvgpr_write_b32 a%d, v%d" % (128 + r, 16 + r))
                for r in range(16):
                    a("v_pk_mov_b32 %s, 0, 0" % vp(16 + 2 * r))
                a("s_nop 1")
                a.label(lf)
            self.cv_iter(it & 1, list(range(8)), acc, it == 0, mix(lds(it + 1) if it < 5 else [], extra.get(it, [])), hi=0.92)
        a("s_mul_i32 s54, s%d, 12288" % S_OCT)
        a("v_lshl_add_u32 v10, v0, 4, s54")
        a("v_add_u32 v11, 4096, v10")
        a("v_add_u32 v12, 8192, v10")
        a("v_lshlrev_b32 v13, 4, v0")
        a("v_add_u32 v13, %d, v13" % LDS_OWN)
        self.stamp("convmf")
        a("s_barrier")
        for q in range(8):
            a("ds_write_b128 v242, %s offset:%d" % (v4(16 + 4 * q), 1536 * q))
        lw = self.lab("nofl")
        a("s_add_u32 s54, s%d, 1" % S_WAVE)
        a("s_bitcmp0_b32 s54, 1")
        a("s_cbranch_scc1 %s" % lw)
        for q in range(8):
            a("ds_write_b128 v243, %s offset:%d" % (a4(128 + 4 * q), 1536 * q))
        a.label(lw)
        self.pd_check(len(pfs))
        a("s_waitcnt lgkmcnt(0)")
        a("s_barrier")
        for j in range(3):
            b = 64 + 16 * j
            for k in range(2):
                for hh in range(2):
                    a("ds_read_b128 %s, v13 offset:%d" % (v4(b + 8 * k + 4 * hh), k * 2 * OHS + hh * OHS + 4096 * j))
        for j in range(3):
            b = 64 + 16 * j
            a("s_waitcnt lgkmcnt(%d)" % (4 * (2 - j)))
            for p in range(4):
                a("v_pk_add_f32 %s, %s, %s" % (vp(b + 2 * p), vp(b + 2 * p), vp(b + 8 + 2 * p)))
            for p in range(4):
                a("v_pk_mul_f32 %s, %s, %s op_sel_hi:[1,0]" % (vp(b + 2 * p), vp(b + 2 * p), vp(4 + 2 * j)))
            for p in range(4):
                a("v_cvt_pk_bf16_f32 v%d, v%d, v%d" % (b + 8 + p, b + 2 * p, b + 2 * p + 1))
            for p in range(4):
                a("v_min_u32 v%d, 0xfffffffe, v%d" % (b + 8 + p, b + 8 + p))
            a("global_store_dwordx4 v%d, %s, %s sc1" % (10 + j, v4(b + 8), sp(P_YT)))
        self.stamp("ytstore")

    def helper(self):
        a = self.a
        a.label("L_helper")
        self.flag_store(0)
        self.pf_w1()
        a("s_sub_u32 s60, s%d, 27" % S_IDX)
        a("s_lshl_b32 s60, s60, 2")
        a("s_add_u32 s60, s60, s%d" % S_WAVE)
        for r in range(4):
            a("v_mov_b32 v%d, -1" % (20 + r))
        a("v_lshrrev_b32 v5, 3, v1")
        a("v_and_b32 v6, 7, v1")
        a("s_lshr_b32 s62, s%d, 1" % S_XCD)
        def poison(ptr, per_xcd_kb, xcd_stride):
            a("s_mul_i32 s61, s%d, %d" % (S_XCD, xcd_stride))
            a("s_lshl_b32 s63, s60, 10")
            a("s_add_u32 s61, s61, s63")
            a("v_lshl_add_u32 v7, v1, 4, s61")
            a("s_mov_b32 s63, s60")
            lp = self.lab("poi")
            a.label(lp)
            a("global_store_dwordx4 v7, v[20:23], %s sc1" % sp(ptr))
            a("v_add_u32 v7, 20480, v7")
            a("s_add_u32 s63, s63, 20")
            a("s_cmp_lt_u32 s63, %d" % per_xcd_kb)
            a("s_cbranch_scc1 %s" % lp)
        def pref(ptr, rs, nline, maxline, rowf, ngroups):
            a("s_mul_i32 s61, s62, %d" % nline)
            a("v_min_u32 v8, %d, v6" % (nline - 1))
            a("v_add_u32 v8, s61, v8")
            a("v_min_u32 v8, %d, v8" % maxline)
            a("v_lshlrev_b32 v8, 7, v8")
            a("s_mov_b32 s63, s60")
            lp = self.lab("prf")
            a.label(lp)
            rowf()
            a("v_add_u32 v9, s64, v5")
            a("v_mul_u32_u24 v9, %d, v9" % rs)
            a("v_add_u32 v9, v9, v8")
            a("global_load_dword v254, v9, %s" % sp(ptr))
            a("s_add_u32 s63, s63, 20")
            a("s_cmp_lt_u32 s63, %d" % ngroups)
            a("s_cbranch_scc1 %s" % lp)
        def row_w1b():
            a("s_and_b32 s64, s63, 3")
            a("s_lshl_b32 s64, s64, 9")
            a("s_lshr_b32 s65, s63, 2")
            a("s_lshl_b32 s65, s65, 3")
            a("s_add_u32 s64, s64, s65")
            a("s_add_u32 s64, s64, 256")
        def row_w2():
            a("s_and_b32 s64, s63, 3")
            a("s_mul_i32 s64, s64, 448")
            a("s_min_u32 s64, s64, 1312")
            a("s_lshr_b32 s65, s63, 2")
            a("s_lshl_b32 s65, s65, 3")
            a("s_add_u32 s64, s64, s65")
            a("s_min_u32 s64, s64, 1720")
        poison(P_YT, 27 * 12, 32 * 12288)
        self.flag_store(1)
        if 'h' in BGX:
            self.pf_w2b()
        poison(P_HP, 320, 327680)
        self.flag_store(4)
        a("global_load_dword v254, v231, %s %s" % (sp(P_W1), NT))
        a("global_load_dword v254, v232, %s %s" % (sp(P_W2), NT))
        if 'j' in BGX:
            self.pf_w2b((160,))
        a("s_lshl_b32 s90, s%d, 9" % S_WAVE)
        a("s_lshl_b32 s91, s%d, 7" % S_FB)
        self.wl_setup(P_W1, 3456, 90, 91, 16384)
        a("global_load_dword v193, v233, %s sc1" % sp(P_FL))
        self.pd_check(0)
        a("s_branch L_win2")

    def phase4_pre(self):
        a = self.a
        a("s_mul_i32 s55, s%d, 48" % S_OCT)
        for j in range(3):
            a("v_add_u32 v5, %d, v0" % (256 * j))
            if j == 2:
                a("v_min_u32 v5, 639, v5")
            a("v_mul_u32_u24 v6, 820, v5")
            a("v_lshrrev_b32 v6, 16, v6")
            a("v_mul_u32_u24 v7, 80, v6")
            a("v_sub_u32 v7, v5, v7")
            a("v_mul_u32_u24 v8, 21846, v7")
            a("v_lshrrev_b32 v8, 16, v8")
            a("v_lshl_add_u32 v6, v6, 5, v8")
            a("v_mul_u32_u24 v8, 3, v8")
            a("v_sub_u32 v7, v7, v8")
            a("v_mul_u32_u24 v6, 12288, v6")
            a("v_lshl_add_u32 v6, v7, 4, v6")
            a("v_add_u32 v%d, s55, v6" % (170 + j))
        for n in range(12):
            a("v_lshlrev_b32 v%d, 16, v%d" % (100 + 2 * n, XG + n))
            a("v_and_b32 v%d, 0xffff0000, v%d" % (101 + 2 * n, XG + n))
            a("v_lshlrev_b32 v%d, 16, v%d" % (124 + 2 * n, TG + n))
            a("v_and_b32 v%d, 0xffff0000, v%d" % (125 + 2 * n, TG + n))
        a("s_lshl_b32 s54, s%d, 8" % S_OCT)
        a("v_lshrrev_b32 v2, 4, v0")
        a("v_lshlrev_b32 v2, 16, v2")
        a("v_and_b32 v3, 15, v0")
        a("v_lshl_add_u32 v2, v3, 4, v2")
        a("v_add_u32 v173, s54, v2")
        a("v_add_u32 v174, 0x100000, v173")
        a("v_add_u32 v175, 0x200000, v173")
        a("s_mul_i32 s54, s%d, 10240" % S_OCT)
        a("v_lshl_add_u32 v176, v0, 4, s54")
        a("v_add_u32 v177, 4096, v176")
        a("v_add_u32 v178, 8192, v176")
        a("v_lshlrev_b32 v179, 2, v0")
        a("v_add_u32 v179, %d, v179" % LDS_LN)
        a("v_lshlrev_b32 v180, 2, v1")
        a("v_add_u32 v180, %d, v180" % LDS_LN)

    def pd_check(self, n):
        a = self.a
        a("s_mov_b32 s69, 0")
        lp, lok = self.lab("pdpoll"), self.lab("pdok")
        a("s_waitcnt vmcnt(%d)" % n)
        a.label(lp)
        a("v_cmp_ne_u32 vcc, s%d, v193" % S_TAG)
        a("s_cbranch_vccz %s" % lok)
        a("s_add_u32 s69, s69, 1")
        a("s_cmp_gt_u32 s69, %d" % SPIN)
        a("s_cbranch_scc1 %s" % lok)
        a("s_sleep 4")
        a("global_load_dword v193, v233, %s sc1" % sp(P_FL))
        a("s_waitcnt vmcnt(0)")
        a("s_branch %s" % lp)
        a.label(lok)

    def phase4(self, N2):
        a = self.a
        a("s_mov_b32 s69, 0")
        lp, lok, lf = self.lab("hpoll"), self.lab("hok"), self.lab("hfirst")
        for j in range(3):
            a("global_load_dwordx4 %s, v%d, %s sc1" % (v4(16 + 4 * j), 170 + j, sp(P_YT)))
        a("s_waitcnt vmcnt(3)")
        for t in self.wl_tr(8, N2):
            a(t)
        a("s_branch %s" % lf)
        a.label(lp)
        for j in range(3):
            a("global_load_dwordx4 %s, v%d, %s sc1" % (v4(16 + 4 * j), 170 + j, sp(P_YT)))
        a.label(lf)
        a("s_waitcnt vmcnt(0)")
        a("v_max3_u32 v28, v16, v17, v18")
        a("v_max3_u32 v29, v19, v20, v21")
        a("v_max3_u32 v30, v22, v23, v24")
        a("v_max3_u32 v31, v25, v26, v27")
        a("v_max3_u32 v28, v28, v29, v30")
        a("v_max_u32 v28, v28, v31")
        a("v_cmp_eq_u32 vcc, -1, v28")
        a("s_cbranch_vccz %s" % lok)
        self.spin_tail(lp, lok, 4)
        a.label(lok)
        self.stamp("hpoll")
        mark4 = len(a.ins)
        def unp(src):
            for n in range(12):
                a("v_lshlrev_b32 v%d, 16, v%d" % (32 + 2 * n, src + n))
                a("v_and_b32 v%d, 0xffff0000, v%d" % (33 + 2 * n, src + n))
        unp(16)
        for n in range(12):
            a("v_pk_add_f32 %s, %s, %s" % (vp(32 + 2 * n), vp(32 + 2 * n), vp(124 + 2 * n)))
        for n in range(12):
            a("v_cvt_pk_bf16_f32 v%d, v%d, v%d" % (16 + n, 32 + 2 * n, 33 + 2 * n))
        unp(16)
        for n in range(12):
            a("v_pk_add_f32 %s, %s, %s" % (vp(32 + 2 * n), vp(32 + 2 * n), vp(100 + 2 * n)))
        for n in range(12):
            a("v_cvt_pk_bf16_f32 v%d, v%d, v%d" % (150 + n, 32 + 2 * n, 33 + 2 * n))
        self.weave(mark4, self.wl_dma_groups(3456, 8 - N2, 32768, slot0=4096 * N2))
        lz = self.lab("hz")
        a("s_cmp_lt_u32 s%d, 2" % S_WAVE)
        a("s_cbranch_scc1 %s" % lz)
        for r in range(4):
            a("v_mov_b32 v%d, 0" % (158 + r))
        a.label(lz)
        unp(150)
        for p in range(4):
            a("v_pk_add_f32 %s, %s, %s" % (vp(64 + 2 * p), vp(32 + 2 * p), vp(40 + 2 * p)))
            a("v_pk_mul_f32 %s, %s, %s" % (vp(72 + 2 * p), vp(32 + 2 * p), vp(32 + 2 * p)))
        for p in range(4):
            a("v_pk_add_f32 %s, %s, %s" % (vp(64 + 2 * p), vp(64 + 2 * p), vp(48 + 2 * p)))
            a("v_pk_fma_f32 %s, %s, %s, %s" % (vp(72 + 2 * p), vp(40 + 2 * p), vp(40 + 2 * p), vp(72 + 2 * p)))
        for p in range(4):
            a("v_pk_fma_f32 %s, %s, %s, %s" % (vp(72 + 2 * p), vp(48 + 2 * p), vp(48 + 2 * p), vp(72 + 2 * p)))
        for k in range(8):
            a("v_permlane32_swap_b32 v%d, v%d" % (64 + k, 72 + k))
        for p in range(4):
            a("v_pk_add_f32 %s, %s, %s" % (vp(64 + 2 * p), vp(64 + 2 * p), vp(72 + 2 * p)))
        for k in range(4):
            a("v_permlane16_swap_b32 v%d, v%d" % (64 + k, 68 + k))
        for p in range(2):
            a("v_pk_add_f32 %s, %s, %s" % (vp(64 + 2 * p), vp(64 + 2 * p), vp(68 + 2 * p)))
        for k in range(2):
            a("v_add_f32_dpp v%d, v%d, v%d row_ror:8 row_mask:0xf bank_mask:0x3" % (72 + k, 64 + k, 64 + k))
        for k in range(2):
            a("v_add_f32_dpp v%d, v%d, v%d row_ror:8 row_mask:0xf bank_mask:0xc" % (72 + k, 66 + k, 66 + k))
        a("v_add_f32_dpp v64, v72, v72 row_half_mirror row_mask:0xf bank_mask:0x5")
        a("v_add_f32_dpp v64, v73, v73 row_half_mirror row_mask:0xf bank_mask:0xa")
        a("v_add_f32_dpp v64, v64, v64 quad_perm:[1,0,3,2] row_mask:0xf bank_mask:0xf")
        a("v_add_f32_dpp v64, v64, v64 quad_perm:[2,3,0,1] row_mask:0xf bank_mask:0xf")
        a("ds_write_b32 v179, v64")
        self.pd_check(63)
        for n in range(12):
            a("v_min_u32 v%d, 0xfffffffe, v%d" % (150 + n, 150 + n))
        a("s_waitcnt lgkmcnt(0)")
        a("s_barrier")
        for w in range(4):
            a("ds_read_b32 v%d, v180 offset:%d" % (64 + w, 256 * w))
        a("s_waitcnt lgkmcnt(0)")
        a("v_pk_add_f32 v[64:65], v[64:65], v[66:67]")
        a("v_add_f32 v64, v64, v65")
        a("v_mul_f32 v64, %s, v64" % f32(1.0 / 640))
        a("v_mov_b32 v65, v64")
        a("v_permlane32_swap_b32 v64, v65")
        a("v_fma_f32 v65, -v64, v64, v65")
        a("v_max_f32 v65, 0, v65")
        self.bf16_round(67, 65)
        self.bf16_round(66, 64)
        a("v_add_f32 v67, %s, v67" % f32(1e-5))
        self.bf16_round(67, 67)
        a("v_sqrt_f32 v67, v67")
        a("v_sub_f32 v68, v64, v66")
        self.bf16_round(67, 67)
        a("v_rcp_f32 v67, v67")
        a("v_mul_f32 v69, v65, v67")
        a("v_mul_f32 v68, v68, v67")
        a("v_mul_f32 v69, v69, v67")
        self.bf16_round(69, 69)
        self.bf16_round(68, 68)
        a("v_add_f32 v69, %s, v69" % f32(1e-5))
        self.bf16_round(69, 69)
        a("v_sqrt_f32 v69, v69")
        a("v_fma_f32 v70, v66, v67, v68")
        self.bf16_round(69, 69)
        a("v_rcp_f32 v69, v69")
        a("v_mul_f32 v70, -v70, v69")
        a("v_mul_f32 v71, v67, v69")
        for r in range(8):
            a("v_readlane_b32 s%d, v70, %d" % (54 + r, 4 * r))
        for r in range(8):
            a("v_readlane_b32 s%d, v71, %d" % ((62, 63, 64, 65, 66, 67, 70, 71)[r], 4 * r))
        for r in range(8):
            a("v_mov_b32 v%d, s%d" % (72 + r, 54 + r))
        l3 = self.lab("h3")
        for j in range(3):
            if j == 2:
                a("s_cmp_ge_u32 s%d, 2" % S_WAVE)
                a("s_cbranch_scc1 %s" % l3)
            for p in range(4):
                h = 32 + 8 * j + 2 * p
                a("v_pk_fma_f32 %s, %s, %s, %s" % (vp(h), vp(h), sp((62, 64, 66, 70)[p]), vp(72 + 2 * p)))
            for p in range(4):
                h = 32 + 8 * j + 2 * p
                a("v_cvt_pk_bf16_f32 v%d, v%d, v%d" % (16 + 4 * j + p, h, h + 1))
            for p in range(4):
                a("v_min_u32 v%d, 0xfffffffe, v%d" % (16 + 4 * j + p, 16 + 4 * j + p))
            a("global_store_dwordx4 v%d, %s, %s sc1" % (173 + j, v4(16 + 4 * j), sp(P_HP)))
        a("global_store_dwordx4 v178, v[158:161], %s sc1" % sp(P_H2))
        a.label(l3)
        a("global_store_dwordx4 v176, v[150:153], %s sc1" % sp(P_H2))
        a("global_store_dwordx4 v177, v[154:157], %s sc1" % sp(P_H2))
        self.stamp("hpstore")

    NP = 35
    def acc(self, j, mt): return ACC0 + 4 * (mt * 4 + j)
    def preg(self, k): return SLOT0 + 4 * (k % self.NP)

    def frag_load(self, name, seq0, mts, i):
        s, mt = i // len(mts), mts[i % len(mts)]
        base = (84 if name.startswith("g1") else 64) + (0 if s < 8 else 2)
        return "global_load_dwordx4 %s, v%d, %s offset:%d sc1 ; #%s_%d" % (
            v4(self.preg(seq0 + i)), 2 + mt, sp(base), (s % 8) * 1024 - 4096, name, s)

    def frag_check(self, seq0, mts, s):
        if CK1:
            r = [self.preg(seq0 + s * len(mts) + m) + 3 for m in range(len(mts))]
            if len(r) == 3:
                return ["v_max3_u32 v7, v%d, v%d, v%d" % tuple(r), "v_cmp_eq_u32 vcc, -1, v7"]
            return ["v_max_u32 v7, v%d, v%d" % tuple(r), "v_cmp_eq_u32 vcc, -1, v7"]
        r = [self.preg(seq0 + s * len(mts) + m) + k for m in range(len(mts)) for k in range(4)]
        L = ["v_max3_u32 v7, v%d, v%d, v%d" % (r[0], r[1], r[2]), "v_max3_u32 v8, v%d, v%d, v%d" % (r[3], r[4], r[5])]
        rest = r[6:]
        t = 7
        while len(rest) >= 2:
            L.append("v_max3_u32 v%d, v%d, v%d, v%d" % (t, t, rest[0], rest[1]))
            rest = rest[2:]
            t = 15 - t
        L += ["v_max_u32 v7, v7, v8", "v_cmp_eq_u32 vcc, -1, v7"]
        return L

    def gpass(self, name, nsteps, mts, w_is_A, seq0, npre, bgf=None, s_short=None, hook=None):
        a = self.a
        nm = len(mts)
        tot = nsteps * nm
        ldone = self.lab("gdone")
        def branch_slow(s):
            ls, lb = self.lab("gslow"), self.lab("gback")
            a("s_cbranch_vccnz %s" % ls)
            a.label(lb)
            self.slowpaths.append((s, ls, lb, [self.frag_load(name, seq0, mts, s * nm + m).split(';')[0] for m in range(nm)],
                                   self.frag_check(seq0, mts, s)))
        a("@wait %s_0" % name)
        for l in self.frag_check(seq0, mts, 0):
            a(l)
        branch_slow(0)
        self.stamp(name + "f")
        for s in range(nsteps):
            if hook and s in hook:
                hook[s]()
            fill = []
            for g in (bgf(s) if bgf else []):
                fill.append(g)
            ck = []
            if s + 1 < nsteps:
                ck = [["@wait %s_%d" % (name, s + 1)]] + [[x] for x in self.frag_check(seq0, mts, s + 1)]
            items = fill + ck
            nmf = 4 * nm
            per = [len(items) * (k + 1) // nmf - len(items) * k // nmf for k in range(nmf)]
            n = 0
            for m, mt in enumerate(mts):
                for j in range(4):
                    c = v4(self.acc(j, mt))
                    w = a4((s * 4 + j) * 4)
                    f = v4(self.preg(seq0 + s * nm + m))
                    A, B = (w, f) if w_is_A else (f, w)
                    a("v_mfma_f32_16x16x32_bf16 %s, %s, %s, %s" % (c, A, B, "0" if s == 0 else c))
                    if j == 3:
                        a("@mark free%d" % (seq0 + s * nm + m))
                    for _ in range(per[n]):
                        for t in items.pop(0):
                            a(t)
                    n += 1
            if s + 1 < nsteps:
                if s_short is not None and s + 2 == nsteps:
                    a("@mark noins")
                    a("s_cmp_eq_u32 s%d, 1" % s_short)
                    a("s_cbranch_scc1 %s" % ldone)
                branch_slow(s + 1)
        a.label(ldone)
        a("@mark ins")
        self.stamp(name + "m")

    def est(self, ins):
        k = ins.kind
        if k == 'mfma': return 16
        if k in ('label', 'dir'): return 0
        if k == 'trans': return 8
        if k == 'mem': return 30 if 'write_b128' in ins.op else 8
        if ins.op == 's_barrier': return 60
        return 4.5

    def schedule(self, start, ops, per=None, lat=700, ahead=None):
        from asmdsl import Ins
        a = self.a
        per = per or float(os.environ.get("PER", "70"))
        ahead = ahead or float(os.environ.get("AHEAD", "400"))
        seg = a.ins[start:]
        del a.ins[start:]
        seen = set()
        t = 0.0; tm = 0.0
        pf = 0.0
        done = {}
        q = list(ops)
        noins = False
        noex = False
        def emit(op):
            nonlocal pf, t
            for x in op['ins']:
                a(x)
                t += 4.5
            pf = max(pf, t) + per * op.get('kb', 1)
            done[op['tag']] = pf + lat
        for n, ins in enumerate(seg):
            if ins.op == '@mark':
                seen.add(ins.text.split()[1])
            if ins.op == '@wait':
                tag = ins.text.split()[1]
                idx = [k for k, o in enumerate(q) if o['tag'] == tag]
                if idx:
                    for o in q[:idx[-1] + 1]:
                        assert all(m in seen for m in o['after']), (o, tag)
                        emit(o)
                    q = q[idx[-1] + 1:]
                if tag in done:
                    t = max(t, done[tag])
            a.ins.append(ins)
            if ins.kind == 'mfma':
                t = max(t, tm) + 8
                tm = t + 8
            else:
                t += self.est(ins)
            if ins.op.startswith('s_cmp') or ins.op.startswith('s_bitcmp'): continue
            if 'exec' in ins.text and ins.op.startswith('s_mov'):
                noex = '-1' not in ins.text
            if ins.op == '@mark' and ins.text.split()[1] in ('noins', 'ins'):
                noins = ins.text.split()[1] == 'noins'
            if noins or noex or ins.kind == 'branch': continue
            while q and all(m in seen for m in q[0]['after']) and pf - t < ahead:
                emit(q.pop(0))
        assert not q, q[:3]

    def emit_slowpaths(self):
        a = self.a
        for s, ls, lb, loads, chk in self.slowpaths:
            a.label(ls)
            a("s_add_u32 s69, s69, 1")
            a("s_cmp_gt_u32 s69, %d" % SPIN)
            a("s_cbranch_scc1 %s" % lb)
            a("s_sleep 2")
            for l in loads:
                a(l)
            a("s_waitcnt vmcnt(0)")
            for l in chk:
                a(l)
            a("s_cbranch_vccnz %s" % ls)
            a("s_branch %s" % lb)

    def rndp(self, regs):
        a = self.a
        for b in regs:
            a("v_cvt_pk_bf16_f32 v%d, v%d, v%d" % (b + 1, b, b + 1))
        for b in regs:
            a("v_lshlrev_b32 v%d, 16, v%d" % (b, b + 1))
            a("v_and_b32 v%d, 0xffff0000, v%d" % (b + 1, b + 1))

    def epilogue(self, kind, mts, mid=None, bg=None, post=None, js=3072):
        a = self.a
        bg = list(bg or [])
        a("s_waitcnt lgkmcnt(0)")
        a("s_barrier")
        if post:
            post()
        mk = len(a.ins)
        for j in range(1, 4):
            for m, mt in enumerate(mts):
                a("ds_write_b128 v%d, %s offset:%d" % (241 + j, v4(self.acc(j, mt)), 1024 * m))
        if mid:
            mid()
        else:
            n1 = len(bg) // 4
            if n1:
                self.weave(mk, bg[:n1]); bg = bg[n1:]
        a("s_waitcnt lgkmcnt(0)")
        a("s_barrier")
        for m, mt in enumerate(mts):
            for j in range(1, 4):
                a("ds_read_b128 %s, v245 offset:%d" % (v4(self.acc(j, mt)), js * (j - 1) + 1024 * m))
        mk = len(a.ins)
        P = [self.acc(0, mt) + 2 * h for mt in mts for h in range(2)]
        T = [self.acc(1, mt) + 2 * h for mt in mts for h in range(2)]
        for m, mt in enumerate(mts):
            a("s_waitcnt lgkmcnt(%d)" % (3 * (len(mts) - 1 - m)))
            for h in range(2):
                a("v_pk_add_f32 %s, %s, %s" % (vp(self.acc(0, mt) + 2 * h), vp(self.acc(0, mt) + 2 * h), vp(self.acc(1, mt) + 2 * h)))
                a("v_pk_add_f32 %s, %s, %s" % (vp(self.acc(2, mt) + 2 * h), vp(self.acc(2, mt) + 2 * h), vp(self.acc(3, mt) + 2 * h)))
        if kind == 2:
            for mt in mts:
                a("ds_read_b64 %s, v249 offset:%d" % (vp(self.acc(3, mt)), 32 * mt))
        for mt in mts:
            for h in range(2):
                a("v_pk_add_f32 %s, %s, %s" % (vp(self.acc(0, mt) + 2 * h), vp(self.acc(0, mt) + 2 * h), vp(self.acc(2, mt) + 2 * h)))
        self.rndp(P)
        for n, p in enumerate(P):
            if kind == 1:
                a("v_pk_add_f32 %s, %s, %s" % (vp(p), vp(p), vp(250 + 2 * (n & 1))))
            else:
                a("v_pk_add_f32 %s, %s, %s op_sel_hi:[1,0]" % (vp(p), vp(p), vp(250)))
        self.rndp(P)
        if kind == 1:
            for p, t in zip(P, T):
                a("v_pk_mul_f32 %s, %s, %s" % (vp(t), vp(p), vp(p)))
            for p, t in zip(P, T):
                a("v_pk_fma_f32 %s, %s, %s, %s op_sel_hi:[1,0,0]" % (vp(t), vp(t), vp(12), vp(10)))
            for p, t in zip(P, T):
                a("v_pk_mul_f32 %s, %s, %s" % (vp(t), vp(t), vp(p)))
            for t in T:
                a("v_exp_f32 v%d, v%d" % (t, t))
                a("v_exp_f32 v%d, v%d" % (t + 1, t + 1))
            for t in T:
                a("v_pk_add_f32 %s, %s, 1.0 op_sel_hi:[1,0]" % (vp(t), vp(t)))
            for t in T:
                a("v_rcp_f32 v%d, v%d" % (t, t))
                a("v_rcp_f32 v%d, v%d" % (t + 1, t + 1))
            for p, t in zip(P, T):
                a("v_pk_mul_f32 %s, %s, %s" % (vp(p), vp(p), vp(t)))
        else:
            a("s_waitcnt lgkmcnt(0)")
            for mt in mts:
                for h in range(2):
                    a("v_lshlrev_b32 v%d, 16, v%d" % (self.acc(1, mt) + 2 * h, self.acc(3, mt) + h))
                    a("v_and_b32 v%d, 0xffff0000, v%d" % (self.acc(1, mt) + 2 * h + 1, self.acc(3, mt) + h))
            for p, t in zip(P, T):
                a("v_pk_add_f32 %s, %s, %s" % (vp(p), vp(p), vp(t)))
        prs = {2: [(3, 4)], 3: [(0, 1), (2, 2)], 5: [(0, 1), (2, 2), (3, 4)]}[len(mts)]
        outs = []
        for ta, tb in prs:
            o = self.acc(2, ta)
            outs.append(o)
            for h in range(2):
                a("v_cvt_pk_bf16_f32 v%d, v%d, v%d" % (o + h, self.acc(0, ta) + 2 * h, self.acc(0, ta) + 2 * h + 1))
                a("v_cvt_pk_bf16_f32 v%d, v%d, v%d" % (o + 2 + h, self.acc(0, tb) + 2 * h, self.acc(0, tb) + 2 * h + 1))
        if kind == 1:
            for o in outs:
                for k in range(4):
                    a("v_min_u32 v%d, 0xfffffffe, v%d" % (o + k, o + k))
        if bg:
            self.weave(mk, bg)
        for o in outs:
            for h in range(2):
                a("v_permlane16_swap_b32 v%d, v%d" % (o + h, o + 2 + h))
        for n, ((ta, tb), o) in enumerate(zip(prs, outs)):
            ar = 246 + (0 if ta == 0 else (1 if ta == 2 else 2))
            if kind == 1:
                a("global_store_dwordx4 v%d, %s, %s sc1" % (ar, v4(o), sp(P_G)))
            else:
                a("global_store_dwordx4 v%d, %s, %s %s" % (ar, v4(o), sp(P_OUT), os.environ.get("OST", "")))

    def g_common_setup(self):
        a = self.a
        for j in range(1, 4):
            a("s_add_u32 s54, s%d, %d" % (S_WAVE, j))
            a("s_and_b32 s54, s54, 3")
            a("s_lshl_b32 s54, s54, 15")
            a("s_add_u32 s54, s54, %d" % (20480 + 3072 * (j - 1)))
            a("v_lshl_add_u32 v%d, v1, 4, s54" % (241 + j))
        a("s_lshl_b32 s54, s%d, 15" % S_WAVE)
        a("s_add_u32 s54, s54, 20480")
        a("v_lshl_add_u32 v245, v1, 4, s54")

    def g1_setup(self):
        a = self.a
        a("s_mul_i32 s54, s%d, %d" % (S_DB, 5 * 65536))
        a("v_lshl_add_u32 v2, v1, 4, s54")
        for mt in range(1, 5):
            a("v_add_u32 v%d, %d, v2" % (2 + mt, 65536 * mt))
        a("s_lshl_b32 s54, s%d, 14" % S_WAVE)
        a("s_add_u32 s54, s54, 4096")
        a("s_add_u32 s84, s%d, s54" % P_HP)
        a("s_addc_u32 s85, s%d, 0" % (P_HP + 1))
        a("s_add_u32 s86, s84, 8192")
        a("s_addc_u32 s87, s85, 0")
        a("s_mul_i32 s54, s%d, 270" % S_DB)
        a("s_lshl_b32 s55, s%d, 1" % S_FB)
        a("s_add_u32 s54, s54, s55")
        a("s_lshl_b32 s54, s54, 10")
        a("s_lshl_b32 s55, s%d, 9" % S_WAVE)
        a("s_add_u32 s54, s54, s55")
        a("v_and_b32 v7, 15, v1")
        a("v_lshrrev_b32 v8, 5, v1")
        a("v_lshl_add_u32 v7, v8, 4, v7")
        a("v_lshl_add_u32 v7, v7, 4, s54")
        a("v_add_u32 v247, %d, v7" % (2 * 54 * 1024))
        a("v_bfe_u32 v8, v1, 4, 1")
        a("v_mul_u32_u24 v8, %d, v8" % (54 * 1024))
        a("v_add_u32 v246, v7, v8")
        a("v_add_u32 v248, %d, v246" % (3 * 54 * 1024))
        for r in range(4):
            a("v_mov_b32 v%d, -1" % (10 + r))
        for r in (246, 247, 248):
            a("global_store_dwordx4 v%d, v[10:13], %s sc1 ; #gpoi" % (r, sp(P_G)))
        a("s_lshl_b32 s54, s%d, 7" % S_FB)
        a("s_lshl_b32 s55, s%d, 5" % S_WAVE)
        a("s_add_u32 s54, s54, s55")
        a("v_lshrrev_b32 v7, 4, v1")
        a("v_lshl_add_u32 v7, v7, 3, s54")
        a("global_load_dwordx2 v[252:253], v7, %s" % sp(P_B1))
        a("s_mul_i32 s54, s%d, 27" % S_DB)
        a("s_add_u32 s54, s54, s%d" % S_FB)
        a("s_lshl_b32 s54, s54, 7")
        a("s_add_u32 s54, s54, 0x18000")
        a("v_mov_b32 v249, s54")
        a("v_mov_b32 v9, s%d" % S_TAG)
        a("s_mov_b32 s69, 0")

    def g2_flag_addr(self):
        G = []
        G.append(["v_bfe_u32 v9, v1, 2, 3", "s_lshl_b32 s54, s%d, 3" % S_SB, "v_add_u32 v9, s54, v9", "v_lshlrev_b32 v9, 7, v9"])
        G.append(["v_and_b32 v13, 3, v1", "v_lshl_add_u32 v9, v13, 2, v9", "v_add_u32 v9, 0x10000, v9"])
        G.append(["s_mul_i32 s54, s%d, %d" % (S_DB2, 27 * 128), "s_add_u32 s54, s54, 0x18000", "v_and_b32 v11, 31, v1",
                  "v_min_u32 v11, 26, v11", "v_lshl_add_u32 v11, v11, 7, s54"])
        G.append(["v_cmp_lt_u32 s[62:63], 31, v1", "s_nop 1", "v_cndmask_b32 v9, v9, v11, s[62:63]"])
        return G

    def g2_flag_loads(self):
        return ["global_load_dword v249, v9, %s sc1 ; #g2fl" % sp(P_FL)]

    def g2_check(self, first_wait):
        a = self.a
        lp, lok = self.lab("h2poll"), self.lab("h2ok")
        a(first_wait)
        a("@mark noins")
        a.label(lp)
        a("v_cmp_ne_u32 vcc, s%d, v249" % S_TAG)
        a("s_cbranch_vccz %s" % lok)
        a("s_add_u32 s69, s69, 1")
        a("s_cmp_gt_u32 s69, %d" % SPIN)
        a("s_cbranch_scc1 %s" % lok)
        a("s_sleep 8")
        for t in self.g2_flag_loads():
            a(t.split(';')[0] + " ; #cond")
        a("s_waitcnt vmcnt(0)")
        a("s_branch %s" % lp)
        a.label(lok)
        a("@mark ins")
        a("@mark g2a_ok")

    def g2_addr(self, mts):
        G = [["s_mul_i32 s54, s%d, %d" % (S_DB2, 5 * 54 * 1024), "v_lshl_add_u32 v11, v1, 4, s54"]]
        G.append(["v_add_u32 v%d, %d, v11" % (2 + mt, 54 * 1024 * mt) for mt in mts])
        if 0 in mts:
            G.append(["s_lshl_b32 s54, s%d, 10" % S_K2, "s_add_u32 s54, s54, 4096", "@mark noins", "s_add_u32 s64, s%d, s54" % P_G,
                      "s_addc_u32 s65, s%d, 0" % (P_G + 1), "s_add_u32 s66, s64, 8192", "s_addc_u32 s67, s65, 0", "@mark ins"])
        return G

    def g2_late_setup(self):
        G = []
        G.append(["s_mul_i32 s60, s%d, %d" % (S_SB, 8 * 10240), "s_mul_i32 s61, s%d, 1280" % S_DB2, "s_add_u32 s60, s60, s61"])
        for j in range(3):
            g = ["v_add_u32 v9, %d, v0" % (256 * j)]
            if j == 2:
                g.append("v_min_u32 v9, 639, v9")
            g += ["v_mul_u32_u24 v11, 820, v9", "v_lshrrev_b32 v11, 16, v11"]
            G.append(g)
            G.append(["v_mul_u32_u24 v13, 80, v11", "v_sub_u32 v13, v9, v13", "v_mul_u32_u24 v9, 10240, v11"])
            G.append(["v_lshl_add_u32 v9, v13, 4, v9", "v_add_u32 v9, s60, v9",
                      "global_load_dwordx4 %s, v9, %s sc1 ; #htile" % (a4(224 + 4 * j), sp(P_H2))])
            G.append(["v_mul_u32_u24 v9, %d, v11" % (8 * 176), "v_lshl_add_u32 v9, v13, 1, v9", "v_add_u32 v%d, %d, v9" % (251 + j, LDS_H)])
        G.append(["s_lshl_b32 s60, s%d, 4" % S_WAVE, "v_and_b32 v9, 15, v1", "v_add_u32 v9, s60, v9", "s_lshl_b32 s61, s%d, 7" % S_SB])
        G.append(["v_lshl_add_u32 v11, v9, 1, s61", "global_load_ushort v250, v11, %s ; #b2" % sp(P_B2), "v_lshrrev_b32 v13, 4, v1"])
        G.append(["v_mul_u32_u24 v11, 176, v9", "v_lshl_add_u32 v11, v13, 3, v11", "v_add_u32 v249, %d, v11" % LDS_H])
        G.append(["s_mul_i32 s60, s%d, %d" % (S_SB, 64 * 1280), "s_mul_i32 s61, s%d, 160" % S_DB2, "s_add_u32 s60, s60, s61",
                  "v_mul_u32_u24 v11, 1280, v9"])
        G.append(["v_lshrrev_b32 v9, 1, v13", "v_lshl_add_u32 v11, v9, 4, v11", "v_add_u32 v11, s60, v11", "v_add_u32 v247, 64, v11"])
        G.append(["v_and_b32 v13, 1, v13", "v_lshl_add_u32 v246, v13, 5, v11", "v_add_u32 v248, 96, v246"])
        W = [["@wait htile"]]
        for j in range(3):
            for p in range(4):
                W.append(["ds_write_b16 v%d, a%d offset:%d" % (251 + j, 224 + 4 * j + p, (2 * p) * 176),
                          "ds_write_b16_d16_hi v%d, a%d offset:%d" % (251 + j, 224 + 4 * j + p, (2 * p + 1) * 176)])
        W.append(["@wait b2", "v_lshlrev_b32 v250, 16, v250"])
        return G, W

    def back_half(self):
        a = self.a
        one = lambda L: [[x] for x in L]
        N2 = int(os.environ.get('N2', '5'))
        MA, MB = [0, 1, 2], [3, 4]
        a.label("L_win2")
        for t in self.wl_tr(4, 4):
            a(t)
        a("s_lshl_b32 s54, s%d, 14" % S_WAVE)
        a("s_waitcnt lgkmcnt(0)")
        for nt in range(4):
            a("v_add_u32 v%d, s54, v%d" % (WT + nt, WT + nt))
        a("s_barrier")
        a("v_add_u32 v233, 0x18000, v233")
        a("global_load_dword v193, v233, %s sc1" % sp(P_FL))
        mk2 = len(a.ins)
        self.phase4_pre()
        self.g_common_setup()
        self.weave(mk2, self.wl_dma_groups(3456, N2, 32768), 0.0, 0.9)
        lq = self.lab("nog1s")
        a("s_cmp_eq_u32 s%d, 0" % S_G1)
        a("s_cbranch_scc1 %s" % lq)
        self.g1_setup()
        a("s_lshl_b32 s54, s%d, 7" % S_OCT)
        a("s_lshl_b32 s55, s%d, 2" % S_WAVE)
        a("s_add_u32 s54, s54, s55")
        a("s_add_u32 s54, s54, 0x10000")
        a("v_mov_b32 v254, s54")
        a.label(lq)
        self.stamp("win2")
        self.phase4(N2)
        a("s_lshl_b32 s90, s%d, 5" % S_K2)
        a("s_lshl_b32 s91, s%d, 7" % S_SB)
        self.wl_setup(P_W2, 4096, 90, 91, None, tmp=28)
        lg = self.lab("nog1")
        a("s_waitcnt lgkmcnt(0)")
        a("s_cmp_eq_u32 s%d, 0" % S_G1)
        a("s_cbranch_scc1 %s" % lg)
        a("s_mov_b32 s69, 0")
        N3A = int(os.environ.get("N3A", "5"))
        d3 = self.wl_dma_groups(4096, 5, 32768, tag="w2a")
        for g in d3[:2 * N3A]:
            for t in g:
                a(t)
        self.stamp("win3")
        sched0 = len(a.ins)
        qA, qB, qC, qD = 0, 48, 80, 122
        def fr(name, q, mts, n, after=()):
            return [dict(ins=[self.frag_load(name, q, mts, i)], tag="%s_%d" % (name, i // len(mts)),
                         after=list(after) + (["free%d" % (q + i - self.NP)] if q + i >= self.NP else [])) for i in range(n)]
        def dmaops(groups, tag, afterf):
            return [dict(ins=g, tag="%s%d" % (tag, n // 2) if n & 1 else "x", kb=2, after=afterf(n // 2)) for n, g in enumerate(groups)]
        trw = one(self.wl_tr(8 + N2, 8 - N2, slot0=4096 * N2))
        def bgA(s):
            if s < 8 - N2: return trw[8 * s:8 * s + 8]
            if s == 7: return [["v_lshlrev_b32 v250, 16, v252", "v_and_b32 v251, 0xffff0000, v252"],
                               ["v_lshlrev_b32 v252, 16, v253", "v_and_b32 v253, 0xffff0000, v253"],
                               ["v_mov_b32 v10, %s" % f32(-2.0 * 0.7978845608028654 * LOG2E),
                                "v_mov_b32 v12, %s" % f32(-2.0 * 0.7978845608028654 * LOG2E * 0.044715)]]
            if s == 7 + N2: return [["s_waitcnt lgkmcnt(0)"]]
            if s == 4: return [["s_mov_b64 exec, 1", "global_store_dword v254, v9, %s sc1" % sp(P_FL), "s_mov_b64 exec, -1"]]
            return []
        self.gpass("g1a", 16, MA, True, qA, 0, bgA)
        def pd2():
            l = self.lab("pd2")
            a("@mark noins")
            a("s_cmp_lg_u32 s%d, 0" % S_WAVE)
            a("s_cbranch_scc1 %s" % l)
            a("s_mov_b64 exec, 1")
            a("global_store_dword v249, v9, %s sc1 ; #cond" % sp(P_FL))
            a("s_mov_b64 exec, -1")
            a("@mark noins")
            a.label(l)
            a("@mark ins")
        self.epilogue(1, MA, post=pd2)
        self.stamp("g1ae")
        tr0 = self.wl_tr(0, 5)
        tr1 = self.wl_tr(5, 5)
        fa = self.g2_flag_addr()
        FS = int(os.environ.get("FS", "8"))
        def bgB(s):
            L = []
            if 3 <= s <= 7:
                L += [["s_waitcnt lgkmcnt(8)" if s <= 5 else "s_waitcnt lgkmcnt(0)", "@mark s0_%d" % (s - 3)]]
            if 1 <= s <= 5:
                L += [["@wait w2a%d" % (s - 1)]] + one(tr0[8 * (s - 1):8 * s])
            if s == 0:
                L += fa + self.g2_addr(MA)
            if s == FS - 3:
                L += one(self.g2_flag_loads())
            if s >= 11:
                L += [["@wait w2b%d" % (s - 11)]] + one(tr1[8 * (s - 11):8 * (s - 10)])
            return L
        self.gpass("g1b", 16, MB, True, qB, 32, bgB, hook={FS: lambda: self.g2_check("@wait g2fl")})
        def midB():
            for g in self.g2_addr(MB):
                for t in g:
                    a(t)
            a("@mark g2b_ok")
        self.epilogue(1, MB, mid=midB, post=lambda: a("@mark s1"))
        self.stamp("g1be")
        a("@mark preg2a")
        a.label("L_g2a")
        dm2 = self.wl_dma_groups(4096, 4, 32768, tag="w2c")
        dm2[5] = dm2[5][:2] + ["s_lshl_b32 s83, s%d, 17" % S_SHORT, "s_sub_u32 s83, %d, s83" % (32 * 4096),
                               "s_add_u32 s80, s80, s83", "s_addc_u32 s81, s81, 0"]
        tr2 = self.wl_tr(10, 4)
        LG, LW = self.g2_late_setup()
        def bgC(s):
            L = []
            if s < 5:
                L += LG[4 * s:4 * s + 4]
            if 5 <= s <= 8:
                L += [["@wait w2c%d" % (s - 5)]] + one(tr2[8 * (s - 5):8 * (s - 4)])
            if s == 9:
                L += [["s_waitcnt lgkmcnt(0)"]] + LW[:5]
            if s == 10:
                L += LW[5:10]
            if s == 11:
                L += LW[10:]
            return L
        self.gpass("g2a", 14, MA, False, qC, 33, bgC, s_short=S_SHORT)
        a("@mark ins")
        bgD = None
        if MERGE == 0:
            self.epilogue(2, MA)
        if MERGE == 2:
            mkE = len(a.ins)
            self.epilogue(2, MA)
            ep = [i.text for i in a.ins[mkE:]]
            del a.ins[mkE:]
            grp = []
            for t in ep:
                if grp and grp[-1][-1].startswith("s_waitcnt") and t == "s_barrier":
                    grp[-1].append(t)
                else:
                    grp.append([t])
            NSD = 12
            bgD = lambda s: grp[len(grp) * s // NSD:len(grp) * (s + 1) // NSD] if s < NSD else []
        self.stamp("g2ae")
        self.gpass("g2b", 14, MB, False, qD, 28, bgD, s_short=S_SHORT)
        if MERGE == 1:
            for j in range(1, 4):
                a("v_add_u32 v%d, %d, v%d" % (241 + j, (5120 - 3072) * (j - 1) - 20480, 241 + j))
            a("v_subrev_u32 v245, 20480, v245")
            self.epilogue(2, MA + MB, js=5120)
        else:
            self.epilogue(2, MB)
        self.stamp("g2be")
        A1 = fr("g1a", qA, MA, 48)
        B1 = fr("g1b", qB, MB, 32)
        A2 = fr("g2a", qC, MA, 42, after=["g2a_ok"])
        B2 = fr("g2b", qD, MB, 28, after=["g2b_ok", os.environ.get("B2M", "free%d" % (qC + 20))])
        D1 = dmaops(self.wl_dma_groups(4096, 5, 32768, tag="w2b"), "w2b", lambda k: ["s0_%d" % k])
        D2 = dmaops(dm2, "w2c", lambda k: ["s1"])
        D0 = dmaops(d3, "w2a", lambda k: [])[2 * N3A:]
        ops = A1 + D0 + B1 + D1 + A2[:15] + D2 + A2[15:] + B2
        self.schedule(sched0, ops)
        lab = [n for n, i in enumerate(a.ins) if i.islabel and i.op == "L_g2a"][0]
        pre = [i.text.split(';')[0] for i in a.ins[sched0:lab] if '#g2a_' in i.text or '#g2b_' in i.text]
        st = [n for n, i in enumerate(a.ins[:lab]) if i.text == dm2[0][0] and n > sched0]
        texts = [i.text for i in a.ins[sched0:lab]]
        npre_d = 0
        for n, g in enumerate(dm2):
            key = [x for x in g if 'load_lds' in x][-1]
            if n & 1 and key in texts: npre_d = n + 1
        cnt_lds = sum(1 for x in texts if 'load_lds' in x) - 20 - 4 * (5 - N3A)
        npre_d = cnt_lds // 2
        self.pre_inactive = (pre, dm2[:npre_d])
        self.inactive = (lg, qC, MA)

    def pf_w2b(self, parts=(160, 320)):
        a = self.a
        a("s_sub_u32 s66, s%d, 27" % S_IDX)
        a("s_add_u32 s66, s66, s%d" % S_K2)
        a("s_lshl_b32 s66, s66, 5")
        a("v_lshrrev_b32 v10, 2, v1")
        a("v_add_u32 v10, s66, v10")
        a("v_and_b32 v12, 3, v1")
        a("s_lshl_b32 s67, s%d, 9" % S_XCD)
        a("v_lshl_add_u32 v12, v12, 7, s67")
        def pfb(off):
            for i in range(2):
                a("v_add_u32 v11, %d, v10" % (off + 16 * i))
                a("v_min_u32 v11, 1727, v11")
                a("v_lshl_add_u32 v11, v11, 12, v12")
                a("global_load_dword v254, v11, %s" % sp(P_W2))
        for o in parts:
            pfb(o)

    def inactive_path(self):
        a = self.a
        lg, qC, MA = self.inactive
        a.label(lg)
        self.wl_dma_loop(4096, 5, 32768)
        self.flag_store(2, wait="vmcnt(20)")
        if 'j' in BGX:
            self.pf_w2b((320,))
        elif 'h' not in BGX:
            self.pf_w2b()
        a("s_waitcnt vmcnt(%d)" % (0 if 'h' in BGX else (2 if 'j' in BGX else 4)))
        for t in self.wl_tr(0, 5):
            a(t)
        a("s_waitcnt lgkmcnt(0)")
        self.wl_dma_loop(4096, 5, 32768)
        for g in self.g2_flag_addr():
            for t in g:
                a(t)
        a("s_waitcnt vmcnt(0)")
        for t in self.wl_tr(5, 5):
            a(t)
        a("s_sleep %s" % os.environ.get("SLF", "110"))
        for t in self.g2_flag_loads():
            a(t.split(';')[0])
        a("s_mov_b32 s69, 0")
        self.g2_check("s_waitcnt vmcnt(0) lgkmcnt(0)")
        for g in self.g2_addr([0, 1, 2, 3, 4]):
            for t in g:
                a(t)
        for g in self.pre_inactive[1]:
            for t in g:
                a(t.split(';')[0])
        a("s_sleep %s" % os.environ.get("SLI", "30"))
        for t in self.pre_inactive[0]:
            a(t)
        a("s_waitcnt vmcnt(0)")
        a("s_branch L_g2a")

    def finish(self):
        a = self.a
        if self.timing:
            a("s_memrealtime s[98:99]")
            a("s_waitcnt lgkmcnt(0)")
            a("v_writelane_b32 v255, s98, 63")
            a("s_lshl_b32 s54, s2, 2")
            a("s_add_u32 s54, s54, s%d" % S_WAVE)
            a("s_lshl_b32 s54, s54, 8")
            a("s_add_u32 s54, s54, 0x%x" % WS_TIME)
            a("v_lshl_add_u32 v2, v1, 2, s54")
            a("global_store_dword v2, v255, %s" % sp(P_WS))
        if os.environ.get("PAD"):
            lp = self.lab("pad")
            a.label(lp)
            a("s_memrealtime s[98:99]")
            a("s_waitcnt lgkmcnt(0)")
            a("s_sub_u32 s98, s98, s100")
            a("s_cmp_lt_u32 s98, %d" % (100 * int(os.environ["PAD"])))
            a("s_cbranch_scc1 %s" % lp)
        l = self.lab("nn")
        a("s_or_b32 s54, s2, s%d" % S_WAVE)
        a("s_cmp_lg_u32 s54, 0")
        a("s_cbranch_scc1 %s" % l)
        a("v_mov_b32 v2, 0")
        a("v_mov_b32 v3, s%d" % S_TAG)
        a("s_mov_b64 exec, 1")
        a("global_store_dword v2, v3, %s" % sp(P_WS))
        a.label(l)
        a.label("L_end")
        a("s_endpgm")

    def build(self):
        self.phase0()
        self.phase1()
        self.phase2()
        self.phase3()
        self.back_half()
        self.finish()
        self.helper()
        self.inactive_path()
        self.a.label("L_codeend")
        self.emit_slowpaths()
        self.a("s_endpgm")
        body = self.a.finalize()
        hdr = open("cdna_kernels/%s.s.ref" % NAME).read().split("; Override launch")[0]
        hdr += "; @launch grid=(256,1,1) block=(256,1,1) lds=%d\n" % LDS_TOTAL
        hdr += '.amdgcn_target "amdgcn-amd-amdhsa--gfx950"\n.text\n.globl %s_kernel\n.p2align 8\n.type %s_kernel,@function\n%s_kernel:\n' % (NAME, NAME, NAME)
        ftr = """.section .rodata,"a"
.p2align 6
.amdhsa_kernel %s_kernel
  .amdhsa_next_free_vgpr 512
  .amdhsa_next_free_sgpr 102
  .amdhsa_accum_offset 256
  .amdhsa_group_segment_fixed_size 0
  .amdhsa_kernarg_size 120
  .amdhsa_user_sgpr_count 2
  .amdhsa_user_sgpr_kernarg_segment_ptr 1
  .amdhsa_system_sgpr_workgroup_id_x 1
.end_amdhsa_kernel
""" % NAME
        return hdr + body + ftr


if __name__ == "__main__":
    import argparse
    ap = argparse.ArgumentParser()
    ap.add_argument("-o", default="k.s")
    ap.add_argument("--timing", action="store_true")
    args = ap.parse_args()
    g = Gen(timing=args.timing)
    open(args.o, "w").write(g.build())
    if args.timing:
        open(args.o + ".names", "w").write(",".join(g.names))
```

```python
import sys, struct, os
from asmdsl import Asm

NAME = "sequential_preLN__ssm_conv_s4d__mixer_token_mlp__prompt"

def f32(x):
    return "0x%08x" % struct.unpack("<I", struct.pack("<f", x))[0]

LOG2E = 1.4426950408889634
INV2PI = 0.15915494309189535

WS_FL = 0x10000
WS_UT = 0x100000
WS_H2 = 0x380000
WS_YT = 0x600000
WS_HP = 0x900000
WS_G = 0xB80000
P2A = 7
P2KB = 19
WS_DBG = 0x1000000
WS_TIME = 0x2000000

ESTR = 528
E1SZ = 21 * ESTR
ECH = E1SZ + 32 * ESTR
LDS_E = 0
CSTR = 4640
CCH = 4 * CSTR
LDS_C = 84224
USTR = 4224
LDS_U = 139904
LDS_XR = LDS_U
XRS = 1344
LDS_SR = 152576
LDS_SC = 152704
LDS_SHP = 65536
LDS_SHF = 81920
OWNS = 24576 + 64
OHS = 12288 + 64
LDS_OWN = LDS_C
LDS_LN = 160000
LDS_MID = 81920
LDS_H = 147456
LDS_TOTAL = 163840

S_WAVE, S_XCD, S_IDX, S_OCT = 3, 4, 5, 6
S_CF, S_PAR, S_TAG = 7, 9, 10
P_UT, P_H2 = 12, 14
P_X, P_LOGA, P_AIM, P_CR, P_CI, P_LDT, P_DSK = 16, 18, 20, 22, 24, 26, 28
P_W1, P_B1, P_W2, P_B2, P_OUT, P_DBG, P_WS = 32, 34, 36, 38, 40, 42, 44
P_YT, P_HP, P_G, P_FL = 46, 48, 50, 52
S_DB, S_FB, S_SB, S_G1 = 76, 77, 78, 79
S_DB2 = 75
NT = os.environ.get('NT', '')
NT2 = os.environ.get('NT2', '')
NTX = os.environ.get('NTX', '')
S_K2, S_SHORT = 92, 93
XG, TG = 200, 212
WD, WT = 234, 238
ACC0, SLOT0, NSLOT = 14, 94, 7
QA, QB = [7, 4, 3, 0], [6, 5, 2, 1]
SPIN = 200000
CK1 = int(os.environ.get('CK1', '0'))
MERGE = int(os.environ.get('MERGE', '2'))
TLBW = int(os.environ.get('TLBW', '1'))
BGX = os.environ.get('BGX', 'zh')

def sp(n): return "s[%d:%d]" % (n, n + 1)
def vp(n): return "v[%d:%d]" % (n, n + 1)
def v4(n): return "v[%d:%d]" % (n, n + 3)
def a4(n): return "a[%d:%d]" % (n, n + 3)
def a2(n): return "a[%d:%d]" % (n, n + 1)


class Gen:
    def __init__(self, debug=0, timing=False):
        self.a = Asm()
        self.debug = debug
        self.timing = timing
        self.nstamp = 0
        self.names = []
        self.uid = 0
        self.slowpaths = []

    def lab(self, base):
        self.uid += 1
        return "L_%s_%d" % (base, self.uid)

    def stamp(self, name=""):
        if not self.timing:
            return
        a = self.a
        a("s_memrealtime s[98:99]" if os.environ.get("RT") else "s_memtime s[98:99]")
        a("s_waitcnt lgkmcnt(0)")
        a("v_writelane_b32 v255, s98, %d" % self.nstamp)
        if self.nstamp >= 30:
            pass
        elif self.nstamp >= len(self.names):
            self.names.append(name)
        else:
            self.names[self.nstamp] += "/" + name
        self.nstamp += 1

    def weave(self, mark, bg, lo=0.0, hi=1.0):
        a = self.a
        seg = a.ins[mark:]
        del a.ins[mark:]
        n = len(seg)
        pos = [int(n * (lo + (hi - lo) * (k + 0.5) / len(bg))) for k in range(len(bg))]
        k = 0
        for i, ins in enumerate(seg):
            while k < len(bg) and pos[k] <= i:
                for t in bg[k]:
                    a(t)
                k += 1
            a.ins.append(ins)
        while k < len(bg):
            for t in bg[k]:
                a(t)
            k += 1

    def cmuls(self, lst):
        a = self.a
        for d, x, y in lst:
            a("v_pk_mul_f32 %s, %s, %s op_sel:[0,0] op_sel_hi:[0,1]" % (vp(d), vp(x), vp(y)))
        for d, x, y in lst:
            a("v_pk_fma_f32 %s, %s, %s, %s op_sel:[1,1,0] op_sel_hi:[1,0,1] neg_lo:[0,1,0]" % (vp(d), vp(x), vp(y), vp(d)))

    def cexps(self, items, tmp):
        a = self.a
        for n, (d, k, ar, ap) in enumerate(items):
            t = tmp + 2 * n
            a("v_mul_f32 v%d, %s, v%d" % (t, f32(float(2 ** k)), ar))
            a("v_mul_f32 v%d, %s, v%d" % (t + 1, f32(float(2 ** k)), ap))
        for n, it in enumerate(items):
            t = tmp + 2 * n
            a("v_exp_f32 v%d, v%d" % (t, t))
            a("v_fract_f32 v%d, v%d" % (t + 1, t + 1))
        for n, it in enumerate(items):
            t = tmp + 2 * n
            a("v_cos_f32 v%d, v%d" % (it[0], t + 1))
            a("v_sin_f32 v%d, v%d" % (it[0] + 1, t + 1))
        for n, it in enumerate(items):
            t = tmp + 2 * n
            a("v_pk_mul_f32 %s, %s, %s op_sel:[0,0] op_sel_hi:[0,1]" % (vp(it[0]), vp(t), vp(it[0])))

    def rowreduce16(self, regs, op="v_add_f32"):
        a = self.a
        for mode in ("quad_perm:[1,0,3,2]", "quad_perm:[2,3,0,1]", "row_half_mirror", "row_mirror"):
            for r in regs:
                a("%s_dpp v%d, v%d, v%d %s row_mask:0xf bank_mask:0xf" % (op, r, r, r, mode))

    def bf16_round(self, d, s):
        a = self.a
        a("v_cvt_pk_bf16_f32 v%d, v%d, v%d" % (d, s, s))
        a("v_and_b32 v%d, 0xffff0000, v%d" % (d, d))

    def spin_tail(self, lp, lok, sleep):
        a = self.a
        a("s_add_u32 s69, s69, 1")
        a("s_cmp_gt_u32 s69, %d" % SPIN)
        a("s_cbranch_scc1 %s" % lok)
        a("s_sleep %d" % sleep)
        a("s_branch %s" % lp)

    def wait_w3(self, n, extra):
        a = self.a
        if 'z' in BGX:
            a("s_waitcnt vmcnt(%d)%s" % (n, extra))
            return
        l = self.lab("ww3")
        a("s_waitcnt vmcnt(%d)%s" % (n + 4, extra))
        a("s_cmp_eq_u32 s%d, 3" % S_WAVE)
        a("s_cbranch_scc1 %s" % l)
        a("s_waitcnt vmcnt(%d)" % n)
        a.label(l)

    def pf_w1(self):
        a = self.a
        a("global_load_dword v254, v231, %s %s" % (sp(P_W1), NT))
        a("v_add_u32 v231, %d, v231" % (256 * 3456))

    def flag_store(self, arr, per_wave=True, wait="vmcnt(0)"):
        a = self.a
        a("s_lshl_b32 s54, s%d, 7" % S_OCT)
        if arr:
            a("s_add_u32 s54, s54, %d" % (arr * 0x8000))
        if per_wave:
            a("s_lshl_b32 s55, s%d, 2" % S_WAVE)
            a("s_add_u32 s54, s54, s55")
        a("v_mov_b32 v2, s54")
        a("v_mov_b32 v3, s%d" % S_TAG)
        if wait:
            a("s_waitcnt %s" % wait)
        a("s_mov_b64 exec, 1")
        a("global_store_dword v2, v3, %s sc1" % sp(P_FL))
        a("s_mov_b64 exec, -1")

    def phase0(self):
        a = self.a
        a("s_cmp_ge_u32 s2, 256")
        a("s_cbranch_scc1 L_end")
        a("s_load_dwordx16 s[16:31], s[0:1], 0")
        a("s_load_dwordx8 s[32:39], s[0:1], 64")
        a("s_load_dwordx4 s[40:43], s[0:1], 96")
        a("s_load_dwordx2 s[44:45], s[0:1], 112")
        a("s_getpc_b64 s[94:95]")
        a.label("L_pc")
        a("v_lshrrev_b32 v2, 6, v0")
        a("v_and_b32 v1, 63, v0")
        a("v_readfirstlane_b32 s%d, v2" % S_WAVE)
        a("s_and_b32 s%d, s2, 7" % S_XCD)
        a("s_lshr_b32 s%d, s2, 3" % S_IDX)
        a("s_lshl_b32 s%d, s%d, 5" % (S_OCT, S_XCD))
        a("s_add_u32 s%d, s%d, s%d" % (S_OCT, S_OCT, S_IDX))
        a("s_lshl_b32 s54, s%d, 4" % S_IDX)
        a("v_add_u32 v3, s54, v0")
        a("v_lshlrev_b32 v3, 7, v3")
        a("v_min_u32 v3, (L_codeend-L_pc-4), v3")
        a("v_cmp_gt_u32 vcc, 16, v0")
        a("s_and_saveexec_b64 s[54:55], vcc")
        lq = self.lab("cpf")
        a("s_cbranch_execz %s" % lq)
        a("global_load_dword v254, v3, s[94:95]")
        a.label(lq)
        a("s_mov_b64 exec, -1")
        a("s_mul_i32 s54, s%d, 80" % S_XCD)
        a("s_min_u32 s55, s%d, 26" % S_IDX)
        a("s_mul_i32 s55, s55, 3")
        a("s_add_u32 s%d, s54, s55" % S_CF)
        a("s_lshl_b32 s54, s%d, 3" % S_OCT)
        a("s_lshl_b32 s55, s%d, 1" % S_WAVE)
        a("s_add_u32 s54, s54, s55")
        a("v_lshrrev_b32 v9, 5, v1")
        a("v_add_u32 v4, s54, v9")
        a("v_mul_u32_u24 v4, 1280, v4")
        a("v_and_b32 v5, 31, v1")
        a("v_lshl_add_u32 v4, v5, 3, v4")
        a("v_add_u32 v9, s55, v9")
        a("v_mul_u32_u24 v8, %d, v9" % XRS)
        a("v_lshl_add_u32 v8, v5, 3, v8")
        a("v_add_u32 v8, %d, v8" % LDS_XR)
        a("s_min_u32 s56, s%d, 2" % S_WAVE)
        a("s_add_u32 s56, s56, s%d" % S_CF)
        a("s_min_u32 s56, s56, 639")
        a("s_lshl_b32 s57, s56, 8")
        a("v_lshl_add_u32 v6, v1, 2, s57")
        a("v_lshlrev_b32 v7, 1, v0")
        a("v_min_u32 v181, 159, v0")
        a("v_lshrrev_b32 v182, 2, v181")
        a("v_mul_u32_u24 v183, 13108, v182")
        a("v_lshrrev_b32 v183, 16, v183")
        a("v_mul_u32_u24 v183, 27, v183")
        a("v_add3_u32 v182, v182, v183, 27")
        a("v_and_b32 v181, 3, v181")
        a("v_lshlrev_b32 v181, 2, v181")
        a("v_lshl_add_u32 v233, v182, 7, v181")
        a("v_add_u32 v233, 0x8000, v233")
        a("s_mul_i32 s61, s%d, 27" % S_XCD)
        a("s_add_u32 s62, s61, 26")
        a("s_lshr_b32 s61, s61, 3")
        a("s_lshr_b32 s62, s62, 3")
        a("v_and_b32 v231, 7, v1")
        a("v_add_u32 v231, s61, v231")
        a("v_min_u32 v231, s62, v231")
        a("s_lshl_b32 s61, s%d, 9" % S_WAVE)
        a("s_lshl_b32 s62, s%d, 3" % S_IDX)
        a("s_add_u32 s61, s61, s62")
        a("v_lshrrev_b32 v232, 3, v1")
        a("v_add_u32 v232, s61, v232")
        a("v_mul_u32_u24 v232, 3456, v232")
        a("v_lshl_add_u32 v231, v231, 7, v232")
        a("s_mul_i32 s61, s%d, 448" % S_WAVE)
        a("s_min_u32 s61, s61, 1312")
        a("s_mul_i32 s62, s%d, 5" % S_IDX)
        a("s_add_u32 s61, s61, s62")
        a("v_lshrrev_b32 v232, 2, v1")
        a("v_min_u32 v232, 4, v232")
        a("v_add_u32 v232, s61, v232")
        a("v_lshlrev_b32 v232, 12, v232")
        a("v_and_b32 v183, 3, v1")
        a("v_lshl_add_u32 v232, v183, 7, v232")
        a("s_lshl_b32 s61, s%d, 9" % S_XCD)
        a("v_add_u32 v232, s61, v232")
        if self.timing:
            a("v_mov_b32 v255, 0")
        a("s_waitcnt lgkmcnt(0)")
        self.stamp("start")
        if self.timing:
            a("s_memrealtime s[98:99]")
            a("s_waitcnt lgkmcnt(0)")
            a("v_writelane_b32 v255, s98, 62")
        for k in range(5):
            a("global_load_dwordx2 %s, v4, %s offset:%d %s" % (vp(10 + 2 * k), sp(P_X), 256 * k, NTX))
        a("global_load_ushort v228, v7, %s" % sp(P_DSK))
        a("global_load_ushort v229, v7, %s offset:512" % sp(P_DSK))
        a("v_min_u32 v7, 254, v7")
        a("global_load_ushort v230, v7, %s offset:1024" % sp(P_DSK))
        for n, p in enumerate((P_LOGA, P_AIM, P_CR, P_CI)):
            a("global_load_dword v%d, v6, %s %s" % (224 + n, sp(p), NTX))
        if 'a' in BGX:
            a("global_load_dword v254, v231, %s %s" % (sp(P_W1), NT))
        a("s_load_dword s%d, %s, 0" % (S_TAG, sp(P_WS)))
        a("s_lshl_b32 s57, s56, 1")
        a("s_and_b32 s57, s57, 0xfffffffc")
        a("s_load_dword s59, %s, s57" % sp(P_LDT))
        for p, off in ((P_YT, WS_YT), (P_HP, WS_HP), (P_G, WS_G), (P_FL, WS_FL), (P_UT, WS_UT), (P_H2, WS_H2)):
            a("s_add_u32 s%d, s%d, 0x%x" % (p, P_WS, off))
            a("s_addc_u32 s%d, s%d, 0" % (p + 1, P_WS + 1))
        if int(os.environ.get("FLW", "1")):
            a("s_lshl_b32 s54, s%d, 7" % S_OCT)
            a("v_and_b32 v2, 7, v1")
            a("v_lshlrev_b32 v2, 15, v2")
            a("v_add_u32 v2, s54, v2")
            a("s_mov_b64 exec, 0x3f")
            a("global_load_dword v254, v2, %s sc1" % sp(P_FL))
            a("s_mov_b64 exec, -1")
        a("s_mul_i32 s54, s%d, 27" % S_XCD)
        a("s_min_u32 s55, s%d, 26" % S_IDX)
        a("s_add_u32 s54, s54, s55")
        a("s_lshr_b32 s%d, s54, 3" % S_FB)
        a("s_and_b32 s%d, s54, 7" % S_DB)
        a("s_lshl_b32 s54, s%d, 2" % S_XCD)
        a("s_lshr_b32 s55, s%d, 3" % S_IDX)
        a("s_add_u32 s%d, s54, s55" % S_SB)
        a("s_and_b32 s%d, s%d, 7" % (S_DB2, S_IDX))
        a("s_mov_b32 s%d, 1" % S_G1)
        a("s_cmp_ge_u32 s%d, 27" % S_IDX)
        a("s_cmov_b32 s%d, 0" % S_G1)
        a("s_mul_i32 s%d, s%d, 14" % (S_K2, S_WAVE))
        a("s_lshr_b32 s%d, s%d, 1" % (S_SHORT, S_WAVE))
        a("s_cmp_eq_u32 s%d, 3" % S_WAVE)
        a("s_cmov_b32 s%d, 41" % S_K2)

    PARK = [194, 195, 196, 197, 198, 199, 242, 243, 244, 245, 246]
    def early_setup(self):
        a = self.a
        a("v_mov_b32 v184, v8")
        a("v_mov_b32 v185, v9")
        self.conv_setup()
        for n, r in enumerate(self.PARK):
            a("v_accvgpr_write_b32 a%d, v%d" % (240 + n, r))
        self.phase4_addr()
        for n in range(11):
            a("v_accvgpr_write_b32 a%d, v%d" % (224 + n, 170 + n))
        a("v_mov_b32 v8, v184")
        a("v_mov_b32 v9, v185")

    def unpark(self):
        a = self.a
        for n, r in enumerate(self.PARK):
            a("v_accvgpr_read_b32 v%d, a%d" % (r, 240 + n))

    def phase1(self):
        a = self.a
        self.early_setup()
        a("v_mov_b32 v24, 0")
        a("v_mov_b32 v25, 0")
        a("v_mov_b32 v26, 0x3f803f80")
        a("v_bfe_u32 v27, v1, 2, 2")
        a("v_mul_u32_u24 v27, %d, v27" % XRS)
        a("v_lshrrev_b32 v28, 4, v0")
        a("v_lshl_add_u32 v27, v28, 5, v27")
        a("v_and_b32 v28, 3, v1")
        a("v_lshl_add_u32 v27, v28, 3, v27")
        a("v_add_u32 v27, %d, v27" % LDS_XR)
        a("v_lshlrev_b32 v29, 2, v9")
        a("v_add_u32 v29, %d, v29" % LDS_SR)
        a("v_mov_b32 v30, %d" % LDS_SR)
        a("s_mul_i32 s58, s%d, 10240" % S_OCT)
        a("v_lshl_add_u32 v2, v0, 4, s58")
        a("v_add_u32 v3, 4096, v2")
        a("v_add_u32 v4, 8192, v2")
        a("s_waitcnt vmcnt(%d) lgkmcnt(0)" % (7 + int(os.environ.get("FLW", "1"))))
        for k in range(5):
            a("ds_write_b64 v8, %s offset:%d" % (vp(10 + 2 * k), 256 * k))
        for k in range(10):
            a("v_dot2_f32_bf16 v24, v%d, v26, v24" % (10 + k))
            a("v_dot2_f32_bf16 v25, v%d, v%d, v25" % (10 + k, 10 + k))
        a("s_mul_i32 s%d, s%d, 1664525" % (S_TAG, S_TAG))
        a("s_add_u32 s%d, s%d, 1013904223" % (S_TAG, S_TAG))
        a("s_nop 1")
        self.rowreduce16([24, 25])
        a("v_mov_b32 v31, v24")
        a("v_mov_b32 v32, v25")
        a("v_permlane16_swap_b32 v24, v31")
        a("v_permlane16_swap_b32 v25, v32")
        a("v_add_f32 v24, v24, v31")
        a("v_add_f32 v25, v25, v32")
        a("v_mul_f32 v24, %s, v24" % f32(1.0 / 640))
        a("v_mul_f32 v25, %s, v25" % f32(1.0 / 640))
        a("v_fma_f32 v25, -v24, v24, v25")
        a("v_max_f32 v25, 0, v25")
        self.bf16_round(25, 25)
        self.bf16_round(24, 24)
        a("v_add_f32 v25, %s, v25" % f32(1e-5))
        self.bf16_round(25, 25)
        a("v_sqrt_f32 v25, v25")
        self.bf16_round(25, 25)
        a("v_rcp_f32 v25, v25")
        a("ds_write_b32 v29, v24")
        a("ds_write_b32 v29, v25 offset:32")
        a("s_waitcnt lgkmcnt(0)")
        a("s_barrier")
        self.stamp("stats")
        for j in range(3):
            for hh in range(2):
                a("ds_read_b64_tr_b16 %s, v27 offset:%d" % (vp(XG + 4 * j + 2 * hh), 512 * j + 4 * XRS * hh))
        for q in range(4):
            a("ds_read_b128 %s, v30 offset:%d" % (v4(32 + 4 * q), 16 * q))
        W = lambda n: 48 + 2 * n
        it = [(j, p) for j in range(3) for p in range(4)]
        def unpack(srcf):
            for n in range(12):
                a("v_lshlrev_b32 v%d, 16, v%d" % (W(n), srcf(n)))
                a("v_and_b32 v%d, 0xffff0000, v%d" % (W(n) + 1, srcf(n)))
        def cvt(dstf, op="v_cvt_pk_bf16_f32"):
            for n in range(12):
                a("%s v%d, v%d, v%d" % (op, dstf(n), W(n), W(n) + 1))
        a("s_waitcnt lgkmcnt(4)")
        unpack(lambda n: XG + n)
        a("s_waitcnt lgkmcnt(0)")
        for n, (j, p) in enumerate(it):
            a("v_pk_add_f32 %s, %s, %s neg_lo:[0,1] neg_hi:[0,1]" % (vp(W(n)), vp(W(n)), vp(32 + 2 * p)))
        cvt(lambda n: 72 + n)
        unpack(lambda n: 72 + n)
        for n, (j, p) in enumerate(it):
            a("v_pk_mul_f32 %s, %s, %s" % (vp(W(n)), vp(W(n)), vp(40 + 2 * p)))
        cvt(lambda n: 72 + n)
        unpack(lambda n: 72 + n)
        cvt(lambda n: 84 + n, "v_cvt_pk_f16_f32")
        a("s_waitcnt vmcnt(%d)" % int(os.environ.get("FLW", "1")))
        a("global_store_dwordx4 v2, v[84:87], %s sc1" % sp(P_UT))
        a("global_store_dwordx4 v3, v[88:91], %s sc1" % sp(P_UT))
        l = self.lab("ut3")
        a("s_cmp_ge_u32 s%d, 2" % S_WAVE)
        a("s_cbranch_scc1 %s" % l)
        a("global_store_dwordx4 v4, v[92:95], %s sc1" % sp(P_UT))
        a.label(l)
        for j in range(3):
            a("v_lshlrev_b32 v%d, 16, v%d" % (100 + 2 * j, 228 + j))
        for n, (j, p) in enumerate(it):
            a("v_pk_mul_f32 %s, %s, %s op_sel_hi:[1,0]" % (vp(W(n)), vp(W(n)), vp(100 + 2 * j)))
        cvt(lambda n: TG + n)
        self.stamp("utstore")

    def wl_setup(self, ptr, rs, row0_sgpr, col_sgpr, stage_shift, tmp=2):
        a = self.a
        T2, T3, T4 = "v%d" % tmp, "v%d" % (tmp + 1), "v%d" % (tmp + 2)
        aa = lambda x: a(x.replace("V2", T2).replace("V3", T3).replace("V4", T4))
        aa("v_lshrrev_b32 V2, 3, v1")
        aa("v_and_b32 V3, 7, v1")
        aa("v_and_b32 V4, 2, V2")
        aa("v_xor_b32 V3, V3, V4")
        aa("v_mul_u32_u24 V2, %d, V2" % rs)
        aa("v_lshl_add_u32 v%d, V3, 4, V2" % WD)
        aa("v_xor_b32 V3, 4, V3")
        aa("v_lshl_add_u32 v%d, V3, 4, V2" % (WD + 1))
        a("v_add_u32 v%d, %d, v%d" % (WD + 1, 8 * rs - 1024, WD + 1))
        a("v_add_u32 v%d, %d, v%d" % (WD + 2, 16 * rs - 2048, WD))
        a("v_add_u32 v%d, %d, v%d" % (WD + 3, 16 * rs - 2048, WD + 1))
        a("s_mul_i32 s54, s%d, %d" % (row0_sgpr, rs))
        a("s_add_u32 s54, s54, s%d" % col_sgpr)
        a("s_add_u32 s80, s%d, s54" % ptr)
        a("s_addc_u32 s81, s%d, 0" % (ptr + 1))
        if stage_shift is not None:
            a("v_lshrrev_b32 v2, 4, v1")
            a("v_bfe_u32 v3, v1, 2, 2")
            a("v_lshl_add_u32 v4, v2, 3, v3")
            a("v_lshlrev_b32 v4, 7, v4")
            a("v_and_b32 v5, 3, v1")
            a("v_lshl_add_u32 v4, v5, 3, v4")
            a("s_mul_i32 s54, s%d, %d" % (S_WAVE, stage_shift))
            a("v_add_u32 v4, s54, v4")
            a("v_lshrrev_b32 v3, 1, v3")
            a("v_and_b32 v2, 1, v2")
            a("v_lshl_add_u32 v2, v2, 1, v3")
            for nt in range(4):
                a("s_add_u32 s54, s%d, %d" % (S_WAVE, nt))
                a("s_and_b32 s54, s54, 3")
                a("v_xor_b32 v3, s54, v2")
                a("v_lshl_add_u32 v%d, v3, 5, v4" % (WT + nt))

    def wl_dma_groups(self, rs, nks, stage_shift, slot0=0, tag="wd"):
        G = []
        for s in range(nks):
            g = []
            if s == 0:
                g.append("s_mul_i32 s82, s%d, %d" % (S_WAVE, stage_shift))
                if slot0:
                    g.append("s_add_u32 s82, s82, %d" % (slot0))
            g.append("s_mov_b32 m0, s82")
            g.append("s_add_u32 s82, s82, 4096")
            g.append("global_load_lds_dwordx4 v%d, s[80:81]" % WD)
            g.append("global_load_lds_dwordx4 v%d, s[80:81] offset:1024" % (WD + 1))
            G.append(g)
            G.append(["global_load_lds_dwordx4 v%d, s[80:81] offset:2048" % (WD + 2),
                      "global_load_lds_dwordx4 v%d, s[80:81] offset:3072 ; #%s%d" % (WD + 3, tag, s),
                      "s_add_u32 s80, s80, %d" % (32 * rs), "s_addc_u32 s81, s81, 0"])
        return G

    def wl_dma_loop(self, rs, count, stage_shift, slot0=0):
        a = self.a
        a("s_mul_i32 s82, s%d, %d" % (S_WAVE, stage_shift))
        if slot0:
            a("s_add_u32 s82, s82, %d" % (slot0))
        a("s_mov_b32 s83, %s" % str(count))
        lp = self.lab("dma")
        a.label(lp)
        a("s_mov_b32 m0, s82 ; #loop")
        a("s_add_u32 s82, s82, 4096")
        for k in range(4):
            a("global_load_lds_dwordx4 v%d, s[80:81] offset:%d" % (WD + k, 1024 * k))
        a("s_add_u32 s80, s80, %d" % (32 * rs))
        a("s_addc_u32 s81, s81, 0")
        a("s_sub_u32 s83, s83, 1")
        a("s_cmp_gt_i32 s83, 0")
        a("s_cbranch_scc1 %s" % lp)

    def wl_tr(self, ks0, nks, slot0=0):
        return ["ds_read_b64_tr_b16 %s, v%d offset:%d" % (a2(((ks0 + s) * 4 + nt) * 4 + 2 * hf), WT + nt, slot0 + s * 4096 + hf * 512)
                for s in range(nks) for nt in range(4) for hf in range(2)]

    def phase2(self):
        a = self.a
        lW3 = self.lab("w3")
        lKd = self.lab("kdone")
        st0 = self.nstamp
        a("s_cmp_ge_u32 s%d, 27" % S_IDX)
        a("s_cbranch_scc1 L_helper")
        a("s_cmp_eq_u32 s%d, 3" % S_WAVE)
        a("s_cbranch_scc1 %s" % lW3)
        a("s_and_b32 s57, s56, 1")
        a("s_lshl_b32 s57, s57, 4")
        a("s_lshr_b32 s59, s59, s57")
        a("s_lshl_b32 s59, s59, 16")
        a("v_mov_b32 v242, %s" % f32(LOG2E))
        a("v_mul_f32 v242, s59, v242")
        a("v_exp_f32 v242, v242")
        a("v_and_b32 v243, 0x7fff7fff, v226")
        a("v_and_b32 v244, 0x7fff7fff, v227")
        a("v_pk_max_u16 v243, v243, v244")
        a("v_lshlrev_b32 v244, 16, v243")
        a("v_max_u32 v243, v243, v244")
        self.bf16_round(242, 242)
        a("v_lshlrev_b32 v246, 16, v224")
        a("v_and_b32 v250, 0xffff0000, v224")
        fill = [["v_mul_f32 v246, %s, v246" % f32(LOG2E), "v_mul_f32 v250, %s, v250" % f32(LOG2E)],
                ["v_exp_f32 v246, v246", "v_exp_f32 v250, v250"],
                ["v_lshlrev_b32 v247, 16, v225", "v_and_b32 v251, 0xffff0000, v225"],
                ["v_mul_f32 v247, v247, v242", "v_mul_f32 v251, v251, v242"]]
        for mode, fl in zip(("quad_perm:[1,0,3,2]", "quad_perm:[2,3,0,1]", "row_half_mirror", "row_mirror"), fill):
            a("v_max_u32_dpp v243, v243, v243 %s row_mask:0xf bank_mask:0xf" % mode)
            for t in fl:
                a(t)
        for sw, r, src in (("v_permlane16_swap_b32", 248, 226), ("v_permlane32_swap_b32", 249, 227)):
            a("v_mov_b32 v244, v243")
            a("v_lshlrev_b32 v%d, 16, v%d" % (r, src))
            a("v_and_b32 v%d, 0xffff0000, v%d" % (r + 4, src))
            a("%s v243, v244" % sw)
            a("v_max_u32 v243, v243, v244")
        self.bf16_round(246, 246)
        self.bf16_round(250, 250)
        a("v_mul_f32 v247, %s, v247" % f32(INV2PI))
        a("v_mul_f32 v251, %s, v251" % f32(INV2PI))
        a("v_mul_f32 v246, v246, v242")
        a("v_mul_f32 v250, v250, v242")
        a("v_mul_f32 v246, %s, v246" % f32(-LOG2E))
        a("v_mul_f32 v250, %s, v250" % f32(-LOG2E))
        SA, SB = 10, 100
        E = lambda S, j: S + 2 * j
        T = lambda S, j: S + 34 + 2 * j
        GK = lambda S, k: S + 66 + 2 * {0: 0, 1: 1, 2: 2, 8: 3, 9: 4, 10: 5, 11: 6}[k]
        self.cexps([(E(SA, 1), 3, 246, 247), (E(SB, 1), 3, 250, 251), (GK(SA, 0), 0, 246, 247), (GK(SB, 0), 0, 250, 251),
                    (GK(SA, 8), 8, 246, 247), (GK(SB, 8), 8, 250, 251)], 180)
        a("v_and_b32 v243, 0x7f800000, v243")
        a("v_max_u32 v243, 0x00800000, v243")
        a("v_min_u32 v243, 0x7e800000, v243")
        a("v_sub_u32 v244, 0x7f800000, v243")
        a("v_mul_f32 v245, v243, v242")
        for r in (248, 249, 252, 253):
            a("v_mul_f32 v%d, v%d, v244" % (r, r))
        a("s_lshl_b32 s54, s%d, 2" % S_WAVE)
        a("s_add_u32 s54, s54, %d" % LDS_SC)
        a("v_mov_b32 v5, s54")
        a("ds_write_b32 v5, v245")
        a("s_mul_i32 s60, s%d, %d" % (S_WAVE, ECH))
        a("v_lshl_add_u32 v6, v1, 3, s60")
        self.flag_store(0)
        self.pf_w1()
        self.stamp("flag")
        mark = len(a.ins)
        tmpn = [0]
        def st(off, ra, rb, neg=False):
            t = 188 + 2 * (tmpn[0] % 6)
            tmpn[0] += 1
            ng = "-" if neg else ""
            return ["v_cvt_pk_f16_f32 v%d, v%d, %sv%d" % (t, ra, ng, ra + 1),
                    "v_cvt_pk_f16_f32 v%d, v%d, %sv%d" % (t + 1, rb, ng, rb + 1),
                    "ds_write_b64 v6, %s offset:%d" % (vp(t), off)]
        sq = lambda d, x: (d, x, x)
        SS = (SA, SB)
        R = lambda S, r: ((248 if S == SA else 252) if r == 0 else S + 2 * r)
        a("v_mov_b32 v196, 0x00003c00")
        a("v_mov_b32 v197, 0x00003c00")
        a("ds_write_b64 v6, v[196:197] offset:%d" % (LDS_E + E1SZ))
        self.cmuls([sq(E(S, 2), E(S, 1)) for S in SS] + [sq(GK(S, 1), GK(S, 0)) for S in SS] + [sq(GK(S, 9), GK(S, 8)) for S in SS])
        self.cmuls([sq(E(S, 4), E(S, 2)) for S in SS] + [(E(S, 3), E(S, 1), E(S, 2)) for S in SS] +
                   [sq(GK(S, 2), GK(S, 1)) for S in SS] + [sq(GK(S, 10), GK(S, 9)) for S in SS])
        m2 = len(a.ins)
        self.cmuls([sq(E(S, 8), E(S, 4)) for S in SS] + [(E(S, 4 + j), E(S, j), E(S, 4)) for j in (1, 2, 3) for S in SS] +
                   [sq(GK(S, 11), GK(S, 10)) for S in SS])
        self.weave(m2, [st(LDS_E + E1SZ + j * ESTR, E(SA, j), E(SB, j)) for j in (1, 2, 3, 4)] + [st(LDS_E, R(SA, 0), R(SB, 0), True)])
        m2 = len(a.ins)
        self.cmuls([sq(E(S, 16), E(S, 8)) for S in SS] + [(E(S, 8 + j), E(S, j), E(S, 8)) for j in range(1, 8) for S in SS])
        self.weave(m2, [st(LDS_E + E1SZ + j * ESTR, E(SA, j), E(SB, j)) for j in (5, 6, 7, 8)])
        m2 = len(a.ins)
        self.cmuls([(T(S, j), E(S, j), E(S, 16)) for j in range(1, 16) for S in SS])
        self.weave(m2, [st(LDS_E + E1SZ + j * ESTR, E(SA, j), E(SB, j)) for j in range(9, 17)])
        R = lambda S, r: ((248 if S == SA else 252) if r == 0 else (S + 2 * r if r <= 16 else S + 80 + 2 * (r - 17)))
        l1 = [(1, 0, 0), (2, 0, 1), (4, 0, 2), (8, 0, 8), (12, 0, 9), (16, 0, 10), (20, 0, 11)]
        l2 = [(3, 1, 1), (5, 1, 2), (6, 2, 2), (9, 2, 8), (10, 4, 8), (13, 4, 9), (14, 8, 9), (17, 8, 10), (18, 12, 10)]
        l3 = [(7, 3, 2), (11, 6, 8), (15, 10, 9), (19, 14, 10)]
        tst = [st(LDS_E + E1SZ + (16 + j) * ESTR, T(SA, j), T(SB, j)) for j in range(1, 16)]
        m2 = len(a.ins)
        self.cmuls([(R(S, d), R(S, x), GK(S, k)) for d, x, k in l1 for S in SS])
        self.weave(m2, tst[:7])
        m2 = len(a.ins)
        self.cmuls([(R(S, d), R(S, x), GK(S, k)) for d, x, k in l2 for S in SS])
        self.weave(m2, tst[7:])
        m2 = len(a.ins)
        self.cmuls([(R(S, d), R(S, x), GK(S, k)) for d, x, k in l3 for S in SS])
        self.weave(m2, [st(LDS_E + d * ESTR, R(SA, d), R(SB, d), True) for d, x, k in l1])
        for d, x, k in l2 + l3:
            for t in st(LDS_E + d * ESTR, R(SA, d), R(SB, d), True):
                a(t)
        self.stamp("Edone")
        a("v_and_b32 v2, 31, v1")
        a("v_lshrrev_b32 v3, 5, v1")
        a("v_mul_u32_u24 v4, %d, v2" % ESTR)
        a("v_lshl_add_u32 v4, v3, 4, v4")
        a("v_add_u32 v4, s60, v4")
        for ks in range(16):
            a("ds_read_b128 %s, v4 offset:%d" % (v4(32 + 8 * ks), LDS_E + ks * 32))
            a("ds_read_b128 %s, v4 offset:%d" % (v4(36 + 8 * ks), LDS_E + E1SZ + ks * 32))
            if ks >= 6:
                k = ks - 6
                a("s_waitcnt lgkmcnt(12)")
                a("v_mfma_f32_32x32x16_f16 v[8:23], %s, %s, %s" % (v4(32 + 8 * k), v4(36 + 8 * k), "0" if k == 0 else "v[8:23]"))
        a("s_mul_i32 s55, s%d, %d" % (S_WAVE, CCH))
        a("s_add_u32 s55, s55, %d" % (LDS_C + 3 * CSTR))
        a("v_lshlrev_b32 v5, 4, v2")
        a("v_sub_u32 v5, s55, v5")
        a("v_lshlrev_b32 v6, 3, v3")
        a("v_sub_u32 v6, v5, v6")
        a("v_lshl_add_u32 v7, v1, 4, s55")
        for r in range(4):
            a("v_mov_b32 v%d, 0" % (164 + r))
        for k in range(10, 16):
            a("s_waitcnt lgkmcnt(%d)" % (2 * (15 - k)))
            a("v_mfma_f32_32x32x16_f16 v[8:23], %s, %s, v[8:23]" % (v4(32 + 8 * k), v4(36 + 8 * k)))
        a("v_cmp_gt_u32 vcc, 34, v1")
        a("s_and_saveexec_b64 s[62:63], vcc")
        a("ds_write_b128 v7, v[164:167] offset:4096")
        a("s_mov_b64 exec, -1")
        a("v_min_u32 v168, 23, v1")
        a("v_lshl_add_u32 v168, v168, 4, s55")
        a("v_add_u32 v168, 4096, v168")
        a("v_subrev_u32 v169, %d, v7" % (3 * CSTR))
        a("v_subrev_u32 v170, %d, v168" % (3 * CSTR))
        for i in range(4):
            a("v_cvt_pk_f16_f32 v%d, v%d, v%d" % (24 + 2 * i, 16 + i, 16 + i))
            a("v_cvt_pk_f16_f32 v%d, v%d, v%d" % (25 + 2 * i, 16 + i, 16 + i))
        for d, x, y in ((32, 13, 13), (34, 13, 12), (35, 12, 12), (36, 15, 15), (38, 15, 14), (39, 14, 14), (40, 14, 13),
                        (41, 12, 12), (42, 11, 10), (43, 9, 8)):
            a("v_cvt_pk_f16_f32 v%d, v%d, v%d" % (d, x, y))
        a("s_mov_b32 exec_hi, 0")
        for i in range(4):
            P = 1020 - 256 * i
            a("ds_write_b64 v5, %s offset:%d" % (vp(24 + 2 * i), 2 * P))
            a("ds_write_b64 v5, %s offset:%d" % (vp(24 + 2 * i), 2 * P + 8))
        a("s_mov_b32 exec_lo, 0x55555555")
        for i in range(4):
            P = 1019 - 256 * i
            a("ds_write_b16 v5, v%d offset:%d" % (24 + 2 * i, 2 * P))
        a("s_mov_b32 exec_lo, 0")
        a("s_mov_b32 exec_hi, 1")
        a("ds_write_b64 v5, %s" % vp(24))
        a("s_mov_b32 exec_hi, -1")
        for i, (bb, ba, aa) in enumerate(((32, 34, 35), (36, 38, 39))):
            P = 2042 - 512 - 256 * i
            a("ds_write_b32 v5, v%d offset:%d" % (bb, 2 * P))
            a("ds_write_b64 v5, %s offset:%d" % (vp(ba), 2 * P + 4))
            a("ds_write_b32 v5, v%d offset:%d" % (aa, 2 * P + 12))
        a("s_mov_b32 exec_lo, -1")
        a("s_mov_b32 exec_hi, 0")
        P = 2041 - 256
        a("ds_write_b16 v5, v36 offset:%d" % (2 * P))
        a("ds_write_b32 v5, v39 offset:%d" % (2 * P + 2))
        a("ds_write_b64 v5, %s offset:%d" % (vp(40), 2 * P + 6))
        a("ds_write_b16 v5, v35 offset:%d" % (2 * P + 14))
        a("s_mov_b64 exec, -1")
        a("ds_write_b64 v6, %s offset:%d" % (vp(42), 2 * 2044))
        self.stamp("Kexp")
        for rnd in range(5):
            b = 44 + 24 * rnd
            src = "v7 offset:%d" % (1024 * rnd) if rnd < 4 else "v168"
            src2 = "v7 offset:%d" % (1024 * rnd + 16) if rnd < 4 else "v168 offset:16"
            a("ds_read_b128 %s, %s" % (v4(b), src))
            a("ds_read_b64 %s, %s" % (vp(b + 4), src2))
        for rnd in range(5):
            b = 44 + 24 * rnd
            a("s_waitcnt lgkmcnt(%d)" % (2 * (4 - rnd) + 3 * rnd))
            for k in range(4):
                a("v_alignbit_b32 v%d, v%d, v%d, 16" % (b + 8 + k, b + k + 1, b + k))
            ad, o = ("v169", 1024 * rnd) if rnd < 4 else ("v170", 0)
            a("ds_write_b128 %s, %s offset:%d" % (ad, v4(b + 8), o + 2 * CSTR))
            for k in range(4):
                a("v_mov_b32 v%d, v%d" % (b + 12 + k, b + k + 1))
            a("ds_write_b128 %s, %s offset:%d" % (ad, v4(b + 12), o + 1 * CSTR))
            for k in range(4):
                a("v_alignbit_b32 v%d, v%d, v%d, 16" % (b + 16 + k, b + k + 2, b + k + 1))
            a("ds_write_b128 %s, %s offset:%d" % (ad, v4(b + 16), o))
        a("s_branch %s" % lKd)
        a.label(lW3)
        self.nstamp = st0
        self.flag_store(0)
        self.pf_w1()
        self.stamp("flag")
        a("s_lshl_b32 s54, s%d, 4" % S_CF)
        for j in range(12):
            a("v_add_u32 v7, %d, v1" % (64 * j))
            a("v_mul_u32_u24 v8, 21846, v7")
            a("v_lshrrev_b32 v8, 16, v8")
            a("v_mul_u32_u24 v9, 3, v8")
            a("v_sub_u32 v9, v7, v9")
            a("v_mul_u32_u24 v%d, 10240, v8" % (100 + j))
            a("v_lshl_add_u32 v%d, v9, 4, v%d" % (100 + j, 100 + j))
            a("v_add_u32 v%d, s54, v%d" % (100 + j, 100 + j))
            a("v_mul_u32_u24 v9, %d, v9" % USTR)
            a("v_lshl_add_u32 v%d, v8, 4, v9" % (112 + j))
            a("v_add_u32 v%d, %d, v%d" % (112 + j, LDS_U + 128, 112 + j))
        a("v_lshlrev_b32 v10, 7, v1")
        for k in range(1, 4):
            a("v_add_u32 v%d, %d, v10" % (10 + k, 8192 * k))
        a("s_waitcnt vmcnt(0)")
        a("s_sleep %d" % int(os.environ.get("SL1", "8")))
        sv = self.nstamp; self.nstamp = 30
        self.stamp("poll0")
        self.nstamp = sv
        a("s_mov_b32 s69, 0")
        lp, lok = self.lab("flpoll"), self.lab("flok")
        a.label(lp)
        for k in range(4):
            a("global_load_dwordx4 %s, v%d, %s sc1" % (v4(16 + 4 * k), 10 + k, sp(P_FL)))
        a("s_waitcnt vmcnt(0)")
        a("v_xor_b32 v6, s%d, v16" % S_TAG)
        for r in range(17, 32):
            a("v_xor_b32 v7, s%d, v%d" % (S_TAG, r))
            a("v_or_b32 v6, v6, v7")
        a("v_cmp_ne_u32 vcc, 0, v6")
        a("s_cbranch_vccz %s" % lok)
        self.spin_tail(lp, lok, 4)
        a.label(lok)
        if self.timing:
            a("v_writelane_b32 v255, s69, 32")
        self.stamp("flok")
        for j in range(12):
            a("global_load_dwordx4 %s, v%d, %s sc1" % (v4(32 + 4 * j), 100 + j, sp(P_UT)))
        a("v_mov_b32 v6, 0")
        a("v_and_b32 v5, 31, v1")
        a("v_lshlrev_b32 v5, 2, v5")
        a("v_add_u32 v5, %d, v5" % LDS_U)
        for pos in range(3):
            a("ds_write_b32 v5, v6 offset:%d" % (pos * USTR))
        self.unpark()
        for j in range(12):
            a("s_waitcnt vmcnt(%d)" % (11 - j))
            a("ds_write_b128 v%d, %s" % (112 + j, v4(32 + 4 * j)))
        self.stamp("gath")
        lK2 = self.lab("kd2")
        a("s_branch %s" % lK2)
        a.label(lKd)
        self.unpark()
        a.label(lK2)
        a("s_waitcnt lgkmcnt(0)")
        self.stamp("prebar")
        a("s_barrier")
        self.stamp("kbar")

    def conv_setup(self):
        a = self.a
        a("s_lshl_b32 s90, s%d, 9" % S_WAVE)
        a("s_lshl_b32 s91, s%d, 7" % S_FB)
        self.wl_setup(P_W1, 3456, 90, 91, 16384)
        a("v_and_b32 v2, 15, v1")
        a("v_lshrrev_b32 v3, 4, v1")
        a("v_and_b32 v4, 3, v1")
        a("v_bfe_u32 v5, v1, 2, 2")
        a("v_mul_u32_u24 v6, %d, v4" % CSTR)
        a("v_lshl_add_u32 v6, v3, 4, v6")
        a("v_lshlrev_b32 v7, 7, v5")
        a("v_sub_u32 v6, v6, v7")
        a("v_add_u32 v6, %d, v6" % (LDS_C + 832))
        a("v_lshlrev_b32 v7, 3, v2")
        a("v_lshl_add_u32 v7, v3, 4, v7")
        a("v_add_u32 v7, %d, v7" % (LDS_U + 456))
        for p in range(3):
            a("s_mul_i32 s54, s%d, 6" % S_WAVE)
            a("s_add_u32 s54, s54, %d" % (2 * p + 1))
            a("s_lshr_b32 s55, s54, 3")
            a("s_and_b32 s54, s54, 7")
            a("s_lshl_b32 s54, s54, 6")
            a("s_mul_i32 s60, s55, %d" % CCH)
            a("s_sub_u32 s60, s60, s54")
            a("v_add_u32 v%d, s60, v6" % (194 + 2 * p))
            a("s_mul_i32 s60, s55, %d" % USTR)
            a("s_sub_u32 s60, s60, s54")
            a("v_add_u32 v%d, s60, v7" % (195 + 2 * p))
        a("v_lshrrev_b32 v2, 1, v1")
        a("v_mul_u32_u24 v2, 48, v2")
        a("v_and_b32 v3, 1, v1")
        a("v_mul_u32_u24 v3, %d, v3" % OHS)
        a("s_min_u32 s54, s%d, 2" % S_WAVE)
        a("s_lshl_b32 s54, s54, 4")
        a("s_add_u32 s54, s54, %d" % LDS_OWN)
        a("s_add_u32 s55, s54, %d" % (2 * OHS))
        a("s_cmp_eq_u32 s%d, 3" % S_WAVE)
        a("s_cmov_b32 s54, s55")
        a("v_add3_u32 v242, v2, v3, s54")
        a("s_sub_u32 s55, s55, 16")
        a("v_add3_u32 v243, v2, v3, s55")
        for j in range(3):
            a("v_add_u32 v2, %d, v0" % (256 * j))
            a("v_mul_u32_u24 v3, 21846, v2")
            a("v_lshrrev_b32 v3, 16, v3")
            a("v_mul_u32_u24 v4, 3, v3")
            a("v_sub_u32 v2, v2, v4")
            a("v_lshlrev_b32 v2, 2, v2")
            a("v_add_u32 v%d, %d, v2" % (244 + j, LDS_SC))

    def w2a_addr(self):
        a = self.a
        a("s_lshl_b32 s64, s%d, 5" % S_K2)
        a("s_lshl_b32 s65, s%d, 3" % S_IDX)
        a("s_add_u32 s64, s64, s65")
        a("v_lshrrev_b32 v2, 3, v1")
        a("v_add_u32 v2, s64, v2")
        a("s_lshr_b32 s65, s%d, 1" % S_XCD)
        a("s_lshl_b32 s65, s65, 10")
        a("v_and_b32 v4, 7, v1")
        a("v_lshl_add_u32 v4, v4, 7, s65")
        a("v_lshl_add_u32 v193, v2, 12, v4")

    def cv_loads(self, setn, na, vA, vB, ex):
        Ab, Bb = ((64, 96), (128, 160))[setn]
        L = []
        for n in range(na):
            L.append("ds_read_b128 %s, v%d offset:%d" % (v4(Ab + 4 * n), vA, 512 * (7 - n) + ex))
            L.append("ds_read_b64 %s, v%d offset:%d" % (vp(Bb + 4 * n), vB, 512 * n + ex))
            L.append("ds_read_b64 %s, v%d offset:%d" % (vp(Bb + 4 * n + 2), vB, 512 * n + ex + 8))
        return L

    def cv_iter(self, setn, chunks, acc, first, bg, hi=0.85):
        a = self.a
        Ab, Bb = ((64, 96), (128, 160))[setn]
        a("s_waitcnt lgkmcnt(0)")
        mark = len(a.ins)
        seen = set()
        for aa in range(max(chunks) + 1):
            for q in sorted(chunks, reverse=True):
                if q >= aa:
                    c = v4(acc[q])
                    src = "0" if (first and q not in seen) else c
                    seen.add(q)
                    a("v_mfma_f32_16x16x32_f16 %s, %s, %s, %s" % (c, v4(Ab + 4 * aa), v4(Bb + 4 * (q - aa)), src))
        if bg:
            self.weave(mark + 1, bg, 0.0, hi)

    def phase3(self):
        a = self.a
        one = lambda L: [[x] for x in L]
        def mix(L1, L2):
            if not L2: return L1
            out = []
            i = j = 0
            while i < len(L1) or j < len(L2):
                if j >= len(L2) or (i < len(L1) and i * len(L2) <= j * len(L1)):
                    out.append(L1[i]); i += 1
                else:
                    out.append(L2[j]); j += 1
            return out
        acc = {q: 16 + 4 * q for q in range(8)}
        dmaA = self.wl_dma_groups(3456, 4, 16384)
        dmaB = self.wl_dma_groups(3456, 4, 16384)
        def lds(it):
            p = it >> 1
            return one(self.cv_loads(it & 1, 8, 194 + 2 * p, 195 + 2 * p, 64 * (1 - (it & 1))))
        for g in lds(0):
            a(g[0])
        for j in range(3):
            a("ds_read_b32 v%d, v%d" % (4 + 2 * j, 244 + j))
        pfs = [["global_load_dword v192, v231, %s %s" % (sp(P_W1), NT)], ["global_load_dword v192, v232, %s %s" % (sp(P_W2), NT)]]
        nop = []
        extra = {0: dmaA[:4], 1: dmaA[4:], 2: [nop] * 24 + [["s_waitcnt vmcnt(0)"]] + one(self.wl_tr(0, 4)),
                 3: dmaB[:5], 4: dmaB[5:] + [["global_load_dword v193, v233, %s sc1" % sp(P_FL)]] + pfs}
        for it in range(6):
            if it in (2, 4):
                lf = self.lab("flush")
                a("s_cmp_lg_u32 s%d, %d" % (S_WAVE, it >> 1))
                a("s_cbranch_scc1 %s" % lf)
                a("s_nop 7")
                for r in range(32):
                    a("v_accvgpr_write_b32 a%d, v%d" % (128 + r, 16 + r))
                for r in range(16):
                    a("v_pk_mov_b32 %s, 0, 0" % vp(16 + 2 * r))
                a("s_nop 1")
                a.label(lf)
            self.cv_iter(it & 1, list(range(8)), acc, it == 0, mix(lds(it + 1) if it < 5 else [], extra.get(it, [])), hi=0.92)
        a("s_mul_i32 s54, s%d, 12288" % S_OCT)
        a("v_lshl_add_u32 v10, v0, 4, s54")
        a("v_add_u32 v11, 4096, v10")
        a("v_add_u32 v12, 8192, v10")
        a("v_lshlrev_b32 v13, 4, v0")
        a("v_add_u32 v13, %d, v13" % LDS_OWN)
        self.stamp("convmf")
        a("s_barrier")
        for q in range(8):
            a("ds_write_b128 v242, %s offset:%d" % (v4(16 + 4 * q), 1536 * q))
        lw = self.lab("nofl")
        a("s_add_u32 s54, s%d, 1" % S_WAVE)
        a("s_bitcmp0_b32 s54, 1")
        a("s_cbranch_scc1 %s" % lw)
        for q in range(8):
            a("ds_write_b128 v243, %s offset:%d" % (a4(128 + 4 * q), 1536 * q))
        a.label(lw)
        self.pd_check(len(pfs))
        a("s_waitcnt lgkmcnt(0)")
        a("s_barrier")
        for j in range(3):
            b = 64 + 16 * j
            for k in range(2):
                for hh in range(2):
                    a("ds_read_b128 %s, v13 offset:%d" % (v4(b + 8 * k + 4 * hh), k * 2 * OHS + hh * OHS + 4096 * j))
        for j in range(3):
            b = 64 + 16 * j
            a("s_waitcnt lgkmcnt(%d)" % (4 * (2 - j)))
            for p in range(4):
                a("v_pk_add_f32 %s, %s, %s" % (vp(b + 2 * p), vp(b + 2 * p), vp(b + 8 + 2 * p)))
            for p in range(4):
                a("v_pk_mul_f32 %s, %s, %s op_sel_hi:[1,0]" % (vp(b + 2 * p), vp(b + 2 * p), vp(4 + 2 * j)))
            for p in range(4):
                a("v_cvt_pk_bf16_f32 v%d, v%d, v%d" % (b + 8 + p, b + 2 * p, b + 2 * p + 1))
            for p in range(4):
                a("v_min_u32 v%d, 0xfffffffe, v%d" % (b + 8 + p, b + 8 + p))
            a("global_store_dwordx4 v%d, %s, %s sc1" % (10 + j, v4(b + 8), sp(P_YT)))
        self.stamp("ytstore")

    def helper(self):
        a = self.a
        a.label("L_helper")
        self.flag_store(0)
        self.pf_w1()
        a("s_sub_u32 s60, s%d, 27" % S_IDX)
        a("s_lshl_b32 s60, s60, 2")
        a("s_add_u32 s60, s60, s%d" % S_WAVE)
        for r in range(4):
            a("v_mov_b32 v%d, -1" % (20 + r))
        a("v_lshrrev_b32 v5, 3, v1")
        a("v_and_b32 v6, 7, v1")
        a("s_lshr_b32 s62, s%d, 1" % S_XCD)
        def poison(ptr, per_xcd_kb, xcd_stride):
            a("s_mul_i32 s61, s%d, %d" % (S_XCD, xcd_stride))
            a("s_lshl_b32 s63, s60, 10")
            a("s_add_u32 s61, s61, s63")
            a("v_lshl_add_u32 v7, v1, 4, s61")
            a("s_mov_b32 s63, s60")
            lp = self.lab("poi")
            a.label(lp)
            a("global_store_dwordx4 v7, v[20:23], %s sc1" % sp(ptr))
            a("v_add_u32 v7, 20480, v7")
            a("s_add_u32 s63, s63, 20")
            a("s_cmp_lt_u32 s63, %d" % per_xcd_kb)
            a("s_cbranch_scc1 %s" % lp)
        def pref(ptr, rs, nline, maxline, rowf, ngroups):
            a("s_mul_i32 s61, s62, %d" % nline)
            a("v_min_u32 v8, %d, v6" % (nline - 1))
            a("v_add_u32 v8, s61, v8")
            a("v_min_u32 v8, %d, v8" % maxline)
            a("v_lshlrev_b32 v8, 7, v8")
            a("s_mov_b32 s63, s60")
            lp = self.lab("prf")
            a.label(lp)
            rowf()
            a("v_add_u32 v9, s64, v5")
            a("v_mul_u32_u24 v9, %d, v9" % rs)
            a("v_add_u32 v9, v9, v8")
            a("global_load_dword v254, v9, %s" % sp(ptr))
            a("s_add_u32 s63, s63, 20")
            a("s_cmp_lt_u32 s63, %d" % ngroups)
            a("s_cbranch_scc1 %s" % lp)
        def row_w1b():
            a("s_and_b32 s64, s63, 3")
            a("s_lshl_b32 s64, s64, 9")
            a("s_lshr_b32 s65, s63, 2")
            a("s_lshl_b32 s65, s65, 3")
            a("s_add_u32 s64, s64, s65")
            a("s_add_u32 s64, s64, 256")
        def row_w2():
            a("s_and_b32 s64, s63, 3")
            a("s_mul_i32 s64, s64, 448")
            a("s_min_u32 s64, s64, 1312")
            a("s_lshr_b32 s65, s63, 2")
            a("s_lshl_b32 s65, s65, 3")
            a("s_add_u32 s64, s64, s65")
            a("s_min_u32 s64, s64, 1720")
        poison(P_YT, 27 * 12, 32 * 12288)
        self.flag_store(1)
        if 'h' in BGX:
            self.pf_w2b()
        poison(P_HP, 320, 327680)
        self.flag_store(4)
        a("global_load_dword v254, v231, %s %s" % (sp(P_W1), NT))
        a("global_load_dword v254, v232, %s %s" % (sp(P_W2), NT))
        if 'j' in BGX:
            self.pf_w2b((160,))
        a("global_load_dword v193, v233, %s sc1" % sp(P_FL))
        self.pd_check(0)
        a("s_branch L_win2")

    def phase4_addr(self):
        a = self.a
        a("s_mul_i32 s55, s%d, 48" % S_OCT)
        for j in range(3):
            a("v_add_u32 v5, %d, v0" % (256 * j))
            if j == 2:
                a("v_min_u32 v5, 639, v5")
            a("v_mul_u32_u24 v6, 820, v5")
            a("v_lshrrev_b32 v6, 16, v6")
            a("v_mul_u32_u24 v7, 80, v6")
            a("v_sub_u32 v7, v5, v7")
            a("v_mul_u32_u24 v8, 21846, v7")
            a("v_lshrrev_b32 v8, 16, v8")
            a("v_lshl_add_u32 v6, v6, 5, v8")
            a("v_mul_u32_u24 v8, 3, v8")
            a("v_sub_u32 v7, v7, v8")
            a("v_mul_u32_u24 v6, 12288, v6")
            a("v_lshl_add_u32 v6, v7, 4, v6")
            a("v_add_u32 v%d, s55, v6" % (170 + j))
        a("s_lshl_b32 s54, s%d, 8" % S_OCT)
        a("v_lshrrev_b32 v2, 4, v0")
        a("v_lshlrev_b32 v2, 16, v2")
        a("v_and_b32 v3, 15, v0")
        a("v_lshl_add_u32 v2, v3, 4, v2")
        a("v_add_u32 v173, s54, v2")
        a("v_add_u32 v174, 0x100000, v173")
        a("v_add_u32 v175, 0x200000, v173")
        a("s_mul_i32 s54, s%d, 10240" % S_OCT)
        a("v_lshl_add_u32 v176, v0, 4, s54")
        a("v_add_u32 v177, 4096, v176")
        a("v_add_u32 v178, 8192, v176")
        a("v_lshlrev_b32 v179, 2, v0")
        a("v_add_u32 v179, %d, v179" % LDS_LN)
        a("v_lshlrev_b32 v180, 2, v1")
        a("v_add_u32 v180, %d, v180" % LDS_LN)

    def phase4_pre(self):
        a = self.a
        for n in range(11):
            a("v_accvgpr_read_b32 v%d, a%d" % (170 + n, 224 + n))
        for n in range(12):
            a("v_lshlrev_b32 v%d, 16, v%d" % (100 + 2 * n, XG + n))
            a("v_and_b32 v%d, 0xffff0000, v%d" % (101 + 2 * n, XG + n))
            a("v_lshlrev_b32 v%d, 16, v%d" % (124 + 2 * n, TG + n))
            a("v_and_b32 v%d, 0xffff0000, v%d" % (125 + 2 * n, TG + n))

    def pd_check(self, n):
        a = self.a
        a("s_mov_b32 s69, 0")
        lp, lok = self.lab("pdpoll"), self.lab("pdok")
        a("s_waitcnt vmcnt(%d)" % n)
        a.label(lp)
        a("v_cmp_ne_u32 vcc, s%d, v193" % S_TAG)
        a("s_cbranch_vccz %s" % lok)
        a("s_add_u32 s69, s69, 1")
        a("s_cmp_gt_u32 s69, %d" % SPIN)
        a("s_cbranch_scc1 %s" % lok)
        a("s_sleep 4")
        a("global_load_dword v193, v233, %s sc1" % sp(P_FL))
        a("s_waitcnt vmcnt(0)")
        a("s_branch %s" % lp)
        a.label(lok)

    def phase4(self, N2):
        a = self.a
        a("s_mov_b32 s69, 0")
        lp, lok, lf = self.lab("hpoll"), self.lab("hok"), self.lab("hfirst")
        for j in range(3):
            a("global_load_dwordx4 %s, v%d, %s sc1" % (v4(16 + 4 * j), 170 + j, sp(P_YT)))
        a("s_waitcnt vmcnt(3)")
        for t in self.wl_tr(8, N2):
            a(t)
        a("s_branch %s" % lf)
        a.label(lp)
        for j in range(3):
            a("global_load_dwordx4 %s, v%d, %s sc1" % (v4(16 + 4 * j), 170 + j, sp(P_YT)))
        a.label(lf)
        a("s_waitcnt vmcnt(0)")
        a("v_max3_u32 v28, v16, v17, v18")
        a("v_max3_u32 v29, v19, v20, v21")
        a("v_max3_u32 v30, v22, v23, v24")
        a("v_max3_u32 v31, v25, v26, v27")
        a("v_max3_u32 v28, v28, v29, v30")
        a("v_max_u32 v28, v28, v31")
        a("v_cmp_eq_u32 vcc, -1, v28")
        a("s_cbranch_vccz %s" % lok)
        self.spin_tail(lp, lok, 4)
        a.label(lok)
        self.stamp("hpoll")
        mark4 = len(a.ins)
        def unp(src):
            for n in range(12):
                a("v_lshlrev_b32 v%d, 16, v%d" % (32 + 2 * n, src + n))
                a("v_and_b32 v%d, 0xffff0000, v%d" % (33 + 2 * n, src + n))
        unp(16)
        for n in range(12):
            a("v_pk_add_f32 %s, %s, %s" % (vp(32 + 2 * n), vp(32 + 2 * n), vp(124 + 2 * n)))
        for n in range(12):
            a("v_cvt_pk_bf16_f32 v%d, v%d, v%d" % (16 + n, 32 + 2 * n, 33 + 2 * n))
        unp(16)
        for n in range(12):
            a("v_pk_add_f32 %s, %s, %s" % (vp(32 + 2 * n), vp(32 + 2 * n), vp(100 + 2 * n)))
        for n in range(12):
            a("v_cvt_pk_bf16_f32 v%d, v%d, v%d" % (150 + n, 32 + 2 * n, 33 + 2 * n))
        self.weave(mark4, self.wl_dma_groups(3456, 8 - N2, 32768, slot0=4096 * N2))
        lz = self.lab("hz")
        a("s_cmp_lt_u32 s%d, 2" % S_WAVE)
        a("s_cbranch_scc1 %s" % lz)
        for r in range(4):
            a("v_mov_b32 v%d, 0" % (158 + r))
        a.label(lz)
        unp(150)
        for p in range(4):
            a("v_pk_add_f32 %s, %s, %s" % (vp(64 + 2 * p), vp(32 + 2 * p), vp(40 + 2 * p)))
            a("v_pk_mul_f32 %s, %s, %s" % (vp(72 + 2 * p), vp(32 + 2 * p), vp(32 + 2 * p)))
        for p in range(4):
            a("v_pk_add_f32 %s, %s, %s" % (vp(64 + 2 * p), vp(64 + 2 * p), vp(48 + 2 * p)))
            a("v_pk_fma_f32 %s, %s, %s, %s" % (vp(72 + 2 * p), vp(40 + 2 * p), vp(40 + 2 * p), vp(72 + 2 * p)))
        for p in range(4):
            a("v_pk_fma_f32 %s, %s, %s, %s" % (vp(72 + 2 * p), vp(48 + 2 * p), vp(48 + 2 * p), vp(72 + 2 * p)))
        for k in range(8):
            a("v_permlane32_swap_b32 v%d, v%d" % (64 + k, 72 + k))
        for p in range(4):
            a("v_pk_add_f32 %s, %s, %s" % (vp(64 + 2 * p), vp(64 + 2 * p), vp(72 + 2 * p)))
        for k in range(4):
            a("v_permlane16_swap_b32 v%d, v%d" % (64 + k, 68 + k))
        for p in range(2):
            a("v_pk_add_f32 %s, %s, %s" % (vp(64 + 2 * p), vp(64 + 2 * p), vp(68 + 2 * p)))
        for k in range(2):
            a("v_add_f32_dpp v%d, v%d, v%d row_ror:8 row_mask:0xf bank_mask:0x3" % (72 + k, 64 + k, 64 + k))
        for k in range(2):
            a("v_add_f32_dpp v%d, v%d, v%d row_ror:8 row_mask:0xf bank_mask:0xc" % (72 + k, 66 + k, 66 + k))
        a("v_add_f32_dpp v64, v72, v72 row_half_mirror row_mask:0xf bank_mask:0x5")
        a("v_add_f32_dpp v64, v73, v73 row_half_mirror row_mask:0xf bank_mask:0xa")
        a("v_add_f32_dpp v64, v64, v64 quad_perm:[1,0,3,2] row_mask:0xf bank_mask:0xf")
        a("v_add_f32_dpp v64, v64, v64 quad_perm:[2,3,0,1] row_mask:0xf bank_mask:0xf")
        a("ds_write_b32 v179, v64")
        self.pd_check(63)
        for n in range(12):
            a("v_min_u32 v%d, 0xfffffffe, v%d" % (150 + n, 150 + n))
        a("s_waitcnt lgkmcnt(0)")
        a("s_barrier")
        for w in range(4):
            a("ds_read_b32 v%d, v180 offset:%d" % (64 + w, 256 * w))
        a("s_waitcnt lgkmcnt(0)")
        a("v_pk_add_f32 v[64:65], v[64:65], v[66:67]")
        a("v_add_f32 v64, v64, v65")
        a("v_mul_f32 v64, %s, v64" % f32(1.0 / 640))
        a("v_mov_b32 v65, v64")
        a("v_permlane32_swap_b32 v64, v65")
        a("v_fma_f32 v65, -v64, v64, v65")
        a("v_max_f32 v65, 0, v65")
        self.bf16_round(67, 65)
        self.bf16_round(66, 64)
        a("v_add_f32 v67, %s, v67" % f32(1e-5))
        self.bf16_round(67, 67)
        a("v_sqrt_f32 v67, v67")
        a("v_sub_f32 v68, v64, v66")
        self.bf16_round(67, 67)
        a("v_rcp_f32 v67, v67")
        a("v_mul_f32 v69, v65, v67")
        a("v_mul_f32 v68, v68, v67")
        a("v_mul_f32 v69, v69, v67")
        self.bf16_round(69, 69)
        self.bf16_round(68, 68)
        a("v_add_f32 v69, %s, v69" % f32(1e-5))
        self.bf16_round(69, 69)
        a("v_sqrt_f32 v69, v69")
        a("v_fma_f32 v70, v66, v67, v68")
        self.bf16_round(69, 69)
        a("v_rcp_f32 v69, v69")
        a("v_mul_f32 v70, -v70, v69")
        a("v_mul_f32 v71, v67, v69")
        for r in range(8):
            a("v_readlane_b32 s%d, v70, %d" % (54 + r, 4 * r))
        for r in range(8):
            a("v_readlane_b32 s%d, v71, %d" % ((62, 63, 64, 65, 66, 67, 70, 71)[r], 4 * r))
        for r in range(8):
            a("v_mov_b32 v%d, s%d" % (72 + r, 54 + r))
        l3 = self.lab("h3")
        for j in range(3):
            if j == 2:
                a("s_cmp_ge_u32 s%d, 2" % S_WAVE)
                a("s_cbranch_scc1 %s" % l3)
            for p in range(4):
                h = 32 + 8 * j + 2 * p
                a("v_pk_fma_f32 %s, %s, %s, %s" % (vp(h), vp(h), sp((62, 64, 66, 70)[p]), vp(72 + 2 * p)))
            for p in range(4):
                h = 32 + 8 * j + 2 * p
                a("v_cvt_pk_bf16_f32 v%d, v%d, v%d" % (16 + 4 * j + p, h, h + 1))
            for p in range(4):
                a("v_min_u32 v%d, 0xfffffffe, v%d" % (16 + 4 * j + p, 16 + 4 * j + p))
            a("global_store_dwordx4 v%d, %s, %s sc1" % (173 + j, v4(16 + 4 * j), sp(P_HP)))
        a("global_store_dwordx4 v178, v[158:161], %s sc1" % sp(P_H2))
        a.label(l3)
        a("global_store_dwordx4 v176, v[150:153], %s sc1" % sp(P_H2))
        a("global_store_dwordx4 v177, v[154:157], %s sc1" % sp(P_H2))
        self.stamp("hpstore")

    NP = 35
    def acc(self, j, mt): return ACC0 + 4 * (mt * 4 + j)
    def preg(self, k): return SLOT0 + 4 * (k % self.NP)

    def frag_load(self, name, seq0, mts, i):
        s, mt = i // len(mts), mts[i % len(mts)]
        base = (84 if name.startswith("g1") else 64) + (0 if s < 8 else 2)
        return "global_load_dwordx4 %s, v%d, %s offset:%d sc1 ; #%s_%d" % (
            v4(self.preg(seq0 + i)), 2 + mt, sp(base), (s % 8) * 1024 - 4096, name, s)

    def frag_check(self, seq0, mts, s):
        if CK1:
            r = [self.preg(seq0 + s * len(mts) + m) + 3 for m in range(len(mts))]
            if len(r) == 3:
                return ["v_max3_u32 v7, v%d, v%d, v%d" % tuple(r), "v_cmp_eq_u32 vcc, -1, v7"]
            return ["v_max_u32 v7, v%d, v%d" % tuple(r), "v_cmp_eq_u32 vcc, -1, v7"]
        r = [self.preg(seq0 + s * len(mts) + m) + k for m in range(len(mts)) for k in range(4)]
        L = ["v_max3_u32 v7, v%d, v%d, v%d" % (r[0], r[1], r[2]), "v_max3_u32 v8, v%d, v%d, v%d" % (r[3], r[4], r[5])]
        rest = r[6:]
        t = 7
        while len(rest) >= 2:
            L.append("v_max3_u32 v%d, v%d, v%d, v%d" % (t, t, rest[0], rest[1]))
            rest = rest[2:]
            t = 15 - t
        L += ["v_max_u32 v7, v7, v8", "v_cmp_eq_u32 vcc, -1, v7"]
        return L

    def gpass(self, name, nsteps, mts, w_is_A, seq0, npre, bgf=None, s_short=None, hook=None):
        a = self.a
        nm = len(mts)
        tot = nsteps * nm
        ldone = self.lab("gdone")
        def branch_slow(s):
            ls, lb = self.lab("gslow"), self.lab("gback")
            a("s_cbranch_vccnz %s" % ls)
            a.label(lb)
            self.slowpaths.append((s, ls, lb, [self.frag_load(name, seq0, mts, s * nm + m).split(';')[0] for m in range(nm)],
                                   self.frag_check(seq0, mts, s)))
        a("@wait %s_0" % name)
        for l in self.frag_check(seq0, mts, 0):
            a(l)
        branch_slow(0)
        self.stamp(name + "f")
        for s in range(nsteps):
            if hook and s in hook:
                hook[s]()
            fill = []
            for g in (bgf(s) if bgf else []):
                fill.append(g)
            ck = []
            if s + 1 < nsteps:
                ck = [["@wait %s_%d" % (name, s + 1)]] + [[x] for x in self.frag_check(seq0, mts, s + 1)]
            items = fill + ck
            nmf = 4 * nm
            per = [len(items) * (k + 1) // nmf - len(items) * k // nmf for k in range(nmf)]
            n = 0
            for m, mt in enumerate(mts):
                for j in range(4):
                    c = v4(self.acc(j, mt))
                    w = a4((s * 4 + j) * 4)
                    f = v4(self.preg(seq0 + s * nm + m))
                    A, B = (w, f) if w_is_A else (f, w)
                    a("v_mfma_f32_16x16x32_bf16 %s, %s, %s, %s" % (c, A, B, "0" if s == 0 else c))
                    if j == 3:
                        a("@mark free%d" % (seq0 + s * nm + m))
                    for _ in range(per[n]):
                        for t in items.pop(0):
                            a(t)
                    n += 1
            if s + 1 < nsteps:
                if s_short is not None and s + 2 == nsteps:
                    a("@mark noins")
                    a("s_cmp_eq_u32 s%d, 1" % s_short)
                    a("s_cbranch_scc1 %s" % ldone)
                branch_slow(s + 1)
        a.label(ldone)
        a("@mark ins")
        self.stamp(name + "m")

    def est(self, ins):
        k = ins.kind
        if k == 'mfma': return 16
        if k in ('label', 'dir'): return 0
        if k == 'trans': return 8
        if k == 'mem': return 30 if 'write_b128' in ins.op else 8
        if ins.op == 's_barrier': return 60
        return 4.5

    def schedule(self, start, ops, per=None, lat=700, ahead=None):
        from asmdsl import Ins
        a = self.a
        per = per or float(os.environ.get("PER", "70"))
        ahead = ahead or float(os.environ.get("AHEAD", "400"))
        seg = a.ins[start:]
        del a.ins[start:]
        seen = set()
        t = 0.0; tm = 0.0
        pf = 0.0
        done = {}
        q = list(ops)
        noins = False
        noex = False
        def emit(op):
            nonlocal pf, t
            for x in op['ins']:
                a(x)
                t += 4.5
            pf = max(pf, t) + per * op.get('kb', 1)
            done[op['tag']] = pf + lat
        for n, ins in enumerate(seg):
            if ins.op == '@mark':
                seen.add(ins.text.split()[1])
            if ins.op == '@wait':
                tag = ins.text.split()[1]
                idx = [k for k, o in enumerate(q) if o['tag'] == tag]
                if idx:
                    for o in q[:idx[-1] + 1]:
                        assert all(m in seen for m in o['after']), (o, tag)
                        emit(o)
                    q = q[idx[-1] + 1:]
                if tag in done:
                    t = max(t, done[tag])
            a.ins.append(ins)
            if ins.kind == 'mfma':
                t = max(t, tm) + 8
                tm = t + 8
            else:
                t += self.est(ins)
            if ins.op.startswith('s_cmp') or ins.op.startswith('s_bitcmp'): continue
            if 'exec' in ins.text and ins.op.startswith('s_mov'):
                noex = '-1' not in ins.text
            if ins.op == '@mark' and ins.text.split()[1] in ('noins', 'ins'):
                noins = ins.text.split()[1] == 'noins'
            if noins or noex or ins.kind == 'branch': continue
            while q and all(m in seen for m in q[0]['after']) and pf - t < ahead:
                emit(q.pop(0))
        assert not q, q[:3]

    def emit_slowpaths(self):
        a = self.a
        for s, ls, lb, loads, chk in self.slowpaths:
            a.label(ls)
            a("s_add_u32 s69, s69, 1")
            a("s_cmp_gt_u32 s69, %d" % SPIN)
            a("s_cbranch_scc1 %s" % lb)
            a("s_sleep 2")
            for l in loads:
                a(l)
            a("s_waitcnt vmcnt(0)")
            for l in chk:
                a(l)
            a("s_cbranch_vccnz %s" % ls)
            a("s_branch %s" % lb)

    def rndp(self, regs):
        a = self.a
        for b in regs:
            a("v_cvt_pk_bf16_f32 v%d, v%d, v%d" % (b + 1, b, b + 1))
        for b in regs:
            a("v_lshlrev_b32 v%d, 16, v%d" % (b, b + 1))
            a("v_and_b32 v%d, 0xffff0000, v%d" % (b + 1, b + 1))

    def epilogue(self, kind, mts, mid=None, bg=None, post=None, js=3072):
        a = self.a
        bg = list(bg or [])
        a("s_waitcnt lgkmcnt(0)")
        a("s_barrier")
        if post:
            post()
        mk = len(a.ins)
        for j in range(1, 4):
            for m, mt in enumerate(mts):
                a("ds_write_b128 v%d, %s offset:%d" % (241 + j, v4(self.acc(j, mt)), 1024 * m))
        if mid:
            mid()
        else:
            n1 = len(bg) // 4
            if n1:
                self.weave(mk, bg[:n1]); bg = bg[n1:]
        a("s_waitcnt lgkmcnt(0)")
        a("s_barrier")
        for m, mt in enumerate(mts):
            for j in range(1, 4):
                a("ds_read_b128 %s, v245 offset:%d" % (v4(self.acc(j, mt)), js * (j - 1) + 1024 * m))
        mk = len(a.ins)
        P = [self.acc(0, mt) + 2 * h for mt in mts for h in range(2)]
        T = [self.acc(1, mt) + 2 * h for mt in mts for h in range(2)]
        for m, mt in enumerate(mts):
            a("s_waitcnt lgkmcnt(%d)" % (3 * (len(mts) - 1 - m)))
            for h in range(2):
                a("v_pk_add_f32 %s, %s, %s" % (vp(self.acc(0, mt) + 2 * h), vp(self.acc(0, mt) + 2 * h), vp(self.acc(1, mt) + 2 * h)))
                a("v_pk_add_f32 %s, %s, %s" % (vp(self.acc(2, mt) + 2 * h), vp(self.acc(2, mt) + 2 * h), vp(self.acc(3, mt) + 2 * h)))
        if kind == 2:
            for mt in mts:
                a("ds_read_b64 %s, v249 offset:%d" % (vp(self.acc(3, mt)), 32 * mt))
        for mt in mts:
            for h in range(2):
                a("v_pk_add_f32 %s, %s, %s" % (vp(self.acc(0, mt) + 2 * h), vp(self.acc(0, mt) + 2 * h), vp(self.acc(2, mt) + 2 * h)))
        self.rndp(P)
        for n, p in enumerate(P):
            if kind == 1:
                a("v_pk_add_f32 %s, %s, %s" % (vp(p), vp(p), vp(250 + 2 * (n & 1))))
            else:
                a("v_pk_add_f32 %s, %s, %s op_sel_hi:[1,0]" % (vp(p), vp(p), vp(250)))
        self.rndp(P)
        if kind == 1:
            for p, t in zip(P, T):
                a("v_pk_mul_f32 %s, %s, %s" % (vp(t), vp(p), vp(p)))
            for p, t in zip(P, T):
                a("v_pk_fma_f32 %s, %s, %s, %s op_sel_hi:[1,0,0]" % (vp(t), vp(t), vp(12), vp(10)))
            for p, t in zip(P, T):
                a("v_pk_mul_f32 %s, %s, %s" % (vp(t), vp(t), vp(p)))
            for t in T:
                a("v_exp_f32 v%d, v%d" % (t, t))
                a("v_exp_f32 v%d, v%d" % (t + 1, t + 1))
            for t in T:
                a("v_pk_add_f32 %s, %s, 1.0 op_sel_hi:[1,0]" % (vp(t), vp(t)))
            for t in T:
                a("v_rcp_f32 v%d, v%d" % (t, t))
                a("v_rcp_f32 v%d, v%d" % (t + 1, t + 1))
            for p, t in zip(P, T):
                a("v_pk_mul_f32 %s, %s, %s" % (vp(p), vp(p), vp(t)))
        else:
            a("s_waitcnt lgkmcnt(0)")
            for mt in mts:
                for h in range(2):
                    a("v_lshlrev_b32 v%d, 16, v%d" % (self.acc(1, mt) + 2 * h, self.acc(3, mt) + h))
                    a("v_and_b32 v%d, 0xffff0000, v%d" % (self.acc(1, mt) + 2 * h + 1, self.acc(3, mt) + h))
            for p, t in zip(P, T):
                a("v_pk_add_f32 %s, %s, %s" % (vp(p), vp(p), vp(t)))
        prs = {2: [(3, 4)], 3: [(0, 1), (2, 2)], 5: [(0, 1), (2, 2), (3, 4)]}[len(mts)]
        outs = []
        for ta, tb in prs:
            o = self.acc(2, ta)
            outs.append(o)
            for h in range(2):
                a("v_cvt_pk_bf16_f32 v%d, v%d, v%d" % (o + h, self.acc(0, ta) + 2 * h, self.acc(0, ta) + 2 * h + 1))
                a("v_cvt_pk_bf16_f32 v%d, v%d, v%d" % (o + 2 + h, self.acc(0, tb) + 2 * h, self.acc(0, tb) + 2 * h + 1))
        if kind == 1:
            for o in outs:
                for k in range(4):
                    a("v_min_u32 v%d, 0xfffffffe, v%d" % (o + k, o + k))
        if bg:
            self.weave(mk, bg)
        for o in outs:
            for h in range(2):
                a("v_permlane16_swap_b32 v%d, v%d" % (o + h, o + 2 + h))
        for n, ((ta, tb), o) in enumerate(zip(prs, outs)):
            ar = 246 + (0 if ta == 0 else (1 if ta == 2 else 2))
            if kind == 1:
                a("global_store_dwordx4 v%d, %s, %s sc1" % (ar, v4(o), sp(P_G)))
            else:
                a("global_store_dwordx4 v%d, %s, %s %s" % (ar, v4(o), sp(P_OUT), os.environ.get("OST", "")))

    def g_common_setup(self):
        a = self.a
        for j in range(1, 4):
            a("s_add_u32 s54, s%d, %d" % (S_WAVE, j))
            a("s_and_b32 s54, s54, 3")
            a("s_lshl_b32 s54, s54, 15")
            a("s_add_u32 s54, s54, %d" % (20480 + 3072 * (j - 1)))
            a("v_lshl_add_u32 v%d, v1, 4, s54" % (241 + j))
        a("s_lshl_b32 s54, s%d, 15" % S_WAVE)
        a("s_add_u32 s54, s54, 20480")
        a("v_lshl_add_u32 v245, v1, 4, s54")

    def g1_setup(self):
        a = self.a
        a("s_mul_i32 s54, s%d, %d" % (S_DB, 5 * 65536))
        a("v_lshl_add_u32 v2, v1, 4, s54")
        for mt in range(1, 5):
            a("v_add_u32 v%d, %d, v2" % (2 + mt, 65536 * mt))
        a("s_lshl_b32 s54, s%d, 14" % S_WAVE)
        a("s_add_u32 s54, s54, 4096")
        a("s_add_u32 s84, s%d, s54" % P_HP)
        a("s_addc_u32 s85, s%d, 0" % (P_HP + 1))
        a("s_add_u32 s86, s84, 8192")
        a("s_addc_u32 s87, s85, 0")
        a("s_mul_i32 s54, s%d, 270" % S_DB)
        a("s_lshl_b32 s55, s%d, 1" % S_FB)
        a("s_add_u32 s54, s54, s55")
        a("s_lshl_b32 s54, s54, 10")
        a("s_lshl_b32 s55, s%d, 9" % S_WAVE)
        a("s_add_u32 s54, s54, s55")
        a("v_and_b32 v7, 15, v1")
        a("v_lshrrev_b32 v8, 5, v1")
        a("v_lshl_add_u32 v7, v8, 4, v7")
        a("v_lshl_add_u32 v7, v7, 4, s54")
        a("v_add_u32 v247, %d, v7" % (2 * 54 * 1024))
        a("v_bfe_u32 v8, v1, 4, 1")
        a("v_mul_u32_u24 v8, %d, v8" % (54 * 1024))
        a("v_add_u32 v246, v7, v8")
        a("v_add_u32 v248, %d, v246" % (3 * 54 * 1024))
        for r in range(4):
            a("v_mov_b32 v%d, -1" % (10 + r))
        for r in (246, 247, 248):
            a("global_store_dwordx4 v%d, v[10:13], %s sc1 ; #gpoi" % (r, sp(P_G)))
        a("s_lshl_b32 s54, s%d, 7" % S_FB)
        a("s_lshl_b32 s55, s%d, 5" % S_WAVE)
        a("s_add_u32 s54, s54, s55")
        a("v_lshrrev_b32 v7, 4, v1")
        a("v_lshl_add_u32 v7, v7, 3, s54")
        a("global_load_dwordx2 v[252:253], v7, %s" % sp(P_B1))
        a("s_mul_i32 s54, s%d, 27" % S_DB)
        a("s_add_u32 s54, s54, s%d" % S_FB)
        a("s_lshl_b32 s54, s54, 7")
        a("s_add_u32 s54, s54, 0x18000")
        a("v_mov_b32 v249, s54")
        a("v_mov_b32 v9, s%d" % S_TAG)
        a("s_mov_b32 s69, 0")

    def g2_flag_addr(self):
        G = []
        G.append(["v_bfe_u32 v9, v1, 2, 3", "s_lshl_b32 s54, s%d, 3" % S_SB, "v_add_u32 v9, s54, v9", "v_lshlrev_b32 v9, 7, v9"])
        G.append(["v_and_b32 v13, 3, v1", "v_lshl_add_u32 v9, v13, 2, v9", "v_add_u32 v9, 0x10000, v9"])
        G.append(["s_mul_i32 s54, s%d, %d" % (S_DB2, 27 * 128), "s_add_u32 s54, s54, 0x18000", "v_and_b32 v11, 31, v1",
                  "v_min_u32 v11, 26, v11", "v_lshl_add_u32 v11, v11, 7, s54"])
        G.append(["v_cmp_lt_u32 s[62:63], 31, v1", "s_nop 1", "v_cndmask_b32 v9, v9, v11, s[62:63]"])
        return G

    def g2_flag_loads(self):
        return ["global_load_dword v249, v9, %s sc1 ; #g2fl" % sp(P_FL)]

    def g2_check(self, first_wait):
        a = self.a
        lp, lok = self.lab("h2poll"), self.lab("h2ok")
        a(first_wait)
        a("@mark noins")
        a.label(lp)
        a("v_cmp_ne_u32 vcc, s%d, v249" % S_TAG)
        a("s_cbranch_vccz %s" % lok)
        a("s_add_u32 s69, s69, 1")
        a("s_cmp_gt_u32 s69, %d" % SPIN)
        a("s_cbranch_scc1 %s" % lok)
        a("s_sleep 8")
        for t in self.g2_flag_loads():
            a(t.split(';')[0] + " ; #cond")
        a("s_waitcnt vmcnt(0)")
        a("s_branch %s" % lp)
        a.label(lok)
        a("@mark ins")
        a("@mark g2a_ok")

    def g2_addr(self, mts):
        G = [["s_mul_i32 s54, s%d, %d" % (S_DB2, 5 * 54 * 1024), "v_lshl_add_u32 v11, v1, 4, s54"]]
        G.append(["v_add_u32 v%d, %d, v11" % (2 + mt, 54 * 1024 * mt) for mt in mts])
        if 0 in mts:
            G.append(["s_lshl_b32 s54, s%d, 10" % S_K2, "s_add_u32 s54, s54, 4096", "@mark noins", "s_add_u32 s64, s%d, s54" % P_G,
                      "s_addc_u32 s65, s%d, 0" % (P_G + 1), "s_add_u32 s66, s64, 8192", "s_addc_u32 s67, s65, 0", "@mark ins"])
        return G

    def g2_late_setup(self):
        G = []
        G.append(["s_mul_i32 s60, s%d, %d" % (S_SB, 8 * 10240), "s_mul_i32 s61, s%d, 1280" % S_DB2, "s_add_u32 s60, s60, s61"])
        for j in range(3):
            g = ["v_add_u32 v9, %d, v0" % (256 * j)]
            if j == 2:
                g.append("v_min_u32 v9, 639, v9")
            g += ["v_mul_u32_u24 v11, 820, v9", "v_lshrrev_b32 v11, 16, v11"]
            G.append(g)
            G.append(["v_mul_u32_u24 v13, 80, v11", "v_sub_u32 v13, v9, v13", "v_mul_u32_u24 v9, 10240, v11"])
            G.append(["v_lshl_add_u32 v9, v13, 4, v9", "v_add_u32 v9, s60, v9",
                      "global_load_dwordx4 %s, v9, %s sc1 ; #htile" % (a4(224 + 4 * j), sp(P_H2))])
            G.append(["v_mul_u32_u24 v9, %d, v11" % (8 * 176), "v_lshl_add_u32 v9, v13, 1, v9", "v_add_u32 v%d, %d, v9" % (251 + j, LDS_H)])
        G.append(["s_lshl_b32 s60, s%d, 4" % S_WAVE, "v_and_b32 v9, 15, v1", "v_add_u32 v9, s60, v9", "s_lshl_b32 s61, s%d, 7" % S_SB])
        G.append(["v_lshl_add_u32 v11, v9, 1, s61", "global_load_ushort v250, v11, %s ; #b2" % sp(P_B2), "v_lshrrev_b32 v13, 4, v1"])
        G.append(["v_mul_u32_u24 v11, 176, v9", "v_lshl_add_u32 v11, v13, 3, v11", "v_add_u32 v249, %d, v11" % LDS_H])
        G.append(["s_mul_i32 s60, s%d, %d" % (S_SB, 64 * 1280), "s_mul_i32 s61, s%d, 160" % S_DB2, "s_add_u32 s60, s60, s61",
                  "v_mul_u32_u24 v11, 1280, v9"])
        G.append(["v_lshrrev_b32 v9, 1, v13", "v_lshl_add_u32 v11, v9, 4, v11", "v_add_u32 v11, s60, v11", "v_add_u32 v247, 64, v11"])
        G.append(["v_and_b32 v13, 1, v13", "v_lshl_add_u32 v246, v13, 5, v11", "v_add_u32 v248, 96, v246"])
        W = [["@wait htile"]]
        for j in range(3):
            for p in range(4):
                W.append(["ds_write_b16 v%d, a%d offset:%d" % (251 + j, 224 + 4 * j + p, (2 * p) * 176),
                          "ds_write_b16_d16_hi v%d, a%d offset:%d" % (251 + j, 224 + 4 * j + p, (2 * p + 1) * 176)])
        W.append(["@wait b2", "v_lshlrev_b32 v250, 16, v250"])
        return G, W

    def back_half(self):
        a = self.a
        one = lambda L: [[x] for x in L]
        N2 = int(os.environ.get('N2', '5'))
        MA, MB = [0, 1, 2], [3, 4]
        a.label("L_win2")
        for t in self.wl_tr(4, 4):
            a(t)
        a("s_lshl_b32 s54, s%d, 14" % S_WAVE)
        a("s_waitcnt lgkmcnt(0)")
        for nt in range(4):
            a("v_add_u32 v%d, s54, v%d" % (WT + nt, WT + nt))
        a("s_barrier")
        a("v_add_u32 v233, 0x18000, v233")
        a("global_load_dword v193, v233, %s sc1" % sp(P_FL))
        mk2 = len(a.ins)
        self.phase4_pre()
        self.g_common_setup()
        self.weave(mk2, self.wl_dma_groups(3456, N2, 32768), 0.0, 0.9)
        lq = self.lab("nog1s")
        a("s_cmp_eq_u32 s%d, 0" % S_G1)
        a("s_cbranch_scc1 %s" % lq)
        self.g1_setup()
        a("s_lshl_b32 s54, s%d, 7" % S_OCT)
        a("s_lshl_b32 s55, s%d, 2" % S_WAVE)
        a("s_add_u32 s54, s54, s55")
        a("s_add_u32 s54, s54, 0x10000")
        a("v_mov_b32 v254, s54")
        a.label(lq)
        self.stamp("win2")
        self.phase4(N2)
        a("s_lshl_b32 s90, s%d, 5" % S_K2)
        a("s_lshl_b32 s91, s%d, 7" % S_SB)
        self.wl_setup(P_W2, 4096, 90, 91, None, tmp=28)
        lg = self.lab("nog1")
        a("s_waitcnt lgkmcnt(0)")
        a("s_cmp_eq_u32 s%d, 0" % S_G1)
        a("s_cbranch_scc1 %s" % lg)
        a("s_mov_b32 s69, 0")
        N3A = int(os.environ.get("N3A", "5"))
        d3 = self.wl_dma_groups(4096, 5, 32768, tag="w2a")
        for g in d3[:2 * N3A]:
            for t in g:
                a(t)
        self.stamp("win3")
        sched0 = len(a.ins)
        qA, qB, qC, qD = 0, 48, 80, 122
        def fr(name, q, mts, n, after=()):
            return [dict(ins=[self.frag_load(name, q, mts, i)], tag="%s_%d" % (name, i // len(mts)),
                         after=list(after) + (["free%d" % (q + i - self.NP)] if q + i >= self.NP else [])) for i in range(n)]
        def dmaops(groups, tag, afterf):
            return [dict(ins=g, tag="%s%d" % (tag, n // 2) if n & 1 else "x", kb=2, after=afterf(n // 2)) for n, g in enumerate(groups)]
        trw = one(self.wl_tr(8 + N2, 8 - N2, slot0=4096 * N2))
        def bgA(s):
            if s < 8 - N2: return trw[8 * s:8 * s + 8]
            if s == 7: return [["v_lshlrev_b32 v250, 16, v252", "v_and_b32 v251, 0xffff0000, v252"],
                               ["v_lshlrev_b32 v252, 16, v253", "v_and_b32 v253, 0xffff0000, v253"],
                               ["v_mov_b32 v10, %s" % f32(-2.0 * 0.7978845608028654 * LOG2E),
                                "v_mov_b32 v12, %s" % f32(-2.0 * 0.7978845608028654 * LOG2E * 0.044715)]]
            if s == 7 + N2: return [["s_waitcnt lgkmcnt(0)"]]
            if s == 4: return [["s_mov_b64 exec, 1", "global_store_dword v254, v9, %s sc1" % sp(P_FL), "s_mov_b64 exec, -1"]]
            return []
        self.gpass("g1a", 16, MA, True, qA, 0, bgA)
        def pd2():
            l = self.lab("pd2")
            a("@mark noins")
            a("s_cmp_lg_u32 s%d, 0" % S_WAVE)
            a("s_cbranch_scc1 %s" % l)
            a("s_mov_b64 exec, 1")
            a("global_store_dword v249, v9, %s sc1 ; #cond" % sp(P_FL))
            a("s_mov_b64 exec, -1")
            a("@mark noins")
            a.label(l)
            a("@mark ins")
        self.epilogue(1, MA, post=pd2)
        self.stamp("g1ae")
        tr0 = self.wl_tr(0, 5)
        tr1 = self.wl_tr(5, 5)
        fa = self.g2_flag_addr()
        FS = int(os.environ.get("FS", "8"))
        def bgB(s):
            L = []
            if 3 <= s <= 7:
                L += [["s_waitcnt lgkmcnt(8)" if s <= 5 else "s_waitcnt lgkmcnt(0)", "@mark s0_%d" % (s - 3)]]
            if 1 <= s <= 5:
                L += [["@wait w2a%d" % (s - 1)]] + one(tr0[8 * (s - 1):8 * s])
            if s == 0:
                L += fa + self.g2_addr(MA)
            if s == FS - 3:
                L += one(self.g2_flag_loads())
            if s >= 11:
                L += [["@wait w2b%d" % (s - 11)]] + one(tr1[8 * (s - 11):8 * (s - 10)])
            return L
        self.gpass("g1b", 16, MB, True, qB, 32, bgB, hook={FS: lambda: self.g2_check("@wait g2fl")})
        def midB():
            for g in self.g2_addr(MB):
                for t in g:
                    a(t)
            a("@mark g2b_ok")
        self.epilogue(1, MB, mid=midB, post=lambda: a("@mark s1"))
        self.stamp("g1be")
        a("@mark preg2a")
        a.label("L_g2a")
        dm2 = self.wl_dma_groups(4096, 4, 32768, tag="w2c")
        dm2[5] = dm2[5][:2] + ["s_lshl_b32 s83, s%d, 17" % S_SHORT, "s_sub_u32 s83, %d, s83" % (32 * 4096),
                               "s_add_u32 s80, s80, s83", "s_addc_u32 s81, s81, 0"]
        tr2 = self.wl_tr(10, 4)
        LG, LW = self.g2_late_setup()
        def bgC(s):
            L = []
            if s < 5:
                L += LG[4 * s:4 * s + 4]
            if 5 <= s <= 8:
                L += [["@wait w2c%d" % (s - 5)]] + one(tr2[8 * (s - 5):8 * (s - 4)])
            if s == 9:
                L += [["s_waitcnt lgkmcnt(0)"]] + LW[:5]
            if s == 10:
                L += LW[5:10]
            if s == 11:
                L += LW[10:]
            return L
        self.gpass("g2a", 14, MA, False, qC, 33, bgC, s_short=S_SHORT)
        a("@mark ins")
        bgD = None
        if MERGE == 0:
            self.epilogue(2, MA)
        if MERGE == 2:
            mkE = len(a.ins)
            self.epilogue(2, MA)
            ep = [i.text for i in a.ins[mkE:]]
            del a.ins[mkE:]
            grp = []
            for t in ep:
                if grp and grp[-1][-1].startswith("s_waitcnt") and t == "s_barrier":
                    grp[-1].append(t)
                else:
                    grp.append([t])
            NSD = 12
            bgD = lambda s: grp[len(grp) * s // NSD:len(grp) * (s + 1) // NSD] if s < NSD else []
        self.stamp("g2ae")
        self.gpass("g2b", 14, MB, False, qD, 28, bgD, s_short=S_SHORT)
        if MERGE == 1:
            for j in range(1, 4):
                a("v_add_u32 v%d, %d, v%d" % (241 + j, (5120 - 3072) * (j - 1) - 20480, 241 + j))
            a("v_subrev_u32 v245, 20480, v245")
            self.epilogue(2, MA + MB, js=5120)
        else:
            self.epilogue(2, MB)
        self.stamp("g2be")
        A1 = fr("g1a", qA, MA, 48)
        B1 = fr("g1b", qB, MB, 32)
        A2 = fr("g2a", qC, MA, 42, after=["g2a_ok"])
        B2 = fr("g2b", qD, MB, 28, after=["g2b_ok", os.environ.get("B2M", "free%d" % (qC + 20))])
        D1 = dmaops(self.wl_dma_groups(4096, 5, 32768, tag="w2b"), "w2b", lambda k: ["s0_%d" % k])
        D2 = dmaops(dm2, "w2c", lambda k: ["s1"])
        D0 = dmaops(d3, "w2a", lambda k: [])[2 * N3A:]
        ops = A1 + D0 + B1 + D1 + A2[:15] + D2 + A2[15:] + B2
        self.schedule(sched0, ops)
        lab = [n for n, i in enumerate(a.ins) if i.islabel and i.op == "L_g2a"][0]
        pre = [i.text.split(';')[0] for i in a.ins[sched0:lab] if '#g2a_' in i.text or '#g2b_' in i.text]
        st = [n for n, i in enumerate(a.ins[:lab]) if i.text == dm2[0][0] and n > sched0]
        texts = [i.text for i in a.ins[sched0:lab]]
        npre_d = 0
        for n, g in enumerate(dm2):
            key = [x for x in g if 'load_lds' in x][-1]
            if n & 1 and key in texts: npre_d = n + 1
        cnt_lds = sum(1 for x in texts if 'load_lds' in x) - 20 - 4 * (5 - N3A)
        npre_d = cnt_lds // 2
        self.pre_inactive = (pre, dm2[:npre_d])
        self.inactive = (lg, qC, MA)

    def pf_w2b(self, parts=(160, 320)):
        a = self.a
        a("s_sub_u32 s66, s%d, 27" % S_IDX)
        a("s_add_u32 s66, s66, s%d" % S_K2)
        a("s_lshl_b32 s66, s66, 5")
        a("v_lshrrev_b32 v10, 2, v1")
        a("v_add_u32 v10, s66, v10")
        a("v_and_b32 v12, 3, v1")
        a("s_lshl_b32 s67, s%d, 9" % S_XCD)
        a("v_lshl_add_u32 v12, v12, 7, s67")
        def pfb(off):
            for i in range(2):
                a("v_add_u32 v11, %d, v10" % (off + 16 * i))
                a("v_min_u32 v11, 1727, v11")
                a("v_lshl_add_u32 v11, v11, 12, v12")
                a("global_load_dword v254, v11, %s" % sp(P_W2))
        for o in parts:
            pfb(o)

    def inactive_path(self):
        a = self.a
        lg, qC, MA = self.inactive
        a.label(lg)
        self.wl_dma_loop(4096, 5, 32768)
        self.flag_store(2, wait="vmcnt(20)")
        if 'j' in BGX:
            self.pf_w2b((320,))
        elif 'h' not in BGX:
            self.pf_w2b()
        a("s_waitcnt vmcnt(%d)" % (0 if 'h' in BGX else (2 if 'j' in BGX else 4)))
        for t in self.wl_tr(0, 5):
            a(t)
        a("s_waitcnt lgkmcnt(0)")
        self.wl_dma_loop(4096, 5, 32768)
        for g in self.g2_flag_addr():
            for t in g:
                a(t)
        a("s_waitcnt vmcnt(0)")
        for t in self.wl_tr(5, 5):
            a(t)
        a("s_sleep %s" % os.environ.get("SLF", "110"))
        for t in self.g2_flag_loads():
            a(t.split(';')[0])
        a("s_mov_b32 s69, 0")
        self.g2_check("s_waitcnt vmcnt(0) lgkmcnt(0)")
        for g in self.g2_addr([0, 1, 2, 3, 4]):
            for t in g:
                a(t)
        for g in self.pre_inactive[1]:
            for t in g:
                a(t.split(';')[0])
        a("s_sleep %s" % os.environ.get("SLI", "30"))
        for t in self.pre_inactive[0]:
            a(t)
        a("s_waitcnt vmcnt(0)")
        a("s_branch L_g2a")

    def finish(self):
        a = self.a
        if self.timing:
            a("s_memrealtime s[98:99]")
            a("s_waitcnt lgkmcnt(0)")
            a("v_writelane_b32 v255, s98, 63")
            a("s_lshl_b32 s54, s2, 2")
            a("s_add_u32 s54, s54, s%d" % S_WAVE)
            a("s_lshl_b32 s54, s54, 8")
            a("s_add_u32 s54, s54, 0x%x" % WS_TIME)
            a("v_lshl_add_u32 v2, v1, 2, s54")
            a("global_store_dword v2, v255, %s" % sp(P_WS))
        l = self.lab("nn")
        a("s_or_b32 s54, s2, s%d" % S_WAVE)
        a("s_cmp_lg_u32 s54, 0")
        a("s_cbranch_scc1 %s" % l)
        a("v_mov_b32 v2, 0")
        a("v_mov_b32 v3, s%d" % S_TAG)
        a("s_mov_b64 exec, 1")
        a("global_store_dword v2, v3, %s" % sp(P_WS))
        a.label(l)
        a.label("L_end")
        a("s_endpgm")

    def build(self):
        self.phase0()
        self.phase1()
        self.phase2()
        self.phase3()
        self.back_half()
        self.finish()
        self.helper()
        self.inactive_path()
        self.a.label("L_codeend")
        self.emit_slowpaths()
        self.a("s_endpgm")
        body = self.a.finalize()
        hdr = open("cdna_kernels/%s.s.ref" % NAME).read().split("; Override launch")[0]
        hdr += "; @launch grid=(256,1,1) block=(256,1,1) lds=%d\n" % LDS_TOTAL
        hdr += '.amdgcn_target "amdgcn-amd-amdhsa--gfx950"\n.text\n.globl %s_kernel\n.p2align 8\n.type %s_kernel,@function\n%s_kernel:\n' % (NAME, NAME, NAME)
        ftr = """.section .rodata,"a"
.p2align 6
.amdhsa_kernel %s_kernel
  .amdhsa_next_free_vgpr 512
  .amdhsa_next_free_sgpr 102
  .amdhsa_accum_offset 256
  .amdhsa_group_segment_fixed_size 0
  .amdhsa_kernarg_size 120
  .amdhsa_user_sgpr_count 2
  .amdhsa_user_sgpr_kernarg_segment_ptr 1
  .amdhsa_system_sgpr_workgroup_id_x 1
.end_amdhsa_kernel
""" % NAME
        return hdr + body + ftr


if __name__ == "__main__":
    import argparse
    ap = argparse.ArgumentParser()
    ap.add_argument("-o", default="k.s")
    ap.add_argument("--timing", action="store_true")
    args = ap.parse_args()
    g = Gen(timing=args.timing)
    open(args.o, "w").write(g.build())
    if args.timing:
        open(args.o + ".names", "w").write(",".join(g.names))
```

```python
import sys, struct, os
from asmdsl import Asm

NAME = "sequential_preLN__ssm_conv_s4d__mixer_token_mlp__prompt"

def f32(x):
    return "0x%08x" % struct.unpack("<I", struct.pack("<f", x))[0]

LOG2E = 1.4426950408889634
INV2PI = 0.15915494309189535

WS_FL = 0x10000
WS_UT = 0x100000
WS_H2 = 0x380000
WS_YT = 0x600000
WS_HP = 0x900000
WS_G = 0xB80000
P2A = 7
P2KB = 19
WS_DBG = 0x1000000
WS_TIME = 0x2000000

ESTR = 528
E1SZ = 21 * ESTR
ECH = E1SZ + 32 * ESTR
LDS_E = 0
CSTR = 4640
CCH = 4 * CSTR
LDS_C = 84224
USTR = 4224
LDS_U = 139904
LDS_XR = LDS_U
XRS = 1344
LDS_SR = 152576
LDS_SC = 152704
LDS_SHP = 65536
LDS_SHF = 81920
OWNS = 24576 + 64
OHS = 12288 + 64
LDS_OWN = LDS_C
LDS_LN = 160000
LDS_MID = 81920
LDS_H = 147456
LDS_TOTAL = 163840

S_WAVE, S_XCD, S_IDX, S_OCT = 3, 4, 5, 6
S_CF, S_PAR, S_TAG = 7, 9, 10
P_UT, P_H2 = 12, 14
P_X, P_LOGA, P_AIM, P_CR, P_CI, P_LDT, P_DSK = 16, 18, 20, 22, 24, 26, 28
P_W1, P_B1, P_W2, P_B2, P_OUT, P_DBG, P_WS = 32, 34, 36, 38, 40, 42, 44
P_YT, P_HP, P_G, P_FL = 46, 48, 50, 52
S_DB, S_FB, S_SB, S_G1 = 76, 77, 78, 79
S_DB2 = 75
NT = os.environ.get('NT', '')
NT2 = os.environ.get('NT2', '')
NTX = os.environ.get('NTX', '')
S_K2, S_SHORT = 92, 93
XG, TG = 200, 212
WD, WT = 234, 238
ACC0, SLOT0, NSLOT = 14, 94, 7
QA, QB = [7, 4, 3, 0], [6, 5, 2, 1]
SPIN = 200000
M24 = int(os.environ.get('M24', '1'))
M2B = int(os.environ.get('M2B', '0'))
CK1 = int(os.environ.get('CK1', '0'))
MERGE = int(os.environ.get('MERGE', '2'))
TLBW = int(os.environ.get('TLBW', '1'))
BGX = os.environ.get('BGX', 'zh')

def sp(n): return "s[%d:%d]" % (n, n + 1)
def vp(n): return "v[%d:%d]" % (n, n + 1)
def v4(n): return "v[%d:%d]" % (n, n + 3)
def a4(n): return "a[%d:%d]" % (n, n + 3)
def a2(n): return "a[%d:%d]" % (n, n + 1)


class Gen:
    def __init__(self, debug=0, timing=False):
        self.a = Asm()
        self.debug = debug
        self.timing = timing
        self.nstamp = 0
        self.names = []
        self.uid = 0
        self.slowpaths = []

    def lab(self, base):
        self.uid += 1
        return "L_%s_%d" % (base, self.uid)

    def stamp(self, name=""):
        if os.environ.get("PADAT") == name:
            a = self.a
            lp = self.lab("pad")
            a("@mark noins")
            a.label(lp)
            a("s_memrealtime s[98:99]")
            a("s_waitcnt lgkmcnt(0)")
            a("s_sub_u32 s98, s98, s100")
            a("s_cmp_lt_u32 s98, 4000")
            a("s_cbranch_scc1 %s" % lp)
            a("@mark ins")
        if not self.timing:
            return
        a = self.a
        a("s_memrealtime s[98:99]" if os.environ.get("RT") else "s_memtime s[98:99]")
        a("s_waitcnt lgkmcnt(0)")
        a("v_writelane_b32 v255, s98, %d" % self.nstamp)
        if self.nstamp >= 30:
            pass
        elif self.nstamp >= len(self.names):
            self.names.append(name)
        else:
            self.names[self.nstamp] += "/" + name
        self.nstamp += 1

    def weave(self, mark, bg, lo=0.0, hi=1.0):
        a = self.a
        seg = a.ins[mark:]
        del a.ins[mark:]
        n = len(seg)
        pos = [int(n * (lo + (hi - lo) * (k + 0.5) / len(bg))) for k in range(len(bg))]
        k = 0
        for i, ins in enumerate(seg):
            while k < len(bg) and pos[k] <= i:
                for t in bg[k]:
                    a(t)
                k += 1
            a.ins.append(ins)
        while k < len(bg):
            for t in bg[k]:
                a(t)
            k += 1

    def cmuls(self, lst):
        a = self.a
        for d, x, y in lst:
            a("v_pk_mul_f32 %s, %s, %s op_sel:[0,0] op_sel_hi:[0,1]" % (vp(d), vp(x), vp(y)))
        for d, x, y in lst:
            a("v_pk_fma_f32 %s, %s, %s, %s op_sel:[1,1,0] op_sel_hi:[1,0,1] neg_lo:[0,1,0]" % (vp(d), vp(x), vp(y), vp(d)))

    def cexps(self, items, tmp):
        a = self.a
        for n, (d, k, ar, ap) in enumerate(items):
            t = tmp + 2 * n
            a("v_mul_f32 v%d, %s, v%d" % (t, f32(float(2 ** k)), ar))
            a("v_mul_f32 v%d, %s, v%d" % (t + 1, f32(float(2 ** k)), ap))
        for n, it in enumerate(items):
            t = tmp + 2 * n
            a("v_exp_f32 v%d, v%d" % (t, t))
            a("v_fract_f32 v%d, v%d" % (t + 1, t + 1))
        for n, it in enumerate(items):
            t = tmp + 2 * n
            a("v_cos_f32 v%d, v%d" % (it[0], t + 1))
            a("v_sin_f32 v%d, v%d" % (it[0] + 1, t + 1))
        for n, it in enumerate(items):
            t = tmp + 2 * n
            a("v_pk_mul_f32 %s, %s, %s op_sel:[0,0] op_sel_hi:[0,1]" % (vp(it[0]), vp(t), vp(it[0])))

    def rowreduce16(self, regs, op="v_add_f32"):
        a = self.a
        for mode in ("quad_perm:[1,0,3,2]", "quad_perm:[2,3,0,1]", "row_half_mirror", "row_mirror"):
            for r in regs:
                a("%s_dpp v%d, v%d, v%d %s row_mask:0xf bank_mask:0xf" % (op, r, r, r, mode))

    def bf16_round(self, d, s):
        a = self.a
        a("v_cvt_pk_bf16_f32 v%d, v%d, v%d" % (d, s, s))
        a("v_and_b32 v%d, 0xffff0000, v%d" % (d, d))

    def spin_tail(self, lp, lok, sleep):
        a = self.a
        a("s_add_u32 s69, s69, 1")
        a("s_cmp_gt_u32 s69, %d" % SPIN)
        a("s_cbranch_scc1 %s" % lok)
        a("s_sleep %d" % sleep)
        a("s_branch %s" % lp)

    def wait_w3(self, n, extra):
        a = self.a
        if 'z' in BGX:
            a("s_waitcnt vmcnt(%d)%s" % (n, extra))
            return
        l = self.lab("ww3")
        a("s_waitcnt vmcnt(%d)%s" % (n + 4, extra))
        a("s_cmp_eq_u32 s%d, 3" % S_WAVE)
        a("s_cbranch_scc1 %s" % l)
        a("s_waitcnt vmcnt(%d)" % n)
        a.label(l)

    def pf_w1(self):
        a = self.a
        if 'a' not in BGX and 'n' not in BGX:
            a("global_load_dword v254, v231, %s %s" % (sp(P_W1), NT))
        a("v_add_u32 v231, %d, v231" % (256 * 3456))

    def flag_store(self, arr, per_wave=True, wait="vmcnt(0)"):
        a = self.a
        a("s_lshl_b32 s54, s%d, 7" % S_OCT)
        if arr:
            a("s_add_u32 s54, s54, %d" % (arr * 0x8000))
        if per_wave:
            a("s_lshl_b32 s55, s%d, 2" % S_WAVE)
            a("s_add_u32 s54, s54, s55")
        a("v_mov_b32 v2, s54")
        a("v_mov_b32 v3, s%d" % S_TAG)
        if wait:
            a("s_waitcnt %s" % wait)
        a("s_mov_b64 exec, 1")
        a("global_store_dword v2, v3, %s sc1" % sp(P_FL))
        a("s_mov_b64 exec, -1")

    def phase0(self):
        a = self.a
        a("s_cmp_ge_u32 s2, 256")
        a("s_cbranch_scc1 L_end")
        a("s_load_dwordx16 s[16:31], s[0:1], 0")
        a("s_load_dwordx8 s[32:39], s[0:1], 64")
        a("s_load_dwordx4 s[40:43], s[0:1], 96")
        a("s_load_dwordx2 s[44:45], s[0:1], 112")
        if os.environ.get("PADAT"):
            a("s_memrealtime s[100:101]")
        a("s_getpc_b64 s[94:95]")
        a.label("L_pc")
        a("v_lshrrev_b32 v2, 6, v0")
        a("v_and_b32 v1, 63, v0")
        a("v_readfirstlane_b32 s%d, v2" % S_WAVE)
        a("s_and_b32 s%d, s2, 7" % S_XCD)
        a("s_lshr_b32 s%d, s2, 3" % S_IDX)
        a("s_lshl_b32 s%d, s%d, 5" % (S_OCT, S_XCD))
        a("s_add_u32 s%d, s%d, s%d" % (S_OCT, S_OCT, S_IDX))
        a("s_lshl_b32 s54, s%d, 4" % S_IDX)
        a("v_add_u32 v3, s54, v0")
        a("v_lshlrev_b32 v3, 7, v3")
        a("v_min_u32 v3, (L_codeend-L_pc-4), v3")
        a("v_cmp_gt_u32 vcc, 16, v0")
        a("s_and_saveexec_b64 s[54:55], vcc")
        lq = self.lab("cpf")
        a("s_cbranch_execz %s" % lq)
        a("global_load_dword v254, v3, s[94:95]")
        a.label(lq)
        a("s_mov_b64 exec, -1")
        a("s_mul_i32 s54, s%d, 80" % S_XCD)
        a("s_min_u32 s55, s%d, 26" % S_IDX)
        a("s_mul_i32 s55, s55, 3")
        a("s_add_u32 s%d, s54, s55" % S_CF)
        a("s_lshl_b32 s54, s%d, 3" % S_OCT)
        a("s_lshl_b32 s55, s%d, 1" % S_WAVE)
        a("s_add_u32 s54, s54, s55")
        a("v_lshrrev_b32 v9, 5, v1")
        a("v_add_u32 v4, s54, v9")
        a("v_mul_u32_u24 v4, 1280, v4")
        a("v_and_b32 v5, 31, v1")
        a("v_lshl_add_u32 v4, v5, 3, v4")
        a("v_add_u32 v9, s55, v9")
        a("v_mul_u32_u24 v8, %d, v9" % XRS)
        a("v_lshl_add_u32 v8, v5, 3, v8")
        a("v_add_u32 v8, %d, v8" % LDS_XR)
        a("s_min_u32 s56, s%d, 2" % S_WAVE)
        a("s_add_u32 s56, s56, s%d" % S_CF)
        a("s_min_u32 s56, s56, 639")
        a("s_lshl_b32 s57, s56, 8")
        a("v_lshl_add_u32 v6, v1, 2, s57")
        a("v_lshlrev_b32 v7, 1, v0")
        a("v_min_u32 v181, 159, v0")
        a("v_lshrrev_b32 v182, 2, v181")
        a("v_mul_u32_u24 v183, 13108, v182")
        a("v_lshrrev_b32 v183, 16, v183")
        a("v_mul_u32_u24 v183, 27, v183")
        a("v_add3_u32 v182, v182, v183, 27")
        a("v_and_b32 v181, 3, v181")
        a("v_lshlrev_b32 v181, 2, v181")
        a("v_lshl_add_u32 v233, v182, 7, v181")
        a("v_add_u32 v233, 0x8000, v233")
        a("s_lshr_b32 s63, s%d, %d" % (S_XCD, M24))
        a("s_mul_i32 s61, s63, 27")
        a("s_add_u32 s62, s61, 26")
        a("s_lshr_b32 s61, s61, %d" % (3 - M24))
        a("s_lshr_b32 s62, s62, %d" % (3 - M24))
        a("v_and_b32 v231, 7, v1")
        a("v_add_u32 v231, s61, v231")
        a("v_min_u32 v231, s62, v231")
        a("s_lshl_b32 s61, s%d, 9" % S_WAVE)
        a("s_lshl_b32 s62, s%d, 3" % S_IDX)
        a("s_add_u32 s61, s61, s62")
        a("v_lshrrev_b32 v232, 3, v1")
        a("v_add_u32 v232, s61, v232")
        a("v_mul_u32_u24 v232, 3456, v232")
        a("v_lshl_add_u32 v231, v231, 7, v232")
        a("s_mul_i32 s61, s%d, 448" % S_WAVE)
        a("s_min_u32 s61, s61, 1312")
        a("s_mul_i32 s62, s%d, 5" % S_IDX)
        a("s_add_u32 s61, s61, s62")
        a("s_lshr_b32 s63, s%d, %d" % (S_XCD, M2B))
        a("v_lshrrev_b32 v232, %d, v1" % (2 + M2B))
        a("v_min_u32 v232, 4, v232")
        a("v_add_u32 v232, s61, v232")
        a("v_lshlrev_b32 v232, 12, v232")
        a("v_and_b32 v183, %d, v1" % (7 if M2B else 3))
        a("v_lshl_add_u32 v232, v183, 7, v232")
        a("s_lshl_b32 s61, s63, %d" % (9 + M2B))
        a("v_add_u32 v232, s61, v232")
        if self.timing:
            a("v_mov_b32 v255, 0")
        a("s_waitcnt lgkmcnt(0)")
        self.stamp("start")
        if self.timing:
            a("s_memrealtime s[98:99]")
            a("s_waitcnt lgkmcnt(0)")
            a("v_writelane_b32 v255, s98, 62")
        for k in range(5):
            a("global_load_dwordx2 %s, v4, %s offset:%d %s" % (vp(10 + 2 * k), sp(P_X), 256 * k, NTX))
        a("global_load_ushort v228, v7, %s" % sp(P_DSK))
        a("global_load_ushort v229, v7, %s offset:512" % sp(P_DSK))
        a("v_min_u32 v7, 254, v7")
        a("global_load_ushort v230, v7, %s offset:1024" % sp(P_DSK))
        for n, p in enumerate((P_LOGA, P_AIM, P_CR, P_CI)):
            a("global_load_dword v%d, v6, %s %s" % (224 + n, sp(p), NTX))
        if 'a' in BGX:
            a("global_load_dword v254, v231, %s %s" % (sp(P_W1), NT))
        a("s_load_dword s%d, %s, 0" % (S_TAG, sp(P_WS)))
        a("s_lshl_b32 s57, s56, 1")
        a("s_and_b32 s57, s57, 0xfffffffc")
        a("s_load_dword s59, %s, s57" % sp(P_LDT))
        for p, off in ((P_YT, WS_YT), (P_HP, WS_HP), (P_G, WS_G), (P_FL, WS_FL), (P_UT, WS_UT), (P_H2, WS_H2)):
            a("s_add_u32 s%d, s%d, 0x%x" % (p, P_WS, off))
            a("s_addc_u32 s%d, s%d, 0" % (p + 1, P_WS + 1))
        if int(os.environ.get("FLW", "1")):
            a("s_lshl_b32 s54, s%d, 7" % S_OCT)
            a("v_and_b32 v2, 7, v1")
            a("v_lshlrev_b32 v2, 15, v2")
            a("v_add_u32 v2, s54, v2")
            a("s_mov_b64 exec, 0x3f")
            a("global_load_dword v254, v2, %s sc1" % sp(P_FL))
            a("s_mov_b64 exec, -1")
        if M24:
            a("s_lshr_b32 s60, s%d, 1" % S_XCD)
            a("s_and_b32 s61, s%d, 1" % S_XCD)
            a("s_lshl_b32 s61, s61, 2")
            a("s_mul_i32 s54, s60, 27")
            a("s_min_u32 s55, s%d, 26" % S_IDX)
            a("s_add_u32 s54, s54, s55")
            a("s_lshr_b32 s%d, s54, 2" % S_FB)
            a("s_and_b32 s54, s54, 3")
            a("s_add_u32 s%d, s54, s61" % S_DB)
            if M2B:
                a("s_lshl_b32 s54, s60, 3")
                a("s_lshr_b32 s55, s%d, 2" % S_IDX)
                a("s_add_u32 s%d, s54, s55" % S_SB)
                a("s_and_b32 s54, s%d, 3" % S_IDX)
                a("s_add_u32 s%d, s54, s61" % S_DB2)
            else:
                a("s_lshl_b32 s54, s%d, 2" % S_XCD)
                a("s_lshr_b32 s55, s%d, 3" % S_IDX)
                a("s_add_u32 s%d, s54, s55" % S_SB)
                a("s_and_b32 s%d, s%d, 7" % (S_DB2, S_IDX))
        else:
            a("s_mul_i32 s54, s%d, 27" % S_XCD)
            a("s_min_u32 s55, s%d, 26" % S_IDX)
            a("s_add_u32 s54, s54, s55")
            a("s_lshr_b32 s%d, s54, 3" % S_FB)
            a("s_and_b32 s%d, s54, 7" % S_DB)
            a("s_lshl_b32 s54, s%d, 2" % S_XCD)
            a("s_lshr_b32 s55, s%d, 3" % S_IDX)
            a("s_add_u32 s%d, s54, s55" % S_SB)
            a("s_and_b32 s%d, s%d, 7" % (S_DB2, S_IDX))
        a("s_mov_b32 s%d, 1" % S_G1)
        a("s_cmp_ge_u32 s%d, 27" % S_IDX)
        a("s_cmov_b32 s%d, 0" % S_G1)
        a("s_mul_i32 s%d, s%d, 14" % (S_K2, S_WAVE))
        a("s_lshr_b32 s%d, s%d, 1" % (S_SHORT, S_WAVE))
        a("s_cmp_eq_u32 s%d, 3" % S_WAVE)
        a("s_cmov_b32 s%d, 41" % S_K2)

    PARK = [194, 195, 196, 197, 198, 199, 242, 243, 244, 245, 246]
    def early_setup(self):
        a = self.a
        a("v_mov_b32 v184, v8")
        a("v_mov_b32 v185, v9")
        self.conv_setup()
        for n, r in enumerate(self.PARK):
            a("v_accvgpr_write_b32 a%d, v%d" % (240 + n, r))
        self.phase4_addr()
        for n in range(11):
            a("v_accvgpr_write_b32 a%d, v%d" % (224 + n, 170 + n))
        a("v_mov_b32 v8, v184")
        a("v_mov_b32 v9, v185")

    def unpark(self):
        a = self.a
        for n, r in enumerate(self.PARK):
            a("v_accvgpr_read_b32 v%d, a%d" % (r, 240 + n))

    def phase1(self):
        a = self.a
        self.early_setup()
        a("v_mov_b32 v24, 0")
        a("v_mov_b32 v25, 0")
        a("v_mov_b32 v26, 0x3f803f80")
        a("v_bfe_u32 v27, v1, 2, 2")
        a("v_mul_u32_u24 v27, %d, v27" % XRS)
        a("v_lshrrev_b32 v28, 4, v0")
        a("v_lshl_add_u32 v27, v28, 5, v27")
        a("v_and_b32 v28, 3, v1")
        a("v_lshl_add_u32 v27, v28, 3, v27")
        a("v_add_u32 v27, %d, v27" % LDS_XR)
        a("v_lshlrev_b32 v29, 2, v9")
        a("v_add_u32 v29, %d, v29" % LDS_SR)
        a("v_mov_b32 v30, %d" % LDS_SR)
        a("s_mul_i32 s58, s%d, 10240" % S_OCT)
        a("v_lshl_add_u32 v2, v0, 4, s58")
        a("v_add_u32 v3, 4096, v2")
        a("v_add_u32 v4, 8192, v2")
        a("s_waitcnt vmcnt(%d) lgkmcnt(0)" % (7 + int(os.environ.get("FLW", "1")) + ("a" in BGX)))
        for k in range(5):
            a("ds_write_b64 v8, %s offset:%d" % (vp(10 + 2 * k), 256 * k))
        for k in range(10):
            a("v_dot2_f32_bf16 v24, v%d, v26, v24" % (10 + k))
            a("v_dot2_f32_bf16 v25, v%d, v%d, v25" % (10 + k, 10 + k))
        a("s_mul_i32 s%d, s%d, 1664525" % (S_TAG, S_TAG))
        a("s_add_u32 s%d, s%d, 1013904223" % (S_TAG, S_TAG))
        a("s_nop 1")
        self.rowreduce16([24, 25])
        a("v_mov_b32 v31, v24")
        a("v_mov_b32 v32, v25")
        a("v_permlane16_swap_b32 v24, v31")
        a("v_permlane16_swap_b32 v25, v32")
        a("v_add_f32 v24, v24, v31")
        a("v_add_f32 v25, v25, v32")
        a("v_mul_f32 v24, %s, v24" % f32(1.0 / 640))
        a("v_mul_f32 v25, %s, v25" % f32(1.0 / 640))
        a("v_fma_f32 v25, -v24, v24, v25")
        a("v_max_f32 v25, 0, v25")
        self.bf16_round(25, 25)
        self.bf16_round(24, 24)
        a("v_add_f32 v25, %s, v25" % f32(1e-5))
        self.bf16_round(25, 25)
        a("v_sqrt_f32 v25, v25")
        self.bf16_round(25, 25)
        a("v_rcp_f32 v25, v25")
        a("ds_write_b32 v29, v24")
        a("ds_write_b32 v29, v25 offset:32")
        a("s_waitcnt lgkmcnt(0)")
        a("s_barrier")
        self.stamp("stats")
        for j in range(3):
            for hh in range(2):
                a("ds_read_b64_tr_b16 %s, v27 offset:%d" % (vp(XG + 4 * j + 2 * hh), 512 * j + 4 * XRS * hh))
        for q in range(4):
            a("ds_read_b128 %s, v30 offset:%d" % (v4(32 + 4 * q), 16 * q))
        W = lambda n: 48 + 2 * n
        it = [(j, p) for j in range(3) for p in range(4)]
        def unpack(srcf):
            for n in range(12):
                a("v_lshlrev_b32 v%d, 16, v%d" % (W(n), srcf(n)))
                a("v_and_b32 v%d, 0xffff0000, v%d" % (W(n) + 1, srcf(n)))
        def cvt(dstf, op="v_cvt_pk_bf16_f32"):
            for n in range(12):
                a("%s v%d, v%d, v%d" % (op, dstf(n), W(n), W(n) + 1))
        a("s_waitcnt lgkmcnt(4)")
        unpack(lambda n: XG + n)
        a("s_waitcnt lgkmcnt(0)")
        for n, (j, p) in enumerate(it):
            a("v_pk_add_f32 %s, %s, %s neg_lo:[0,1] neg_hi:[0,1]" % (vp(W(n)), vp(W(n)), vp(32 + 2 * p)))
        cvt(lambda n: 72 + n)
        unpack(lambda n: 72 + n)
        for n, (j, p) in enumerate(it):
            a("v_pk_mul_f32 %s, %s, %s" % (vp(W(n)), vp(W(n)), vp(40 + 2 * p)))
        cvt(lambda n: 72 + n)
        unpack(lambda n: 72 + n)
        cvt(lambda n: 84 + n, "v_cvt_pk_f16_f32")
        a("s_waitcnt vmcnt(%d)" % (int(os.environ.get("FLW", "1")) + ("a" in BGX)))
        a("global_store_dwordx4 v2, v[84:87], %s sc1" % sp(P_UT))
        a("global_store_dwordx4 v3, v[88:91], %s sc1" % sp(P_UT))
        l = self.lab("ut3")
        a("s_cmp_ge_u32 s%d, 2" % S_WAVE)
        a("s_cbranch_scc1 %s" % l)
        a("global_store_dwordx4 v4, v[92:95], %s sc1" % sp(P_UT))
        a.label(l)
        for j in range(3):
            a("v_lshlrev_b32 v%d, 16, v%d" % (100 + 2 * j, 228 + j))
        for n, (j, p) in enumerate(it):
            a("v_pk_mul_f32 %s, %s, %s op_sel_hi:[1,0]" % (vp(W(n)), vp(W(n)), vp(100 + 2 * j)))
        cvt(lambda n: TG + n)
        self.stamp("utstore")

    def wl_setup(self, ptr, rs, row0_sgpr, col_sgpr, stage_shift, tmp=2):
        a = self.a
        T2, T3, T4 = "v%d" % tmp, "v%d" % (tmp + 1), "v%d" % (tmp + 2)
        aa = lambda x: a(x.replace("V2", T2).replace("V3", T3).replace("V4", T4))
        aa("v_lshrrev_b32 V2, 3, v1")
        aa("v_and_b32 V3, 7, v1")
        aa("v_and_b32 V4, 2, V2")
        aa("v_xor_b32 V3, V3, V4")
        aa("v_mul_u32_u24 V2, %d, V2" % rs)
        aa("v_lshl_add_u32 v%d, V3, 4, V2" % WD)
        aa("v_xor_b32 V3, 4, V3")
        aa("v_lshl_add_u32 v%d, V3, 4, V2" % (WD + 1))
        a("v_add_u32 v%d, %d, v%d" % (WD + 1, 8 * rs - 1024, WD + 1))
        a("v_add_u32 v%d, %d, v%d" % (WD + 2, 16 * rs - 2048, WD))
        a("v_add_u32 v%d, %d, v%d" % (WD + 3, 16 * rs - 2048, WD + 1))
        a("s_mul_i32 s54, s%d, %d" % (row0_sgpr, rs))
        a("s_add_u32 s54, s54, s%d" % col_sgpr)
        a("s_add_u32 s80, s%d, s54" % ptr)
        a("s_addc_u32 s81, s%d, 0" % (ptr + 1))
        if stage_shift is not None:
            a("v_lshrrev_b32 v2, 4, v1")
            a("v_bfe_u32 v3, v1, 2, 2")
            a("v_lshl_add_u32 v4, v2, 3, v3")
            a("v_lshlrev_b32 v4, 7, v4")
            a("v_and_b32 v5, 3, v1")
            a("v_lshl_add_u32 v4, v5, 3, v4")
            a("s_mul_i32 s54, s%d, %d" % (S_WAVE, stage_shift))
            a("v_add_u32 v4, s54, v4")
            a("v_lshrrev_b32 v3, 1, v3")
            a("v_and_b32 v2, 1, v2")
            a("v_lshl_add_u32 v2, v2, 1, v3")
            for nt in range(4):
                a("s_add_u32 s54, s%d, %d" % (S_WAVE, nt))
                a("s_and_b32 s54, s54, 3")
                a("v_xor_b32 v3, s54, v2")
                a("v_lshl_add_u32 v%d, v3, 5, v4" % (WT + nt))

    def wl_dma_groups(self, rs, nks, stage_shift, slot0=0, tag="wd"):
        G = []
        for s in range(nks):
            g = []
            if s == 0:
                g.append("s_mul_i32 s82, s%d, %d" % (S_WAVE, stage_shift))
                if slot0:
                    g.append("s_add_u32 s82, s82, %d" % (slot0))
            g.append("s_mov_b32 m0, s82")
            g.append("s_add_u32 s82, s82, 4096")
            g.append("global_load_lds_dwordx4 v%d, s[80:81]" % WD)
            g.append("global_load_lds_dwordx4 v%d, s[80:81] offset:1024" % (WD + 1))
            G.append(g)
            G.append(["global_load_lds_dwordx4 v%d, s[80:81] offset:2048" % (WD + 2),
                      "global_load_lds_dwordx4 v%d, s[80:81] offset:3072 ; #%s%d" % (WD + 3, tag, s),
                      "s_add_u32 s80, s80, %d" % (32 * rs), "s_addc_u32 s81, s81, 0"])
        return G

    def wl_dma_loop(self, rs, count, stage_shift, slot0=0):
        a = self.a
        a("s_mul_i32 s82, s%d, %d" % (S_WAVE, stage_shift))
        if slot0:
            a("s_add_u32 s82, s82, %d" % (slot0))
        a("s_mov_b32 s83, %s" % str(count))
        lp = self.lab("dma")
        a.label(lp)
        a("s_mov_b32 m0, s82 ; #loop")
        a("s_add_u32 s82, s82, 4096")
        for k in range(4):
            a("global_load_lds_dwordx4 v%d, s[80:81] offset:%d" % (WD + k, 1024 * k))
        a("s_add_u32 s80, s80, %d" % (32 * rs))
        a("s_addc_u32 s81, s81, 0")
        a("s_sub_u32 s83, s83, 1")
        a("s_cmp_gt_i32 s83, 0")
        a("s_cbranch_scc1 %s" % lp)

    def wl_tr(self, ks0, nks, slot0=0):
        return ["ds_read_b64_tr_b16 %s, v%d offset:%d" % (a2(((ks0 + s) * 4 + nt) * 4 + 2 * hf), WT + nt, slot0 + s * 4096 + hf * 512)
                for s in range(nks) for nt in range(4) for hf in range(2)]

    def phase2(self):
        a = self.a
        lW3 = self.lab("w3")
        lKd = self.lab("kdone")
        st0 = self.nstamp
        a("s_cmp_ge_u32 s%d, 27" % S_IDX)
        a("s_cbranch_scc1 L_helper")
        a("s_cmp_eq_u32 s%d, 3" % S_WAVE)
        a("s_cbranch_scc1 %s" % lW3)
        a("s_and_b32 s57, s56, 1")
        a("s_lshl_b32 s57, s57, 4")
        a("s_lshr_b32 s59, s59, s57")
        a("s_lshl_b32 s59, s59, 16")
        a("v_mov_b32 v242, %s" % f32(LOG2E))
        a("v_mul_f32 v242, s59, v242")
        a("v_exp_f32 v242, v242")
        a("v_and_b32 v243, 0x7fff7fff, v226")
        a("v_and_b32 v244, 0x7fff7fff, v227")
        a("v_pk_max_u16 v243, v243, v244")
        a("v_lshlrev_b32 v244, 16, v243")
        a("v_max_u32 v243, v243, v244")
        self.bf16_round(242, 242)
        a("v_lshlrev_b32 v246, 16, v224")
        a("v_and_b32 v250, 0xffff0000, v224")
        fill = [["v_mul_f32 v246, %s, v246" % f32(LOG2E), "v_mul_f32 v250, %s, v250" % f32(LOG2E)],
                ["v_exp_f32 v246, v246", "v_exp_f32 v250, v250"],
                ["v_lshlrev_b32 v247, 16, v225", "v_and_b32 v251, 0xffff0000, v225"],
                ["v_mul_f32 v247, v247, v242", "v_mul_f32 v251, v251, v242"]]
        for mode, fl in zip(("quad_perm:[1,0,3,2]", "quad_perm:[2,3,0,1]", "row_half_mirror", "row_mirror"), fill):
            a("v_max_u32_dpp v243, v243, v243 %s row_mask:0xf bank_mask:0xf" % mode)
            for t in fl:
                a(t)
        for sw, r, src in (("v_permlane16_swap_b32", 248, 226), ("v_permlane32_swap_b32", 249, 227)):
            a("v_mov_b32 v244, v243")
            a("v_lshlrev_b32 v%d, 16, v%d" % (r, src))
            a("v_and_b32 v%d, 0xffff0000, v%d" % (r + 4, src))
            a("%s v243, v244" % sw)
            a("v_max_u32 v243, v243, v244")
        self.bf16_round(246, 246)
        self.bf16_round(250, 250)
        a("v_mul_f32 v247, %s, v247" % f32(INV2PI))
        a("v_mul_f32 v251, %s, v251" % f32(INV2PI))
        a("v_mul_f32 v246, v246, v242")
        a("v_mul_f32 v250, v250, v242")
        a("v_mul_f32 v246, %s, v246" % f32(-LOG2E))
        a("v_mul_f32 v250, %s, v250" % f32(-LOG2E))
        SA, SB = 10, 100
        E = lambda S, j: S + 2 * j
        T = lambda S, j: S + 34 + 2 * j
        GK = lambda S, k: S + 66 + 2 * {0: 0, 1: 1, 2: 2, 8: 3, 9: 4, 10: 5, 11: 6}[k]
        self.cexps([(E(SA, 1), 3, 246, 247), (E(SB, 1), 3, 250, 251), (GK(SA, 0), 0, 246, 247), (GK(SB, 0), 0, 250, 251),
                    (GK(SA, 8), 8, 246, 247), (GK(SB, 8), 8, 250, 251)], 180)
        a("v_and_b32 v243, 0x7f800000, v243")
        a("v_max_u32 v243, 0x00800000, v243")
        a("v_min_u32 v243, 0x7e800000, v243")
        a("v_sub_u32 v244, 0x7f800000, v243")
        a("v_mul_f32 v245, v243, v242")
        for r in (248, 249, 252, 253):
            a("v_mul_f32 v%d, v%d, v244" % (r, r))
        a("s_lshl_b32 s54, s%d, 2" % S_WAVE)
        a("s_add_u32 s54, s54, %d" % LDS_SC)
        a("v_mov_b32 v5, s54")
        a("ds_write_b32 v5, v245")
        a("s_mul_i32 s60, s%d, %d" % (S_WAVE, ECH))
        a("v_lshl_add_u32 v6, v1, 3, s60")
        FLP = int(os.environ.get("FLP", "1"))
        if FLP == 0:
            self.flag_store(0)
            self.pf_w1()
            self.stamp("flag")
        mark = len(a.ins)
        tmpn = [0]
        def st(off, ra, rb, neg=False):
            t = 188 + 2 * (tmpn[0] % 6)
            tmpn[0] += 1
            ng = "-" if neg else ""
            return ["v_cvt_pk_f16_f32 v%d, v%d, %sv%d" % (t, ra, ng, ra + 1),
                    "v_cvt_pk_f16_f32 v%d, v%d, %sv%d" % (t + 1, rb, ng, rb + 1),
                    "ds_write_b64 v6, %s offset:%d" % (vp(t), off)]
        sq = lambda d, x: (d, x, x)
        SS = (SA, SB)
        R = lambda S, r: ((248 if S == SA else 252) if r == 0 else S + 2 * r)
        a("v_mov_b32 v196, 0x00003c00")
        a("v_mov_b32 v197, 0x00003c00")
        a("ds_write_b64 v6, v[196:197] offset:%d" % (LDS_E + E1SZ))
        self.cmuls([sq(E(S, 2), E(S, 1)) for S in SS] + [sq(GK(S, 1), GK(S, 0)) for S in SS] + [sq(GK(S, 9), GK(S, 8)) for S in SS])
        self.cmuls([sq(E(S, 4), E(S, 2)) for S in SS] + [(E(S, 3), E(S, 1), E(S, 2)) for S in SS] +
                   [sq(GK(S, 2), GK(S, 1)) for S in SS] + [sq(GK(S, 10), GK(S, 9)) for S in SS])
        if FLP == 1:
            self.flag_store(0)
            self.pf_w1()
            self.stamp("flag")
        m2 = len(a.ins)
        self.cmuls([sq(E(S, 8), E(S, 4)) for S in SS] + [(E(S, 4 + j), E(S, j), E(S, 4)) for j in (1, 2, 3) for S in SS] +
                   [sq(GK(S, 11), GK(S, 10)) for S in SS])
        self.weave(m2, [st(LDS_E + E1SZ + j * ESTR, E(SA, j), E(SB, j)) for j in (1, 2, 3, 4)] + [st(LDS_E, R(SA, 0), R(SB, 0), True)])
        if FLP == 2:
            self.flag_store(0)
            self.pf_w1()
            self.stamp("flag")
        m2 = len(a.ins)
        self.cmuls([sq(E(S, 16), E(S, 8)) for S in SS] + [(E(S, 8 + j), E(S, j), E(S, 8)) for j in range(1, 8) for S in SS])
        self.weave(m2, [st(LDS_E + E1SZ + j * ESTR, E(SA, j), E(SB, j)) for j in (5, 6, 7, 8)])
        m2 = len(a.ins)
        self.cmuls([(T(S, j), E(S, j), E(S, 16)) for j in range(1, 16) for S in SS])
        self.weave(m2, [st(LDS_E + E1SZ + j * ESTR, E(SA, j), E(SB, j)) for j in range(9, 17)])
        R = lambda S, r: ((248 if S == SA else 252) if r == 0 else (S + 2 * r if r <= 16 else S + 80 + 2 * (r - 17)))
        l1 = [(1, 0, 0), (2, 0, 1), (4, 0, 2), (8, 0, 8), (12, 0, 9), (16, 0, 10), (20, 0, 11)]
        l2 = [(3, 1, 1), (5, 1, 2), (6, 2, 2), (9, 2, 8), (10, 4, 8), (13, 4, 9), (14, 8, 9), (17, 8, 10), (18, 12, 10)]
        l3 = [(7, 3, 2), (11, 6, 8), (15, 10, 9), (19, 14, 10)]
        tst = [st(LDS_E + E1SZ + (16 + j) * ESTR, T(SA, j), T(SB, j)) for j in range(1, 16)]
        m2 = len(a.ins)
        self.cmuls([(R(S, d), R(S, x), GK(S, k)) for d, x, k in l1 for S in SS])
        self.weave(m2, tst[:7])
        m2 = len(a.ins)
        self.cmuls([(R(S, d), R(S, x), GK(S, k)) for d, x, k in l2 for S in SS])
        self.weave(m2, tst[7:])
        m2 = len(a.ins)
        self.cmuls([(R(S, d), R(S, x), GK(S, k)) for d, x, k in l3 for S in SS])
        self.weave(m2, [st(LDS_E + d * ESTR, R(SA, d), R(SB, d), True) for d, x, k in l1])
        for d, x, k in l2 + l3:
            for t in st(LDS_E + d * ESTR, R(SA, d), R(SB, d), True):
                a(t)
        self.stamp("Edone")
        a("v_and_b32 v2, 31, v1")
        a("v_lshrrev_b32 v3, 5, v1")
        a("v_mul_u32_u24 v4, %d, v2" % ESTR)
        a("v_lshl_add_u32 v4, v3, 4, v4")
        a("v_add_u32 v4, s60, v4")
        for ks in range(16):
            a("ds_read_b128 %s, v4 offset:%d" % (v4(32 + 8 * ks), LDS_E + ks * 32))
            a("ds_read_b128 %s, v4 offset:%d" % (v4(36 + 8 * ks), LDS_E + E1SZ + ks * 32))
            if ks >= 6:
                k = ks - 6
                a("s_waitcnt lgkmcnt(12)")
                a("v_mfma_f32_32x32x16_f16 v[8:23], %s, %s, %s" % (v4(32 + 8 * k), v4(36 + 8 * k), "0" if k == 0 else "v[8:23]"))
        a("s_mul_i32 s55, s%d, %d" % (S_WAVE, CCH))
        a("s_add_u32 s55, s55, %d" % (LDS_C + 3 * CSTR))
        a("v_lshlrev_b32 v5, 4, v2")
        a("v_sub_u32 v5, s55, v5")
        a("v_lshlrev_b32 v6, 3, v3")
        a("v_sub_u32 v6, v5, v6")
        a("v_lshl_add_u32 v7, v1, 4, s55")
        for r in range(4):
            a("v_mov_b32 v%d, 0" % (164 + r))
        for k in range(10, 16):
            a("s_waitcnt lgkmcnt(%d)" % (2 * (15 - k)))
            a("v_mfma_f32_32x32x16_f16 v[8:23], %s, %s, v[8:23]" % (v4(32 + 8 * k), v4(36 + 8 * k)))
        a("v_cmp_gt_u32 vcc, 34, v1")
        a("s_and_saveexec_b64 s[62:63], vcc")
        a("ds_write_b128 v7, v[164:167] offset:4096")
        a("s_mov_b64 exec, -1")
        a("v_min_u32 v168, 23, v1")
        a("v_lshl_add_u32 v168, v168, 4, s55")
        a("v_add_u32 v168, 4096, v168")
        a("v_subrev_u32 v169, %d, v7" % (3 * CSTR))
        a("v_subrev_u32 v170, %d, v168" % (3 * CSTR))
        for i in range(4):
            a("v_cvt_pk_f16_f32 v%d, v%d, v%d" % (24 + 2 * i, 16 + i, 16 + i))
            a("v_cvt_pk_f16_f32 v%d, v%d, v%d" % (25 + 2 * i, 16 + i, 16 + i))
        for d, x, y in ((32, 13, 13), (34, 13, 12), (35, 12, 12), (36, 15, 15), (38, 15, 14), (39, 14, 14), (40, 14, 13),
                        (41, 12, 12), (42, 11, 10), (43, 9, 8)):
            a("v_cvt_pk_f16_f32 v%d, v%d, v%d" % (d, x, y))
        a("s_mov_b32 exec_hi, 0")
        for i in range(4):
            P = 1020 - 256 * i
            a("ds_write_b64 v5, %s offset:%d" % (vp(24 + 2 * i), 2 * P))
            a("ds_write_b64 v5, %s offset:%d" % (vp(24 + 2 * i), 2 * P + 8))
        a("s_mov_b32 exec_lo, 0x55555555")
        for i in range(4):
            P = 1019 - 256 * i
            a("ds_write_b16 v5, v%d offset:%d" % (24 + 2 * i, 2 * P))
        a("s_mov_b32 exec_lo, 0")
        a("s_mov_b32 exec_hi, 1")
        a("ds_write_b64 v5, %s" % vp(24))
        a("s_mov_b32 exec_hi, -1")
        for i, (bb, ba, aa) in enumerate(((32, 34, 35), (36, 38, 39))):
            P = 2042 - 512 - 256 * i
            a("ds_write_b32 v5, v%d offset:%d" % (bb, 2 * P))
            a("ds_write_b64 v5, %s offset:%d" % (vp(ba), 2 * P + 4))
            a("ds_write_b32 v5, v%d offset:%d" % (aa, 2 * P + 12))
        a("s_mov_b32 exec_lo, -1")
        a("s_mov_b32 exec_hi, 0")
        P = 2041 - 256
        a("ds_write_b16 v5, v36 offset:%d" % (2 * P))
        a("ds_write_b32 v5, v39 offset:%d" % (2 * P + 2))
        a("ds_write_b64 v5, %s offset:%d" % (vp(40), 2 * P + 6))
        a("ds_write_b16 v5, v35 offset:%d" % (2 * P + 14))
        a("s_mov_b64 exec, -1")
        a("ds_write_b64 v6, %s offset:%d" % (vp(42), 2 * 2044))
        self.stamp("Kexp")
        for rnd in range(5):
            b = 44 + 24 * rnd
            src = "v7 offset:%d" % (1024 * rnd) if rnd < 4 else "v168"
            src2 = "v7 offset:%d" % (1024 * rnd + 16) if rnd < 4 else "v168 offset:16"
            a("ds_read_b128 %s, %s" % (v4(b), src))
            a("ds_read_b64 %s, %s" % (vp(b + 4), src2))
        for rnd in range(5):
            b = 44 + 24 * rnd
            a("s_waitcnt lgkmcnt(%d)" % (2 * (4 - rnd) + 3 * rnd))
            for k in range(4):
                a("v_alignbit_b32 v%d, v%d, v%d, 16" % (b + 8 + k, b + k + 1, b + k))
            ad, o = ("v169", 1024 * rnd) if rnd < 4 else ("v170", 0)
            a("ds_write_b128 %s, %s offset:%d" % (ad, v4(b + 8), o + 2 * CSTR))
            for k in range(4):
                a("v_mov_b32 v%d, v%d" % (b + 12 + k, b + k + 1))
            a("ds_write_b128 %s, %s offset:%d" % (ad, v4(b + 12), o + 1 * CSTR))
            for k in range(4):
                a("v_alignbit_b32 v%d, v%d, v%d, 16" % (b + 16 + k, b + k + 2, b + k + 1))
            a("ds_write_b128 %s, %s offset:%d" % (ad, v4(b + 16), o))
        a("s_branch %s" % lKd)
        a.label(lW3)
        self.nstamp = st0
        self.flag_store(0)
        self.pf_w1()
        self.stamp("flag")
        a("s_lshl_b32 s54, s%d, 4" % S_CF)
        for j in range(12):
            a("v_add_u32 v7, %d, v1" % (64 * j))
            a("v_mul_u32_u24 v8, 21846, v7")
            a("v_lshrrev_b32 v8, 16, v8")
            a("v_mul_u32_u24 v9, 3, v8")
            a("v_sub_u32 v9, v7, v9")
            a("v_mul_u32_u24 v%d, 10240, v8" % (100 + j))
            a("v_lshl_add_u32 v%d, v9, 4, v%d" % (100 + j, 100 + j))
            a("v_add_u32 v%d, s54, v%d" % (100 + j, 100 + j))
            a("v_mul_u32_u24 v9, %d, v9" % USTR)
            a("v_lshl_add_u32 v%d, v8, 4, v9" % (112 + j))
            a("v_add_u32 v%d, %d, v%d" % (112 + j, LDS_U + 128, 112 + j))
        a("v_lshlrev_b32 v10, 7, v1")
        for k in range(1, 4):
            a("v_add_u32 v%d, %d, v10" % (10 + k, 8192 * k))
        a("s_waitcnt vmcnt(0)")
        a("s_sleep %d" % int(os.environ.get("SL1", "8")))
        sv = self.nstamp; self.nstamp = 30
        self.stamp("poll0")
        self.nstamp = sv
        a("s_mov_b32 s69, 0")
        lp, lok = self.lab("flpoll"), self.lab("flok")
        a.label(lp)
        for k in range(4):
            a("global_load_dwordx4 %s, v%d, %s sc1" % (v4(16 + 4 * k), 10 + k, sp(P_FL)))
        a("s_waitcnt vmcnt(0)")
        a("v_xor_b32 v6, s%d, v16" % S_TAG)
        for r in range(17, 32):
            a("v_xor_b32 v7, s%d, v%d" % (S_TAG, r))
            a("v_or_b32 v6, v6, v7")
        a("v_cmp_ne_u32 vcc, 0, v6")
        a("s_cbranch_vccz %s" % lok)
        self.spin_tail(lp, lok, 4)
        a.label(lok)
        if self.timing:
            a("v_writelane_b32 v255, s69, 32")
        self.stamp("flok")
        for j in range(12):
            a("global_load_dwordx4 %s, v%d, %s sc1" % (v4(32 + 4 * j), 100 + j, sp(P_UT)))
        a("v_mov_b32 v6, 0")
        a("v_and_b32 v5, 31, v1")
        a("v_lshlrev_b32 v5, 2, v5")
        a("v_add_u32 v5, %d, v5" % LDS_U)
        for pos in range(3):
            a("ds_write_b32 v5, v6 offset:%d" % (pos * USTR))
        self.unpark()
        for j in range(12):
            a("s_waitcnt vmcnt(%d)" % (11 - j))
            a("ds_write_b128 v%d, %s" % (112 + j, v4(32 + 4 * j)))
        self.stamp("gath")
        lK2 = self.lab("kd2")
        a("s_branch %s" % lK2)
        a.label(lKd)
        self.unpark()
        a.label(lK2)
        a("s_waitcnt lgkmcnt(0)")
        self.stamp("prebar")
        a("s_barrier")
        self.stamp("kbar")

    def conv_setup(self):
        a = self.a
        a("s_lshl_b32 s90, s%d, 9" % S_WAVE)
        a("s_lshl_b32 s91, s%d, 7" % S_FB)
        self.wl_setup(P_W1, 3456, 90, 91, 16384)
        a("v_and_b32 v2, 15, v1")
        a("v_lshrrev_b32 v3, 4, v1")
        a("v_and_b32 v4, 3, v1")
        a("v_bfe_u32 v5, v1, 2, 2")
        a("v_mul_u32_u24 v6, %d, v4" % CSTR)
        a("v_lshl_add_u32 v6, v3, 4, v6")
        a("v_lshlrev_b32 v7, 7, v5")
        a("v_sub_u32 v6, v6, v7")
        a("v_add_u32 v6, %d, v6" % (LDS_C + 832))
        a("v_lshlrev_b32 v7, 3, v2")
        a("v_lshl_add_u32 v7, v3, 4, v7")
        a("v_add_u32 v7, %d, v7" % (LDS_U + 456))
        for p in range(3):
            a("s_mul_i32 s54, s%d, 6" % S_WAVE)
            a("s_add_u32 s54, s54, %d" % (2 * p + 1))
            a("s_lshr_b32 s55, s54, 3")
            a("s_and_b32 s54, s54, 7")
            a("s_lshl_b32 s54, s54, 6")
            a("s_mul_i32 s60, s55, %d" % CCH)
            a("s_sub_u32 s60, s60, s54")
            a("v_add_u32 v%d, s60, v6" % (194 + 2 * p))
            a("s_mul_i32 s60, s55, %d" % USTR)
            a("s_sub_u32 s60, s60, s54")
            a("v_add_u32 v%d, s60, v7" % (195 + 2 * p))
        a("v_lshrrev_b32 v2, 1, v1")
        a("v_mul_u32_u24 v2, 48, v2")
        a("v_and_b32 v3, 1, v1")
        a("v_mul_u32_u24 v3, %d, v3" % OHS)
        a("s_min_u32 s54, s%d, 2" % S_WAVE)
        a("s_lshl_b32 s54, s54, 4")
        a("s_add_u32 s54, s54, %d" % LDS_OWN)
        a("s_add_u32 s55, s54, %d" % (2 * OHS))
        a("s_cmp_eq_u32 s%d, 3" % S_WAVE)
        a("s_cmov_b32 s54, s55")
        a("v_add3_u32 v242, v2, v3, s54")
        a("s_sub_u32 s55, s55, 16")
        a("v_add3_u32 v243, v2, v3, s55")
        for j in range(3):
            a("v_add_u32 v2, %d, v0" % (256 * j))
            a("v_mul_u32_u24 v3, 21846, v2")
            a("v_lshrrev_b32 v3, 16, v3")
            a("v_mul_u32_u24 v4, 3, v3")
            a("v_sub_u32 v2, v2, v4")
            a("v_lshlrev_b32 v2, 2, v2")
            a("v_add_u32 v%d, %d, v2" % (244 + j, LDS_SC))

    def w2a_addr(self):
        a = self.a
        a("s_lshl_b32 s64, s%d, 5" % S_K2)
        a("s_lshl_b32 s65, s%d, 3" % S_IDX)
        a("s_add_u32 s64, s64, s65")
        a("v_lshrrev_b32 v2, 3, v1")
        a("v_add_u32 v2, s64, v2")
        a("s_lshr_b32 s65, s%d, 1" % S_XCD)
        a("s_lshl_b32 s65, s65, 10")
        a("v_and_b32 v4, 7, v1")
        a("v_lshl_add_u32 v4, v4, 7, s65")
        a("v_lshl_add_u32 v193, v2, 12, v4")

    def cv_loads(self, setn, na, vA, vB, ex):
        Ab, Bb = ((64, 96), (128, 160))[setn]
        L = []
        for n in range(na):
            L.append("ds_read_b128 %s, v%d offset:%d" % (v4(Ab + 4 * n), vA, 512 * (7 - n) + ex))
            L.append("ds_read_b64 %s, v%d offset:%d" % (vp(Bb + 4 * n), vB, 512 * n + ex))
            L.append("ds_read_b64 %s, v%d offset:%d" % (vp(Bb + 4 * n + 2), vB, 512 * n + ex + 8))
        return L

    def cv_iter(self, setn, chunks, acc, first, bg, hi=0.85):
        a = self.a
        Ab, Bb = ((64, 96), (128, 160))[setn]
        a("s_waitcnt lgkmcnt(0)")
        mark = len(a.ins)
        seen = set()
        for aa in range(max(chunks) + 1):
            for q in sorted(chunks, reverse=True):
                if q >= aa:
                    c = v4(acc[q])
                    src = "0" if (first and q not in seen) else c
                    seen.add(q)
                    a("v_mfma_f32_16x16x32_f16 %s, %s, %s, %s" % (c, v4(Ab + 4 * aa), v4(Bb + 4 * (q - aa)), src))
        if bg:
            self.weave(mark + 1, bg, 0.0, hi)

    def phase3(self):
        a = self.a
        one = lambda L: [[x] for x in L]
        def mix(L1, L2):
            if not L2: return L1
            out = []
            i = j = 0
            while i < len(L1) or j < len(L2):
                if j >= len(L2) or (i < len(L1) and i * len(L2) <= j * len(L1)):
                    out.append(L1[i]); i += 1
                else:
                    out.append(L2[j]); j += 1
            return out
        acc = {q: 16 + 4 * q for q in range(8)}
        dmaA = self.wl_dma_groups(3456, 4, 16384)
        dmaB = self.wl_dma_groups(3456, 4, 16384)
        def lds(it):
            p = it >> 1
            return one(self.cv_loads(it & 1, 8, 194 + 2 * p, 195 + 2 * p, 64 * (1 - (it & 1))))
        for g in lds(0):
            a(g[0])
        for j in range(3):
            a("ds_read_b32 v%d, v%d" % (4 + 2 * j, 244 + j))
        pfs = [["global_load_dword v192, v231, %s %s" % (sp(P_W1), NT)], ["global_load_dword v192, v232, %s %s" % (sp(P_W2), NT)]]
        if os.environ.get("NPB"):
            pfs = pfs[1:]
        nop = []
        extra = {0: dmaA[:4], 1: dmaA[4:], 2: [nop] * 24 + [["s_waitcnt vmcnt(0)"]] + one(self.wl_tr(0, 4)),
                 3: dmaB[:5], 4: dmaB[5:] + [["global_load_dword v193, v233, %s sc1" % sp(P_FL)]] + pfs}
        for it in range(6):
            if it in (2, 4):
                lf = self.lab("flush")
                a("s_cmp_lg_u32 s%d, %d" % (S_WAVE, it >> 1))
                a("s_cbranch_scc1 %s" % lf)
                a("s_nop 7")
                for r in range(32):
                    a("v_accvgpr_write_b32 a%d, v%d" % (128 + r, 16 + r))
                for r in range(16):
                    a("v_pk_mov_b32 %s, 0, 0" % vp(16 + 2 * r))
                a("s_nop 1")
                a.label(lf)
            self.cv_iter(it & 1, list(range(8)), acc, it == 0, mix(lds(it + 1) if it < 5 else [], extra.get(it, [])), hi=0.92)
        a("s_mul_i32 s54, s%d, 12288" % S_OCT)
        a("v_lshl_add_u32 v10, v0, 4, s54")
        a("v_add_u32 v11, 4096, v10")
        a("v_add_u32 v12, 8192, v10")
        a("v_lshlrev_b32 v13, 4, v0")
        a("v_add_u32 v13, %d, v13" % LDS_OWN)
        self.stamp("convmf")
        a("s_barrier")
        for q in range(8):
            a("ds_write_b128 v242, %s offset:%d" % (v4(16 + 4 * q), 1536 * q))
        lw = self.lab("nofl")
        a("s_add_u32 s54, s%d, 1" % S_WAVE)
        a("s_bitcmp0_b32 s54, 1")
        a("s_cbranch_scc1 %s" % lw)
        for q in range(8):
            a("ds_write_b128 v243, %s offset:%d" % (a4(128 + 4 * q), 1536 * q))
        a.label(lw)
        self.pd_check(len(pfs))
        a("s_waitcnt lgkmcnt(0)")
        a("s_barrier")
        for j in range(3):
            b = 64 + 16 * j
            for k in range(2):
                for hh in range(2):
                    a("ds_read_b128 %s, v13 offset:%d" % (v4(b + 8 * k + 4 * hh), k * 2 * OHS + hh * OHS + 4096 * j))
        for j in range(3):
            b = 64 + 16 * j
            a("s_waitcnt lgkmcnt(%d)" % (4 * (2 - j)))
            for p in range(4):
                a("v_pk_add_f32 %s, %s, %s" % (vp(b + 2 * p), vp(b + 2 * p), vp(b + 8 + 2 * p)))
            for p in range(4):
                a("v_pk_mul_f32 %s, %s, %s op_sel_hi:[1,0]" % (vp(b + 2 * p), vp(b + 2 * p), vp(4 + 2 * j)))
            for p in range(4):
                a("v_cvt_pk_bf16_f32 v%d, v%d, v%d" % (b + 8 + p, b + 2 * p, b + 2 * p + 1))
            for p in range(4):
                a("v_min_u32 v%d, 0xfffffffe, v%d" % (b + 8 + p, b + 8 + p))
            a("global_store_dwordx4 v%d, %s, %s sc1" % (10 + j, v4(b + 8), sp(P_YT)))
        self.stamp("ytstore")

    def helper(self):
        a = self.a
        a.label("L_helper")
        self.flag_store(0)
        self.pf_w1()
        a("s_sub_u32 s60, s%d, 27" % S_IDX)
        a("s_lshl_b32 s60, s60, 2")
        a("s_add_u32 s60, s60, s%d" % S_WAVE)
        for r in range(4):
            a("v_mov_b32 v%d, -1" % (20 + r))
        a("v_lshrrev_b32 v5, 3, v1")
        a("v_and_b32 v6, 7, v1")
        a("s_lshr_b32 s62, s%d, 1" % S_XCD)
        def poison(ptr, per_xcd_kb, xcd_stride):
            a("s_mul_i32 s61, s%d, %d" % (S_XCD, xcd_stride))
            a("s_lshl_b32 s63, s60, 10")
            a("s_add_u32 s61, s61, s63")
            a("v_lshl_add_u32 v7, v1, 4, s61")
            a("s_mov_b32 s63, s60")
            lp = self.lab("poi")
            a.label(lp)
            a("global_store_dwordx4 v7, v[20:23], %s sc1" % sp(ptr))
            a("v_add_u32 v7, 20480, v7")
            a("s_add_u32 s63, s63, 20")
            a("s_cmp_lt_u32 s63, %d" % per_xcd_kb)
            a("s_cbranch_scc1 %s" % lp)
        def pref(ptr, rs, nline, maxline, rowf, ngroups):
            a("s_mul_i32 s61, s62, %d" % nline)
            a("v_min_u32 v8, %d, v6" % (nline - 1))
            a("v_add_u32 v8, s61, v8")
            a("v_min_u32 v8, %d, v8" % maxline)
            a("v_lshlrev_b32 v8, 7, v8")
            a("s_mov_b32 s63, s60")
            lp = self.lab("prf")
            a.label(lp)
            rowf()
            a("v_add_u32 v9, s64, v5")
            a("v_mul_u32_u24 v9, %d, v9" % rs)
            a("v_add_u32 v9, v9, v8")
            a("global_load_dword v254, v9, %s" % sp(ptr))
            a("s_add_u32 s63, s63, 20")
            a("s_cmp_lt_u32 s63, %d" % ngroups)
            a("s_cbranch_scc1 %s" % lp)
        def row_w1b():
            a("s_and_b32 s64, s63, 3")
            a("s_lshl_b32 s64, s64, 9")
            a("s_lshr_b32 s65, s63, 2")
            a("s_lshl_b32 s65, s65, 3")
            a("s_add_u32 s64, s64, s65")
            a("s_add_u32 s64, s64, 256")
        def row_w2():
            a("s_and_b32 s64, s63, 3")
            a("s_mul_i32 s64, s64, 448")
            a("s_min_u32 s64, s64, 1312")
            a("s_lshr_b32 s65, s63, 2")
            a("s_lshl_b32 s65, s65, 3")
            a("s_add_u32 s64, s64, s65")
            a("s_min_u32 s64, s64, 1720")
        poison(P_YT, 27 * 12, 32 * 12288)
        self.flag_store(1)
        if 'h' in BGX:
            self.pf_w2b()
        poison(P_HP, 320, 327680)
        self.flag_store(4)
        a("global_load_dword v254, v231, %s %s" % (sp(P_W1), NT))
        a("global_load_dword v254, v232, %s %s" % (sp(P_W2), NT))
        if 'j' in BGX:
            self.pf_w2b((160,))
        a("global_load_dword v193, v233, %s sc1" % sp(P_FL))
        self.pd_check(0)
        a("s_branch L_win2")

    def phase4_addr(self):
        a = self.a
        a("s_mul_i32 s55, s%d, 48" % S_OCT)
        for j in range(3):
            a("v_add_u32 v5, %d, v0" % (256 * j))
            if j == 2:
                a("v_min_u32 v5, 639, v5")
            a("v_mul_u32_u24 v6, 820, v5")
            a("v_lshrrev_b32 v6, 16, v6")
            a("v_mul_u32_u24 v7, 80, v6")
            a("v_sub_u32 v7, v5, v7")
            a("v_mul_u32_u24 v8, 21846, v7")
            a("v_lshrrev_b32 v8, 16, v8")
            a("v_lshl_add_u32 v6, v6, 5, v8")
            a("v_mul_u32_u24 v8, 3, v8")
            a("v_sub_u32 v7, v7, v8")
            a("v_mul_u32_u24 v6, 12288, v6")
            a("v_lshl_add_u32 v6, v7, 4, v6")
            a("v_add_u32 v%d, s55, v6" % (170 + j))
        a("s_lshl_b32 s54, s%d, 8" % S_OCT)
        a("v_lshrrev_b32 v2, 4, v0")
        a("v_lshlrev_b32 v2, 16, v2")
        a("v_and_b32 v3, 15, v0")
        a("v_lshl_add_u32 v2, v3, 4, v2")
        a("v_add_u32 v173, s54, v2")
        a("v_add_u32 v174, 0x100000, v173")
        a("v_add_u32 v175, 0x200000, v173")
        a("s_mul_i32 s54, s%d, 10240" % S_OCT)
        a("v_lshl_add_u32 v176, v0, 4, s54")
        a("v_add_u32 v177, 4096, v176")
        a("v_add_u32 v178, 8192, v176")
        a("v_lshlrev_b32 v179, 2, v0")
        a("v_add_u32 v179, %d, v179" % LDS_LN)
        a("v_lshlrev_b32 v180, 2, v1")
        a("v_add_u32 v180, %d, v180" % LDS_LN)

    def phase4_pre(self):
        a = self.a
        for n in range(11):
            a("v_accvgpr_read_b32 v%d, a%d" % (170 + n, 224 + n))
        for n in range(12):
            a("v_lshlrev_b32 v%d, 16, v%d" % (100 + 2 * n, XG + n))
            a("v_and_b32 v%d, 0xffff0000, v%d" % (101 + 2 * n, XG + n))
            a("v_lshlrev_b32 v%d, 16, v%d" % (124 + 2 * n, TG + n))
            a("v_and_b32 v%d, 0xffff0000, v%d" % (125 + 2 * n, TG + n))

    def pd_check(self, n):
        a = self.a
        a("s_mov_b32 s69, 0")
        lp, lok = self.lab("pdpoll"), self.lab("pdok")
        a("s_waitcnt vmcnt(%d)" % n)
        a.label(lp)
        a("v_cmp_ne_u32 vcc, s%d, v193" % S_TAG)
        a("s_cbranch_vccz %s" % lok)
        a("s_add_u32 s69, s69, 1")
        a("s_cmp_gt_u32 s69, %d" % SPIN)
        a("s_cbranch_scc1 %s" % lok)
        a("s_sleep 4")
        a("global_load_dword v193, v233, %s sc1" % sp(P_FL))
        a("s_waitcnt vmcnt(0)")
        a("s_branch %s" % lp)
        a.label(lok)

    def phase4(self, N2):
        a = self.a
        a("s_mov_b32 s69, 0")
        lp, lok, lf = self.lab("hpoll"), self.lab("hok"), self.lab("hfirst")
        for j in range(3):
            a("global_load_dwordx4 %s, v%d, %s sc1" % (v4(16 + 4 * j), 170 + j, sp(P_YT)))
        a("s_waitcnt vmcnt(3)")
        for t in self.wl_tr(8, N2):
            a(t)
        a("s_branch %s" % lf)
        a.label(lp)
        for j in range(3):
            a("global_load_dwordx4 %s, v%d, %s sc1" % (v4(16 + 4 * j), 170 + j, sp(P_YT)))
        a.label(lf)
        a("s_waitcnt vmcnt(0)")
        a("v_max3_u32 v28, v16, v17, v18")
        a("v_max3_u32 v29, v19, v20, v21")
        a("v_max3_u32 v30, v22, v23, v24")
        a("v_max3_u32 v31, v25, v26, v27")
        a("v_max3_u32 v28, v28, v29, v30")
        a("v_max_u32 v28, v28, v31")
        a("v_cmp_eq_u32 vcc, -1, v28")
        a("s_cbranch_vccz %s" % lok)
        self.spin_tail(lp, lok, 4)
        a.label(lok)
        self.stamp("hpoll")
        mark4 = len(a.ins)
        def unp(src):
            for n in range(12):
                a("v_lshlrev_b32 v%d, 16, v%d" % (32 + 2 * n, src + n))
                a("v_and_b32 v%d, 0xffff0000, v%d" % (33 + 2 * n, src + n))
        unp(16)
        for n in range(12):
            a("v_pk_add_f32 %s, %s, %s" % (vp(32 + 2 * n), vp(32 + 2 * n), vp(124 + 2 * n)))
        for n in range(12):
            a("v_cvt_pk_bf16_f32 v%d, v%d, v%d" % (16 + n, 32 + 2 * n, 33 + 2 * n))
        unp(16)
        for n in range(12):
            a("v_pk_add_f32 %s, %s, %s" % (vp(32 + 2 * n), vp(32 + 2 * n), vp(100 + 2 * n)))
        for n in range(12):
            a("v_cvt_pk_bf16_f32 v%d, v%d, v%d" % (150 + n, 32 + 2 * n, 33 + 2 * n))
        self.weave(mark4, self.wl_dma_groups(3456, 8 - N2, 32768, slot0=4096 * N2))
        lz = self.lab("hz")
        a("s_cmp_lt_u32 s%d, 2" % S_WAVE)
        a("s_cbranch_scc1 %s" % lz)
        for r in range(4):
            a("v_mov_b32 v%d, 0" % (158 + r))
        a.label(lz)
        unp(150)
        for p in range(4):
            a("v_pk_add_f32 %s, %s, %s" % (vp(64 + 2 * p), vp(32 + 2 * p), vp(40 + 2 * p)))
            a("v_pk_mul_f32 %s, %s, %s" % (vp(72 + 2 * p), vp(32 + 2 * p), vp(32 + 2 * p)))
        for p in range(4):
            a("v_pk_add_f32 %s, %s, %s" % (vp(64 + 2 * p), vp(64 + 2 * p), vp(48 + 2 * p)))
            a("v_pk_fma_f32 %s, %s, %s, %s" % (vp(72 + 2 * p), vp(40 + 2 * p), vp(40 + 2 * p), vp(72 + 2 * p)))
        for p in range(4):
            a("v_pk_fma_f32 %s, %s, %s, %s" % (vp(72 + 2 * p), vp(48 + 2 * p), vp(48 + 2 * p), vp(72 + 2 * p)))
        for k in range(8):
            a("v_permlane32_swap_b32 v%d, v%d" % (64 + k, 72 + k))
        for p in range(4):
            a("v_pk_add_f32 %s, %s, %s" % (vp(64 + 2 * p), vp(64 + 2 * p), vp(72 + 2 * p)))
        for k in range(4):
            a("v_permlane16_swap_b32 v%d, v%d" % (64 + k, 68 + k))
        for p in range(2):
            a("v_pk_add_f32 %s, %s, %s" % (vp(64 + 2 * p), vp(64 + 2 * p), vp(68 + 2 * p)))
        for k in range(2):
            a("v_add_f32_dpp v%d, v%d, v%d row_ror:8 row_mask:0xf bank_mask:0x3" % (72 + k, 64 + k, 64 + k))
        for k in range(2):
            a("v_add_f32_dpp v%d, v%d, v%d row_ror:8 row_mask:0xf bank_mask:0xc" % (72 + k, 66 + k, 66 + k))
        a("v_add_f32_dpp v64, v72, v72 row_half_mirror row_mask:0xf bank_mask:0x5")
        a("v_add_f32_dpp v64, v73, v73 row_half_mirror row_mask:0xf bank_mask:0xa")
        a("v_add_f32_dpp v64, v64, v64 quad_perm:[1,0,3,2] row_mask:0xf bank_mask:0xf")
        a("v_add_f32_dpp v64, v64, v64 quad_perm:[2,3,0,1] row_mask:0xf bank_mask:0xf")
        a("ds_write_b32 v179, v64")
        self.pd_check(63)
        for n in range(12):
            a("v_min_u32 v%d, 0xfffffffe, v%d" % (150 + n, 150 + n))
        a("s_waitcnt lgkmcnt(0)")
        a("s_barrier")
        for w in range(4):
            a("ds_read_b32 v%d, v180 offset:%d" % (64 + w, 256 * w))
        a("s_waitcnt lgkmcnt(0)")
        a("v_pk_add_f32 v[64:65], v[64:65], v[66:67]")
        a("v_add_f32 v64, v64, v65")
        a("v_mul_f32 v64, %s, v64" % f32(1.0 / 640))
        a("v_mov_b32 v65, v64")
        a("v_permlane32_swap_b32 v64, v65")
        a("v_fma_f32 v65, -v64, v64, v65")
        a("v_max_f32 v65, 0, v65")
        self.bf16_round(67, 65)
        self.bf16_round(66, 64)
        a("v_add_f32 v67, %s, v67" % f32(1e-5))
        self.bf16_round(67, 67)
        a("v_sqrt_f32 v67, v67")
        a("v_sub_f32 v68, v64, v66")
        self.bf16_round(67, 67)
        a("v_rcp_f32 v67, v67")
        a("v_mul_f32 v69, v65, v67")
        a("v_mul_f32 v68, v68, v67")
        a("v_mul_f32 v69, v69, v67")
        self.bf16_round(69, 69)
        self.bf16_round(68, 68)
        a("v_add_f32 v69, %s, v69" % f32(1e-5))
        self.bf16_round(69, 69)
        a("v_sqrt_f32 v69, v69")
        a("v_fma_f32 v70, v66, v67, v68")
        self.bf16_round(69, 69)
        a("v_rcp_f32 v69, v69")
        a("v_mul_f32 v70, -v70, v69")
        a("v_mul_f32 v71, v67, v69")
        for r in range(8):
            a("v_readlane_b32 s%d, v70, %d" % (54 + r, 4 * r))
        for r in range(8):
            a("v_readlane_b32 s%d, v71, %d" % ((62, 63, 64, 65, 66, 67, 70, 71)[r], 4 * r))
        for r in range(8):
            a("v_mov_b32 v%d, s%d" % (72 + r, 54 + r))
        l3 = self.lab("h3")
        for j in range(3):
            if j == 2:
                a("s_cmp_ge_u32 s%d, 2" % S_WAVE)
                a("s_cbranch_scc1 %s" % l3)
            for p in range(4):
                h = 32 + 8 * j + 2 * p
                a("v_pk_fma_f32 %s, %s, %s, %s" % (vp(h), vp(h), sp((62, 64, 66, 70)[p]), vp(72 + 2 * p)))
            for p in range(4):
                h = 32 + 8 * j + 2 * p
                a("v_cvt_pk_bf16_f32 v%d, v%d, v%d" % (16 + 4 * j + p, h, h + 1))
            for p in range(4):
                a("v_min_u32 v%d, 0xfffffffe, v%d" % (16 + 4 * j + p, 16 + 4 * j + p))
            a("global_store_dwordx4 v%d, %s, %s sc1" % (173 + j, v4(16 + 4 * j), sp(P_HP)))
        a("global_store_dwordx4 v178, v[158:161], %s sc1" % sp(P_H2))
        a.label(l3)
        a("global_store_dwordx4 v176, v[150:153], %s sc1" % sp(P_H2))
        a("global_store_dwordx4 v177, v[154:157], %s sc1" % sp(P_H2))
        self.stamp("hpstore")

    NP = 35
    def acc(self, j, mt): return ACC0 + 4 * (mt * 4 + j)
    def preg(self, k): return SLOT0 + 4 * (k % self.NP)

    def frag_load(self, name, seq0, mts, i):
        s, mt = i // len(mts), mts[i % len(mts)]
        base = (84 if name.startswith("g1") else 64) + (0 if s < 8 else 2)
        return "global_load_dwordx4 %s, v%d, %s offset:%d sc1 ; #%s_%d" % (
            v4(self.preg(seq0 + i)), 2 + mt, sp(base), (s % 8) * 1024 - 4096, name, s)

    def frag_check(self, seq0, mts, s):
        if CK1:
            r = [self.preg(seq0 + s * len(mts) + m) + 3 for m in range(len(mts))]
            if len(r) == 3:
                return ["v_max3_u32 v7, v%d, v%d, v%d" % tuple(r), "v_cmp_eq_u32 vcc, -1, v7"]
            return ["v_max_u32 v7, v%d, v%d" % tuple(r), "v_cmp_eq_u32 vcc, -1, v7"]
        r = [self.preg(seq0 + s * len(mts) + m) + k for m in range(len(mts)) for k in range(4)]
        L = ["v_max3_u32 v7, v%d, v%d, v%d" % (r[0], r[1], r[2]), "v_max3_u32 v8, v%d, v%d, v%d" % (r[3], r[4], r[5])]
        rest = r[6:]
        t = 7
        while len(rest) >= 2:
            L.append("v_max3_u32 v%d, v%d, v%d, v%d" % (t, t, rest[0], rest[1]))
            rest = rest[2:]
            t = 15 - t
        L += ["v_max_u32 v7, v7, v8", "v_cmp_eq_u32 vcc, -1, v7"]
        return L

    def gpass(self, name, nsteps, mts, w_is_A, seq0, npre, bgf=None, s_short=None, hook=None):
        a = self.a
        nm = len(mts)
        tot = nsteps * nm
        ldone = self.lab("gdone")
        def branch_slow(s):
            ls, lb = self.lab("gslow"), self.lab("gback")
            a("s_cbranch_vccnz %s" % ls)
            a.label(lb)
            self.slowpaths.append((s, ls, lb, [self.frag_load(name, seq0, mts, s * nm + m).split(';')[0] for m in range(nm)],
                                   self.frag_check(seq0, mts, s)))
        a("@wait %s_0" % name)
        for l in self.frag_check(seq0, mts, 0):
            a(l)
        branch_slow(0)
        self.stamp(name + "f")
        for s in range(nsteps):
            if hook and s in hook:
                hook[s]()
            fill = []
            for g in (bgf(s) if bgf else []):
                fill.append(g)
            ck = []
            if s + 1 < nsteps:
                ck = [["@wait %s_%d" % (name, s + 1)]] + [[x] for x in self.frag_check(seq0, mts, s + 1)]
            items = fill + ck
            nmf = 4 * nm
            per = [len(items) * (k + 1) // nmf - len(items) * k // nmf for k in range(nmf)]
            n = 0
            for m, mt in enumerate(mts):
                for j in range(4):
                    c = v4(self.acc(j, mt))
                    w = a4((s * 4 + j) * 4)
                    f = v4(self.preg(seq0 + s * nm + m))
                    A, B = (w, f) if w_is_A else (f, w)
                    a("v_mfma_f32_16x16x32_bf16 %s, %s, %s, %s" % (c, A, B, "0" if s == 0 else c))
                    if j == 3:
                        a("@mark free%d" % (seq0 + s * nm + m))
                    for _ in range(per[n]):
                        for t in items.pop(0):
                            a(t)
                    n += 1
            if s + 1 < nsteps:
                if s_short is not None and s + 2 == nsteps:
                    a("@mark noins")
                    a("s_cmp_eq_u32 s%d, 1" % s_short)
                    a("s_cbranch_scc1 %s" % ldone)
                branch_slow(s + 1)
        a.label(ldone)
        a("@mark ins")
        self.stamp(name + "m")

    def est(self, ins):
        k = ins.kind
        if k == 'mfma': return 16
        if k in ('label', 'dir'): return 0
        if k == 'trans': return 8
        if k == 'mem': return 30 if 'write_b128' in ins.op else 8
        if ins.op == 's_barrier': return 60
        return 4.5

    def schedule(self, start, ops, per=None, lat=700, ahead=None):
        from asmdsl import Ins
        a = self.a
        per = per or float(os.environ.get("PER", "70"))
        ahead = ahead or float(os.environ.get("AHEAD", "400"))
        seg = a.ins[start:]
        del a.ins[start:]
        seen = set()
        t = 0.0; tm = 0.0
        pf = 0.0
        done = {}
        q = list(ops)
        noins = False
        noex = False
        def emit(op):
            nonlocal pf, t
            for x in op['ins']:
                a(x)
                t += 4.5
            pf = max(pf, t) + per * op.get('kb', 1)
            done[op['tag']] = pf + lat
        for n, ins in enumerate(seg):
            if ins.op == '@mark':
                seen.add(ins.text.split()[1])
            if ins.op == '@wait':
                tag = ins.text.split()[1]
                idx = [k for k, o in enumerate(q) if o['tag'] == tag]
                if idx:
                    for o in q[:idx[-1] + 1]:
                        assert all(m in seen for m in o['after']), (o, tag)
                        emit(o)
                    q = q[idx[-1] + 1:]
                if tag in done:
                    t = max(t, done[tag])
            a.ins.append(ins)
            if ins.kind == 'mfma':
                t = max(t, tm) + 8
                tm = t + 8
            else:
                t += self.est(ins)
            if ins.op.startswith('s_cmp') or ins.op.startswith('s_bitcmp'): continue
            if 'exec' in ins.text and ins.op.startswith('s_mov'):
                noex = '-1' not in ins.text
            if ins.op == '@mark' and ins.text.split()[1] in ('noins', 'ins'):
                noins = ins.text.split()[1] == 'noins'
            if noins or noex or ins.kind == 'branch': continue
            while q and all(m in seen for m in q[0]['after']) and pf - t < ahead:
                emit(q.pop(0))
        assert not q, q[:3]

    def emit_slowpaths(self):
        a = self.a
        for s, ls, lb, loads, chk in self.slowpaths:
            a.label(ls)
            a("s_add_u32 s69, s69, 1")
            a("s_cmp_gt_u32 s69, %d" % SPIN)
            a("s_cbranch_scc1 %s" % lb)
            a("s_sleep 2")
            for l in loads:
                a(l)
            a("s_waitcnt vmcnt(0)")
            for l in chk:
                a(l)
            a("s_cbranch_vccnz %s" % ls)
            a("s_branch %s" % lb)

    def rndp(self, regs):
        a = self.a
        for b in regs:
            a("v_cvt_pk_bf16_f32 v%d, v%d, v%d" % (b + 1, b, b + 1))
        for b in regs:
            a("v_lshlrev_b32 v%d, 16, v%d" % (b, b + 1))
            a("v_and_b32 v%d, 0xffff0000, v%d" % (b + 1, b + 1))

    def epilogue(self, kind, mts, mid=None, bg=None, post=None, js=3072):
        a = self.a
        bg = list(bg or [])
        a("s_waitcnt lgkmcnt(0)")
        a("s_barrier")
        if post:
            post()
        mk = len(a.ins)
        for j in range(1, 4):
            for m, mt in enumerate(mts):
                a("ds_write_b128 v%d, %s offset:%d" % (241 + j, v4(self.acc(j, mt)), 1024 * m))
        if mid:
            mid()
        else:
            n1 = len(bg) // 4
            if n1:
                self.weave(mk, bg[:n1]); bg = bg[n1:]
        a("s_waitcnt lgkmcnt(0)")
        a("s_barrier")
        for m, mt in enumerate(mts):
            for j in range(1, 4):
                a("ds_read_b128 %s, v245 offset:%d" % (v4(self.acc(j, mt)), js * (j - 1) + 1024 * m))
        mk = len(a.ins)
        P = [self.acc(0, mt) + 2 * h for mt in mts for h in range(2)]
        T = [self.acc(1, mt) + 2 * h for mt in mts for h in range(2)]
        for m, mt in enumerate(mts):
            a("s_waitcnt lgkmcnt(%d)" % (3 * (len(mts) - 1 - m)))
            for h in range(2):
                a("v_pk_add_f32 %s, %s, %s" % (vp(self.acc(0, mt) + 2 * h), vp(self.acc(0, mt) + 2 * h), vp(self.acc(1, mt) + 2 * h)))
                a("v_pk_add_f32 %s, %s, %s" % (vp(self.acc(2, mt) + 2 * h), vp(self.acc(2, mt) + 2 * h), vp(self.acc(3, mt) + 2 * h)))
        if kind == 2:
            for mt in mts:
                a("ds_read_b64 %s, v249 offset:%d" % (vp(self.acc(3, mt)), 32 * mt))
        for mt in mts:
            for h in range(2):
                a("v_pk_add_f32 %s, %s, %s" % (vp(self.acc(0, mt) + 2 * h), vp(self.acc(0, mt) + 2 * h), vp(self.acc(2, mt) + 2 * h)))
        self.rndp(P)
        for n, p in enumerate(P):
            if kind == 1:
                a("v_pk_add_f32 %s, %s, %s" % (vp(p), vp(p), vp(250 + 2 * (n & 1))))
            else:
                a("v_pk_add_f32 %s, %s, %s op_sel_hi:[1,0]" % (vp(p), vp(p), vp(250)))
        self.rndp(P)
        if kind == 1:
            for p, t in zip(P, T):
                a("v_pk_mul_f32 %s, %s, %s" % (vp(t), vp(p), vp(p)))
            for p, t in zip(P, T):
                a("v_pk_fma_f32 %s, %s, %s, %s op_sel_hi:[1,0,0]" % (vp(t), vp(t), vp(12), vp(10)))
            for p, t in zip(P, T):
                a("v_pk_mul_f32 %s, %s, %s" % (vp(t), vp(t), vp(p)))
            for t in T:
                a("v_exp_f32 v%d, v%d" % (t, t))
                a("v_exp_f32 v%d, v%d" % (t + 1, t + 1))
            for t in T:
                a("v_pk_add_f32 %s, %s, 1.0 op_sel_hi:[1,0]" % (vp(t), vp(t)))
            for t in T:
                a("v_rcp_f32 v%d, v%d" % (t, t))
                a("v_rcp_f32 v%d, v%d" % (t + 1, t + 1))
            for p, t in zip(P, T):
                a("v_pk_mul_f32 %s, %s, %s" % (vp(p), vp(p), vp(t)))
        else:
            a("s_waitcnt lgkmcnt(0)")
            for mt in mts:
                for h in range(2):
                    a("v_lshlrev_b32 v%d, 16, v%d" % (self.acc(1, mt) + 2 * h, self.acc(3, mt) + h))
                    a("v_and_b32 v%d, 0xffff0000, v%d" % (self.acc(1, mt) + 2 * h + 1, self.acc(3, mt) + h))
            for p, t in zip(P, T):
                a("v_pk_add_f32 %s, %s, %s" % (vp(p), vp(p), vp(t)))
        prs = {2: [(3, 4)], 3: [(0, 1), (2, 2)], 5: [(0, 1), (2, 2), (3, 4)]}[len(mts)]
        outs = []
        for ta, tb in prs:
            o = self.acc(2, ta)
            outs.append(o)
            for h in range(2):
                a("v_cvt_pk_bf16_f32 v%d, v%d, v%d" % (o + h, self.acc(0, ta) + 2 * h, self.acc(0, ta) + 2 * h + 1))
                a("v_cvt_pk_bf16_f32 v%d, v%d, v%d" % (o + 2 + h, self.acc(0, tb) + 2 * h, self.acc(0, tb) + 2 * h + 1))
        if kind == 1:
            for o in outs:
                for k in range(4):
                    a("v_min_u32 v%d, 0xfffffffe, v%d" % (o + k, o + k))
        if bg:
            self.weave(mk, bg)
        for o in outs:
            for h in range(2):
                a("v_permlane16_swap_b32 v%d, v%d" % (o + h, o + 2 + h))
        for n, ((ta, tb), o) in enumerate(zip(prs, outs)):
            ar = 246 + (0 if ta == 0 else (1 if ta == 2 else 2))
            if kind == 1:
                a("global_store_dwordx4 v%d, %s, %s sc1" % (ar, v4(o), sp(P_G)))
            else:
                a("global_store_dwordx4 v%d, %s, %s %s" % (ar, v4(o), sp(P_OUT), os.environ.get("OST", "sc1")))

    def g_common_setup(self):
        a = self.a
        for j in range(1, 4):
            a("s_add_u32 s54, s%d, %d" % (S_WAVE, j))
            a("s_and_b32 s54, s54, 3")
            a("s_lshl_b32 s54, s54, 15")
            a("s_add_u32 s54, s54, %d" % (20480 + 3072 * (j - 1)))
            a("v_lshl_add_u32 v%d, v1, 4, s54" % (241 + j))
        a("s_lshl_b32 s54, s%d, 15" % S_WAVE)
        a("s_add_u32 s54, s54, 20480")
        a("v_lshl_add_u32 v245, v1, 4, s54")

    def g1_setup(self):
        a = self.a
        a("s_mul_i32 s54, s%d, %d" % (S_DB, 5 * 65536))
        a("v_lshl_add_u32 v2, v1, 4, s54")
        for mt in range(1, 5):
            a("v_add_u32 v%d, %d, v2" % (2 + mt, 65536 * mt))
        a("s_lshl_b32 s54, s%d, 14" % S_WAVE)
        a("s_add_u32 s54, s54, 4096")
        a("s_add_u32 s84, s%d, s54" % P_HP)
        a("s_addc_u32 s85, s%d, 0" % (P_HP + 1))
        a("s_add_u32 s86, s84, 8192")
        a("s_addc_u32 s87, s85, 0")
        a("s_mul_i32 s54, s%d, 270" % S_DB)
        a("s_lshl_b32 s55, s%d, 1" % S_FB)
        a("s_add_u32 s54, s54, s55")
        a("s_lshl_b32 s54, s54, 10")
        a("s_lshl_b32 s55, s%d, 9" % S_WAVE)
        a("s_add_u32 s54, s54, s55")
        a("v_and_b32 v7, 15, v1")
        a("v_lshrrev_b32 v8, 5, v1")
        a("v_lshl_add_u32 v7, v8, 4, v7")
        a("v_lshl_add_u32 v7, v7, 4, s54")
        a("v_add_u32 v247, %d, v7" % (2 * 54 * 1024))
        a("v_bfe_u32 v8, v1, 4, 1")
        a("v_mul_u32_u24 v8, %d, v8" % (54 * 1024))
        a("v_add_u32 v246, v7, v8")
        a("v_add_u32 v248, %d, v246" % (3 * 54 * 1024))
        for r in range(4):
            a("v_mov_b32 v%d, -1" % (10 + r))
        for r in (246, 247, 248):
            a("global_store_dwordx4 v%d, v[10:13], %s sc1 ; #gpoi" % (r, sp(P_G)))
        a("s_lshl_b32 s54, s%d, 7" % S_FB)
        a("s_lshl_b32 s55, s%d, 5" % S_WAVE)
        a("s_add_u32 s54, s54, s55")
        a("v_lshrrev_b32 v7, 4, v1")
        a("v_lshl_add_u32 v7, v7, 3, s54")
        a("global_load_dwordx2 v[252:253], v7, %s" % sp(P_B1))
        a("s_mul_i32 s54, s%d, 27" % S_DB)
        a("s_add_u32 s54, s54, s%d" % S_FB)
        a("s_lshl_b32 s54, s54, 7")
        a("s_add_u32 s54, s54, 0x18000")
        a("v_mov_b32 v249, s54")
        a("v_mov_b32 v9, s%d" % S_TAG)
        a("s_mov_b32 s69, 0")

    def g2_flag_addr(self):
        G = []
        G.append(["v_bfe_u32 v9, v1, 2, 3", "s_lshl_b32 s54, s%d, 3" % S_SB, "v_add_u32 v9, s54, v9", "v_lshlrev_b32 v9, 7, v9"])
        G.append(["v_and_b32 v13, 3, v1", "v_lshl_add_u32 v9, v13, 2, v9", "v_add_u32 v9, 0x10000, v9"])
        G.append(["s_mul_i32 s54, s%d, %d" % (S_DB2, 27 * 128), "s_add_u32 s54, s54, 0x18000", "v_and_b32 v11, 31, v1",
                  "v_min_u32 v11, 26, v11", "v_lshl_add_u32 v11, v11, 7, s54"])
        G.append(["v_cmp_lt_u32 s[62:63], 31, v1", "s_nop 1", "v_cndmask_b32 v9, v9, v11, s[62:63]"])
        return G

    def g2_flag_loads(self):
        return ["global_load_dword v249, v9, %s sc1 ; #g2fl" % sp(P_FL)]

    def g2_check(self, first_wait):
        a = self.a
        lp, lok = self.lab("h2poll"), self.lab("h2ok")
        a(first_wait)
        a("@mark noins")
        a.label(lp)
        a("v_cmp_ne_u32 vcc, s%d, v249" % S_TAG)
        a("s_cbranch_vccz %s" % lok)
        a("s_add_u32 s69, s69, 1")
        a("s_cmp_gt_u32 s69, %d" % SPIN)
        a("s_cbranch_scc1 %s" % lok)
        a("s_sleep 8")
        for t in self.g2_flag_loads():
            a(t.split(';')[0] + " ; #cond")
        a("s_waitcnt vmcnt(0)")
        a("s_branch %s" % lp)
        a.label(lok)
        a("@mark ins")
        a("@mark g2a_ok")

    def g2_addr(self, mts, bases=None):
        G = [["s_mul_i32 s54, s%d, %d" % (S_DB2, 5 * 54 * 1024), "v_lshl_add_u32 v11, v1, 4, s54"]]
        G.append(["v_add_u32 v%d, %d, v11" % (2 + mt, 54 * 1024 * mt) for mt in mts])
        if bases:
            G.append(["s_lshl_b32 s54, s%d, 10" % S_K2, "s_add_u32 s54, s54, 4096", "@mark noins", "s_add_u32 s64, s%d, s54" % P_G,
                      "s_addc_u32 s65, s%d, 0" % (P_G + 1), "s_add_u32 s66, s64, 8192", "s_addc_u32 s67, s65, 0", "@mark ins"])
        return G

    def g2_late_setup(self):
        G = []
        G.append(["s_mul_i32 s60, s%d, %d" % (S_SB, 8 * 10240), "s_mul_i32 s61, s%d, 1280" % S_DB2, "s_add_u32 s60, s60, s61"])
        for j in range(3):
            g = ["v_add_u32 v9, %d, v0" % (256 * j)]
            if j == 2:
                g.append("v_min_u32 v9, 639, v9")
            g += ["v_mul_u32_u24 v11, 820, v9", "v_lshrrev_b32 v11, 16, v11"]
            G.append(g)
            G.append(["v_mul_u32_u24 v13, 80, v11", "v_sub_u32 v13, v9, v13", "v_mul_u32_u24 v9, 10240, v11"])
            G.append(["v_lshl_add_u32 v9, v13, 4, v9", "v_add_u32 v9, s60, v9",
                      "global_load_dwordx4 %s, v9, %s sc1 ; #htile" % (a4(224 + 4 * j), sp(P_H2))])
            G.append(["v_mul_u32_u24 v9, %d, v11" % (8 * 176), "v_lshl_add_u32 v9, v13, 1, v9", "v_add_u32 v%d, %d, v9" % (251 + j, LDS_H)])
        G.append(["s_lshl_b32 s60, s%d, 4" % S_WAVE, "v_and_b32 v9, 15, v1", "v_add_u32 v9, s60, v9", "s_lshl_b32 s61, s%d, 7" % S_SB])
        G.append(["v_lshl_add_u32 v11, v9, 1, s61", "global_load_ushort v250, v11, %s ; #b2" % sp(P_B2), "v_lshrrev_b32 v13, 4, v1"])
        G.append(["v_mul_u32_u24 v11, 176, v9", "v_lshl_add_u32 v11, v13, 3, v11", "v_add_u32 v249, %d, v11" % LDS_H])
        G.append(["s_mul_i32 s60, s%d, %d" % (S_SB, 64 * 1280), "s_mul_i32 s61, s%d, 160" % S_DB2, "s_add_u32 s60, s60, s61",
                  "v_mul_u32_u24 v11, 1280, v9"])
        G.append(["v_lshrrev_b32 v9, 1, v13", "v_lshl_add_u32 v11, v9, 4, v11", "v_add_u32 v11, s60, v11", "v_add_u32 v247, 64, v11"])
        G.append(["v_and_b32 v13, 1, v13", "v_lshl_add_u32 v246, v13, 5, v11", "v_add_u32 v248, 96, v246"])
        W = [["@wait htile"]]
        for j in range(3):
            for p in range(4):
                W.append(["ds_write_b16 v%d, a%d offset:%d" % (251 + j, 224 + 4 * j + p, (2 * p) * 176),
                          "ds_write_b16_d16_hi v%d, a%d offset:%d" % (251 + j, 224 + 4 * j + p, (2 * p + 1) * 176)])
        W.append(["@wait b2", "v_lshlrev_b32 v250, 16, v250"])
        return G, W

    def back_half(self):
        a = self.a
        one = lambda L: [[x] for x in L]
        N2 = int(os.environ.get('N2', '5'))
        MA, MB = [0, 1, 2], [3, 4]
        if os.environ.get('SWAP'):
            MA, MB = MB, MA
        nA, nB = len(MA), len(MB)
        a.label("L_win2")
        for t in self.wl_tr(4, 4):
            a(t)
        a("s_lshl_b32 s54, s%d, 14" % S_WAVE)
        a("s_waitcnt lgkmcnt(0)")
        for nt in range(4):
            a("v_add_u32 v%d, s54, v%d" % (WT + nt, WT + nt))
        a("s_barrier")
        a("v_add_u32 v233, 0x18000, v233")
        a("global_load_dword v193, v233, %s sc1" % sp(P_FL))
        mk2 = len(a.ins)
        self.phase4_pre()
        self.g_common_setup()
        self.weave(mk2, self.wl_dma_groups(3456, N2, 32768), 0.0, 0.9)
        lq = self.lab("nog1s")
        a("s_cmp_eq_u32 s%d, 0" % S_G1)
        a("s_cbranch_scc1 %s" % lq)
        self.g1_setup()
        a("s_lshl_b32 s54, s%d, 7" % S_OCT)
        a("s_lshl_b32 s55, s%d, 2" % S_WAVE)
        a("s_add_u32 s54, s54, s55")
        a("s_add_u32 s54, s54, 0x10000")
        a("v_mov_b32 v254, s54")
        a.label(lq)
        self.stamp("win2")
        self.phase4(N2)
        a("s_lshl_b32 s90, s%d, 5" % S_K2)
        a("s_lshl_b32 s91, s%d, 7" % S_SB)
        self.wl_setup(P_W2, 4096, 90, 91, None, tmp=28)
        lg = self.lab("nog1")
        a("s_waitcnt lgkmcnt(0)")
        a("s_cmp_eq_u32 s%d, 0" % S_G1)
        a("s_cbranch_scc1 %s" % lg)
        a("s_mov_b32 s69, 0")
        N3A = int(os.environ.get("N3A", "5"))
        d3 = self.wl_dma_groups(4096, 5, 32768, tag="w2a")
        for g in d3[:2 * N3A]:
            for t in g:
                a(t)
        self.stamp("win3")
        sched0 = len(a.ins)
        qA, qB, qC, qD = 0, 16 * nA, 80, 80 + 14 * nA
        def fr(name, q, mts, n, after=()):
            return [dict(ins=[self.frag_load(name, q, mts, i)], tag="%s_%d" % (name, i // len(mts)),
                         after=list(after) + (["free%d" % (q + i - self.NP)] if q + i >= self.NP else [])) for i in range(n)]
        def dmaops(groups, tag, afterf):
            return [dict(ins=g, tag="%s%d" % (tag, n // 2) if n & 1 else "x", kb=2, after=afterf(n // 2)) for n, g in enumerate(groups)]
        trw = one(self.wl_tr(8 + N2, 8 - N2, slot0=4096 * N2))
        def bgA(s):
            if s < 8 - N2: return trw[8 * s:8 * s + 8]
            if s == 7: return [["v_lshlrev_b32 v250, 16, v252", "v_and_b32 v251, 0xffff0000, v252"],
                               ["v_lshlrev_b32 v252, 16, v253", "v_and_b32 v253, 0xffff0000, v253"],
                               ["v_mov_b32 v10, %s" % f32(-2.0 * 0.7978845608028654 * LOG2E),
                                "v_mov_b32 v12, %s" % f32(-2.0 * 0.7978845608028654 * LOG2E * 0.044715)]]
            if s == 7 + N2: return [["s_waitcnt lgkmcnt(0)"]]
            if s == 4: return [["s_mov_b64 exec, 1", "global_store_dword v254, v9, %s sc1" % sp(P_FL), "s_mov_b64 exec, -1"]]
            return []
        self.gpass("g1a", 16, MA, True, qA, 0, bgA)
        def pd2():
            l = self.lab("pd2")
            a("@mark noins")
            a("s_cmp_lg_u32 s%d, 0" % S_WAVE)
            a("s_cbranch_scc1 %s" % l)
            a("s_mov_b64 exec, 1")
            a("global_store_dword v249, v9, %s sc1 ; #cond" % sp(P_FL))
            a("s_mov_b64 exec, -1")
            a("@mark noins")
            a.label(l)
            a("@mark ins")
        self.epilogue(1, MA, post=pd2)
        self.stamp("g1ae")
        tr0 = self.wl_tr(0, 5)
        tr1 = self.wl_tr(5, 5)
        fa = self.g2_flag_addr()
        FS = int(os.environ.get("FS", "8"))
        def bgB(s):
            L = []
            if 3 <= s <= 7:
                L += [["s_waitcnt lgkmcnt(8)" if s <= 5 else "s_waitcnt lgkmcnt(0)", "@mark s0_%d" % (s - 3)]]
            if 1 <= s <= 5:
                L += [["@wait w2a%d" % (s - 1)]] + one(tr0[8 * (s - 1):8 * s])
            if s == 0:
                L += fa + self.g2_addr(MA, True)
            if s == FS - 3:
                L += one(self.g2_flag_loads())
            if s >= 11:
                L += [["@wait w2b%d" % (s - 11)]] + one(tr1[8 * (s - 11):8 * (s - 10)])
            return L
        self.gpass("g1b", 16, MB, True, qB, 32, bgB, hook={FS: lambda: self.g2_check("@wait g2fl")})
        def midB():
            for g in self.g2_addr(MB):
                for t in g:
                    a(t)
            a("@mark g2b_ok")
        self.epilogue(1, MB, mid=midB, post=lambda: a("@mark s1"))
        self.stamp("g1be")
        a("@mark preg2a")
        a.label("L_g2a")
        dm2 = self.wl_dma_groups(4096, 4, 32768, tag="w2c")
        dm2[5] = dm2[5][:2] + ["s_lshl_b32 s83, s%d, 17" % S_SHORT, "s_sub_u32 s83, %d, s83" % (32 * 4096),
                               "s_add_u32 s80, s80, s83", "s_addc_u32 s81, s81, 0"]
        tr2 = self.wl_tr(10, 4)
        LG, LW = self.g2_late_setup()
        def bgC(s):
            L = []
            if s < 5:
                L += LG[4 * s:4 * s + 4]
            if 5 <= s <= 8:
                L += [["@wait w2c%d" % (s - 5)]] + one(tr2[8 * (s - 5):8 * (s - 4)])
            if s == 9:
                L += [["s_waitcnt lgkmcnt(0)"]] + LW[:5]
            if s == 10:
                L += LW[5:10]
            if s == 11:
                L += LW[10:]
            return L
        self.gpass("g2a", 14, MA, False, qC, 33, bgC, s_short=S_SHORT)
        a("@mark ins")
        bgD = None
        if MERGE == 0:
            self.epilogue(2, MA)
        if MERGE == 2:
            mkE = len(a.ins)
            self.epilogue(2, MA)
            ep = [i.text for i in a.ins[mkE:]]
            del a.ins[mkE:]
            grp = []
            for t in ep:
                if grp and grp[-1][-1].startswith("s_waitcnt") and t == "s_barrier":
                    grp[-1].append(t)
                else:
                    grp.append([t])
            NSD = 12
            bgD = lambda s: grp[len(grp) * s // NSD:len(grp) * (s + 1) // NSD] if s < NSD else []
        self.stamp("g2ae")
        self.gpass("g2b", 14, MB, False, qD, 28, bgD, s_short=S_SHORT)
        if MERGE == 1:
            for j in range(1, 4):
                a("v_add_u32 v%d, %d, v%d" % (241 + j, (5120 - 3072) * (j - 1) - 20480, 241 + j))
            a("v_subrev_u32 v245, 20480, v245")
            self.epilogue(2, [0, 1, 2, 3, 4], js=5120)
        else:
            self.epilogue(2, MB)
        self.stamp("g2be")
        A1 = fr("g1a", qA, MA, 16 * nA)
        B1 = fr("g1b", qB, MB, 16 * nB)
        A2 = fr("g2a", qC, MA, 14 * nA, after=["g2a_ok"])
        B2 = fr("g2b", qD, MB, 14 * nB, after=["g2b_ok", "free%d" % (qC + int(os.environ.get("B2M", "20")))])
        D1 = dmaops(self.wl_dma_groups(4096, 5, 32768, tag="w2b"), "w2b", lambda k: ["s0_%d" % k])
        D2 = dmaops(dm2, "w2c", lambda k: ["s1"])
        D0 = dmaops(d3, "w2a", lambda k: [])[2 * N3A:]
        nb1 = 32 if nB == 2 else int(os.environ.get('NB1', '36'))
        ops = A1 + D0 + B1[:nb1] + D1 + B1[nb1:] + A2[:15] + D2 + A2[15:] + B2
        self.schedule(sched0, ops)
        lab = [n for n, i in enumerate(a.ins) if i.islabel and i.op == "L_g2a"][0]
        pre = [i.text.split(';')[0] for i in a.ins[sched0:lab] if '#g2a_' in i.text or '#g2b_' in i.text]
        st = [n for n, i in enumerate(a.ins[:lab]) if i.text == dm2[0][0] and n > sched0]
        texts = [i.text for i in a.ins[sched0:lab]]
        npre_d = 0
        for n, g in enumerate(dm2):
            key = [x for x in g if 'load_lds' in x][-1]
            if n & 1 and key in texts: npre_d = n + 1
        cnt_lds = sum(1 for x in texts if 'load_lds' in x) - 20 - 4 * (5 - N3A)
        npre_d = cnt_lds // 2
        self.pre_inactive = (pre, dm2[:npre_d])
        self.inactive = (lg, qC, MA)

    def pf_w2b(self, parts=(160, 320)):
        a = self.a
        a("s_sub_u32 s66, s%d, 27" % S_IDX)
        a("s_add_u32 s66, s66, s%d" % S_K2)
        a("s_lshl_b32 s66, s66, 5")
        a("v_lshrrev_b32 v10, %d, v1" % (2 + M2B))
        a("v_add_u32 v10, s66, v10")
        a("v_and_b32 v12, %d, v1" % (7 if M2B else 3))
        a("s_lshr_b32 s67, s%d, %d" % (S_XCD, M2B))
        a("s_lshl_b32 s67, s67, %d" % (9 + M2B))
        a("v_lshl_add_u32 v12, v12, 7, s67")
        def pfb(off):
            for i in range(4 if M2B else 2):
                a("v_add_u32 v11, %d, v10" % (off + (8 if M2B else 16) * i))
                a("v_min_u32 v11, 1727, v11")
                a("v_lshl_add_u32 v11, v11, 12, v12")
                a("global_load_dword v254, v11, %s" % sp(P_W2))
        for o in parts:
            pfb(o)

    def inactive_path(self):
        a = self.a
        lg, qC, MA = self.inactive
        a.label(lg)
        self.wl_dma_loop(4096, 5, 32768)
        self.flag_store(2, wait="vmcnt(20)")
        if 'j' in BGX:
            self.pf_w2b((320,))
        elif 'h' not in BGX:
            self.pf_w2b()
        a("s_waitcnt vmcnt(%d)" % (0 if 'h' in BGX else (2 if 'j' in BGX else 4)))
        for t in self.wl_tr(0, 5):
            a(t)
        a("s_waitcnt lgkmcnt(0)")
        self.wl_dma_loop(4096, 5, 32768)
        for g in self.g2_flag_addr():
            for t in g:
                a(t)
        a("s_waitcnt vmcnt(0)")
        for t in self.wl_tr(5, 5):
            a(t)
        a("s_sleep %s" % os.environ.get("SLF", "95"))
        for t in self.g2_flag_loads():
            a(t.split(';')[0])
        a("s_mov_b32 s69, 0")
        self.g2_check("s_waitcnt vmcnt(0) lgkmcnt(0)")
        for g in self.g2_addr([0, 1, 2, 3, 4], True):
            for t in g:
                a(t)
        for g in self.pre_inactive[1]:
            for t in g:
                a(t.split(';')[0])
        a("s_sleep %s" % os.environ.get("SLI", "16"))
        for t in self.pre_inactive[0]:
            a(t)
        a("s_waitcnt vmcnt(0)")
        a("s_branch L_g2a")

    def finish(self):
        a = self.a
        if self.timing:
            a("s_memrealtime s[98:99]")
            a("s_waitcnt lgkmcnt(0)")
            a("v_writelane_b32 v255, s98, 63")
            a("s_lshl_b32 s54, s2, 2")
            a("s_add_u32 s54, s54, s%d" % S_WAVE)
            a("s_lshl_b32 s54, s54, 8")
            a("s_add_u32 s54, s54, 0x%x" % WS_TIME)
            a("v_lshl_add_u32 v2, v1, 2, s54")
            a("global_store_dword v2, v255, %s" % sp(P_WS))
        l = self.lab("nn")
        a("s_or_b32 s54, s2, s%d" % S_WAVE)
        a("s_cmp_lg_u32 s54, 0")
        a("s_cbranch_scc1 %s" % l)
        a("v_mov_b32 v2, 0")
        a("v_mov_b32 v3, s%d" % S_TAG)
        a("s_mov_b64 exec, 1")
        a("global_store_dword v2, v3, %s" % sp(P_WS))
        a.label(l)
        a.label("L_end")
        a("s_endpgm")

    def build(self):
        self.phase0()
        self.phase1()
        self.phase2()
        self.phase3()
        self.back_half()
        self.finish()
        self.helper()
        self.inactive_path()
        self.a.label("L_codeend")
        self.emit_slowpaths()
        self.a("s_endpgm")
        body = self.a.finalize()
        hdr = open("cdna_kernels/%s.s.ref" % NAME).read().split("; Override launch")[0]
        hdr += "; @launch grid=(256,1,1) block=(256,1,1) lds=%d\n" % LDS_TOTAL
        hdr += '.amdgcn_target "amdgcn-amd-amdhsa--gfx950"\n.text\n.globl %s_kernel\n.p2align 8\n.type %s_kernel,@function\n%s_kernel:\n' % (NAME, NAME, NAME)
        ftr = """.section .rodata,"a"
.p2align 6
.amdhsa_kernel %s_kernel
  .amdhsa_next_free_vgpr 512
  .amdhsa_next_free_sgpr 102
  .amdhsa_accum_offset 256
  .amdhsa_group_segment_fixed_size 0
  .amdhsa_kernarg_size 120
  .amdhsa_user_sgpr_count 2
  .amdhsa_user_sgpr_kernarg_segment_ptr 1
  .amdhsa_system_sgpr_workgroup_id_x 1
.end_amdhsa_kernel
""" % NAME
        return hdr + body + ftr


if __name__ == "__main__":
    import argparse
    ap = argparse.ArgumentParser()
    ap.add_argument("-o", default="k.s")
    ap.add_argument("--timing", action="store_true")
    args = ap.parse_args()
    g = Gen(timing=args.timing)
    open(args.o, "w").write(g.build())
    if args.timing:
        open(args.o + ".names", "w").write(",".join(g.names))
```
